```python
import torch

def _softmax(x, axis=-1):
    return torch.softmax(x, dim=axis)

def _gelu(x):
    return torch.nn.functional.gelu(x, approximate='tanh')

def _silu(x):
    return torch.nn.functional.silu(x)

def _sigmoid(x):
    return torch.sigmoid(x)

def _layernorm(x, axis=-1, eps=1e-05):
    m = x.mean(dim=axis, keepdim=True)
    v = x.var(dim=axis, keepdim=True, unbiased=False)
    return (x - m) / torch.sqrt(v + eps)

def _scatter_add(tgt, idx, src, axis=0):
    return tgt.clone().index_add_(axis, idx, src)

def _segment_sum(src, seg, n):
    out = torch.zeros((n,) + src.shape[1:], dtype=src.dtype)
    return out.index_add_(0, seg, src)

def _pad(x, pw):
    flat = tuple((v for pair in reversed(pw) for v in pair))
    return torch.nn.functional.pad(x, flat)
kernel_name = 'adaLN_cond__gqa_block_cached__glu_gated_swiglu__decode'

def setup_inputs():

    _w = lambda a: (lambda t: t.to(torch.bfloat16) if t.is_floating_point() else t)(torch.as_tensor(a))

    def _A_setup():
        B, Sq, D = (4, 1, 1024)
        Hq, Hkv, Sk, Dh = (32, 4, 16384, 128)
        assert Hq % Hkv == 0, (Hq, Hkv)
        return {'x': _w((lambda *s: torch.randn(*s, dtype=torch.bfloat16) * 0.1)(B, Sq, D)), 'k_cache': _w((lambda *s: torch.randn(*s, dtype=torch.bfloat16) * 0.8)(B, Hkv, Sk, Dh)), 'v_cache': _w((lambda *s: torch.randn(*s, dtype=torch.bfloat16) * 3.2)(B, Hkv, Sk, Dh)), 'wq': _w((lambda *s: torch.randn(*s, dtype=torch.bfloat16) * 0.8)(D, Hq * Dh) * D ** (-0.5)), 'wo': _w((lambda *s: torch.randn(*s, dtype=torch.bfloat16) * 3.2)(Hq * Dh, D) * (Hq * Dh) ** (-0.5))}
    _A_in = _A_setup()

    def _B_setup():
        B, S, D, F = (4, 1, 1024, 3584)
        return {'x': _w((lambda *s: torch.randn(*s, dtype=torch.bfloat16) * 0.1)(B, S, D)), 'w1': _w((lambda *s: torch.randn(*s, dtype=torch.bfloat16) * 3.2)(D, F) * (2.0 / D) ** 0.5), 'w3': _w((lambda *s: torch.randn(*s, dtype=torch.bfloat16) * 3.2)(D, F) * (2.0 / D) ** 0.5), 'w2': _w((lambda *s: torch.randn(*s, dtype=torch.bfloat16) * 3.2)(F, D) * (2.0 / F) ** 0.5)}
    _B_in = _B_setup()
    return {'A_x': _A_in['x'], 'A_k_cache': _A_in['k_cache'], 'A_v_cache': _A_in['v_cache'], 'A_wq': _A_in['wq'], 'A_wo': _A_in['wo'], 'B_x': _B_in['x'], 'B_w1': _B_in['w1'], 'B_w3': _B_in['w3'], 'B_w2': _B_in['w2'], 'c': _w((lambda *s: torch.randn(*s, dtype=torch.bfloat16) * 0.2)(4, 1024) * 8.0), 'w_mod': _w((lambda *s: torch.randn(*s, dtype=torch.bfloat16) * 0.2)(1024, 6 * 1024) * 1024 ** (-0.5) * 8.0)}

def reference(A_x, A_k_cache, A_v_cache, A_wq, A_wo, B_x, B_w1, B_w3, B_w2, c, w_mod):

    def _A_ref(x, k_cache, v_cache, wq, wo):
        B, Sq, D = x.shape
        Hq, Dh = (32, 128)
        Hkv = k_cache.shape[1]
        rep = Hq // Hkv
        q = (lambda x, *d: x.permute(*d))((x @ wq).reshape(B, Sq, Hq, Dh), 0, 2, 1, 3)
        k = (lambda x, n, axis: torch.repeat_interleave(x, n, dim=axis))(k_cache, rep, axis=1)
        v = (lambda x, n, axis: torch.repeat_interleave(x, n, dim=axis))(v_cache, rep, axis=1)
        scores = torch.einsum('bhqd,bhkd->bhqk', q, k) * Dh ** (-0.5)
        p = _softmax(scores, axis=-1)
        o = torch.einsum('bhqk,bhkd->bhqd', p, v)
        return (lambda x, *d: x.permute(*d))(o, 0, 2, 1, 3).reshape(B, Sq, Hq * Dh) @ wo

    def _B_ref(x, w1, w3, w2):
        gate = torch.einsum('bsd,df->bsf', x, w1)
        up = torch.einsum('bsd,df->bsf', x, w3)
        h = _silu(gate) * up
        out = torch.einsum('bsf,fd->bsd', h, w2)
        return out
    x = A_x
    mod = (_silu(c) @ w_mod).reshape(c.shape[0], 6, 1, -1)
    sa, ca, ga, sb, cb, gb = (mod[:, 0].clone(), mod[:, 1].clone(), mod[:, 2].clone(), mod[:, 3].clone(), mod[:, 4].clone(), mod[:, 5].clone())
    h = _layernorm(x, axis=-1) * (1 + ca) + sa
    x = x + ga * _A_ref(h, A_k_cache, A_v_cache, A_wq, A_wo)
    h = _layernorm(x, axis=-1) * (1 + cb) + sb
    x = x + gb * _B_ref(h, B_w1, B_w3, B_w2)
    return x
```

```python
import re

TRANS = ('v_exp_f32','v_log_f32','v_rcp_f32','v_rsq_f32','v_sqrt_f32','v_sin_f32','v_cos_f32','v_rcp_iflag_f32')
REG_RE = re.compile(r'^(-|abs\()?\|?([vas])(\d+|\[(\d+):(\d+)\])\|?\)?$')

def regs_of(op):
    op = op.strip()
    if op in ('vcc',): return {('s','vcc_lo'),('s','vcc_hi')}
    if op in ('vcc_lo','vcc_hi'): return {('s',op)}
    if op == 'exec': return {('s','exec_lo'),('s','exec_hi')}
    if op in ('exec_lo','exec_hi'): return {('s',op)}
    if op == 'm0': return {('s','m0')}
    m = REG_RE.match(op)
    if not m: return set()
    k = m.group(2)
    if m.group(4) is not None:
        return {(k,i) for i in range(int(m.group(4)), int(m.group(5))+1)}
    return {(k,int(m.group(3)))}

def split_ops(s):
    out=[]; d=0; cur=''
    for ch in s:
        if ch in '[(': d+=1
        if ch in '])': d-=1
        if ch==',' and d==0: out.append(cur.strip()); cur=''
        else: cur+=ch
    if cur.strip(): out.append(cur.strip())
    return out

class Ins:
    def __init__(self, text):
        self.text = text
        t = text.split(';')[0].strip()
        self.is_label = t.endswith(':')
        self.is_dir = t.startswith('.') and not self.is_label
        self.empty = (t == '')
        self.op = ''; self.defs=set(); self.uses=set(); self.kind='none'
        self.srcC=set(); self.srcAB=set(); self.dpp=False; self.const_sgpr=set(); self.storedata=set()
        if self.is_label or self.is_dir or self.empty: return
        p = t.split(None,1)
        self.op = p[0]
        rest = p[1] if len(p)>1 else ''
        ops = split_ops(rest)
        mods = ''
        if ops:
            lp = ops[-1].split()
            ops[-1] = lp[0]; mods = ' '.join(lp[1:])
        self.mods = mods; self.ops = ops
        op = self.op
        R = [regs_of(o) for o in ops]
        U = lambda idx: set().union(*[R[i] for i in idx if i < len(R)]) if idx else set()
        allr = range(len(R))
        if op.startswith('v_mfma'):
            self.kind='mfma'; self.defs=R[0]; self.srcAB=R[1]|R[2]; self.srcC=R[3]; self.uses=self.srcAB|self.srcC
            self.passes = 8 if '32x32' in op else 4
            self.dtuple = ops[0]; self.ctuple = ops[3]
        elif op.startswith('v_'):
            self.kind='valu'
            self.trans = op.replace('_e32','').replace('_e64','') in TRANS
            self.dpp = ('_dpp' in op) or any(x in mods for x in ('quad_perm','row_'))
            if op.startswith('v_cmp'):
                self.defs=R[0]; self.uses=U(allr[1:])
                if op.startswith('v_cmpx'): raise Exception('no cmpx')
            elif op.startswith('v_permlane') and 'swap' in op:
                self.defs=R[0]|R[1]; self.uses=R[0]|R[1]; self.kind='valu'; self.permlane=True
            elif op.startswith(('v_add_co','v_sub_co','v_subrev_co','v_addc_co','v_subb_co','v_div_scale','v_mad_u64_u32')):
                self.defs=R[0]|R[1]; self.uses=U(allr[2:])
            elif op.startswith(('v_readfirstlane','v_readlane')):
                self.defs=R[0]; self.uses=U(allr[1:]); self.readlane=True
            elif op.startswith(('v_fmac','v_dot2c','v_writelane')):
                self.defs=R[0]; self.uses=U(allr)
            elif op == 'v_nop':
                pass
            else:
                self.defs=R[0]; self.uses=U(allr[1:])
                if self.dpp and ('bound_ctrl' not in mods or True): self.uses |= R[0]
                if op.startswith('v_cndmask') and len(ops)==3: self.uses |= regs_of('vcc')
            self.const_sgpr = {r for r in self.uses if r[0]=='s'}
        elif op.startswith('ds_'):
            self.kind='ds'
            if op.startswith(('ds_read','ds_bpermute','ds_permute','ds_swizzle')) or '_rtn' in op:
                self.defs=R[0]; self.uses=U(allr[1:])
            else: self.uses=U(allr)
        elif op.startswith(('global_','buffer_','flat_')):
            self.kind='vmem'
            lds = (' lds' in (' '+mods)) or ('_lds_' in op)
            self.lds = lds
            if op.startswith(('buffer_wbl2','buffer_inv')): pass
            elif 'load' in op and not lds:
                self.defs=R[0]; self.uses=U(allr[1:])
            elif 'atomic' in op and 'sc0' in mods.split():
                if op.startswith('global'): self.defs=R[0]; self.uses=U(allr[1:])
                else: self.defs=R[0]; self.uses=U(allr)
            else:
                self.uses=U(allr)
                if 'store' in op and ('x3' in op or 'x4' in op):
                    self.storedata = R[1] if op.startswith('global') else R[0]
            if lds: self.uses |= {('s','m0')}
        elif op.startswith('s_'):
            self.kind='salu'
            if op in ('s_nop',): self.kind='nop'; self.n=int(ops[0],0)+1
            elif op.startswith(('s_branch','s_cbranch','s_setpc','s_swappc','s_call','s_endpgm')): self.kind='branch'
            elif op.startswith(('s_waitcnt','s_barrier','s_sleep','s_setprio')): pass
            elif op.startswith(('s_cmp','s_bitcmp')): self.uses=U(allr)
            elif 'saveexec' in op: self.defs=R[0]|regs_of('exec'); self.uses=U(allr[1:])|regs_of('exec')
            else:
                self.defs=R[0] if R else set(); self.uses=U(allr[1:])
        else:
            raise Exception('unknown op '+op)

def need(prod, cons):
    n = 0
    pv = {r for r in prod.defs if r[0] in 'va'}
    ps = {r for r in prod.defs if r[0]=='s'}
    if prod.kind=='valu':
        if cons.kind=='mfma' and pv & cons.uses: n=max(n,2)
        if cons.kind=='valu':
            if cons.dpp and pv & cons.uses: n=max(n,2)
            if getattr(cons,'permlane',False) and pv & cons.uses: n=max(n,2)
            if getattr(cons,'readlane',False) and pv & cons.uses: n=max(n,1)
            if prod.trans and pv & cons.uses: n=max(n,1)
            if ps & cons.const_sgpr:
                n=max(n, 4 if (getattr(cons,'readlane',False) or cons.op.startswith('v_writelane')) else 2)
        if prod.op.startswith('v_dot') and cons.kind in ('valu','vmem','ds','mfma') and (pv & (cons.uses|cons.defs)):
            same = cons.op==prod.op and not (pv & (regs_of(cons.ops[1])|regs_of(cons.ops[2])))
            if not same: n=max(n,3)
        if cons.kind=='vmem' and ps & cons.uses: n=max(n,5)
        if cons.kind in ('salu','branch') and (ps & cons.uses): n=max(n,1)
    if prod.kind=='mfma':
        P = prod.passes
        if cons.kind=='mfma':
            if pv & cons.srcAB: n=max(n, 8 if P==4 else 12)
            if pv & cons.srcC:
                if cons.ctuple==prod.dtuple and cons.passes==P: pass
                else: n=max(n, 6 if P==4 else 10)
            elif pv & cons.defs:
                n=max(n, 6 if P==4 else 10)
        elif cons.kind in ('valu','vmem','ds'):
            if pv & (cons.uses|cons.defs): n=max(n, 8 if P==4 else 12)
            if cons.kind=='valu' and (prod.srcC & cons.defs): n=max(n, 3 if P==4 else 7)
    if prod.kind=='salu' and ('s','m0') in prod.defs:
        if cons.kind=='vmem' and getattr(cons,'lds',False): n=max(n,1)
    if prod.kind=='vmem' and prod.storedata:
        if cons.kind in ('valu','mfma') and prod.storedata & cons.defs: n=max(n,2)
        elif prod.storedata & cons.defs: n=max(n,1)
    return n

def worst(prod):
    if prod.kind=='mfma': return 8 if prod.passes==4 else 12
    if prod.kind=='valu':
        sd={r for r in prod.defs if r[0]=='s'}
        if sd and sd <= {('s','vcc_lo'),('s','vcc_hi')}: return 2
        if sd: return 5
        if prod.op.startswith('v_dot'): return 3
        return 2 if prod.defs else 0
    if prod.kind=='salu' and ('s','m0') in prod.defs: return 1
    if prod.kind=='vmem' and prod.storedata: return 2
    return 0

def fix_hazards(lines):
    out=[]; hist=[]
    nops=0
    def pad(k):
        nonlocal nops
        while k>0:
            c=min(k,16); out.append('    s_nop %d'%(c-1)); nops+=1
            for h in hist: h[1]+=c
            k-=c
    for ln in lines:
        i = Ins(ln)
        if i.empty or i.is_dir: out.append(ln); continue
        if i.is_label or i.kind=='branch':
            k = max([worst(h[0])-h[1]-(1 if i.kind=='branch' else 0) for h in hist]+[0])
            if i.kind=='branch':
                k = max([k]+[need(h[0],i)-h[1] for h in hist])
            if i.op=='s_endpgm': k=0
            pad(k); out.append(ln)
            hist=[]
            continue
        k = max([need(h[0],i)-h[1] for h in hist]+[0])
        pad(k)
        out.append(ln)
        adv = i.n if i.kind=='nop' else 1
        for h in hist: h[1]+=adv
        hist=[h for h in hist if h[1] < worst(h[0])]
        if worst(i)>0: hist.append([i,0])
    return out

class A:
    def __init__(self): self.l=[]; self.uid=0
    def __call__(self, s):
        for ln in s.strip('\n').split('\n'):
            t=ln.strip()
            if not t: continue
            self.l.append(t if t.split(';')[0].strip().endswith(':') or t.startswith('.') else '    '+t)
    def c(self, s): self.l.append('    ; '+s)
    def label(self, p='L'):
        self.uid+=1; return '%s_%d'%(p,self.uid)
    def text(self): return '\n'.join(fix_hazards(self.l))+'\n'

def v(i,n=1): return 'v%d'%i if n==1 else 'v[%d:%d]'%(i,i+n-1)
def s(i,n=1): return 's%d'%i if n==1 else 's[%d:%d]'%(i,i+n-1)
def a(i,n=1): return 'a%d'%i if n==1 else 'a[%d:%d]'%(i,i+n-1)

def kd(name, vgpr=256, sgpr=102, accum=None):
    if accum is None: accum=(min(vgpr,256)+3)//4*4
    return f'''.section .rodata,"a"
.p2align 6
.amdhsa_kernel {name}
  .amdhsa_next_free_vgpr {vgpr}
  .amdhsa_next_free_sgpr {sgpr}
  .amdhsa_accum_offset {accum}
  .amdhsa_group_segment_fixed_size 0
  .amdhsa_kernarg_size 112
  .amdhsa_user_sgpr_count 2
  .amdhsa_user_sgpr_kernarg_segment_ptr 1
  .amdhsa_system_sgpr_workgroup_id_x 1
  .amdhsa_float_denorm_mode_32 3
.end_amdhsa_kernel
'''
def khead(name):
    return f'''.text
.globl {name}
.p2align 8
.type {name},@function
{name}:
'''
```

```python
import sys
from asmgen import *
KN='adaLN_cond__gqa_block_cached__glu_gated_swiglu__decode_kernel'

WS_O   = 0x000000
WS_Y   = 0x080000
WS_Z   = 0x100000
WS_MN  = 0x140000
WS_Q   = 0x148000
WS_ML  = 0x150000
WS_X1  = 0x154000
WS_HH  = 0x158000
WS_FLAT= 0x160000
WS_MU  = 0x160000
WS_END = 0x164000
WS_STAMP = 0x200000
RING = 0x8000
L_ASRC = 0x20000; ASTR = 2112
L_RED  = 0x22100
L_QOP  = 0x24100; QSTR = 272
L_ML   = 0x24A00
L_FLAG = 0x24B00
LDS_BYTES = 0x24C00
OSTR = 528
F_LAND = 0
F_CONS = 32
F_Q = 64; F_ML = 68; F_O = 72; F_AUX = 76
P_X,P_K,P_V,P_WQ,P_WO,P_BX,P_W1,P_W3,P_W2,P_C,P_WM,P_OUT,P_DBG,P_WS = [4+2*i for i in range(14)]
LOG2E = 0x3fb8aa3b
SCALE = 0x3db504f3

class Cfg:
    D=2
    pol='nt'
    stamps=False
    round_s=True
    round_ln=True
    sleep_head=8
    sleep_tail=1
    gpoll=8192
    lpoll=1<<17

def lds_spin(e, cfg, flag, target, vaddr, vtmp, stmp=40):
    l=e.label('Lsp'); d=e.label('Lspd')
    e(f'''
    s_mov_b32 s{stmp+1}, 0
    {l}:
    ds_read_b32 v{vtmp}, v{vaddr} offset:{flag}
    s_add_u32 s{stmp+1}, s{stmp+1}, 1
    s_waitcnt lgkmcnt(0)
    v_readfirstlane_b32 s{stmp}, v{vtmp}
    s_cmp_ge_u32 s{stmp}, {target}
    s_cbranch_scc1 {d}
    s_cmp_lt_u32 s{stmp+1}, {cfg.lpoll}
    s_cbranch_scc1 {l}
    {d}:
    ''')

def lds_signal(e, flag, vaddr, vone):
    e(f'''
    s_mov_b64 exec, 1
    ds_add_u32 v{vaddr}, v{vone} offset:{flag}
    s_mov_b64 exec, -1
    ''')

def stamp(e, cfg, i):
    if cfg.stamps: e(f's_memrealtime s[{64+2*i}:{65+2*i}]')

def stamps_out(e, cfg, n, vt):
    if not cfg.stamps: return
    e(f'''
    s_waitcnt lgkmcnt(0)
    s_lshl_b32 s40, s2, 3
    s_add_u32 s40, s40, s3
    s_lshl_b32 s40, s40, 7
    s_add_u32 s40, s40, {WS_STAMP}
    v_mov_b32 v{vt}, s40
    s_mov_b64 exec, 1
    ''')
    for i in range(n):
        e(f'v_mov_b32 v{vt+2}, s{64+2*i}\nv_mov_b32 v{vt+3}, s{65+2*i}\nglobal_store_dwordx2 v{vt}, v[{vt+2}:{vt+3}], s[{P_WS}:{P_WS+1}] offset:{8*i}')
    e('s_mov_b64 exec, -1')

def srd(e, d, p, size):
    e(f's_mov_b32 s{d}, s{p}\ns_mov_b32 s{d+1}, s{p+1}\ns_mov_b32 s{d+2}, {size}\ns_mov_b32 s{d+3}, 0x20000')

def roles(e):
    e('''
    s_and_b32 s37, s2, 15
    s_lshr_b32 s38, s2, 4
    s_and_b32 s40, s2, 7
    s_lshr_b32 s41, s2, 3
    s_mul_i32 s36, s40, 28
    s_add_u32 s36, s36, s41
    s_and_b32 s41, s41, 1
    s_cmp_ge_u32 s38, 4
    s_cselect_b32 s33, 1, 0
    s_cmp_ge_u32 s38, 12
    s_cselect_b32 s33, 2, s33
    s_cmp_eq_u32 s33, 1
    s_mov_b32 s35, 12288
    s_cselect_b32 s35, 8192, s35
    s_cselect_b32 s42, 8, 24
    s_cmp_eq_u32 s33, 0
    s_cselect_b32 s42, 0, s42
    s_cselect_b32 s43, 3, 4
    s_lshl_b32 s40, s40, s43
    s_lshl_b32 s43, s38, 1
    s_add_u32 s40, s40, s43
    s_add_u32 s40, s40, s41
    s_sub_u32 s39, s40, s42
    s_lshl_b32 s34, s39, 6
    s_cmp_eq_u32 s33, 2
    s_cselect_b32 s40, 4096, 0
    s_add_u32 s34, s34, s40
    ''')

UNITS = [('J',i) for i in range(4)]+[('WO',i) for i in range(2)]+[('W13',i) for i in range(4)]+[('W2',i) for i in range(2)]+\
        [('J2',i) for i in range(4)]+[('K',i) for i in range(16)]+[('V',i) for i in range(16)]
GROUPS = ['J','WO','W13','W2','J2']
def upos(kind,i): return UNITS.index((kind,i))
def slot(kind,i): return (upos(kind,i)%8)*4096

def stream(e, cfg):
    D=cfg.D; pol=cfg.pol
    vL=1; vK=2; vV=6; vJ=8; vW=9; v13=11; v2=12; vFl=13; vOne=14; vT=15
    vKR=16; vVR=20; vX=28
    Q=48; S=64; ST=128; P=128; O=160; VF=192
    SK,SV,SJ,SJ2,SWO,SW1,SW3,SW2 = 44,48,52,56,60,84,88,92
    e.c('================= stream waves =================')
    e('L_stream:')
    stamp(e,cfg,0)
    e(f'''
    v_lshrrev_b32 v{vX}, 4, v{vL}
    v_and_b32 v{vX+1}, 15, v{vL}
    v_lshrrev_b32 v{vX+2}, 2, v{vL}
    v_mul_lo_u32 v{vJ}, v{vX+2}, s35
    v_lshrrev_b32 v{vX+3}, 5, v{vL}
    v_lshlrev_b32 v{vX+4}, 1, v{vX+3}
    v_and_b32 v{vX+5}, 3, v{vL}
    v_xor_b32 v{vX+4}, v{vX+4}, v{vX+5}
    v_lshl_add_u32 v{vJ}, v{vX+4}, 4, v{vJ}
    s_lshl_b32 s32, s3, 15
    s_waitcnt lgkmcnt(0)
    s_cmp_eq_u32 s33, 1
    s_cselect_b32 s{SJ}, s{P_WQ}, s{P_WM}
    s_cselect_b32 s{SJ+1}, s{P_WQ+1}, s{P_WM+1}
    s_mov_b32 s{SJ+2}, {1024*6144*2}
    s_cselect_b32 s{SJ+2}, {1024*4096*2}, s{SJ+2}
    s_mov_b32 s{SJ+3}, 0x20000
    s_lshl_b32 s96, s3, 8
    s_mul_i32 s96, s96, s35
    s_add_u32 s96, s96, s34
    s_lshl_b32 s97, s35, 4
    s_sub_u32 s97, s97, 1024
    s_lshl_b32 s98, s35, 6
    ''')
    st = dict(issued=0, landed=-1, signaled=set())
    def dma(voff, srdreg, soff, i):
        e(f'buffer_load_dwordx4 v{voff}, s[{srdreg}:{srdreg+3}], {soff} offen offset:{i*1024} {pol} lds')
    def emit_unit(n):
        kind,i = UNITS[n]
        e(f's_add_u32 m0, s32, {(n%8)*4096}')
        if kind in ('J','J2'):
            sr = SJ if kind=='J' else SJ2
            if (kind,i)==('J2',0): e('s_add_u32 s96, s99, 512')
            if (kind,i)==('J',0): e('s_mov_b32 s99, s96')
            e('s_mov_b32 s41, s96')
            for k in range(4):
                dma(vJ, sr, 's41', k)
                if k<3: e('s_add_u32 s41, s41, s97')
            e('s_add_u32 s96, s96, s98')
        elif kind=='WO':
            for k in range(4):
                e(f's_add_u32 s41, s100, {(8*k+4*i)*2048-1024*k}')
                dma(vW+(k&1), SWO, 's41', k)
        elif kind=='W13':
            for k in range(4):
                I=4*i+k; t=I>>1; mat=I&1
                e(f's_add_u32 s41, s101, {32*t*7168}')
                if k: e(f's_add_u32 m0, s32, {(n%8)*4096+1024*k}')
                dma(v13, SW3 if mat else SW1, 's41', 0)
        elif kind=='W2':
            for k in range(4):
                I=4*i+k
                row = 32*(I>>2)+16*(I&1)+4*((I>>1)&1)
                e(f's_add_u32 s41, s77, {row*2048-1024*k}')
                dma(v2, SW2, 's41', k)
        elif kind in ('K','V'):
            e(f's_add_u32 s41, s76, {i*16384}')
            for k in range(4):
                dma((vK+k) if kind=='K' else (vV+(k&1)), SK if kind=='K' else SV, 's41', k)
    def note_landed(n):
        st['landed']=max(st['landed'],n)
        for gi,g in enumerate(GROUPS):
            last=max(k for k,u in enumerate(UNITS) if u[0]==g)
            if last<=st['landed'] and g not in st['signaled']:
                st['signaled'].add(g); lds_signal(e, F_LAND+4*gi, vFl, vOne)
    consumed=set()
    def issue(n):
        assert n==st['issued']
        if n>=D and st['landed']<n-D:
            e(f's_waitcnt vmcnt({4*(D-1)})'); note_landed(n-D)
        if n>=8:
            g=UNITS[n-8][0]
            if g in GROUPS and g not in consumed:
                last=max(k for k,u in enumerate(UNITS) if u[0]==g)
                if g not in st['signaled']:
                    wait_landed(last)
                consumed.add(g); lds_spin(e,cfg,F_CONS+4*GROUPS.index(g),4,vFl,vT)
        emit_unit(n); st['issued']=n+1
    def wait_landed(n):
        if st['landed']>=n: return
        e(f's_waitcnt vmcnt({4*(st["issued"]-1-n)})'); note_landed(n)
    for n in range(D): issue(n)
    srd(e,SK,P_K,0x4000000); srd(e,SV,P_V,0x4000000); srd(e,SWO,P_WO,4096*1024*2)
    e(f'''
    s_cmp_eq_u32 s33, 2
    s_cselect_b32 s{SJ2+2}, {1024*6144*2}, 0
    s_mov_b32 s{SJ2}, s{P_WM}
    s_mov_b32 s{SJ2+1}, s{P_WM+1}
    s_mov_b32 s{SJ2+3}, 0x20000
    s_cmp_lt_u32 s2, 224
    s_cselect_b32 s{SW1+2}, {1024*3584*2}, 0
    s_cselect_b32 s{SW3+2}, {1024*3584*2}, 0
    s_cselect_b32 s{SW2+2}, {1024*3584*2}, 0
    s_mov_b32 s{SW1}, s{P_W1}
    s_mov_b32 s{SW1+1}, s{P_W1+1}
    s_mov_b32 s{SW1+3}, 0x20000
    s_mov_b32 s{SW3}, s{P_W3}
    s_mov_b32 s{SW3+1}, s{P_W3+1}
    s_mov_b32 s{SW3+3}, 0x20000
    s_mov_b32 s{SW2}, s{P_W2}
    s_mov_b32 s{SW2+1}, s{P_W2+1}
    s_mov_b32 s{SW2+3}, 0x20000
    ''')
    e(f'''
    s_lshl_b32 s76, s37, 22
    s_lshl_b32 s40, s38, 18
    s_add_u32 s76, s76, s40
    s_lshl_b32 s40, s3, 12
    s_add_u32 s76, s76, s40
    s_and_b32 s40, s2, 31
    s_lshl_b32 s100, s40, 18
    s_lshl_b32 s40, s3, 16
    s_add_u32 s100, s100, s40
    s_lshr_b32 s40, s2, 5
    s_lshl_b32 s40, s40, 8
    s_add_u32 s100, s100, s40
    s_mul_i32 s101, s3, {256*7168}
    s_lshl_b32 s40, s36, 5
    s_add_u32 s101, s101, s40
    s_lshr_b32 s40, s36, 4
    s_lshl_b32 s77, s40, 19
    s_lshl_b32 s40, s3, 17
    s_add_u32 s77, s77, s40
    s_and_b32 s40, s36, 15
    s_lshl_b32 s40, s40, 7
    s_add_u32 s77, s77, s40
    v_xor_b32 v{vX+6}, v{vX+1}, v{vX}
    v_lshlrev_b32 v{vX+7}, 8, v{vX}
    v_lshl_add_u32 v{vK}, v{vX+6}, 4, v{vX+7}
    v_xor_b32 v{vK+1}, 64, v{vK}
    v_xor_b32 v{vK+2}, 128, v{vK}
    v_xor_b32 v{vK+3}, 192, v{vK}
    v_lshlrev_b32 v{vX+6}, 1, v{vX}
    v_xor_b32 v{vX+6}, v{vX+6}, v{vX+1}
    v_lshl_add_u32 v{vV}, v{vX+6}, 4, v{vX+7}
    v_xor_b32 v{vV+1}, 128, v{vV}
    v_lshlrev_b32 v{vX+7}, 11, v{vX}
    v_lshl_add_u32 v{vW}, v{vX+6}, 4, v{vX+7}
    v_xor_b32 v{vW+1}, 128, v{vW}
    ; w13: sigma = 8*((l>>3)&3) + 4*(l>>5) + ((l>>1)&3)
    v_bfe_u32 v{vX+6}, v{vL}, 3, 2
    v_lshlrev_b32 v{vX+6}, 3, v{vX+6}
    v_lshl_add_u32 v{vX+6}, v{vX+3}, 2, v{vX+6}
    v_bfe_u32 v{vX+7}, v{vL}, 1, 2
    v_add_u32 v{vX+6}, v{vX+6}, v{vX+7}
    v_mul_u32_u24 v{vX+6}, 7168, v{vX+6}
    v_and_b32 v{vX+7}, 1, v{vL}
    v_lshl_add_u32 v{v13}, v{vX+7}, 4, v{vX+6}
    v_bfe_u32 v{vX+6}, v{vL}, 3, 2
    v_lshl_add_u32 v{vX+6}, v{vX+3}, 3, v{vX+6}
    v_lshlrev_b32 v{vX+6}, 11, v{vX+6}
    v_lshlrev_b32 v{vX+7}, 1, v{vX}
    v_and_b32 v{vX+8}, 7, v{vL}
    v_xor_b32 v{vX+7}, v{vX+7}, v{vX+8}
    v_lshl_add_u32 v{v2}, v{vX+7}, 4, v{vX+6}
    v_xor_b32 v{vX+6}, v{vX}, v{vX+1}
    v_lshlrev_b32 v{vX+7}, 8, v{vX+1}
    v_lshl_add_u32 v{vKR}, v{vX+6}, 4, v{vX+7}
    v_add_u32 v{vKR}, s32, v{vKR}
    v_xor_b32 v{vKR+1}, 64, v{vKR}
    v_xor_b32 v{vKR+2}, 128, v{vKR}
    v_xor_b32 v{vKR+3}, 192, v{vKR}
    v_lshlrev_b32 v{vX+6}, 8, v{vX+2}
    v_and_b32 v{vX+7}, 7, v{vX+2}
    v_lshl_add_u32 v{vX+6}, v{vX+7}, 5, v{vX+6}
    v_lshl_add_u32 v{vX+6}, v{vX+5}, 3, v{vX+6}
    v_add_u32 v{vVR}, s32, v{vX+6}
    ''')
    for ct in range(1,8): e(f'v_xor_b32 v{vVR+ct}, {ct<<5}, v{vVR}')
    e(f'''
    v_mov_b32 v{vFl}, {L_FLAG}
    v_mov_b32 v{vOne}, 1
    s_barrier
    ''')
    K0=upos('K',0); V0=upos('V',0)
    for n in range(D, K0+8): issue(n)
    def stage(u):
        wait_landed(K0+u)
        for k in range(4):
            r=ST+(u%8)*16+4*k
            e(f'ds_read_b128 v[{r}:{r+3}], v{vKR+k} offset:{slot("K",u)}')
    def qk(u):
        for k in range(4):
            r=ST+(u%8)*16+4*k
            e(f'v_mfma_f32_16x16x32_bf16 v[{S+4*u}:{S+4*u+3}], v[{r}:{r+3}], v[{Q+4*k}:{Q+4*k+3}], '+('0' if k==0 else f'v[{S+4*u}:{S+4*u+3}]'))
    vM=vX; vLs=vX+1; t0=vX+2
    def rnd(u):
        for h in range(2):
            a0=S+4*u+2*h; a1=a0+1; t=t0+h
            if cfg.round_s:
                e(f'''v_cvt_pk_bf16_f32 v{t}, v{a0}, v{a1}
                v_lshlrev_b32 v{a0}, 16, v{t}
                v_and_b32 v{a1}, 0xffff0000, v{t}''')
            e(f'v_mul_f32 v{a0}, s42, v{a0}\nv_mul_f32 v{a1}, s42, v{a1}')
            if cfg.round_s:
                e(f'''v_cvt_pk_bf16_f32 v{t}, v{a0}, v{a1}
                v_lshlrev_b32 v{a0}, 16, v{t}
                v_and_b32 v{a1}, 0xffff0000, v{t}''')
            if u==0 and h==0: e(f'v_max_f32 v{vM}, v{a0}, v{a1}')
            else: e(f'v_max3_f32 v{vM}, v{vM}, v{a0}, v{a1}')
    for u in range(8):
        stage(u); e('s_waitcnt lgkmcnt(0)'); issue(K0+8+u)
    stamp(e,cfg,1)
    lds_spin(e,cfg,F_Q,1,vFl,vT)
    stamp(e,cfg,2)
    e(f'''
    v_and_b32 v{vX+6}, 7, v{vL}
    v_mul_u32_u24 v{vX+6}, {QSTR}, v{vX+6}
    v_lshrrev_b32 v{vX+7}, 4, v{vL}
    v_lshl_add_u32 v{vX+6}, v{vX+7}, 4, v{vX+6}
    v_add_u32 v{vX+6}, {L_QOP}, v{vX+6}
    s_mov_b32 s42, {SCALE:#x}
    s_mov_b32 s43, {LOG2E:#x}
    ''')
    for k in range(4): e(f'ds_read_b128 v[{Q+4*k}:{Q+4*k+3}], v{vX+6} offset:{64*k}')
    e('s_waitcnt lgkmcnt(0)')
    for u in range(D):
        qk(u); stage(8+u); e('s_waitcnt lgkmcnt(0)'); issue(V0+u)
    for u in range(D,8):
        qk(u); stage(8+u)
    e('s_waitcnt lgkmcnt(0)')
    for u in range(8,16): qk(u)
    nxt=[V0+D]
    def more():
        if nxt[0]<V0+8: issue(nxt[0]); nxt[0]+=1
    more()
    for u in range(16):
        rnd(u)
        if u in (5,10,15): more()
    e(f'''
    v_mov_b32 v{t0}, v{vM}
    v_permlane32_swap_b32 v{t0}, v{vM}
    v_max_f32 v{vM}, v{vM}, v{t0}
    v_mov_b32 v{t0}, v{vM}
    v_permlane16_swap_b32 v{t0}, v{vM}
    v_max_f32 v{vM}, v{vM}, v{t0}
    v_mul_f32 v{vM}, s43, v{vM}
    ''')
    for u in range(16):
        for r in range(4): e(f'v_fma_f32 v{S+4*u+r}, v{S+4*u+r}, s43, -v{vM}')
        for r in range(4): e(f'v_exp_f32 v{S+4*u+r}, v{S+4*u+r}')
        if u==0: e(f'v_add_f32 v{vLs}, v{S}, v{S+1}')
        else: e(f'v_add_f32 v{vLs}, v{vLs}, v{S+4*u}\nv_add_f32 v{vLs}, v{vLs}, v{S+4*u+1}')
        e(f'''v_cvt_pk_bf16_f32 v{P+2*u}, v{S+4*u}, v{S+4*u+1}
        v_add_f32 v{vLs}, v{vLs}, v{S+4*u+2}
        v_add_f32 v{vLs}, v{vLs}, v{S+4*u+3}
        v_cvt_pk_bf16_f32 v{P+2*u+1}, v{S+4*u+2}, v{S+4*u+3}''')
        if u in (7,): more()
    e(f'''
    v_mov_b32 v{t0}, v{vLs}
    v_permlane32_swap_b32 v{t0}, v{vLs}
    v_add_f32 v{vLs}, v{vLs}, v{t0}
    v_mov_b32 v{t0}, v{vLs}
    v_permlane16_swap_b32 v{t0}, v{vLs}
    v_add_f32 v{vLs}, v{vLs}, v{t0}
    s_lshl_b32 s40, s3, 6
    s_add_u32 s40, s40, {L_ML}
    v_lshl_add_u32 v{t0}, v{vL}, 3, s40
    s_mov_b64 exec, 0xff
    ds_write_b64 v{t0}, v[{vM}:{vM+1}]
    s_waitcnt lgkmcnt(0)
    s_mov_b64 exec, -1
    ''')
    lds_signal(e,F_ML,vFl,vOne)
    while nxt[0]<V0+8: more()
    stamp(e,cfg,3)
    for j in range(8):
        wait_landed(V0+2*j+1)
        if j==7: stamp(e,cfg,4)
        for ct in range(8):
            for hf in range(2):
                r=VF+4*ct+2*hf
                e(f'ds_read_b64_tr_b16 v[{r}:{r+1}], v{vVR+ct} offset:{slot("V",2*j+hf)}')
        for ct in range(8):
            e(f's_waitcnt lgkmcnt({14-2*ct})')
            e(f'v_mfma_f32_16x16x32_bf16 v[{O+4*ct}:{O+4*ct+3}], v[{VF+4*ct}:{VF+4*ct+3}], v[{P+4*j}:{P+4*j+3}], '+('0' if j==0 else f'v[{O+4*ct}:{O+4*ct+3}]'))
        for k in range(2):
            if V0+2*j+8+k < len(UNITS): issue(V0+2*j+8+k)
        if j==6:
            e(f'''
            v_and_b32 v{t0}, 15, v{vL}
            v_mul_u32_u24 v{t0}, {OSTR}, v{t0}
            v_lshrrev_b32 v{t0+1}, 4, v{vL}
            v_lshl_add_u32 v{t0}, v{t0+1}, 4, v{t0}
            v_add_u32 v{t0}, s32, v{t0}
            s_mov_b32 s40, 0x00ff00ff
            s_mov_b32 s41, 0x00ff00ff
            ''')
    e('s_mov_b64 exec, s[40:41]')
    for ct in range(8): e(f'ds_write_b128 v{t0}, v[{O+4*ct}:{O+4*ct+3}] offset:{64*ct}')
    e('s_waitcnt lgkmcnt(0)\ns_mov_b64 exec, -1')
    lds_signal(e,F_O,vFl,vOne)
    stamp(e,cfg,5)
    stamps_out(e,cfg,6,vX+4)
    e('s_waitcnt lgkmcnt(0)\ns_endpgm')

SWS=44
def gather(e, cfg, loads, vchk, sleep, pre_exec=None, masked=True):
    l=e.label('Lg'); d=e.label('Lgd')
    e(f's_mov_b32 s41, 0')
    e(f'{l}:')
    regs=[]
    for ld in loads:
        dst,n,voff,soff,imm = ld[:5]
        op={1:'dword',2:'dwordx2',4:'dwordx4'}[n]
        ex = ld[5] if len(ld)>5 else None
        if ex: e(f's_mov_b64 s[42:43], exec\ns_and_b64 exec, exec, {ex}\ns_cbranch_execz {l}_s')
        e(f'buffer_load_{op} {v(dst,n)}, v{voff}, s[{SWS}:{SWS+3}], {soff} offen offset:{imm} sc1')
        if ex: e(f'{l}_s:\ns_mov_b64 exec, s[42:43]')
        regs+=list(range(dst,dst+n))
    e('s_waitcnt vmcnt(0)')
    if len(regs)==1: chk=regs[0]
    else:
        chk=vchk
        if len(regs)==2: e(f'v_max_u32 v{chk}, v{regs[0]}, v{regs[1]}'); rest=[]
        else: e(f'v_max3_u32 v{chk}, v{regs[0]}, v{regs[1]}, v{regs[2]}'); rest=regs[3:]
        while rest:
            if len(rest)==1: e(f'v_max_u32 v{chk}, v{chk}, v{rest[0]}'); rest=[]
            else: e(f'v_max3_u32 v{chk}, v{chk}, v{rest[0]}, v{rest[1]}'); rest=rest[2:]
    e(f'''
    v_cmp_eq_u32 vcc, -1, v{chk}
    s_add_u32 s41, s41, 1
    s_cbranch_vccz {d}
    ''')
    if masked: e('s_mov_b64 exec, vcc')
    if sleep: e(f's_sleep {sleep}')
    e(f'''
    s_cmp_lt_u32 s41, {cfg.gpoll}
    s_cbranch_scc1 {l}
    {d}:
    s_mov_b64 exec, -1
    ''')

def allreduce64(e, op, x, t):
    for r in (8,4,2,1):
        e(f'{op}_dpp v{x}, v{x}, v{x} row_ror:{r} row_mask:0xf bank_mask:0xf')
    for sw in ('v_permlane16_swap_b32','v_permlane32_swap_b32'):
        e(f'v_mov_b32 v{t}, v{x}\n{sw} v{t}, v{x}\n{op} v{x}, v{x}, v{t}')

def unpack(e, src, dst, n):
    for i in range(n):
        e(f'v_lshlrev_b32 v{dst+2*i}, 16, v{src+i}\nv_and_b32 v{dst+2*i+1}, 0xffff0000, v{src+i}')
def rnd_vec(e, x, n, t):
    for i in range(0,n,2):
        tt=t+((i//2)&1)
        e(f'v_cvt_pk_bf16_f32 v{tt}, v{x+i}, v{x+i+1}\nv_lshlrev_b32 v{x+i}, 16, v{tt}\nv_and_b32 v{x+i+1}, 0xffff0000, v{tt}')
def rnd1(e, x):
    e(f'v_cvt_pk_bf16_f32 v{x}, v{x}, v{x}\nv_lshlrev_b32 v{x}, 16, v{x}')

def layernorm(e, cfg, X, t):
    mu=t; var=t+1; a=t+2; b=t+3
    e(f'v_add_f32 v{mu}, v{X}, v{X+1}\nv_add_f32 v{a}, v{X+2}, v{X+3}')
    for i in range(4,16,2): e(f'v_add_f32 v{mu}, v{mu}, v{X+i}\nv_add_f32 v{a}, v{a}, v{X+i+1}')
    e(f'v_add_f32 v{mu}, v{mu}, v{a}')
    allreduce64(e,'v_add_f32',mu,a)
    e(f'v_mul_f32 v{mu}, 0x3a800000, v{mu}')
    e(f'v_sub_f32 v{a}, v{X}, v{mu}\nv_sub_f32 v{b}, v{X+1}, v{mu}\nv_mul_f32 v{var}, v{a}, v{a}\nv_mul_f32 v{t+4}, v{b}, v{b}')
    for i in range(2,16,2):
        e(f'v_sub_f32 v{a}, v{X+i}, v{mu}\nv_sub_f32 v{b}, v{X+i+1}, v{mu}\nv_fmac_f32 v{var}, v{a}, v{a}\nv_fmac_f32 v{t+4}, v{b}, v{b}')
    e(f'v_add_f32 v{var}, v{var}, v{t+4}')
    allreduce64(e,'v_add_f32',var,a)
    e(f'v_mul_f32 v{var}, 0x3a800000, v{var}')
    if cfg.round_ln:
        rnd1(e,mu); rnd1(e,var)
    e(f'v_add_f32 v{var}, 0x3727c5ac, v{var}')
    if cfg.round_ln: rnd1(e,var)
    e(f'v_sqrt_f32 v{var}, v{var}')
    if cfg.round_ln: rnd1(e,var)
    e(f'v_rcp_f32 v{var}, v{var}')
    for i in range(16): e(f'v_sub_f32 v{X+i}, v{X+i}, v{mu}')
    if cfg.round_ln: rnd_vec(e,X,16,a)
    for i in range(16): e(f'v_mul_f32 v{X+i}, v{X+i}, v{var}')
    if cfg.round_ln: rnd_vec(e,X,16,a)

def modulate(e, cfg, X, T1, SB, out, t):
    for i in range(16): e(f'v_mul_f32 v{X+i}, v{X+i}, v{T1+i}')
    if cfg.round_ln: rnd_vec(e,X,16,t)
    for i in range(16): e(f'v_add_f32 v{X+i}, v{X+i}, v{SB+i}')
    for i in range(8): e(f'v_cvt_pk_bf16_f32 v{out+i}, v{X+2*i}, v{X+2*i+1}')

def aux(e, cfg):
    vL=1; vFl=2; vOne=3; vT=4; vRow=5; vAs=6; vAr=7; vA=8
    W2=64; W13=96; WO=160; WJ=192
    sA=3
    e.c('================= aux waves =================')
    e('L_aux:')
    e(f'''
    s_setprio 2
    s_sub_u32 s3, s3, 4
    s_lshl_b32 s32, s3, 15
    v_lshlrev_b32 v{vRow}, 4, v{vL}
    v_mov_b32 v{vFl}, {L_FLAG}
    v_mov_b32 v{vOne}, 1
    v_mov_b32 v16, 0
    s_getpc_b64 s[48:49]
    L_pc:
    s_sub_u32 s48, s48, L_pc-{KN}
    s_subb_u32 s49, s49, 0
    s_lshl_b32 s40, s3, 13
    v_lshl_add_u32 v{vA}, v{vL}, 7, s40
    global_load_dword v63, v{vA}, s[48:49]
    v_lshl_add_u32 v{vA+1}, v{vL}, 2, v{vFl}
    ds_write_b32 v{vA+1}, v16
    s_waitcnt lgkmcnt(0)
    ''')
    stamp(e,cfg,0)
    srd(e,SWS,P_WS,WS_END)
    e(f'''
    s_lshl_b32 s40, s3, 11
    v_add_u32 v{vA}, s40, v{vRow}
    global_load_dwordx4 v[16:19], v{vA}, s[{P_C}:{P_C+1}]
    global_load_dwordx4 v[20:23], v{vA}, s[{P_C}:{P_C+1}] offset:1024
    global_load_dwordx4 v[24:27], v{vA}, s[{P_X}:{P_X+1}]
    global_load_dwordx4 v[28:31], v{vA}, s[{P_X}:{P_X+1}] offset:1024
    s_barrier
    s_mov_b32 s50, 0
    s_mul_i32 s40, s3, {ASTR}
    s_add_u32 s40, s40, {L_ASRC}
    v_add_u32 v{vAs}, s40, v{vRow}
    v_and_b32 v{vA+1}, 3, v{vL}
    v_mul_u32_u24 v{vAr}, {ASTR}, v{vA+1}
    v_lshrrev_b32 v{vA+2}, 4, v{vL}
    v_lshl_add_u32 v{vAr}, v{vA+2}, 4, v{vAr}
    s_lshl_b32 s40, s3, 9
    s_add_u32 s40, s40, {L_ASRC}
    v_add_u32 v{vAr}, s40, v{vAr}
    ''')
    lc=e.label('Lnoclr')
    e(f'''
    v_mov_b32 v32, -1
    v_mov_b32 v33, -1
    v_mov_b32 v34, -1
    v_mov_b32 v35, -1
    s_cmp_lg_u32 s3, 3
    s_cbranch_scc1 {lc}
    s_mul_i32 s40, s2, 5632
    buffer_store_dwordx4 v[32:35], v{vRow}, s[{SWS}:{SWS+3}], s40 offen sc1
    buffer_store_dwordx4 v[32:35], v{vRow}, s[{SWS}:{SWS+3}], s40 offen offset:1024 sc1
    buffer_store_dwordx4 v[32:35], v{vRow}, s[{SWS}:{SWS+3}], s40 offen offset:2048 sc1
    buffer_store_dwordx4 v[32:35], v{vRow}, s[{SWS}:{SWS+3}], s40 offen offset:3072 sc1
    s_add_u32 s40, s40, 4096
    buffer_store_dwordx4 v[32:35], v{vRow}, s[{SWS}:{SWS+3}], s40 offen sc1
    v_lshlrev_b32 v{vA+1}, 3, v{vL}
    buffer_store_dwordx2 v[32:33], v{vA+1}, s[{SWS}:{SWS+3}], s40 offen offset:1024 sc1
    s_cmp_lg_u32 s33, 0
    s_cbranch_scc1 {lc}
    v_lshrrev_b32 v{vA+1}, 4, v{vL}
    v_and_b32 v{vA+2}, 15, v{vL}
    v_lshlrev_b32 v{vA+1}, 12, v{vA+1}
    v_lshl_add_u32 v{vA+1}, v{vA+2}, 2, v{vA+1}
    s_lshl_b32 s40, s39, 6
    s_add_u32 s40, s40, {WS_MU}
    buffer_store_dword v32, v{vA+1}, s[{SWS}:{SWS+3}], s40 offen sc1
    {lc}:
    ''')
    def auxbar():
        e('s_add_u32 s50, s50, 4\ns_waitcnt lgkmcnt(0)')
        lds_signal(e,F_AUX,vFl,vOne)
        lds_spin(e,cfg,F_AUX,'s50',vFl,vT)
    def arrive():
        la=e.label('Lnoarr')
        e(f'''
        s_cmp_lg_u32 s3, 3
        s_cbranch_scc1 {la}
        s_waitcnt vmcnt(0)
        s_and_b32 s40, s2, 3
        s_lshl_b32 s40, s40, 6
        s_lshr_b32 s41, s2, 2
        s_add_u32 s40, s40, s41
        v_mov_b32 v{vA}, s40
        s_mov_b64 exec, 1
        global_store_byte v{vA}, v{vOne}, s[{P_DBG}:{P_DBG+1}] sc1
        s_mov_b64 exec, -1
        {la}:
        ''')
    def gbar():
        l=e.label('Lgb'); d=e.label('Lgbd')
        e(f'''
        v_lshlrev_b32 v{vA}, 2, v{vL}
        s_mov_b32 s41, 0
        s_mov_b32 s42, 0x01010101
        {l}:
        global_load_dword v{vA+1}, v{vA}, s[{P_DBG}:{P_DBG+1}] sc1
        s_add_u32 s41, s41, 1
        s_waitcnt vmcnt(0)
        v_cmp_ne_u32 vcc, s42, v{vA+1}
        s_cbranch_vccz {d}
        s_sleep {cfg.sleep_head}
        s_cmp_lt_u32 s41, {cfg.gpoll}
        s_cbranch_scc1 {l}
        {d}:
        ''')
    def trbase(kind):
        e(f'v_lshrrev_b32 v{vA+4}, 4, v{vL}\nv_bfe_u32 v{vA+5}, v{vL}, 2, 2\nv_and_b32 v{vA+6}, 3, v{vL}')
        g,r,c=vA+4,vA+5,vA+6; t=vA+7
        if kind in ('J','J2'):
            e(f'''v_lshl_add_u32 v{t}, v{g}, 3, v{r}
            v_lshlrev_b32 v{vA}, 6, v{t}
            v_lshl_add_u32 v{vA}, v{c}, 3, v{vA}
            v_and_b32 v{t}, 1, v{g}
            v_lshl_add_u32 v{vA}, v{t}, 5, v{vA}
            v_add_u32 v{vA}, s32, v{vA}
            v_xor_b32 v{vA+1}, 32, v{vA}''')
        elif kind=='WO':
            e(f'''v_lshrrev_b32 v{t}, 2, v{vL}
            v_lshlrev_b32 v{vA}, 8, v{t}
            v_and_b32 v{t}, 7, v{t}
            v_lshl_add_u32 v{vA}, v{t}, 5, v{vA}
            v_lshl_add_u32 v{vA}, v{c}, 3, v{vA}
            v_add_u32 v{vA}, s32, v{vA}''')
        elif kind=='W13':
            e(f'''v_lshlrev_b32 v{vA}, 3, v{vL}
            v_add_u32 v{vA}, s32, v{vA}''')
        elif kind=='W2':
            e(f'''v_lshrrev_b32 v{t}, 5, v{vL}
            v_lshlrev_b32 v{vA}, 10, v{t}
            v_bfe_u32 v{t}, v{vL}, 2, 3
            v_lshl_add_u32 v{vA}, v{t}, 7, v{vA}
            v_lshrrev_b32 v{t}, 1, v{t}
            v_xor_b32 v{t}, s3, v{t}
            v_lshl_add_u32 v{vA}, v{t}, 5, v{vA}
            v_lshl_add_u32 v{vA}, v{c}, 3, v{vA}
            v_add_u32 v{vA+1}, 0x10000, v{vA}''')
    def pickup(kind):
        gi=GROUPS.index(kind)
        trbase(kind)
        lds_spin(e,cfg,F_LAND+4*gi,4,vFl,vT)
        if kind in ('J','J2'):
            for t in range(8):
                for ct in range(2):
                    for hf in range(2):
                        r=WJ+8*t+4*ct+2*hf
                        e(f'ds_read_b64_tr_b16 v[{r}:{r+1}], v{vA+ct} offset:{slot(kind,t>>1)+(t&1)*2048+hf*256}')
        elif kind=='WO':
            for ct in range(8):
                if ct: e(f'v_xor_b32 v{vA+1+(ct&1)}, {ct<<5}, v{vA}')
                for hf in range(2):
                    r=WO+4*ct+2*hf
                    e(f'ds_read_b64_tr_b16 v[{r}:{r+1}], v{vA+1+(ct&1) if ct else vA} offset:{slot(kind,hf)}')
        elif kind=='W13':
            for I in range(16):
                for hf in range(2):
                    r=W13+4*I+2*hf
                    e(f'ds_read_b64_tr_b16 v[{r}:{r+1}], v{vA} offset:{slot(kind,I>>2)+(I&3)*1024+512*hf}')
        elif kind=='W2':
            for t in range(8):
                for hf in range(2):
                    r=W2+4*t+2*hf
                    e(f'ds_read_b64_tr_b16 v[{r}:{r+1}], v{vA+(t>>2)} offset:{((t>>1)&1)*RING+slot(kind,t&1)+2*hf*1024}')
        e('s_waitcnt lgkmcnt(0)')
        lds_signal(e,F_CONS+4*gi,vFl,vOne)
    def skip_group(kind):
        lds_signal(e,F_CONS+4*GROUPS.index(kind),vFl,vOne)
    def gemv(W, acc=16, af=24):
        for t in range(8): e(f'ds_read_b128 v[{af+4*t}:{af+4*t+3}], v{vAr} offset:{64*t}')
        e(f'''
        s_lshl_b32 s40, s3, 9
        s_add_u32 s40, s40, {L_RED}
        v_add_u32 v{vA}, s40, v{vRow}
        ''')
        for t in range(8):
            e(f's_waitcnt lgkmcnt({7-t})')
            for ct in range(2):
                e(f'v_mfma_f32_16x16x32_bf16 v[{acc+4*ct}:{acc+4*ct+3}], v[{af+4*t}:{af+4*t+3}], v[{W+8*t+4*ct}:{W+8*t+4*ct+3}], '+('0' if t==0 else f'v[{acc+4*ct}:{acc+4*ct+3}]'))
        e(f'''
        s_mov_b64 exec, 0xffff
        ds_write_b128 v{vA}, v[{acc}:{acc+3}]
        ds_write_b128 v{vA}, v[{acc+4}:{acc+7}] offset:256
        s_mov_b64 exec, -1
        ''')
    def job_finish(base, rowshift, scol):
        e(f'''
        s_lshl_b32 s40, s3, 2
        s_add_u32 s40, s40, {L_RED}
        v_lshl_add_u32 v{vA}, v{vL}, 5, s40
        s_mov_b64 exec, 0xffff
        ds_read2_b32 v[16:17], v{vA} offset0:0 offset1:4
        ds_read2_b32 v[18:19], v{vA} offset0:128 offset1:132
        v_add_u32 v{vA}, 1024, v{vA}
        ds_read2_b32 v[20:21], v{vA} offset0:0 offset1:4
        ds_read2_b32 v[22:23], v{vA} offset0:128 offset1:132
        s_lshl_b32 s40, s3, {rowshift}
        s_lshl_b32 s41, {scol}, 6
        s_add_u32 s40, s40, s41
        s_add_u32 s40, s40, {base}
        v_lshlrev_b32 v{vA+1}, 2, v{vL}
        s_waitcnt lgkmcnt(0)
        v_add_f32 v16, v16, v18
        v_add_f32 v17, v17, v19
        v_add_f32 v20, v20, v22
        v_add_f32 v21, v21, v23
        v_add_f32 v16, v16, v20
        v_add_f32 v17, v17, v21
        v_cvt_pk_bf16_f32 v16, v16, v17
        v_min_u32 v16, -2, v16
        buffer_store_dword v16, v{vA+1}, s[{SWS}:{SWS+3}], s40 offen sc1
        s_mov_b64 exec, -1
        ''')
    def silu_row():
        e('s_waitcnt vmcnt(2)' if False else '')
        unpack(e,16,32,8)
        for i in range(16): e(f'v_mul_f32 v{48+i}, 0xbfb8aa3b, v{32+i}')
        for i in range(16): e(f'v_exp_f32 v{48+i}, v{48+i}')
        for i in range(16): e(f'v_add_f32 v{48+i}, 1.0, v{48+i}')
        for i in range(16): e(f'v_rcp_f32 v{48+i}, v{48+i}')
        for i in range(16): e(f'v_mul_f32 v{32+i}, v{32+i}, v{48+i}')
        for i in range(8): e(f'v_cvt_pk_bf16_f32 v{16+i}, v{32+2*i}, v{33+2*i}')
        e(f'ds_write_b128 v{vAs}, v[16:19]\nds_write_b128 v{vAs}, v[20:23] offset:1024')
    def gather_q():
        lq=e.label('Lnoq')
        e(f'''
        s_cmp_lg_u32 s3, 0
        s_cbranch_scc1 {lq}
        s_lshl_b32 s40, s37, 11
        s_add_u32 s40, s40, {WS_Q}
        ''')
        gather(e,cfg,[(16,4,vRow,'s40',0),(20,4,vRow,'s40',1024)],vT,cfg.sleep_head)
        e(f'''
        v_lshrrev_b32 v{vA}, 4, v{vL}
        v_mul_u32_u24 v{vA}, {QSTR}, v{vA}
        v_and_b32 v{vA+1}, 15, v{vL}
        v_lshl_add_u32 v{vA}, v{vA+1}, 4, v{vA}
        v_add_u32 v{vA}, {L_QOP}, v{vA}
        ds_write_b128 v{vA}, v[16:19]
        ds_write_b128 v{vA}, v[20:23] offset:{4*QSTR}
        s_waitcnt lgkmcnt(0)
        ''')
        lds_signal(e,F_Q,vFl,vOne)
        e(f'{lq}:')
    lw=e.label('Lw3'); lw2=e.label('Lw3d')
    e(f'''
    s_cmp_eq_u32 s3, 3
    s_cbranch_scc1 {lw}
    s_waitcnt vmcnt(0)
    s_branch {lw2}
    {lw}:
    s_waitcnt vmcnt(6)
    {lw2}:
    s_cmp_eq_u32 s33, 1
    s_cbranch_scc1 L_roleQ
    s_cmp_eq_u32 s33, 2
    s_cbranch_scc1 L_roleN
    ''')
    e.c('---- role U')
    silu_row(); arrive(); pickup('J'); auxbar(); gemv(WJ); auxbar()
    job_finish(WS_MU,12,'s39')
    stamp(e,cfg,1)
    pickup('WO'); pickup('W13'); pickup('W2'); skip_group('J2')
    gbar(); stamp(e,cfg,2)
    e('s_branch L_common')
    e('L_roleN:')
    silu_row(); arrive(); pickup('J'); auxbar(); gemv(WJ)
    gbar(); auxbar()
    job_finish(WS_MN,13,'s39')
    stamp(e,cfg,1)
    pickup('WO'); pickup('W13'); pickup('W2'); pickup('J2')
    auxbar(); gemv(WJ); auxbar()
    e('s_add_u32 s51, s39, 8')
    job_finish(WS_MN,13,'s51')
    stamp(e,cfg,2)
    e('s_branch L_common')
    e('L_roleQ:')
    arrive()
    unpack(e,24,32,8)
    layernorm(e,cfg,32,16)
    pickup('J'); pickup('WO'); pickup('W13'); pickup('W2'); skip_group('J2')
    gbar()
    stamp(e,cfg,1)
    e(f's_lshl_b32 s40, s3, 12\ns_add_u32 s40, s40, {WS_MU}')
    gather(e,cfg,[(16,4,vRow,'s40',0),(20,4,vRow,'s40',1024),(24,4,vRow,'s40',2048),(28,4,vRow,'s40',3072)],vT,cfg.sleep_head)
    unpack(e,24,48,8)
    for i in range(16): e(f'v_add_f32 v{48+i}, 1.0, v{48+i}')
    if cfg.round_ln: rnd_vec(e,48,16,24)
    for i in range(16): e(f'v_mul_f32 v{32+i}, v{32+i}, v{48+i}')
    if cfg.round_ln: rnd_vec(e,32,16,24)
    unpack(e,16,48,8)
    for i in range(16): e(f'v_add_f32 v{32+i}, v{32+i}, v{48+i}')
    for i in range(8): e(f'v_cvt_pk_bf16_f32 v{16+i}, v{32+2*i}, v{33+2*i}')
    e(f'ds_write_b128 v{vAs}, v[16:19]\nds_write_b128 v{vAs}, v[20:23] offset:1024')
    auxbar(); gemv(WJ); auxbar()
    job_finish(WS_Q,13,'s39')
    stamp(e,cfg,2)
    e('L_common:')
    gather_q()
    stamp(e,cfg,3)
    auxbar()
    T1=224; SB=240; F=192; RX=196
    lds_spin(e,cfg,F_ML,4,vFl,vT)
    lm=e.label('Lnoml')
    e(f'''
    s_cmp_lg_u32 s3, 0
    s_cbranch_scc1 {lm}
    v_and_b32 v{vA}, 7, v{vL}
    v_lshlrev_b32 v{vA+1}, 3, v{vA}
    v_add_u32 v{vA}, {L_ML}, v{vA+1}
    ds_read_b64 v[16:17], v{vA}
    ds_read_b64 v[18:19], v{vA} offset:64
    ds_read_b64 v[20:21], v{vA} offset:128
    ds_read_b64 v[22:23], v{vA} offset:192
    s_lshl_b32 s40, s37, 10
    s_lshl_b32 s41, s38, 6
    s_add_u32 s40, s40, s41
    s_add_u32 s40, s40, {WS_ML}
    s_waitcnt lgkmcnt(0)
    v_max3_f32 v24, v16, v18, v20
    v_max_f32 v24, v24, v22
    v_sub_f32 v16, v16, v24
    v_sub_f32 v18, v18, v24
    v_sub_f32 v20, v20, v24
    v_sub_f32 v22, v22, v24
    v_exp_f32 v16, v16
    v_exp_f32 v18, v18
    v_exp_f32 v20, v20
    v_exp_f32 v22, v22
    v_mul_f32 v25, v16, v17
    v_fmac_f32 v25, v18, v19
    v_fmac_f32 v25, v20, v21
    v_fmac_f32 v25, v22, v23
    v_min_u32 v24, -2, v24
    v_min_u32 v25, -2, v25
    s_mov_b64 exec, 0xff
    buffer_store_dwordx2 v[24:25], v{vA+1}, s[{SWS}:{SWS+3}], s40 offen sc1
    s_mov_b64 exec, -1
    {lm}:
    ''')
    e(f's_lshl_b32 s40, s3, 13\ns_add_u32 s40, s40, {WS_MN+2048}')
    gather(e,cfg,[(16,4,vRow,'s40',0),(20,4,vRow,'s40',1024),(24,4,vRow,'s40',2048),(28,4,vRow,'s40',3072)],vT,cfg.sleep_head)
    unpack(e,16,SB,8); unpack(e,24,T1,8)
    for i in range(16): e(f'v_add_f32 v{T1+i}, 1.0, v{T1+i}')
    if cfg.round_ln: rnd_vec(e,T1,16,24)
    lr=e.label('Lnored')
    e(f'''
    s_cmp_ge_u32 s2, 64
    s_cbranch_scc1 {lr}
    s_cmp_lg_u32 s3, 0
    s_cbranch_scc1 {lr}
    v_and_b32 v{vA}, 15, v{vL}
    v_lshlrev_b32 v{vA}, 3, v{vA}
    v_lshrrev_b32 v{vA+1}, 5, v{vL}
    v_lshl_add_u32 v{vA}, v{vA+1}, 2, v{vA}
    s_lshl_b32 s40, s2, 7
    v_add_u32 v{vA+1}, s40, v{vA}
    global_load_dword v18, v{vA+1}, s[{P_X}:{P_X+1}]
    s_lshl_b32 s40, s38, 13
    s_lshl_b32 s51, s37, 7
    s_add_u32 s40, s40, s51
    s_add_u32 s40, s40, {WS_MN}
    s_add_u32 s51, s40, 6144
    ''')
    gather(e,cfg,[(16,1,vA,'s40',0),(17,1,vA,'s51',0)],vT,cfg.sleep_head)
    unpack(e,18,RX,1); unpack(e,16,RX+2,1); unpack(e,17,RX+4,1)
    e(f'{lr}:')
    e(f's_lshl_b32 s40, s37, 10\ns_add_u32 s40, s40, {WS_ML}')
    gather(e,cfg,[(16,4,vRow,'s40',0)],vT,cfg.sleep_head)
    e(f'''
    s_lshl_b32 s40, s3, 4
    s_add_u32 s40, s40, {L_ML}
    v_lshrrev_b32 v{vA+1}, 5, v{vL}
    v_lshl_add_u32 v{vA}, v{vA+1}, 3, s40
    ds_read_b32 v{F}, v{vA}
    ds_read_b32 v{F+1}, v{vA} offset:64
    ds_read_b32 v{F+2}, v{vA} offset:128
    ds_read_b32 v{F+3}, v{vA} offset:192
    v_mov_b32 v20, v16
    v_mov_b32 v21, v18
    ''')
    def allred_s(op, xs, t):
        for r in (4,8):
            for x in xs: e(f'{op}_dpp v{x}, v{x}, v{x} row_ror:{r} row_mask:0xf bank_mask:0xf')
        for sw in ('v_permlane16_swap_b32','v_permlane32_swap_b32'):
            for k,x in enumerate(xs): e(f'v_mov_b32 v{t+k}, v{x}')
            for k,x in enumerate(xs): e(f'{sw} v{t+k}, v{x}')
            for k,x in enumerate(xs): e(f'{op} v{x}, v{x}, v{t+k}')
    allred_s('v_max_f32',[20,21],24)
    e('''
    v_sub_f32 v16, v16, v20
    v_sub_f32 v18, v18, v21
    v_exp_f32 v16, v16
    v_exp_f32 v18, v18
    v_mul_f32 v22, v16, v17
    v_mul_f32 v23, v18, v19
    ''')
    allred_s('v_add_f32',[22,23],24)
    e(f'''
    v_readlane_b32 s40, v20, s3
    v_readlane_b32 s41, v21, s3
    v_readlane_b32 s42, v22, s3
    v_readlane_b32 s43, v23, s3
    v_cmp_gt_u32 vcc, 32, v{vL}
    v_mov_b32 v20, s40
    v_mov_b32 v21, s41
    v_mov_b32 v22, s42
    v_mov_b32 v23, s43
    v_cndmask_b32 v20, v21, v20, vcc
    v_cndmask_b32 v22, v23, v22, vcc
    v_rcp_f32 v22, v22
    s_waitcnt lgkmcnt(0)
    ''')
    for k in range(4): e(f'v_sub_f32 v{F+k}, v{F+k}, v20')
    for k in range(4): e(f'v_exp_f32 v{F+k}, v{F+k}')
    for k in range(4): e(f'v_mul_f32 v{F+k}, v{F+k}, v22')
    stamp(e,cfg,4)
    vOc=48; vOs=49; vH1=50; vRd=51; vRr=52; vYs=53; vRo=54; vH3=55; vZs=56; vHr=57; vHs=58
    e(f'''
    s_lshl_b32 s40, s3, 1
    v_lshrrev_b32 v{vA}, 5, v{vL}
    v_add_u32 v{vA}, s40, v{vA}
    v_mul_u32_u24 v{vOc}, {OSTR}, v{vA}
    v_and_b32 v{vA+1}, 31, v{vL}
    v_lshl_add_u32 v{vOc}, v{vA+1}, 4, v{vOc}
    v_add_u32 v{vOc+11}, 0x10000, v{vOc}
    v_lshlrev_b32 v{vOs}, 3, v{vL}
    s_lshl_b32 s52, s37, 15
    s_lshl_b32 s40, s38, 11
    s_add_u32 s52, s52, s40
    s_lshl_b32 s40, s3, 9
    s_add_u32 s52, s52, s40
    v_and_b32 v{vA}, 3, v{vL}
    v_lshlrev_b32 v{vH1}, 17, v{vA}
    v_bfe_u32 v{vA+1}, v{vL}, 2, 2
    v_lshl_add_u32 v{vH1}, v{vA+1}, 11, v{vH1}
    v_lshrrev_b32 v{vA+2}, 4, v{vL}
    v_lshl_add_u32 v{vH1}, v{vA+2}, 4, v{vH1}
    s_bfe_u32 s40, s2, 0x20003
    s_lshl_b32 s53, s40, 15
    s_and_b32 s40, s2, 7
    s_lshl_b32 s40, s40, 8
    s_add_u32 s53, s53, s40
    s_lshl_b32 s40, s3, 6
    s_add_u32 s53, s53, s40
    s_add_u32 s54, s53, 8192
    s_add_u32 s55, s53, 16384
    s_add_u32 s56, s53, 24576
    s_lshl_b32 s40, s3, 11
    s_add_u32 s40, s40, {L_RED}
    v_add_u32 v{vRd}, s40, v{vRow}
    s_lshl_b32 s40, s3, 2
    s_add_u32 s40, s40, {L_RED}
    v_lshl_add_u32 v{vRr}, v{vL}, 5, s40
    v_lshrrev_b32 v{vA}, 5, v{vL}
    v_lshlrev_b32 v{vYs}, 13, v{vA}
    v_and_b32 v{vA}, 31, v{vL}
    v_lshl_add_u32 v{vYs}, v{vA}, 3, v{vYs}
    s_lshl_b32 s57, s3, 17
    s_lshr_b32 s40, s2, 5
    s_lshl_b32 s40, s40, 14
    s_add_u32 s57, s57, s40
    s_and_b32 s40, s2, 31
    s_lshl_b32 s40, s40, 8
    s_add_u32 s57, s57, s40
    s_add_u32 s57, s57, {WS_Y}
    v_and_b32 v{vA}, 15, v{vL}
    v_lshlrev_b32 v{vRo}, 3, v{vA}
    v_lshrrev_b32 v{vA+1}, 5, v{vL}
    v_lshl_add_u32 v{vRo}, v{vA+1}, 2, v{vRo}
    ; H3a: (g>>1)*128 + (m>>2)*32 + (g&1)*16
    v_lshlrev_b32 v{vH3}, 7, v{vA+1}
    v_bfe_u32 v{vA+2}, v{vL}, 2, 2
    v_lshl_add_u32 v{vH3}, v{vA+2}, 5, v{vH3}
    v_bfe_u32 v{vA+2}, v{vL}, 4, 1
    v_lshl_add_u32 v{vH3}, v{vA+2}, 4, v{vH3}
    s_lshr_b32 s40, s36, 4
    s_lshl_b32 s58, s40, 11
    s_add_u32 s58, s58, {WS_HH}
    v_lshrrev_b32 v{vA+2}, 4, v{vL}
    v_mul_u32_u24 v{vZs}, {16*3584}, v{vA+2}
    v_lshl_add_u32 v{vZs}, v{vA}, 2, v{vZs}
    s_lshl_b32 s59, s40, 8
    s_and_b32 s40, s36, 15
    s_mul_i32 s40, s40, 3584
    s_add_u32 s59, s59, s40
    s_lshl_b32 s40, s3, 6
    s_add_u32 s59, s59, s40
    s_add_u32 s59, s59, {WS_Z}
    v_lshlrev_b32 v{vHr}, 4, v{vA}
    v_lshl_add_u32 v{vHr}, v{vA+2}, 2, v{vHr}
    v_add_u32 v{vHr}, {L_RED}, v{vHr}
    v_lshlrev_b32 v{vHs}, 1, v{vL}
    s_lshl_b32 s60, s36, 7
    s_add_u32 s60, s60, {WS_HH}
    s_mov_b32 s61, 0x3f80
    s_mov_b32 s62, 0x3f800000
    ''')
    e.c('---- tail: combine the four waves of this workgroup')
    lds_spin(e,cfg,F_O,4,vFl,vT)
    stamp(e,cfg,5)
    e(f'''
    ds_read_b128 v[16:19], v{vOc}
    ds_read_b128 v[20:23], v{vOc} offset:{RING}
    ds_read_b128 v[24:27], v{vOc+11}
    ds_read_b128 v[28:31], v{vOc+11} offset:{RING}
    s_waitcnt lgkmcnt(3)
    ''')
    for r in range(4): e(f'v_mul_f32 v{16+r}, v{16+r}, v{F}')
    for k in range(1,4):
        e(f's_waitcnt lgkmcnt({3-k})')
        for r in range(4): e(f'v_fmac_f32 v{16+r}, v{16+4*k+r}, v{F+k}')
    e(f'''
    v_cvt_pk_bf16_f32 v16, v16, v17
    v_cvt_pk_bf16_f32 v17, v18, v19
    v_min_u32 v16, -2, v16
    v_min_u32 v17, -2, v17
    buffer_store_dwordx2 v[16:17], v{vOs}, s[{SWS}:{SWS+3}], s52 offen sc1
    s_waitcnt vmcnt(0)
    ''')
    e.c('---- H1 + output projection')
    gather(e,cfg,[(16,4,vH1,'s53',0),(20,4,vH1,'s54',0),(24,4,vH1,'s55',0),(28,4,vH1,'s56',0)],vT,cfg.sleep_tail)
    stamp(e,cfg,6)
    for i in range(4):
        e(f'v_lshlrev_b32 v{32+2*i}, 16, v{16+i}\nv_and_b32 v{33+2*i}, 0xffff0000, v{16+i}')
    for j in range(1,4):
        for i in range(4):
            e(f'v_dot2_f32_bf16 v{32+2*i}, v{16+4*j+i}, s61, v{32+2*i}\nv_dot2_f32_bf16 v{33+2*i}, v{16+4*j+i}, s62, v{33+2*i}')
    for r in (4,8):
        for i in range(8): e(f'v_add_f32_dpp v{32+i}, v{32+i}, v{32+i} row_ror:{r} row_mask:0xf bank_mask:0xf')
    for i in range(4): e(f'v_cvt_pk_bf16_f32 v{16+i}, v{32+2*i}, v{33+2*i}')
    ACC=204-4
    ACC=16+4
    accs=[20,24,28,32,36,40,44,204]
    for ct in range(8): e(f'v_mfma_f32_16x16x32_bf16 v[{accs[ct]}:{accs[ct]+3}], v[16:19], v[{WO+4*ct}:{WO+4*ct+3}], 0')
    e('s_mov_b64 exec, 0xffff')
    for ct in range(8): e(f'ds_write_b128 v{vRd}, v[{accs[ct]}:{accs[ct]+3}] offset:{256*ct}')
    e(f'''
    s_mov_b64 exec, -1
    s_waitcnt lgkmcnt(0)
    s_barrier
    ds_read2_b32 v[16:17], v{vRr} offset0:0 offset1:4
    v_add_u32 v{vA}, 2048, v{vRr}
    ds_read2_b32 v[18:19], v{vA} offset0:0 offset1:4
    v_add_u32 v{vA+1}, 4096, v{vRr}
    ds_read2_b32 v[20:21], v{vA+1} offset0:0 offset1:4
    v_add_u32 v{vA+2}, 6144, v{vRr}
    ds_read2_b32 v[22:23], v{vA+2} offset0:0 offset1:4
    s_waitcnt lgkmcnt(2)
    v_add_f32 v16, v16, v18
    v_add_f32 v17, v17, v19
    s_waitcnt lgkmcnt(0)
    v_add_f32 v20, v20, v22
    v_add_f32 v21, v21, v23
    v_add_f32 v16, v16, v20
    v_add_f32 v17, v17, v21
    v_min_u32 v16, -2, v16
    v_min_u32 v17, -2, v17
    buffer_store_dwordx2 v[16:17], v{vYs}, s[{SWS}:{SWS+3}], s57 offen sc1
    s_cmp_ge_u32 s2, 224
    s_cbranch_scc1 L_fin
    s_waitcnt vmcnt(0)
    ''')
    stamp(e,cfg,7)
    def red_tail(n):
        for i in range(1,n):
            e(f'v_pk_add_f32 v[16:17], v[16:17], v[{16+4*i}:{17+4*i}]\nv_pk_add_f32 v[18:19], v[18:19], v[{18+4*i}:{19+4*i}]')
        e('''
        v_permlane32_swap_b32 v16, v18
        v_permlane32_swap_b32 v17, v19
        v_add_f32 v16, v16, v18
        v_add_f32 v17, v17, v19
        v_mov_b32 v18, v16
        v_mov_b32 v19, v17
        v_permlane16_swap_b32 v18, v16
        v_permlane16_swap_b32 v19, v17
        v_add_f32 v16, v16, v18
        v_add_f32 v17, v17, v19
        ''')
    def gate_res(G,X,dst):
        rnd_vec(e,16,2,18)
        e(f'v_mul_f32 v16, v16, v{G}\nv_mul_f32 v17, v17, v{G+1}')
        rnd_vec(e,16,2,18)
        e(f'v_add_f32 v16, v16, v{X}\nv_add_f32 v17, v17, v{X+1}\nv_cvt_pk_bf16_f32 v{dst}, v16, v17')
    e.c('---- H2a: reducers')
    l2=e.label('Lnoh2a')
    e(f'''
    s_cmp_ge_u32 s2, 64
    s_cbranch_scc1 {l2}
    s_cmp_lg_u32 s3, 0
    s_cbranch_scc1 {l2}
    s_lshl_b32 s40, s2, 13
    s_add_u32 s40, s40, {WS_Y}
    s_add_u32 s51, s40, 4096
    ''')
    gather(e,cfg,[(16+4*i,4,vRow,'s40' if i<4 else 's51',(i&3)*1024) for i in range(8)],vT,cfg.sleep_tail)
    red_tail(8)
    gate_res(RX+2,RX,16)
    e(f'''
    v_min_u32 v16, -2, v16
    s_lshl_b32 s40, s2, 7
    s_add_u32 s40, s40, {WS_X1}
    s_mov_b32 s42, 0xffff
    s_mov_b32 s43, 0xffff
    s_mov_b64 exec, s[42:43]
    buffer_store_dword v16, v{vRo}, s[{SWS}:{SWS+3}], s40 offen sc1
    s_mov_b64 exec, -1
    v_lshlrev_b32 v{RX}, 16, v16
    v_and_b32 v{RX+1}, 0xffff0000, v16
    s_waitcnt vmcnt(0)
    {l2}:
    ''')
    stamp(e,cfg,8)
    e.c('---- H2b + gate/up')
    e(f's_lshl_b32 s40, s3, 11\ns_add_u32 s40, s40, {WS_X1}')
    gather(e,cfg,[(16,4,vRow,'s40',0),(20,4,vRow,'s40',1024)],vT,cfg.sleep_tail)
    stamp(e,cfg,9)
    unpack(e,16,32,8)
    layernorm(e,cfg,32,16)
    modulate(e,cfg,32,T1,SB,16,24)
    e(f'''
    ds_write_b128 v{vAs}, v[16:19]
    ds_write_b128 v{vAs}, v[20:23] offset:1024
    s_waitcnt lgkmcnt(0)
    s_barrier
    ''')
    gemv(W13, acc=204, af=16)
    l5=e.label('Lnoh')
    e(f'''
    s_waitcnt lgkmcnt(0)
    s_barrier
    s_cmp_lg_u32 s3, 0
    s_cbranch_scc1 {l5}
    ds_read2_b32 v[16:17], v{vHr} offset0:0 offset1:64
    ds_read2_b32 v[18:19], v{vHr} offset0:128 offset1:192
    v_add_u32 v{vA}, 1024, v{vHr}
    ds_read2_b32 v[20:21], v{vA} offset0:0 offset1:64
    ds_read2_b32 v[22:23], v{vA} offset0:128 offset1:192
    s_waitcnt lgkmcnt(2)
    v_add_f32 v16, v16, v18
    v_add_f32 v17, v17, v19
    s_waitcnt lgkmcnt(0)
    v_add_f32 v20, v20, v22
    v_add_f32 v21, v21, v23
    v_add_f32 v16, v16, v20
    v_add_f32 v17, v17, v21
    ''')
    rnd_vec(e,16,2,18)
    e(f'''
    v_mul_f32 v18, 0xbfb8aa3b, v16
    v_exp_f32 v18, v18
    v_add_f32 v18, 1.0, v18
    v_rcp_f32 v18, v18
    v_mul_f32 v16, v16, v18
    ''')
    rnd1(e,16)
    e(f'''
    v_mul_f32 v16, v16, v17
    v_mov_b32_dpp v17, v16 quad_perm:[1,1,3,3] row_mask:0xf bank_mask:0xf
    v_cvt_pk_bf16_f32 v16, v16, v17
    v_min_u32 v16, -2, v16
    s_mov_b32 s42, 0x55555555
    s_mov_b32 s43, 0x55555555
    s_mov_b64 exec, s[42:43]
    buffer_store_dword v16, v{vHs}, s[{SWS}:{SWS+3}], s60 offen sc1
    s_mov_b64 exec, -1
    s_waitcnt vmcnt(0)
    {l5}:
    s_barrier
    ''')
    stamp(e,cfg,10)
    e.c('---- H3a + down projection')
    gather(e,cfg,[(16+4*t,4,vH3,'s58',256*t) for t in range(8)],vT,cfg.sleep_tail)
    stamp(e,cfg,11)
    for t in range(8):
        acc=204+4*(t&1)
        e(f'v_mfma_f32_16x16x32_bf16 v[{acc}:{acc+3}], v[{16+4*t}:{19+4*t}], v[{W2+4*t}:{W2+4*t+3}], '+('0' if t<2 else f'v[{acc}:{acc+3}]'))
    e(f'''
    v_add_f32 v16, v204, v208
    v_min_u32 v16, -2, v16
    buffer_store_dword v16, v{vZs}, s[{SWS}:{SWS+3}], s59 offen sc1
    s_cmp_ge_u32 s2, 64
    s_cbranch_scc1 L_fin
    s_waitcnt vmcnt(0)
    s_barrier
    s_cmp_lg_u32 s3, 0
    s_cbranch_scc1 L_fin
    s_mul_i32 s40, s2, 3584
    s_add_u32 s40, s40, {WS_Z}
    v_mov_b32 v28, 0
    v_mov_b32 v29, 0
    v_mov_b32 v30, 0
    v_mov_b32 v31, 0
    s_mov_b32 s52, -1
    s_mov_b32 s53, 0
    ''')
    e.c('---- H3b: final reducers')
    gather(e,cfg,[(16,4,vRow,'s40',0),(20,4,vRow,'s40',1024),(24,4,vRow,'s40',2048),(28,4,vRow,'s40',3072,'s[52:53]')],vT,cfg.sleep_tail)
    stamp(e,cfg,12)
    red_tail(4)
    gate_res(RX+4,RX,16)
    e(f'''
    s_lshl_b32 s40, s2, 7
    v_add_u32 v{vA}, s40, v{vRo}
    s_mov_b32 s42, 0xffff
    s_mov_b32 s43, 0xffff
    s_mov_b64 exec, s[42:43]
    global_store_dword v{vA}, v16, s[{P_OUT}:{P_OUT+1}]
    s_mov_b64 exec, -1
    L_fin:
    ''')
    stamp(e,cfg,13)
    if cfg.stamps: e('s_add_u32 s3, s3, 4')
    stamps_out(e,cfg,14,vA)
    e('s_endpgm')

def gen(cfg):
    e=A()
    e(f'''
    s_cmp_ge_u32 s2, 256
    s_cbranch_scc1 L_exit
    s_load_dwordx16 s[4:19], s[0:1], 0
    s_load_dwordx8 s[20:27], s[0:1], 64
    s_load_dwordx4 s[28:31], s[0:1], 96
    v_lshrrev_b32 v2, 6, v0
    v_and_b32 v1, 63, v0
    v_readfirstlane_b32 s3, v2
    ''')
    roles(e)
    e('s_cmp_ge_u32 s3, 4\ns_cbranch_scc1 L_aux')
    stream(e,cfg)
    aux(e,cfg)
    e('L_exit:\ns_endpgm')
    e('.p2align 8\n.fill (32768+256-(.-'+KN+'))/4, 4, 0xbf800000')
    hdr = open('adaLN_cond__gqa_block_cached__glu_gated_swiglu__decode.s.ref').read().split('; Override launch')[0] if False else ''
    hdr += f'; fused adaLN + GQA decode attention + SwiGLU block, one launch (generated by gen1.py)\n; @launch grid=(256,1,1) block=(512,1,1) lds={LDS_BYTES}\n.amdgcn_target "amdgcn-amd-amdhsa--gfx950"\n'
    return hdr + khead(KN) + e.text() + kd(KN, 256)

if __name__=='__main__':
    cfg=Cfg()
    out=sys.argv[1]
    for kv in sys.argv[2:]:
        k,val=kv.split('=')
        cur=getattr(cfg,k)
        setattr(cfg,k, (val not in ('0','False')) if isinstance(cur,bool) else type(cur)(val) if not isinstance(cur,int) else int(val,0))
    open(out,'w').write(gen(cfg))
```

```python
import sys
from asmgen import *
KN='adaLN_cond__gqa_block_cached__glu_gated_swiglu__decode_kernel'

WS_O   = 0x000000
WS_Y   = 0x080000
WS_Z   = 0x100000
WS_MN  = 0x140000
WS_ML  = 0x148000
WS_X1  = 0x14C000
WS_HH  = 0x14E000
WS_FLAT= 0x158000
WS_MU  = 0x158000
WS_Q   = 0x15C000
WS_SA  = 0x164000
WS_END = 0x166000
WS_STAMP = 0x200000
RING = 0x8000
L_ASRC = 0x20000; ASTR = 2112
L_RED  = 0x22100
L_QOP  = 0x24100; QSTR = 272
L_ML   = 0x24A00
L_FLAG = 0x24B00
LDS_BYTES = 0x24C00
OSTR = 528
F_LAND = 0
F_CONS = 32
F_Q = 64; F_ML = 68; F_O = 72; F_AUX = 76
P_X,P_K,P_V,P_WQ,P_WO,P_BX,P_W1,P_W3,P_W2,P_C,P_WM,P_OUT,P_DBG,P_WS = [4+2*i for i in range(14)]
LOG2E = 0x3fb8aa3b
SCALE = 0x3db504f3

class Cfg:
    D=2
    pol='nt'
    stamps=False
    round_s=True
    round_ln=True
    sleep_head=8
    sleep_tail=1
    order='B'
    codepf=True
    nojob=False
    prio=2
    late_arrive=False
    D0=4
    DW=4
    gpoll=8192
    lpoll=1<<17

def lds_spin(e, cfg, flag, target, vaddr, vtmp, stmp=40):
    l=e.label('Lsp'); d=e.label('Lspd')
    e(f'''
    s_mov_b32 s{stmp+1}, 0
    {l}:
    ds_read_b32 v{vtmp}, v{vaddr} offset:{flag}
    s_add_u32 s{stmp+1}, s{stmp+1}, 1
    s_waitcnt lgkmcnt(0)
    v_readfirstlane_b32 s{stmp}, v{vtmp}
    s_cmp_ge_u32 s{stmp}, {target}
    s_cbranch_scc1 {d}
    s_cmp_lt_u32 s{stmp+1}, {cfg.lpoll}
    s_cbranch_scc1 {l}
    {d}:
    ''')

def lds_signal(e, flag, vaddr, vone):
    e(f'''
    s_mov_b64 exec, 1
    ds_add_u32 v{vaddr}, v{vone} offset:{flag}
    s_mov_b64 exec, -1
    ''')

def stamp(e, cfg, i):
    if cfg.stamps: e(f's_memrealtime s[{64+2*i}:{65+2*i}]')

def stamps_out(e, cfg, n, vt):
    if not cfg.stamps: return
    e(f'''
    s_waitcnt lgkmcnt(0)
    s_lshl_b32 s40, s2, 3
    s_add_u32 s40, s40, s3
    s_lshl_b32 s40, s40, 7
    s_add_u32 s40, s40, {WS_STAMP}
    v_mov_b32 v{vt}, s40
    s_mov_b64 exec, 1
    ''')
    for i in range(n):
        e(f'v_mov_b32 v{vt+2}, s{64+2*i}\nv_mov_b32 v{vt+3}, s{65+2*i}\nglobal_store_dwordx2 v{vt}, v[{vt+2}:{vt+3}], s[{P_WS}:{P_WS+1}] offset:{8*i}')
    e('s_mov_b64 exec, -1')

def srd(e, d, p, size):
    e(f's_mov_b32 s{d}, s{p}\ns_mov_b32 s{d+1}, s{p+1}\ns_mov_b32 s{d+2}, {size}\ns_mov_b32 s{d+3}, 0x20000')

def roles(e):
    e('''
    s_and_b32 s37, s2, 15
    s_lshr_b32 s38, s2, 4
    s_and_b32 s40, s2, 7
    s_lshr_b32 s41, s2, 3
    s_mul_i32 s36, s40, 28
    s_add_u32 s36, s36, s41
    s_and_b32 s41, s41, 1
    s_cmp_ge_u32 s38, 4
    s_cselect_b32 s33, 1, 0
    s_cmp_ge_u32 s38, 12
    s_cselect_b32 s33, 2, s33
    s_cmp_eq_u32 s33, 1
    s_mov_b32 s35, 12288
    s_cselect_b32 s35, 8192, s35
    s_cselect_b32 s42, 8, 24
    s_cmp_eq_u32 s33, 0
    s_cselect_b32 s42, 0, s42
    s_cselect_b32 s43, 3, 4
    s_lshl_b32 s40, s40, s43
    s_lshl_b32 s43, s38, 1
    s_add_u32 s40, s40, s43
    s_add_u32 s40, s40, s41
    s_sub_u32 s39, s40, s42
    s_lshl_b32 s34, s39, 6
    s_cmp_eq_u32 s33, 2
    s_cselect_b32 s40, 4096, 0
    s_add_u32 s34, s34, s40
    ''')

UNITS = []
def set_order(order):
    U=lambda k,n: [(k,i) for i in range(n)]
    W=U('WO',2)+U('W13',4)+U('W2',2)+U('J2',4)
    if order=='A': UNITS[:] = U('J',4)+W+U('K',16)+U('V',16)
    elif order=='B': UNITS[:] = U('J',4)+U('K',16)+W+U('V',16)
GROUPS = ['J','WO','W13','W2','J2']
def upos(kind,i): return UNITS.index((kind,i))
def slot(kind,i): return (upos(kind,i)%8)*4096

def stream(e, cfg):
    D=cfg.D; pol=cfg.pol
    vL=1; vK=2; vV=6; vJ=8; vW=9; v13=11; v2=12; vFl=13; vOne=14; vT=15
    vKR=16; vVR=20; vX=28
    Q=48; S=64; ST=128; P=128; O=160; VF=192
    SK,SV,SJ,SJ2,SWO,SW1,SW3,SW2 = 44,48,52,56,60,84,88,92
    e.c('================= stream waves =================')
    e('L_stream:')
    stamp(e,cfg,0)
    e(f'''
    v_lshrrev_b32 v{vX}, 4, v{vL}
    v_and_b32 v{vX+1}, 15, v{vL}
    v_lshrrev_b32 v{vX+2}, 2, v{vL}
    v_mul_lo_u32 v{vJ}, v{vX+2}, s35
    v_lshrrev_b32 v{vX+3}, 5, v{vL}
    v_lshlrev_b32 v{vX+4}, 1, v{vX+3}
    v_and_b32 v{vX+5}, 3, v{vL}
    v_xor_b32 v{vX+4}, v{vX+4}, v{vX+5}
    v_lshl_add_u32 v{vJ}, v{vX+4}, 4, v{vJ}
    s_lshl_b32 s32, s3, 15
    s_waitcnt lgkmcnt(0)
    s_cmp_eq_u32 s33, 1
    s_cselect_b32 s{SJ}, s{P_WQ}, s{P_WM}
    s_cselect_b32 s{SJ+1}, s{P_WQ+1}, s{P_WM+1}
    s_mov_b32 s{SJ+2}, {1024*6144*2}
    s_cselect_b32 s{SJ+2}, {1024*4096*2}, s{SJ+2}
    s_mov_b32 s{SJ+3}, 0x20000
    {'s_mov_b32 s%d, 0'%(SJ+2) if cfg.nojob else ''}
    s_lshl_b32 s96, s3, 8
    s_mul_i32 s96, s96, s35
    s_add_u32 s96, s96, s34
    s_lshl_b32 s97, s35, 4
    s_sub_u32 s97, s97, 1024
    s_lshl_b32 s98, s35, 6
    ''')
    st = dict(issued=0, landed=-1, signaled=set())
    def dma(voff, srdreg, soff, i):
        e(f'buffer_load_dwordx4 v{voff}, s[{srdreg}:{srdreg+3}], {soff} offen offset:{i*1024} {pol} lds')
    def emit_unit(n):
        kind,i = UNITS[n]
        e(f's_add_u32 m0, s32, {(n%8)*4096}')
        if kind in ('J','J2'):
            sr = SJ if kind=='J' else SJ2
            if (kind,i)==('J2',0): e('s_add_u32 s96, s99, 512')
            if (kind,i)==('J',0): e('s_mov_b32 s99, s96')
            e('s_mov_b32 s41, s96')
            for k in range(4):
                dma(vJ, sr, 's41', k)
                if k<3: e('s_add_u32 s41, s41, s97')
            e('s_add_u32 s96, s96, s98')
        elif kind=='WO':
            for k in range(4):
                e(f's_add_u32 s41, s100, {(8*k+4*i)*2048-1024*k}')
                dma(vW+(k&1), SWO, 's41', k)
        elif kind=='W13':
            for k in range(4):
                I=4*i+k; t=I>>1; mat=I&1
                e(f's_add_u32 s41, s101, {32*t*7168}')
                if k: e(f's_add_u32 m0, s32, {(n%8)*4096+1024*k}')
                dma(v13, SW3 if mat else SW1, 's41', 0)
        elif kind=='W2':
            for k in range(4):
                I=4*i+k
                row = 32*(I>>2)+16*(I&1)+4*((I>>1)&1)
                e(f's_add_u32 s41, s81, {row*2048-1024*k}')
                dma(v2, SW2, 's41', k)
        elif kind in ('K','V'):
            e(f's_add_u32 s41, s80, {i*16384}')
            for k in range(4):
                dma((vK+k) if kind=='K' else (vV+(k&1)), SK if kind=='K' else SV, 's41', k)
    def note_landed(n):
        st['landed']=max(st['landed'],n)
        for gi,g in enumerate(GROUPS):
            last=max(k for k,u in enumerate(UNITS) if u[0]==g)
            if last<=st['landed'] and g not in st['signaled']:
                st['signaled'].add(g); lds_signal(e, F_LAND+4*gi, vFl, vOne)
                if g=='J': stamp(e,cfg,6)
    consumed=set()
    def issue(n):
        assert n==st['issued']
        Dn = cfg.DW if UNITS[n][0] in ('W13','J2') or (n and UNITS[n-1][0] in ('W13','J2')) else D
        if n>=max(Dn,cfg.D0) and st['landed']<n-Dn:
            e(f's_waitcnt vmcnt({4*(Dn-1)})'); note_landed(n-Dn)
        if n>=8:
            g=UNITS[n-8][0]
            if g in GROUPS and g not in consumed:
                last=max(k for k,u in enumerate(UNITS) if u[0]==g)
                if g not in st['signaled']:
                    wait_landed(last)
                consumed.add(g); lds_spin(e,cfg,F_CONS+4*GROUPS.index(g),4,vFl,vT)
                if g=='J': stamp(e,cfg,7)
        if cfg.stamps: e(f's_memrealtime s[82:83]\ns_waitcnt lgkmcnt(0)\nv_writelane_b32 v47, s82, {n}')
        emit_unit(n); st['issued']=n+1
    def wait_landed(n):
        if st['landed']>=n: return
        e(f's_waitcnt vmcnt({4*(st["issued"]-1-n)})'); note_landed(n)
    e('s_cmp_lt_u32 s2, 248\ns_cbranch_scc1 L_go\ns_barrier\nL_go:')
    for n in range(cfg.D0): issue(n)
    srd(e,SK,P_K,0x4000000); srd(e,SV,P_V,0x4000000); srd(e,SWO,P_WO,4096*1024*2)
    e(f'''
    s_cmp_eq_u32 s33, 2
    s_cselect_b32 s{SJ2+2}, {1024*6144*2}, 0
    s_mov_b32 s{SJ2}, s{P_WM}
    s_mov_b32 s{SJ2+1}, s{P_WM+1}
    s_mov_b32 s{SJ2+3}, 0x20000
    s_cmp_lt_u32 s2, 224
    s_cselect_b32 s{SW1+2}, {1024*3584*2}, 0
    s_cselect_b32 s{SW3+2}, {1024*3584*2}, 0
    s_cselect_b32 s{SW2+2}, {1024*3584*2}, 0
    s_mov_b32 s{SW1}, s{P_W1}
    s_mov_b32 s{SW1+1}, s{P_W1+1}
    s_mov_b32 s{SW1+3}, 0x20000
    s_mov_b32 s{SW3}, s{P_W3}
    s_mov_b32 s{SW3+1}, s{P_W3+1}
    s_mov_b32 s{SW3+3}, 0x20000
    s_mov_b32 s{SW2}, s{P_W2}
    s_mov_b32 s{SW2+1}, s{P_W2+1}
    s_mov_b32 s{SW2+3}, 0x20000
    ''')
    e(f'''
    s_lshl_b32 s80, s37, 22
    s_lshl_b32 s40, s38, 18
    s_add_u32 s80, s80, s40
    s_lshl_b32 s40, s3, 12
    s_add_u32 s80, s80, s40
    s_and_b32 s40, s2, 31
    s_lshl_b32 s100, s40, 18
    s_lshl_b32 s40, s3, 16
    s_add_u32 s100, s100, s40
    s_lshr_b32 s40, s2, 5
    s_lshl_b32 s40, s40, 8
    s_add_u32 s100, s100, s40
    s_mul_i32 s101, s3, {256*7168}
    s_lshl_b32 s40, s36, 5
    s_add_u32 s101, s101, s40
    s_lshr_b32 s40, s36, 4
    s_lshl_b32 s81, s40, 19
    s_lshl_b32 s40, s3, 17
    s_add_u32 s81, s81, s40
    s_and_b32 s40, s36, 15
    s_lshl_b32 s40, s40, 7
    s_add_u32 s81, s81, s40
    v_xor_b32 v{vX+6}, v{vX+1}, v{vX}
    v_lshlrev_b32 v{vX+7}, 8, v{vX}
    v_lshl_add_u32 v{vK}, v{vX+6}, 4, v{vX+7}
    v_xor_b32 v{vK+1}, 64, v{vK}
    v_xor_b32 v{vK+2}, 128, v{vK}
    v_xor_b32 v{vK+3}, 192, v{vK}
    v_lshlrev_b32 v{vX+6}, 1, v{vX}
    v_xor_b32 v{vX+6}, v{vX+6}, v{vX+1}
    v_lshl_add_u32 v{vV}, v{vX+6}, 4, v{vX+7}
    v_xor_b32 v{vV+1}, 128, v{vV}
    v_lshlrev_b32 v{vX+7}, 11, v{vX}
    v_lshl_add_u32 v{vW}, v{vX+6}, 4, v{vX+7}
    v_xor_b32 v{vW+1}, 128, v{vW}
    ; w13: sigma = 8*((l>>3)&3) + 4*(l>>5) + ((l>>1)&3)
    v_bfe_u32 v{vX+6}, v{vL}, 3, 2
    v_lshlrev_b32 v{vX+6}, 3, v{vX+6}
    v_lshl_add_u32 v{vX+6}, v{vX+3}, 2, v{vX+6}
    v_bfe_u32 v{vX+7}, v{vL}, 1, 2
    v_add_u32 v{vX+6}, v{vX+6}, v{vX+7}
    v_mul_u32_u24 v{vX+6}, 7168, v{vX+6}
    v_and_b32 v{vX+7}, 1, v{vL}
    v_lshl_add_u32 v{v13}, v{vX+7}, 4, v{vX+6}
    v_bfe_u32 v{vX+6}, v{vL}, 3, 2
    v_lshl_add_u32 v{vX+6}, v{vX+3}, 3, v{vX+6}
    v_lshlrev_b32 v{vX+6}, 11, v{vX+6}
    v_lshlrev_b32 v{vX+7}, 1, v{vX}
    v_and_b32 v{vX+8}, 7, v{vL}
    v_xor_b32 v{vX+7}, v{vX+7}, v{vX+8}
    v_lshl_add_u32 v{v2}, v{vX+7}, 4, v{vX+6}
    v_xor_b32 v{vX+6}, v{vX}, v{vX+1}
    v_lshlrev_b32 v{vX+7}, 8, v{vX+1}
    v_lshl_add_u32 v{vKR}, v{vX+6}, 4, v{vX+7}
    v_add_u32 v{vKR}, s32, v{vKR}
    v_xor_b32 v{vKR+1}, 64, v{vKR}
    v_xor_b32 v{vKR+2}, 128, v{vKR}
    v_xor_b32 v{vKR+3}, 192, v{vKR}
    v_lshlrev_b32 v{vX+6}, 8, v{vX+2}
    v_and_b32 v{vX+7}, 7, v{vX+2}
    v_lshl_add_u32 v{vX+6}, v{vX+7}, 5, v{vX+6}
    v_lshl_add_u32 v{vX+6}, v{vX+5}, 3, v{vX+6}
    v_add_u32 v{vVR}, s32, v{vX+6}
    ''')
    for ct in range(1,8): e(f'v_xor_b32 v{vVR+ct}, {ct<<5}, v{vVR}')
    e(f'''
    v_mov_b32 v{vFl}, {L_FLAG}
    v_mov_b32 v{vOne}, 1
    s_cmp_ge_u32 s2, 248
    s_cbranch_scc1 L_go2
    s_barrier
    L_go2:
    ''')
    K0=upos('K',0); V0=upos('V',0)
    for n in range(cfg.D0, K0+8): issue(n)
    NX=K0+16
    def stage(u):
        wait_landed(K0+u)
        for k in range(4):
            r=ST+(u%8)*16+4*k
            e(f'ds_read_b128 v[{r}:{r+3}], v{vKR+k} offset:{slot("K",u)}')
    def qk(u):
        for k in range(4):
            r=ST+(u%8)*16+4*k
            e(f'v_mfma_f32_16x16x32_bf16 v[{S+4*u}:{S+4*u+3}], v[{r}:{r+3}], v[{Q+4*k}:{Q+4*k+3}], '+('0' if k==0 else f'v[{S+4*u}:{S+4*u+3}]'))
    vM=vX; vLs=vX+1; t0=vX+2
    def rnd(u):
        for h in range(2):
            a0=S+4*u+2*h; a1=a0+1; t=t0+h
            if cfg.round_s:
                e(f'''v_cvt_pk_bf16_f32 v{t}, v{a0}, v{a1}
                v_lshlrev_b32 v{a0}, 16, v{t}
                v_and_b32 v{a1}, 0xffff0000, v{t}''')
            e(f'v_mul_f32 v{a0}, s42, v{a0}\nv_mul_f32 v{a1}, s42, v{a1}')
            if cfg.round_s:
                e(f'''v_cvt_pk_bf16_f32 v{t}, v{a0}, v{a1}
                v_lshlrev_b32 v{a0}, 16, v{t}
                v_and_b32 v{a1}, 0xffff0000, v{t}''')
            if u==0 and h==0: e(f'v_max_f32 v{vM}, v{a0}, v{a1}')
            else: e(f'v_max3_f32 v{vM}, v{vM}, v{a0}, v{a1}')
    for u in range(8):
        stage(u); e('s_waitcnt lgkmcnt(0)'); issue(K0+8+u)
    stamp(e,cfg,1)
    lds_spin(e,cfg,F_Q,1,vFl,vT)
    stamp(e,cfg,2)
    e(f'''
    v_and_b32 v{vX+6}, 7, v{vL}
    v_mul_u32_u24 v{vX+6}, {QSTR}, v{vX+6}
    v_lshrrev_b32 v{vX+7}, 4, v{vL}
    v_lshl_add_u32 v{vX+6}, v{vX+7}, 4, v{vX+6}
    v_add_u32 v{vX+6}, {L_QOP}, v{vX+6}
    s_mov_b32 s42, {SCALE:#x}
    s_mov_b32 s43, {LOG2E:#x}
    ''')
    for k in range(4): e(f'ds_read_b128 v[{Q+4*k}:{Q+4*k+3}], v{vX+6} offset:{64*k}')
    e('s_waitcnt lgkmcnt(0)')
    for u in range(D):
        qk(u); stage(8+u); e('s_waitcnt lgkmcnt(0)'); issue(NX+u)
    for u in range(D,8):
        qk(u); stage(8+u)
    e('s_waitcnt lgkmcnt(0)')
    for u in range(8,16): qk(u)
    nxt=[NX+D]
    def more():
        if nxt[0]<V0+8: issue(nxt[0]); nxt[0]+=1
    more()
    for u in range(16):
        rnd(u)
        if u in (5,10,15): more()
    e(f'''
    v_mov_b32 v{t0}, v{vM}
    v_permlane32_swap_b32 v{t0}, v{vM}
    v_max_f32 v{vM}, v{vM}, v{t0}
    v_mov_b32 v{t0}, v{vM}
    v_permlane16_swap_b32 v{t0}, v{vM}
    v_max_f32 v{vM}, v{vM}, v{t0}
    v_mul_f32 v{vM}, s43, v{vM}
    ''')
    for u in range(16):
        for r in range(4): e(f'v_fma_f32 v{S+4*u+r}, v{S+4*u+r}, s43, -v{vM}')
        for r in range(4): e(f'v_exp_f32 v{S+4*u+r}, v{S+4*u+r}')
        if u==0: e(f'v_add_f32 v{vLs}, v{S}, v{S+1}')
        else: e(f'v_add_f32 v{vLs}, v{vLs}, v{S+4*u}\nv_add_f32 v{vLs}, v{vLs}, v{S+4*u+1}')
        e(f'''v_cvt_pk_bf16_f32 v{P+2*u}, v{S+4*u}, v{S+4*u+1}
        v_add_f32 v{vLs}, v{vLs}, v{S+4*u+2}
        v_add_f32 v{vLs}, v{vLs}, v{S+4*u+3}
        v_cvt_pk_bf16_f32 v{P+2*u+1}, v{S+4*u+2}, v{S+4*u+3}''')
        if u in (7,): more()
    e(f'''
    v_mov_b32 v{t0}, v{vLs}
    v_permlane32_swap_b32 v{t0}, v{vLs}
    v_add_f32 v{vLs}, v{vLs}, v{t0}
    v_mov_b32 v{t0}, v{vLs}
    v_permlane16_swap_b32 v{t0}, v{vLs}
    v_add_f32 v{vLs}, v{vLs}, v{t0}
    s_lshl_b32 s40, s3, 6
    s_add_u32 s40, s40, {L_ML}
    v_lshl_add_u32 v{t0}, v{vL}, 3, s40
    s_mov_b64 exec, 0xff
    ds_write_b64 v{t0}, v[{vM}:{vM+1}]
    s_waitcnt lgkmcnt(0)
    s_mov_b64 exec, -1
    ''')
    lds_signal(e,F_ML,vFl,vOne)
    while nxt[0]<V0+8: more()
    stamp(e,cfg,3)
    for j in range(8):
        wait_landed(V0+2*j+1)
        if j==7: stamp(e,cfg,4)
        for ct in range(8):
            for hf in range(2):
                r=VF+4*ct+2*hf
                e(f'ds_read_b64_tr_b16 v[{r}:{r+1}], v{vVR+ct} offset:{slot("V",2*j+hf)}')
        for ct in range(8):
            e(f's_waitcnt lgkmcnt({14-2*ct})')
            e(f'v_mfma_f32_16x16x32_bf16 v[{O+4*ct}:{O+4*ct+3}], v[{VF+4*ct}:{VF+4*ct+3}], v[{P+4*j}:{P+4*j+3}], '+('0' if j==0 else f'v[{O+4*ct}:{O+4*ct+3}]'))
        for k in range(2):
            if V0+2*j+8+k < len(UNITS): issue(V0+2*j+8+k)
        if j==6:
            e(f'''
            v_and_b32 v{t0}, 15, v{vL}
            v_mul_u32_u24 v{t0}, {OSTR}, v{t0}
            v_lshrrev_b32 v{t0+1}, 4, v{vL}
            v_lshl_add_u32 v{t0}, v{t0+1}, 4, v{t0}
            v_add_u32 v{t0}, s32, v{t0}
            s_mov_b32 s40, 0x00ff00ff
            s_mov_b32 s41, 0x00ff00ff
            ''')
    e('s_mov_b64 exec, s[40:41]')
    for ct in range(8): e(f'ds_write_b128 v{t0}, v[{O+4*ct}:{O+4*ct+3}] offset:{64*ct}')
    e('s_waitcnt lgkmcnt(0)\ns_mov_b64 exec, -1')
    lds_signal(e,F_O,vFl,vOne)
    stamp(e,cfg,5)
    stamps_out(e,cfg,8,vX+4)
    if cfg.stamps:
        e(f'''s_lshl_b32 s40, s2, 2
        s_add_u32 s40, s40, s3
        s_lshl_b32 s40, s40, 8
        s_add_u32 s40, s40, {WS_STAMP+0x40000}
        v_lshl_add_u32 v46, v{vL}, 2, s40
        global_store_dword v46, v47, s[{P_WS}:{P_WS+1}]''')
    e('s_waitcnt lgkmcnt(0)\ns_endpgm')

SWS=44
def gather(e, cfg, loads, vchk, sleep, pre_exec=None, masked=True):
    l=e.label('Lg'); d=e.label('Lgd')
    e(f's_mov_b32 s41, 0')
    e(f'{l}:')
    regs=[]
    for ld in loads:
        dst,n,voff,soff,imm = ld[:5]
        op={1:'dword',2:'dwordx2',4:'dwordx4'}[n]
        ex = ld[5] if len(ld)>5 else None
        if ex: e(f's_mov_b64 s[42:43], exec\ns_and_b64 exec, exec, {ex}\ns_cbranch_execz {l}_s')
        e(f'buffer_load_{op} {v(dst,n)}, v{voff}, s[{SWS}:{SWS+3}], {soff} offen offset:{imm} sc1')
        if ex: e(f'{l}_s:\ns_mov_b64 exec, s[42:43]')
        regs+=list(range(dst,dst+n))
    e('s_waitcnt vmcnt(0)')
    if len(regs)==1: chk=regs[0]
    else:
        chk=vchk
        if len(regs)==2: e(f'v_max_u32 v{chk}, v{regs[0]}, v{regs[1]}'); rest=[]
        else: e(f'v_max3_u32 v{chk}, v{regs[0]}, v{regs[1]}, v{regs[2]}'); rest=regs[3:]
        while rest:
            if len(rest)==1: e(f'v_max_u32 v{chk}, v{chk}, v{rest[0]}'); rest=[]
            else: e(f'v_max3_u32 v{chk}, v{chk}, v{rest[0]}, v{rest[1]}'); rest=rest[2:]
    e(f'''
    v_cmp_eq_u32 vcc, -1, v{chk}
    s_add_u32 s41, s41, 1
    s_cbranch_vccz {d}
    ''')
    if masked: e('s_mov_b64 exec, vcc')
    if sleep: e(f's_sleep {sleep}')
    e(f'''
    s_cmp_lt_u32 s41, {cfg.gpoll}
    s_cbranch_scc1 {l}
    {d}:
    s_mov_b64 exec, -1
    ''')

def allreduce64(e, op, x, t):
    for r in (8,4,2,1):
        e(f'{op}_dpp v{x}, v{x}, v{x} row_ror:{r} row_mask:0xf bank_mask:0xf')
    for sw in ('v_permlane16_swap_b32','v_permlane32_swap_b32'):
        e(f'v_mov_b32 v{t}, v{x}\n{sw} v{t}, v{x}\n{op} v{x}, v{x}, v{t}')

def unpack(e, src, dst, n):
    for i in range(n):
        e(f'v_lshlrev_b32 v{dst+2*i}, 16, v{src+i}\nv_and_b32 v{dst+2*i+1}, 0xffff0000, v{src+i}')
def rnd_vec(e, x, n, t):
    for i in range(0,n,2):
        tt=t+((i//2)&1)
        e(f'v_cvt_pk_bf16_f32 v{tt}, v{x+i}, v{x+i+1}\nv_lshlrev_b32 v{x+i}, 16, v{tt}\nv_and_b32 v{x+i+1}, 0xffff0000, v{tt}')
def rnd1(e, x):
    e(f'v_cvt_pk_bf16_f32 v{x}, v{x}, v{x}\nv_lshlrev_b32 v{x}, 16, v{x}')

def layernorm(e, cfg, X, t):
    mu=t; var=t+1; a=t+2; b=t+3
    e(f'v_add_f32 v{mu}, v{X}, v{X+1}\nv_add_f32 v{a}, v{X+2}, v{X+3}')
    for i in range(4,16,2): e(f'v_add_f32 v{mu}, v{mu}, v{X+i}\nv_add_f32 v{a}, v{a}, v{X+i+1}')
    e(f'v_add_f32 v{mu}, v{mu}, v{a}')
    allreduce64(e,'v_add_f32',mu,a)
    e(f'v_mul_f32 v{mu}, 0x3a800000, v{mu}')
    e(f'v_sub_f32 v{a}, v{X}, v{mu}\nv_sub_f32 v{b}, v{X+1}, v{mu}\nv_mul_f32 v{var}, v{a}, v{a}\nv_mul_f32 v{t+4}, v{b}, v{b}')
    for i in range(2,16,2):
        e(f'v_sub_f32 v{a}, v{X+i}, v{mu}\nv_sub_f32 v{b}, v{X+i+1}, v{mu}\nv_fmac_f32 v{var}, v{a}, v{a}\nv_fmac_f32 v{t+4}, v{b}, v{b}')
    e(f'v_add_f32 v{var}, v{var}, v{t+4}')
    allreduce64(e,'v_add_f32',var,a)
    e(f'v_mul_f32 v{var}, 0x3a800000, v{var}')
    if cfg.round_ln:
        rnd1(e,mu); rnd1(e,var)
    e(f'v_add_f32 v{var}, 0x3727c5ac, v{var}')
    if cfg.round_ln: rnd1(e,var)
    e(f'v_sqrt_f32 v{var}, v{var}')
    if cfg.round_ln: rnd1(e,var)
    e(f'v_rcp_f32 v{var}, v{var}')
    for i in range(16): e(f'v_sub_f32 v{X+i}, v{X+i}, v{mu}')
    if cfg.round_ln: rnd_vec(e,X,16,a)
    for i in range(16): e(f'v_mul_f32 v{X+i}, v{X+i}, v{var}')
    if cfg.round_ln: rnd_vec(e,X,16,a)

def modulate(e, cfg, X, T1, SB, out, t):
    for i in range(16): e(f'v_mul_f32 v{X+i}, v{X+i}, v{T1+i}')
    if cfg.round_ln: rnd_vec(e,X,16,t)
    for i in range(16): e(f'v_add_f32 v{X+i}, v{X+i}, v{SB+i}')
    for i in range(8): e(f'v_cvt_pk_bf16_f32 v{out+i}, v{X+2*i}, v{X+2*i+1}')

def aux(e, cfg):
    vL=1; vFl=2; vOne=3; vT=4; vRow=5; vAs=6; vAr=7; vA=8
    W2=64; W13=96; WO=160; WJ=192
    sA=3
    e.c('================= aux waves =================')
    e('L_aux:')
    e(f'''
    s_setprio {cfg.prio}
    s_sub_u32 s3, s3, 4
    s_lshl_b32 s32, s3, 15
    v_lshlrev_b32 v{vRow}, 4, v{vL}
    v_mov_b32 v{vFl}, {L_FLAG}
    v_mov_b32 v{vOne}, 1
    v_mov_b32 v16, 0
    v_lshl_add_u32 v{vA+1}, v{vL}, 2, v{vFl}
    ds_write_b32 v{vA+1}, v16
    s_waitcnt lgkmcnt(0)
    ''')
    stamp(e,cfg,0)
    srd(e,SWS,P_WS,WS_END)
    lh=e.label('Lnohead')
    e(f'''
    v_mov_b32 v32, -1
    v_mov_b32 v33, -1
    v_mov_b32 v34, -1
    v_mov_b32 v35, -1
    s_cmp_lt_u32 s2, 248
    s_cbranch_scc1 {lh}
    s_cmp_lg_u32 s3, 3
    s_cbranch_scc1 {lh}
    s_sub_u32 s41, s2, 248
    s_mul_i32 s40, s41, 7168
    s_add_u32 s40, s40, {WS_MU}
    ''')
    for i in range(7):
        if i==4: e('s_add_u32 s40, s40, 4096')
        e(f'buffer_store_dwordx4 v[32:35], v{vRow}, s[{SWS}:{SWS+3}], s40 offen offset:{(i&3)*1024} sc1')
    e(f'''
    s_lshl_b32 s41, s41, 2
    v_mov_b32 v{vA+1}, s41
    s_waitcnt vmcnt(0)
    s_mov_b64 exec, 1
    global_store_dword v{vA+1}, v{vOne}, s[{P_DBG}:{P_DBG+1}] sc1
    s_mov_b64 exec, -1
    {lh}:
    ''')
    e(f'''
    s_lshl_b32 s40, s3, 11
    v_add_u32 v{vA}, s40, v{vRow}
    global_load_dwordx4 v[16:19], v{vA}, s[{P_C}:{P_C+1}]
    global_load_dwordx4 v[20:23], v{vA}, s[{P_C}:{P_C+1}] offset:1024
    global_load_dwordx4 v[24:27], v{vA}, s[{P_X}:{P_X+1}]
    global_load_dwordx4 v[28:31], v{vA}, s[{P_X}:{P_X+1}] offset:1024
    s_barrier
    s_mov_b32 s50, 0
    s_mul_i32 s40, s3, {ASTR}
    s_add_u32 s40, s40, {L_ASRC}
    v_add_u32 v{vAs}, s40, v{vRow}
    v_and_b32 v{vA+1}, 3, v{vL}
    v_mul_u32_u24 v{vAr}, {ASTR}, v{vA+1}
    v_lshrrev_b32 v{vA+2}, 4, v{vL}
    v_lshl_add_u32 v{vAr}, v{vA+2}, 4, v{vAr}
    s_lshl_b32 s40, s3, 9
    s_add_u32 s40, s40, {L_ASRC}
    v_add_u32 v{vAr}, s40, v{vAr}
    ''')
    lc=e.label('Lnoclr')
    e(f'''
    s_cmp_lg_u32 s3, 3
    s_cbranch_scc1 {lc}
    s_mul_i32 s40, s2, 5504
    buffer_store_dwordx4 v[32:35], v{vRow}, s[{SWS}:{SWS+3}], s40 offen sc1
    buffer_store_dwordx4 v[32:35], v{vRow}, s[{SWS}:{SWS+3}], s40 offen offset:1024 sc1
    buffer_store_dwordx4 v[32:35], v{vRow}, s[{SWS}:{SWS+3}], s40 offen offset:2048 sc1
    buffer_store_dwordx4 v[32:35], v{vRow}, s[{SWS}:{SWS+3}], s40 offen offset:3072 sc1
    s_add_u32 s40, s40, 4096
    buffer_store_dwordx4 v[32:35], v{vRow}, s[{SWS}:{SWS+3}], s40 offen sc1
    s_mov_b64 exec, 0xffffff
    buffer_store_dwordx4 v[32:35], v{vRow}, s[{SWS}:{SWS+3}], s40 offen offset:1024 sc1
    s_mov_b64 exec, -1
    {lc}:
    ''')
    def auxbar():
        e('s_add_u32 s50, s50, 4\ns_waitcnt lgkmcnt(0)')
        lds_signal(e,F_AUX,vFl,vOne)
        lds_spin(e,cfg,F_AUX,'s50',vFl,vT)
    def go1():
        l=e.label('Lgo'); d=e.label('Lgod'); la=e.label('Lnoarr')
        e(f'''
        s_cmp_lg_u32 s3, 3
        s_cbranch_scc1 {la}
        v_and_b32 v{vA}, 7, v{vL}
        v_lshlrev_b32 v{vA}, 2, v{vA}
        s_mov_b32 s41, 0
        {l}:
        global_load_dword v{vA+1}, v{vA}, s[{P_DBG}:{P_DBG+1}] sc1
        s_add_u32 s41, s41, 1
        s_waitcnt vmcnt(0)
        v_cmp_ne_u32 vcc, 1, v{vA+1}
        s_cbranch_vccz {d}
        s_sleep {cfg.sleep_head}
        s_cmp_lt_u32 s41, {cfg.gpoll}
        s_cbranch_scc1 {l}
        {d}:
        ''')
        stamp(e,cfg,15)
        e(f'''
        s_lshl_b32 s40, s2, 2
        s_add_u32 s40, s40, {WS_SA}
        v_mov_b32 v{vA}, 0
        s_mov_b64 exec, 1
        buffer_store_dword v{vOne}, v{vA}, s[{SWS}:{SWS+3}], s40 offen sc1
        s_mov_b64 exec, -1
        {la}:
        ''')
    def gbar1():
        l1=e.label('Lgb1')
        e(f's_cmp_lg_u32 s3, 0\ns_cbranch_scc1 {l1}\ns_mov_b32 s40, {WS_SA}')
        gather(e,cfg,[(16,4,vRow,'s40',0)],vT,cfg.sleep_head)
        e(f'{l1}:')
    def trbase(kind):
        e(f'v_lshrrev_b32 v{vA+4}, 4, v{vL}\nv_bfe_u32 v{vA+5}, v{vL}, 2, 2\nv_and_b32 v{vA+6}, 3, v{vL}')
        g,r,c=vA+4,vA+5,vA+6; t=vA+7
        if kind in ('J','J2'):
            e(f'''v_lshl_add_u32 v{t}, v{g}, 3, v{r}
            v_lshlrev_b32 v{vA}, 6, v{t}
            v_lshl_add_u32 v{vA}, v{c}, 3, v{vA}
            v_and_b32 v{t}, 1, v{g}
            v_lshl_add_u32 v{vA}, v{t}, 5, v{vA}
            v_add_u32 v{vA}, s32, v{vA}
            v_xor_b32 v{vA+1}, 32, v{vA}''')
        elif kind=='WO':
            e(f'''v_lshrrev_b32 v{t}, 2, v{vL}
            v_lshlrev_b32 v{vA}, 8, v{t}
            v_and_b32 v{t}, 7, v{t}
            v_lshl_add_u32 v{vA}, v{t}, 5, v{vA}
            v_lshl_add_u32 v{vA}, v{c}, 3, v{vA}
            v_add_u32 v{vA}, s32, v{vA}''')
        elif kind=='W13':
            e(f'''v_lshlrev_b32 v{vA}, 3, v{vL}
            v_add_u32 v{vA}, s32, v{vA}''')
        elif kind=='W2':
            e(f'''v_lshrrev_b32 v{t}, 5, v{vL}
            v_lshlrev_b32 v{vA}, 10, v{t}
            v_bfe_u32 v{t}, v{vL}, 2, 3
            v_lshl_add_u32 v{vA}, v{t}, 7, v{vA}
            v_lshrrev_b32 v{t}, 1, v{t}
            v_xor_b32 v{t}, s3, v{t}
            v_lshl_add_u32 v{vA}, v{t}, 5, v{vA}
            v_lshl_add_u32 v{vA}, v{c}, 3, v{vA}
            v_add_u32 v{vA+1}, 0x10000, v{vA}''')
    def pickup(kind):
        gi=GROUPS.index(kind)
        trbase(kind)
        lds_spin(e,cfg,F_LAND+4*gi,4,vFl,vT)
        if kind in ('J','J2'):
            for t in range(8):
                for ct in range(2):
                    for hf in range(2):
                        r=WJ+8*t+4*ct+2*hf
                        e(f'ds_read_b64_tr_b16 v[{r}:{r+1}], v{vA+ct} offset:{slot(kind,t>>1)+(t&1)*2048+hf*256}')
        elif kind=='WO':
            for ct in range(8):
                if ct: e(f'v_xor_b32 v{vA+1+(ct&1)}, {ct<<5}, v{vA}')
                for hf in range(2):
                    r=WO+4*ct+2*hf
                    e(f'ds_read_b64_tr_b16 v[{r}:{r+1}], v{vA+1+(ct&1) if ct else vA} offset:{slot(kind,hf)}')
        elif kind=='W13':
            for I in range(16):
                for hf in range(2):
                    r=W13+4*I+2*hf
                    e(f'ds_read_b64_tr_b16 v[{r}:{r+1}], v{vA} offset:{slot(kind,I>>2)+(I&3)*1024+512*hf}')
        elif kind=='W2':
            for t in range(8):
                for hf in range(2):
                    r=W2+4*t+2*hf
                    e(f'ds_read_b64_tr_b16 v[{r}:{r+1}], v{vA+(t>>2)} offset:{((t>>1)&1)*RING+slot(kind,t&1)+2*hf*1024}')
        e('s_waitcnt lgkmcnt(0)')
        lds_signal(e,F_CONS+4*gi,vFl,vOne)
    def skip_group(kind):
        lds_signal(e,F_CONS+4*GROUPS.index(kind),vFl,vOne)
    def gemv(W, acc=16, af=24):
        for t in range(8): e(f'ds_read_b128 v[{af+4*t}:{af+4*t+3}], v{vAr} offset:{64*t}')
        e(f'''
        s_lshl_b32 s40, s3, 9
        s_add_u32 s40, s40, {L_RED}
        v_add_u32 v{vA}, s40, v{vRow}
        ''')
        for t in range(8):
            e(f's_waitcnt lgkmcnt({7-t})')
            for ct in range(2):
                e(f'v_mfma_f32_16x16x32_bf16 v[{acc+4*ct}:{acc+4*ct+3}], v[{af+4*t}:{af+4*t+3}], v[{W+8*t+4*ct}:{W+8*t+4*ct+3}], '+('0' if t==0 else f'v[{acc+4*ct}:{acc+4*ct+3}]'))
        e(f'''
        s_mov_b64 exec, 0xffff
        ds_write_b128 v{vA}, v[{acc}:{acc+3}]
        ds_write_b128 v{vA}, v[{acc+4}:{acc+7}] offset:256
        s_mov_b64 exec, -1
        ''')
    def job_finish(base, rowshift, scol):
        e(f'''
        s_lshl_b32 s40, s3, 2
        s_add_u32 s40, s40, {L_RED}
        v_lshl_add_u32 v{vA}, v{vL}, 5, s40
        s_mov_b64 exec, 0xffff
        ds_read2_b32 v[16:17], v{vA} offset0:0 offset1:4
        ds_read2_b32 v[18:19], v{vA} offset0:128 offset1:132
        v_add_u32 v{vA}, 1024, v{vA}
        ds_read2_b32 v[20:21], v{vA} offset0:0 offset1:4
        ds_read2_b32 v[22:23], v{vA} offset0:128 offset1:132
        s_lshl_b32 s40, s3, {rowshift}
        s_lshl_b32 s41, {scol}, 6
        s_add_u32 s40, s40, s41
        s_add_u32 s40, s40, {base}
        v_lshlrev_b32 v{vA+1}, 2, v{vL}
        s_waitcnt lgkmcnt(0)
        v_add_f32 v16, v16, v18
        v_add_f32 v17, v17, v19
        v_add_f32 v20, v20, v22
        v_add_f32 v21, v21, v23
        v_add_f32 v16, v16, v20
        v_add_f32 v17, v17, v21
        v_cvt_pk_bf16_f32 v16, v16, v17
        v_min_u32 v16, -2, v16
        buffer_store_dword v16, v{vA+1}, s[{SWS}:{SWS+3}], s40 offen sc1
        s_mov_b64 exec, -1
        ''')
    def silu_row():
        e('s_waitcnt vmcnt(2)' if False else '')
        unpack(e,16,32,8)
        for i in range(16): e(f'v_mul_f32 v{48+i}, 0xbfb8aa3b, v{32+i}')
        for i in range(16): e(f'v_exp_f32 v{48+i}, v{48+i}')
        for i in range(16): e(f'v_add_f32 v{48+i}, 1.0, v{48+i}')
        for i in range(16): e(f'v_rcp_f32 v{48+i}, v{48+i}')
        for i in range(16): e(f'v_mul_f32 v{32+i}, v{32+i}, v{48+i}')
        for i in range(8): e(f'v_cvt_pk_bf16_f32 v{16+i}, v{32+2*i}, v{33+2*i}')
        e(f'ds_write_b128 v{vAs}, v[16:19]\nds_write_b128 v{vAs}, v[20:23] offset:1024')
    def gather_q():
        lq=e.label('Lnoq')
        e(f'''
        s_cmp_lg_u32 s3, 0
        s_cbranch_scc1 {lq}
        s_lshl_b32 s40, s37, 11
        s_add_u32 s40, s40, {WS_Q}
        ''')
        gather(e,cfg,[(16,4,vRow,'s40',0),(20,4,vRow,'s40',1024)],vT,cfg.sleep_head)
        e(f'''
        v_lshrrev_b32 v{vA}, 4, v{vL}
        v_mul_u32_u24 v{vA}, {QSTR}, v{vA}
        v_and_b32 v{vA+1}, 15, v{vL}
        v_lshl_add_u32 v{vA}, v{vA+1}, 4, v{vA}
        v_add_u32 v{vA}, {L_QOP}, v{vA}
        ds_write_b128 v{vA}, v[16:19]
        ds_write_b128 v{vA}, v[20:23] offset:{4*QSTR}
        s_waitcnt lgkmcnt(0)
        ''')
        lds_signal(e,F_Q,vFl,vOne)
        e(f'{lq}:')
    lw=e.label('Lw3'); lw2=e.label('Lw3d')
    e(f'''
    s_cmp_eq_u32 s3, 3
    s_cbranch_scc1 {lw}
    s_waitcnt vmcnt(0)
    s_branch {lw2}
    {lw}:
    s_waitcnt vmcnt(6)
    {lw2}:
    ''')
    stamp(e,cfg,14)
    e(f'''
    s_cmp_eq_u32 s33, 1
    s_cbranch_scc1 L_roleQ
    s_cmp_eq_u32 s33, 2
    s_cbranch_scc1 L_roleN
    ''')
    early = cfg.order=='A'
    e.c('---- role U')
    silu_row(); pickup('J'); auxbar(); gemv(WJ); go1(); auxbar()
    job_finish(WS_MU,12,'s39')
    stamp(e,cfg,1)
    if early: pickup('WO'); pickup('W13'); pickup('W2'); skip_group('J2')
    stamp(e,cfg,2)
    e('s_branch L_common')
    e('L_roleN:')
    silu_row(); pickup('J'); auxbar(); gemv(WJ); go1(); auxbar()
    def job1fin():
        gbar1(); auxbar()
        job_finish(WS_MN,13,'s39')
    def job2():
        pickup('J2')
        auxbar(); gemv(WJ); auxbar()
        e('s_add_u32 s51, s39, 8')
        job_finish(WS_MN,13,'s51')
    stamp(e,cfg,1)
    if early:
        pickup('WO'); pickup('W13'); pickup('W2'); job1fin(); job2()
    stamp(e,cfg,2)
    e('s_branch L_common')
    e('L_roleQ:')
    unpack(e,24,32,8)
    layernorm(e,cfg,32,16)
    pickup('J')
    go1()
    if early: pickup('WO'); pickup('W13'); pickup('W2'); skip_group('J2')
    auxbar()
    stamp(e,cfg,1)
    e(f's_lshl_b32 s40, s3, 12\ns_add_u32 s40, s40, {WS_MU}')
    gather(e,cfg,[(16,4,vRow,'s40',0),(20,4,vRow,'s40',1024),(24,4,vRow,'s40',2048),(28,4,vRow,'s40',3072)],vT,cfg.sleep_head)
    unpack(e,24,48,8)
    for i in range(16): e(f'v_add_f32 v{48+i}, 1.0, v{48+i}')
    if cfg.round_ln: rnd_vec(e,48,16,24)
    for i in range(16): e(f'v_mul_f32 v{32+i}, v{32+i}, v{48+i}')
    if cfg.round_ln: rnd_vec(e,32,16,24)
    unpack(e,16,48,8)
    for i in range(16): e(f'v_add_f32 v{32+i}, v{32+i}, v{48+i}')
    for i in range(8): e(f'v_cvt_pk_bf16_f32 v{16+i}, v{32+2*i}, v{33+2*i}')
    e(f'ds_write_b128 v{vAs}, v[16:19]\nds_write_b128 v{vAs}, v[20:23] offset:1024')
    auxbar(); gemv(WJ); auxbar()
    job_finish(WS_Q,13,'s39')
    stamp(e,cfg,2)
    e('L_common:')
    gather_q()
    stamp(e,cfg,3)
    lj=e.label('Lj2'); lk=e.label('Lj2d')
    if not early:
        pickup('WO'); pickup('W13'); pickup('W2')
        e(f's_cmp_eq_u32 s33, 2\ns_cbranch_scc1 {lj}')
        skip_group('J2'); gbar1()
        e(f's_branch {lk}\n{lj}:')
        job1fin(); job2()
        e(f'{lk}:')
    else:
        e(f's_cmp_eq_u32 s33, 2\ns_cbranch_scc1 {lk}')
        gbar1()
        e(f'{lk}:')
    auxbar()
    T1=224; SB=240; F=192; RX=196
    lds_spin(e,cfg,F_ML,4,vFl,vT)
    lm=e.label('Lnoml')
    e(f'''
    s_cmp_lg_u32 s3, 0
    s_cbranch_scc1 {lm}
    v_and_b32 v{vA}, 7, v{vL}
    v_lshlrev_b32 v{vA+1}, 3, v{vA}
    v_add_u32 v{vA}, {L_ML}, v{vA+1}
    ds_read_b64 v[16:17], v{vA}
    ds_read_b64 v[18:19], v{vA} offset:64
    ds_read_b64 v[20:21], v{vA} offset:128
    ds_read_b64 v[22:23], v{vA} offset:192
    s_lshl_b32 s40, s37, 10
    s_lshl_b32 s41, s38, 6
    s_add_u32 s40, s40, s41
    s_add_u32 s40, s40, {WS_ML}
    s_waitcnt lgkmcnt(0)
    v_max3_f32 v24, v16, v18, v20
    v_max_f32 v24, v24, v22
    v_sub_f32 v16, v16, v24
    v_sub_f32 v18, v18, v24
    v_sub_f32 v20, v20, v24
    v_sub_f32 v22, v22, v24
    v_exp_f32 v16, v16
    v_exp_f32 v18, v18
    v_exp_f32 v20, v20
    v_exp_f32 v22, v22
    v_mul_f32 v25, v16, v17
    v_fmac_f32 v25, v18, v19
    v_fmac_f32 v25, v20, v21
    v_fmac_f32 v25, v22, v23
    v_min_u32 v24, -2, v24
    v_min_u32 v25, -2, v25
    s_mov_b64 exec, 0xff
    buffer_store_dwordx2 v[24:25], v{vA+1}, s[{SWS}:{SWS+3}], s40 offen sc1
    s_mov_b64 exec, -1
    {lm}:
    ''')
    e(f's_lshl_b32 s40, s3, 13\ns_add_u32 s40, s40, {WS_MN+2048}')
    gather(e,cfg,[(16,4,vRow,'s40',0),(20,4,vRow,'s40',1024),(24,4,vRow,'s40',2048),(28,4,vRow,'s40',3072)],vT,cfg.sleep_head)
    unpack(e,16,SB,8); unpack(e,24,T1,8)
    for i in range(16): e(f'v_add_f32 v{T1+i}, 1.0, v{T1+i}')
    if cfg.round_ln: rnd_vec(e,T1,16,24)
    lr=e.label('Lnored')
    e(f'''
    s_cmp_ge_u32 s2, 64
    s_cbranch_scc1 {lr}
    s_cmp_lg_u32 s3, 0
    s_cbranch_scc1 {lr}
    v_and_b32 v{vA}, 15, v{vL}
    v_lshlrev_b32 v{vA}, 3, v{vA}
    v_lshrrev_b32 v{vA+1}, 5, v{vL}
    v_lshl_add_u32 v{vA}, v{vA+1}, 2, v{vA}
    s_lshl_b32 s40, s2, 7
    v_add_u32 v{vA+1}, s40, v{vA}
    global_load_dword v18, v{vA+1}, s[{P_X}:{P_X+1}]
    s_lshl_b32 s40, s38, 13
    s_lshl_b32 s51, s37, 7
    s_add_u32 s40, s40, s51
    s_add_u32 s40, s40, {WS_MN}
    s_add_u32 s51, s40, 6144
    ''')
    gather(e,cfg,[(16,1,vA,'s40',0),(17,1,vA,'s51',0)],vT,cfg.sleep_head)
    unpack(e,18,RX,1); unpack(e,16,RX+2,1); unpack(e,17,RX+4,1)
    e(f'{lr}:')
    e(f's_lshl_b32 s40, s37, 10\ns_add_u32 s40, s40, {WS_ML}')
    gather(e,cfg,[(16,4,vRow,'s40',0)],vT,cfg.sleep_head)
    e(f'''
    s_lshl_b32 s40, s3, 4
    s_add_u32 s40, s40, {L_ML}
    v_lshrrev_b32 v{vA+1}, 5, v{vL}
    v_lshl_add_u32 v{vA}, v{vA+1}, 3, s40
    ds_read_b32 v{F}, v{vA}
    ds_read_b32 v{F+1}, v{vA} offset:64
    ds_read_b32 v{F+2}, v{vA} offset:128
    ds_read_b32 v{F+3}, v{vA} offset:192
    v_mov_b32 v20, v16
    v_mov_b32 v21, v18
    ''')
    def allred_s(op, xs, t):
        for r in (4,8):
            for x in xs: e(f'{op}_dpp v{x}, v{x}, v{x} row_ror:{r} row_mask:0xf bank_mask:0xf')
        for sw in ('v_permlane16_swap_b32','v_permlane32_swap_b32'):
            for k,x in enumerate(xs): e(f'v_mov_b32 v{t+k}, v{x}')
            for k,x in enumerate(xs): e(f'{sw} v{t+k}, v{x}')
            for k,x in enumerate(xs): e(f'{op} v{x}, v{x}, v{t+k}')
    allred_s('v_max_f32',[20,21],24)
    e('''
    v_sub_f32 v16, v16, v20
    v_sub_f32 v18, v18, v21
    v_exp_f32 v16, v16
    v_exp_f32 v18, v18
    v_mul_f32 v22, v16, v17
    v_mul_f32 v23, v18, v19
    ''')
    allred_s('v_add_f32',[22,23],24)
    e(f'''
    v_readlane_b32 s40, v20, s3
    v_readlane_b32 s41, v21, s3
    v_readlane_b32 s42, v22, s3
    v_readlane_b32 s43, v23, s3
    v_cmp_gt_u32 vcc, 32, v{vL}
    v_mov_b32 v20, s40
    v_mov_b32 v21, s41
    v_mov_b32 v22, s42
    v_mov_b32 v23, s43
    v_cndmask_b32 v20, v21, v20, vcc
    v_cndmask_b32 v22, v23, v22, vcc
    v_rcp_f32 v22, v22
    s_waitcnt lgkmcnt(0)
    ''')
    for k in range(4): e(f'v_sub_f32 v{F+k}, v{F+k}, v20')
    for k in range(4): e(f'v_exp_f32 v{F+k}, v{F+k}')
    for k in range(4): e(f'v_mul_f32 v{F+k}, v{F+k}, v22')
    stamp(e,cfg,4)
    vOc=48; vOs=49; vH1=50; vRd=51; vRr=52; vYs=53; vRo=54; vH3=55; vZs=56; vHr=57; vHs=58
    e(f'''
    s_lshl_b32 s40, s3, 1
    v_lshrrev_b32 v{vA}, 5, v{vL}
    v_add_u32 v{vA}, s40, v{vA}
    v_mul_u32_u24 v{vOc}, {OSTR}, v{vA}
    v_and_b32 v{vA+1}, 31, v{vL}
    v_lshl_add_u32 v{vOc}, v{vA+1}, 4, v{vOc}
    v_add_u32 v{vOc+11}, 0x10000, v{vOc}
    v_lshlrev_b32 v{vOs}, 3, v{vL}
    s_lshl_b32 s52, s37, 15
    s_lshl_b32 s40, s38, 11
    s_add_u32 s52, s52, s40
    s_lshl_b32 s40, s3, 9
    s_add_u32 s52, s52, s40
    v_and_b32 v{vA}, 3, v{vL}
    v_lshlrev_b32 v{vH1}, 17, v{vA}
    v_bfe_u32 v{vA+1}, v{vL}, 2, 2
    v_lshl_add_u32 v{vH1}, v{vA+1}, 11, v{vH1}
    v_lshrrev_b32 v{vA+2}, 4, v{vL}
    v_lshl_add_u32 v{vH1}, v{vA+2}, 4, v{vH1}
    s_bfe_u32 s40, s2, 0x20003
    s_lshl_b32 s53, s40, 15
    s_and_b32 s40, s2, 7
    s_lshl_b32 s40, s40, 8
    s_add_u32 s53, s53, s40
    s_lshl_b32 s40, s3, 6
    s_add_u32 s53, s53, s40
    s_add_u32 s54, s53, 8192
    s_add_u32 s55, s53, 16384
    s_add_u32 s56, s53, 24576
    s_lshl_b32 s40, s3, 11
    s_add_u32 s40, s40, {L_RED}
    v_add_u32 v{vRd}, s40, v{vRow}
    s_lshl_b32 s40, s3, 2
    s_add_u32 s40, s40, {L_RED}
    v_lshl_add_u32 v{vRr}, v{vL}, 5, s40
    v_lshrrev_b32 v{vA}, 5, v{vL}
    v_lshlrev_b32 v{vYs}, 13, v{vA}
    v_and_b32 v{vA}, 31, v{vL}
    v_lshl_add_u32 v{vYs}, v{vA}, 3, v{vYs}
    s_lshl_b32 s57, s3, 17
    s_lshr_b32 s40, s2, 5
    s_lshl_b32 s40, s40, 14
    s_add_u32 s57, s57, s40
    s_and_b32 s40, s2, 31
    s_lshl_b32 s40, s40, 8
    s_add_u32 s57, s57, s40
    s_add_u32 s57, s57, {WS_Y}
    v_and_b32 v{vA}, 15, v{vL}
    v_lshlrev_b32 v{vRo}, 3, v{vA}
    v_lshrrev_b32 v{vA+1}, 5, v{vL}
    v_lshl_add_u32 v{vRo}, v{vA+1}, 2, v{vRo}
    ; H3a: (g>>1)*128 + (m>>2)*32 + (g&1)*16
    v_lshlrev_b32 v{vH3}, 7, v{vA+1}
    v_bfe_u32 v{vA+2}, v{vL}, 2, 2
    v_lshl_add_u32 v{vH3}, v{vA+2}, 5, v{vH3}
    v_bfe_u32 v{vA+2}, v{vL}, 4, 1
    v_lshl_add_u32 v{vH3}, v{vA+2}, 4, v{vH3}
    s_lshr_b32 s40, s36, 4
    s_lshl_b32 s58, s40, 11
    s_add_u32 s58, s58, {WS_HH}
    v_lshrrev_b32 v{vA+2}, 4, v{vL}
    v_mul_u32_u24 v{vZs}, {16*3584}, v{vA+2}
    v_lshl_add_u32 v{vZs}, v{vA}, 2, v{vZs}
    s_lshl_b32 s59, s40, 8
    s_and_b32 s40, s36, 15
    s_mul_i32 s40, s40, 3584
    s_add_u32 s59, s59, s40
    s_lshl_b32 s40, s3, 6
    s_add_u32 s59, s59, s40
    s_add_u32 s59, s59, {WS_Z}
    v_lshlrev_b32 v{vHr}, 4, v{vA}
    v_lshl_add_u32 v{vHr}, v{vA+2}, 2, v{vHr}
    v_add_u32 v{vHr}, {L_RED}, v{vHr}
    v_lshlrev_b32 v{vHs}, 1, v{vL}
    s_lshl_b32 s60, s36, 7
    s_add_u32 s60, s60, {WS_HH}
    s_mov_b32 s61, 0x3f80
    s_mov_b32 s62, 0x3f800000
    ''')
    e.c('---- tail: combine the four waves of this workgroup')
    lds_spin(e,cfg,F_O,4,vFl,vT)
    stamp(e,cfg,5)
    e(f'''
    ds_read_b128 v[16:19], v{vOc}
    ds_read_b128 v[20:23], v{vOc} offset:{RING}
    ds_read_b128 v[24:27], v{vOc+11}
    ds_read_b128 v[28:31], v{vOc+11} offset:{RING}
    s_waitcnt lgkmcnt(3)
    ''')
    for r in range(4): e(f'v_mul_f32 v{16+r}, v{16+r}, v{F}')
    for k in range(1,4):
        e(f's_waitcnt lgkmcnt({3-k})')
        for r in range(4): e(f'v_fmac_f32 v{16+r}, v{16+4*k+r}, v{F+k}')
    e(f'''
    v_cvt_pk_bf16_f32 v16, v16, v17
    v_cvt_pk_bf16_f32 v17, v18, v19
    v_min_u32 v16, -2, v16
    v_min_u32 v17, -2, v17
    buffer_store_dwordx2 v[16:17], v{vOs}, s[{SWS}:{SWS+3}], s52 offen sc1
    s_waitcnt vmcnt(0)
    ''')
    e.c('---- H1 + output projection')
    gather(e,cfg,[(16,4,vH1,'s53',0),(20,4,vH1,'s54',0),(24,4,vH1,'s55',0),(28,4,vH1,'s56',0)],vT,cfg.sleep_tail)
    stamp(e,cfg,6)
    for i in range(4):
        e(f'v_lshlrev_b32 v{32+2*i}, 16, v{16+i}\nv_and_b32 v{33+2*i}, 0xffff0000, v{16+i}')
    for j in range(1,4):
        for i in range(4):
            e(f'v_dot2_f32_bf16 v{32+2*i}, v{16+4*j+i}, s61, v{32+2*i}\nv_dot2_f32_bf16 v{33+2*i}, v{16+4*j+i}, s62, v{33+2*i}')
    for r in (4,8):
        for i in range(8): e(f'v_add_f32_dpp v{32+i}, v{32+i}, v{32+i} row_ror:{r} row_mask:0xf bank_mask:0xf')
    for i in range(4): e(f'v_cvt_pk_bf16_f32 v{16+i}, v{32+2*i}, v{33+2*i}')
    ACC=204-4
    ACC=16+4
    accs=[20,24,28,32,36,40,44,204]
    for ct in range(8): e(f'v_mfma_f32_16x16x32_bf16 v[{accs[ct]}:{accs[ct]+3}], v[16:19], v[{WO+4*ct}:{WO+4*ct+3}], 0')
    e('s_mov_b64 exec, 0xffff')
    for ct in range(8): e(f'ds_write_b128 v{vRd}, v[{accs[ct]}:{accs[ct]+3}] offset:{256*ct}')
    e(f'''
    s_mov_b64 exec, -1
    s_waitcnt lgkmcnt(0)
    s_barrier
    ds_read2_b32 v[16:17], v{vRr} offset0:0 offset1:4
    v_add_u32 v{vA}, 2048, v{vRr}
    ds_read2_b32 v[18:19], v{vA} offset0:0 offset1:4
    v_add_u32 v{vA+1}, 4096, v{vRr}
    ds_read2_b32 v[20:21], v{vA+1} offset0:0 offset1:4
    v_add_u32 v{vA+2}, 6144, v{vRr}
    ds_read2_b32 v[22:23], v{vA+2} offset0:0 offset1:4
    s_waitcnt lgkmcnt(2)
    v_add_f32 v16, v16, v18
    v_add_f32 v17, v17, v19
    s_waitcnt lgkmcnt(0)
    v_add_f32 v20, v20, v22
    v_add_f32 v21, v21, v23
    v_add_f32 v16, v16, v20
    v_add_f32 v17, v17, v21
    v_min_u32 v16, -2, v16
    v_min_u32 v17, -2, v17
    buffer_store_dwordx2 v[16:17], v{vYs}, s[{SWS}:{SWS+3}], s57 offen sc1
    s_cmp_ge_u32 s2, 224
    s_cbranch_scc1 L_fin
    s_waitcnt vmcnt(0)
    ''')
    stamp(e,cfg,7)
    def red_tail(n):
        for i in range(1,n):
            e(f'v_pk_add_f32 v[16:17], v[16:17], v[{16+4*i}:{17+4*i}]\nv_pk_add_f32 v[18:19], v[18:19], v[{18+4*i}:{19+4*i}]')
        e('''
        v_permlane32_swap_b32 v16, v18
        v_permlane32_swap_b32 v17, v19
        v_add_f32 v16, v16, v18
        v_add_f32 v17, v17, v19
        v_mov_b32 v18, v16
        v_mov_b32 v19, v17
        v_permlane16_swap_b32 v18, v16
        v_permlane16_swap_b32 v19, v17
        v_add_f32 v16, v16, v18
        v_add_f32 v17, v17, v19
        ''')
    def gate_res(G,X,dst):
        rnd_vec(e,16,2,18)
        e(f'v_mul_f32 v16, v16, v{G}\nv_mul_f32 v17, v17, v{G+1}')
        rnd_vec(e,16,2,18)
        e(f'v_add_f32 v16, v16, v{X}\nv_add_f32 v17, v17, v{X+1}\nv_cvt_pk_bf16_f32 v{dst}, v16, v17')
    e.c('---- H2a: reducers')
    l2=e.label('Lnoh2a')
    e(f'''
    s_cmp_ge_u32 s2, 64
    s_cbranch_scc1 {l2}
    s_cmp_lg_u32 s3, 0
    s_cbranch_scc1 {l2}
    s_lshl_b32 s40, s2, 13
    s_add_u32 s40, s40, {WS_Y}
    s_add_u32 s51, s40, 4096
    ''')
    gather(e,cfg,[(16+4*i,4,vRow,'s40' if i<4 else 's51',(i&3)*1024) for i in range(8)],vT,cfg.sleep_tail)
    red_tail(8)
    gate_res(RX+2,RX,16)
    e(f'''
    v_min_u32 v16, -2, v16
    s_lshl_b32 s40, s2, 7
    s_add_u32 s40, s40, {WS_X1}
    s_mov_b32 s42, 0xffff
    s_mov_b32 s43, 0xffff
    s_mov_b64 exec, s[42:43]
    buffer_store_dword v16, v{vRo}, s[{SWS}:{SWS+3}], s40 offen sc1
    s_mov_b64 exec, -1
    v_lshlrev_b32 v{RX}, 16, v16
    v_and_b32 v{RX+1}, 0xffff0000, v16
    s_waitcnt vmcnt(0)
    {l2}:
    ''')
    stamp(e,cfg,8)
    e.c('---- H2b + gate/up')
    e(f's_lshl_b32 s40, s3, 11\ns_add_u32 s40, s40, {WS_X1}')
    gather(e,cfg,[(16,4,vRow,'s40',0),(20,4,vRow,'s40',1024)],vT,cfg.sleep_tail)
    stamp(e,cfg,9)
    unpack(e,16,32,8)
    layernorm(e,cfg,32,16)
    modulate(e,cfg,32,T1,SB,16,24)
    e(f'''
    ds_write_b128 v{vAs}, v[16:19]
    ds_write_b128 v{vAs}, v[20:23] offset:1024
    s_waitcnt lgkmcnt(0)
    s_barrier
    ''')
    gemv(W13, acc=204, af=16)
    l5=e.label('Lnoh')
    e(f'''
    s_waitcnt lgkmcnt(0)
    s_barrier
    s_cmp_lg_u32 s3, 0
    s_cbranch_scc1 {l5}
    ds_read2_b32 v[16:17], v{vHr} offset0:0 offset1:64
    ds_read2_b32 v[18:19], v{vHr} offset0:128 offset1:192
    v_add_u32 v{vA}, 1024, v{vHr}
    ds_read2_b32 v[20:21], v{vA} offset0:0 offset1:64
    ds_read2_b32 v[22:23], v{vA} offset0:128 offset1:192
    s_waitcnt lgkmcnt(2)
    v_add_f32 v16, v16, v18
    v_add_f32 v17, v17, v19
    s_waitcnt lgkmcnt(0)
    v_add_f32 v20, v20, v22
    v_add_f32 v21, v21, v23
    v_add_f32 v16, v16, v20
    v_add_f32 v17, v17, v21
    ''')
    rnd_vec(e,16,2,18)
    e(f'''
    v_mul_f32 v18, 0xbfb8aa3b, v16
    v_exp_f32 v18, v18
    v_add_f32 v18, 1.0, v18
    v_rcp_f32 v18, v18
    v_mul_f32 v16, v16, v18
    ''')
    rnd1(e,16)
    e(f'''
    v_mul_f32 v16, v16, v17
    v_mov_b32_dpp v17, v16 quad_perm:[1,1,3,3] row_mask:0xf bank_mask:0xf
    v_cvt_pk_bf16_f32 v16, v16, v17
    v_min_u32 v16, -2, v16
    s_mov_b32 s42, 0x55555555
    s_mov_b32 s43, 0x55555555
    s_mov_b64 exec, s[42:43]
    buffer_store_dword v16, v{vHs}, s[{SWS}:{SWS+3}], s60 offen sc1
    s_mov_b64 exec, -1
    s_waitcnt vmcnt(0)
    {l5}:
    s_barrier
    ''')
    stamp(e,cfg,10)
    e.c('---- H3a + down projection')
    gather(e,cfg,[(16+4*t,4,vH3,'s58',256*t) for t in range(8)],vT,cfg.sleep_tail)
    stamp(e,cfg,11)
    for t in range(8):
        acc=204+4*(t&1)
        e(f'v_mfma_f32_16x16x32_bf16 v[{acc}:{acc+3}], v[{16+4*t}:{19+4*t}], v[{W2+4*t}:{W2+4*t+3}], '+('0' if t<2 else f'v[{acc}:{acc+3}]'))
    e(f'''
    v_add_f32 v16, v204, v208
    v_min_u32 v16, -2, v16
    buffer_store_dword v16, v{vZs}, s[{SWS}:{SWS+3}], s59 offen sc1
    s_cmp_ge_u32 s2, 64
    s_cbranch_scc1 L_fin
    s_waitcnt vmcnt(0)
    s_barrier
    s_cmp_lg_u32 s3, 0
    s_cbranch_scc1 L_fin
    s_mul_i32 s40, s2, 3584
    s_add_u32 s40, s40, {WS_Z}
    v_mov_b32 v28, 0
    v_mov_b32 v29, 0
    v_mov_b32 v30, 0
    v_mov_b32 v31, 0
    s_mov_b32 s52, -1
    s_mov_b32 s53, 0
    ''')
    e.c('---- H3b: final reducers')
    gather(e,cfg,[(16,4,vRow,'s40',0),(20,4,vRow,'s40',1024),(24,4,vRow,'s40',2048),(28,4,vRow,'s40',3072,'s[52:53]')],vT,cfg.sleep_tail)
    stamp(e,cfg,12)
    red_tail(4)
    gate_res(RX+4,RX,16)
    e(f'''
    s_lshl_b32 s40, s2, 7
    v_add_u32 v{vA}, s40, v{vRo}
    s_mov_b32 s42, 0xffff
    s_mov_b32 s43, 0xffff
    s_mov_b64 exec, s[42:43]
    global_store_dword v{vA}, v16, s[{P_OUT}:{P_OUT+1}]
    s_mov_b64 exec, -1
    L_fin:
    ''')
    stamp(e,cfg,13)
    if cfg.stamps: e('s_add_u32 s3, s3, 4')
    stamps_out(e,cfg,16,vA)
    e('s_endpgm')

def gen(cfg):
    set_order(cfg.order)
    e=A()
    e(f'''
    s_cmp_ge_u32 s2, 256
    s_cbranch_scc1 L_exit
    s_load_dwordx16 s[4:19], s[0:1], 0
    s_load_dwordx8 s[20:27], s[0:1], 64
    s_load_dwordx4 s[28:31], s[0:1], 96
    v_lshrrev_b32 v2, 6, v0
    v_and_b32 v1, 63, v0
    v_readfirstlane_b32 s3, v2
    ''')
    if cfg.codepf:
        e(f'''
        s_getpc_b64 s[48:49]
        L_pc:
        s_sub_u32 s48, s48, L_pc-{KN}
        s_subb_u32 s49, s49, 0
        v_and_b32 v3, 0xff, v0
        v_lshlrev_b32 v3, 7, v3
        s_cmp_ge_u32 s3, 4
        s_cbranch_scc1 L_nopf
        global_load_dword v255, v3, s[48:49]
        L_nopf:
        ''')
    roles(e)
    e('s_cmp_ge_u32 s3, 4\ns_cbranch_scc1 L_aux')
    stream(e,cfg)
    aux(e,cfg)
    e('L_exit:\ns_endpgm')
    e('.p2align 8\n.fill (32768+256-(.-'+KN+'))/4, 4, 0xbf800000')
    hdr = open('adaLN_cond__gqa_block_cached__glu_gated_swiglu__decode.s.ref').read().split('; Override launch')[0] if False else ''
    hdr += f'; fused adaLN + GQA decode attention + SwiGLU block, one launch (generated by gen1.py)\n; @launch grid=(256,1,1) block=(512,1,1) lds={LDS_BYTES}\n.amdgcn_target "amdgcn-amd-amdhsa--gfx950"\n'
    return hdr + khead(KN) + e.text() + kd(KN, 256)

if __name__=='__main__':
    cfg=Cfg()
    out=sys.argv[1]
    for kv in sys.argv[2:]:
        k,val=kv.split('=')
        cur=getattr(cfg,k)
        setattr(cfg,k, (val not in ('0','False')) if isinstance(cur,bool) else type(cur)(val) if not isinstance(cur,int) else int(val,0))
    open(out,'w').write(gen(cfg))
```

```python
import sys
from asmgen import *
KN='adaLN_cond__gqa_block_cached__glu_gated_swiglu__decode_kernel'

WS_O   = 0x000000
WS_Y   = 0x080000
WS_GU  = 0x100000
WS_Z   = 0x1E0000
WS_MN  = 0x250000
WS_ML  = 0x290000
WS_X1  = 0x294000
WS_FLAT= 0x298000
WS_MU  = 0x298000
WS_Q   = 0x2B8000
WS_SA  = 0x2F8000
WS_END = 0x2F8400
HEADSH = 12320
WS_STAMP = 0x400000
RING = 0x8000
L_RED  = 0x20000
L_QOP  = 0x24000; QSTR = 272
L_ML   = 0x24900
L_ST   = 0x24A00
L_FLAG = 0x24B00
LDS_BYTES = 0x24C00
OSTR = 528
F_LAND = 0
F_CONS = 32
F_Q = 64; F_ML = 68; F_O = 72; F_AUX = 76; F_V = 80; F_F = 84
P_X,P_K,P_V,P_WQ,P_WO,P_BX,P_W1,P_W3,P_W2,P_C,P_WM,P_OUT,P_DBG,P_WS = [4+2*i for i in range(14)]
LOG2E = 0x3fb8aa3b
SCALE = 0x3db504f3

class Cfg:
    D=2; D0=4
    N=4
    NV=4
    deep=16
    vsig=3
    sleep_ml=32
    pol='nt'
    stamps=False
    round_s=True
    round_ln=True
    sleep_head=8
    sleep_tail=1
    order='A'
    prio=2
    gpoll=8192
    lpoll=1<<17

from gen1 import lds_signal, stamp, srd, allreduce64, unpack, rnd_vec, rnd1
import gen1
gen1.WS_STAMP = WS_STAMP
from gen1 import stamps_out, lds_spin, gather
SWS=44

def roles(e):
    e('''
    s_and_b32 s37, s2, 15
    s_lshr_b32 s38, s2, 4
    s_and_b32 s36, s2, 3
    s_cmp_ge_u32 s2, 64
    s_cselect_b32 s33, 1, 0
    s_cselect_b32 s40, 16, 0
    s_cmp_ge_u32 s2, 192
    s_cselect_b32 s33, 2, s33
    s_cselect_b32 s40, 32, s40
    s_lshr_b32 s39, s2, 2
    s_sub_u32 s39, s39, s40
    s_cmp_eq_u32 s33, 1
    s_mov_b32 s35, 12288
    s_cselect_b32 s35, 8192, s35
    s_lshl_b32 s40, s36, 8
    s_mul_i32 s34, s40, s35
    s_lshl_b32 s40, s39, 8
    s_add_u32 s34, s34, s40
    s_and_b32 s40, s2, 7
    s_mul_i32 s63, s40, 28
    s_lshr_b32 s40, s2, 3
    s_add_u32 s63, s63, s40
    ''')

UNITS=[]
GROUPS=['J','WO','XA','XB']
def set_order(order):
    U=lambda k,n: [(k,i) for i in range(n)]
    W=U('WO',2)+U('XA',4)+U('XB',4)
    if order=='A': UNITS[:] = U('J',4)+W+U('K',16)+U('V',16)
    elif order=='B': UNITS[:] = U('J',4)+U('K',16)+W+U('V',16)
def upos(kind,i): return UNITS.index((kind,i))
def slot(kind,i): return (upos(kind,i)%8)*4096

def stream(e, cfg):
    D=cfg.D; pol=cfg.pol
    vL=1; vK=2; vV=6; vW=8; vSw=10; vR=12; vFl=13; vOne=14; vT=15
    vKR=16; vVR=20; vX=28
    Q=48; S=64; ST=128; P=128; O=160; VF=192
    SK,SV,SW = 44,48,52
    e.c('================= stream waves =================')
    e('L_stream:')
    stamp(e,cfg,0)
    e(f'''
    v_lshrrev_b32 v{vR}, 4, v{vL}
    v_and_b32 v{vX+1}, 15, v{vL}
    v_lshlrev_b32 v{vX+6}, 1, v{vR}
    v_xor_b32 v{vX+6}, v{vX+6}, v{vX+1}
    v_lshlrev_b32 v{vSw}, 4, v{vX+6}
    v_xor_b32 v{vSw+1}, 128, v{vSw}
    s_lshl_b32 s32, s3, 15
    s_mov_b32 s{SW+3}, 0x20000
    s_cmp_lt_u32 s2, 224
    s_cbranch_scc1 L_go
    s_barrier
    L_go:
    s_waitcnt lgkmcnt(0)
    ''')
    st = dict(issued=0, landed=-1, signaled=set())
    def dma(voff, srdreg, soff, i):
        e(f'buffer_load_dwordx4 v{voff}, s[{srdreg}:{srdreg+3}], {soff} offen offset:{i*1024} {pol} lds')
    def tile_setup(kind, t):
        def ptr(a,b): e(f's_cselect_b32 s{SW}, s{a}, s{b}\ns_cselect_b32 s{SW+1}, s{a+1}, s{b+1}')
        if kind=='J':
            if t==0:
                e('s_cmp_eq_u32 s33, 1'); ptr(P_WQ,P_WM)
                e(f'''s_mov_b32 s{SW+2}, {1024*6144*2}
                s_cselect_b32 s{SW+2}, {1024*4096*2}, s{SW+2}
                s_mov_b32 s56, s35
                s_lshl_b32 s40, s3, 6
                s_mul_i32 s58, s40, s35
                s_add_u32 s58, s58, s34
                s_mov_b32 s57, s58''')
            else: e('s_lshl_b32 s40, s35, 5\ns_add_u32 s57, s58, s40')
        elif kind=='WO':
            e(f'''s_mov_b32 s{SW}, s{P_WO}
            s_mov_b32 s{SW+1}, s{P_WO+1}
            s_mov_b32 s{SW+2}, {4096*1024*2}
            s_mov_b32 s56, 2048
            s_and_b32 s40, s2, 31
            s_lshl_b32 s57, s40, 18
            s_lshl_b32 s40, s3, 16
            s_add_u32 s57, s57, s40
            s_lshr_b32 s40, s2, 5
            s_lshl_b32 s40, s40, 8
            s_add_u32 s57, s57, s40''')
        elif kind=='XA':
            if t==0:
                e(f'''s_and_b32 s40, s2, 7
                s_lshl_b32 s40, s40, 2
                s_add_u32 s40, s40, s3
                s_mul_i32 s59, s40, {32*7168}
                s_lshr_b32 s40, s2, 3
                s_lshl_b32 s40, s40, 8
                s_add_u32 s59, s59, s40''')
            e(f's_add_u32 s40, s58, {2048+t*32*12288}\ns_cmp_lt_u32 s2, 224')
            ptr(P_W3 if t else P_W1, P_WM)
            e(f'''s_mov_b32 s{SW+2}, {1024*6144*2}
            s_cselect_b32 s{SW+2}, {1024*3584*2}, s{SW+2}
            s_mov_b32 s56, 12288
            s_cselect_b32 s56, 7168, s56
            s_cselect_b32 s57, s59, s40''')
        elif kind=='XB':
            if t==0:
                e(f'''s_lshr_b32 s40, s63, 3
                s_lshl_b32 s59, s40, 18
                s_lshl_b32 s40, s3, 16
                s_add_u32 s59, s59, s40
                s_and_b32 s40, s63, 7
                s_lshl_b32 s40, s40, 8
                s_add_u32 s59, s59, s40''')
            e(f's_add_u32 s40, s58, {4096+t*32*12288}\ns_cmp_lt_u32 s2, 224')
            ptr(P_W2, P_WM)
            e(f'''s_mov_b32 s{SW+2}, {1024*6144*2}
            s_cselect_b32 s{SW+2}, {0 if t else 1024*3584*2}, s{SW+2}
            s_mov_b32 s56, 12288
            s_cselect_b32 s56, 2048, s56
            s_cselect_b32 s57, s59, s40''')
        e(f'''v_mad_u32_u24 v{vW}, v{vR}, s56, v{vSw}
        v_mad_u32_u24 v{vW+1}, v{vR}, s56, v{vSw+1}
        s_lshl_b32 s60, s56, 3
        s_sub_u32 s60, s60, 1024
        s_lshl_b32 s61, s56, 2''')
    def emit_unit(n):
        kind,i = UNITS[n]
        if kind in GROUPS:
            if (i&1)==0: tile_setup(kind,i>>1); e('s_mov_b32 s41, s57')
            else: e('s_add_u32 s41, s57, s61')
            e(f's_add_u32 m0, s32, {(n%8)*4096}')
            for k in range(4):
                dma(vW+(k&1), SW, 's41', k)
                if k<3: e('s_add_u32 s41, s41, s60')
        else:
            e(f's_add_u32 s41, s62, {i*16384}\ns_add_u32 m0, s32, {(n%8)*4096}')
            for k in range(4):
                dma((vK+k) if kind=='K' else (vV+(k&1)), SK if kind=='K' else SV, 's41', k)
    def note_landed(n):
        st['landed']=max(st['landed'],n)
        for gi,g in enumerate(GROUPS):
            last=max(k for k,u in enumerate(UNITS) if u[0]==g)
            if last<=st['landed'] and g not in st['signaled']:
                st['signaled'].add(g); lds_signal(e, F_LAND+4*gi, vFl, vOne)
                if g=='J': stamp(e,cfg,6)
    consumed=set()
    def issue(n):
        assert n==st['issued']
        if n>=cfg.D0:
            N = cfg.NV if n>=upos('V',0)+cfg.deep else cfg.N
            full = n-1-(N+3)//4
            if st['landed']<n-1-N//4:
                e(f's_waitcnt vmcnt({N})'); note_landed(full)
        if n>=8:
            g=UNITS[n-8][0]
            if g in GROUPS and g not in consumed:
                last=max(k for k,u in enumerate(UNITS) if u[0]==g)
                if g not in st['signaled']: wait_landed(last)
                consumed.add(g); lds_spin(e,cfg,F_CONS+4*GROUPS.index(g),4,vFl,vT)
                if g=='J': stamp(e,cfg,7)
        if cfg.stamps: e(f's_memrealtime s[82:83]\ns_waitcnt lgkmcnt(0)\nv_writelane_b32 v47, s82, {n}')
        emit_unit(n); st['issued']=n+1
    def wait_landed(n):
        if st['landed']>=n: return
        e(f's_waitcnt vmcnt({4*(st["issued"]-1-n)})'); note_landed(n)
    for n in range(cfg.D0): issue(n)
    srd(e,SK,P_K,0x4000000); srd(e,SV,P_V,0x4000000)
    e(f'''
    s_lshl_b32 s62, s37, 22
    s_lshl_b32 s40, s38, 18
    s_add_u32 s62, s62, s40
    s_lshl_b32 s40, s3, 12
    s_add_u32 s62, s62, s40
    v_xor_b32 v{vX+6}, v{vX+1}, v{vR}
    v_lshlrev_b32 v{vX+7}, 8, v{vR}
    v_lshl_add_u32 v{vK}, v{vX+6}, 4, v{vX+7}
    v_xor_b32 v{vK+1}, 64, v{vK}
    v_xor_b32 v{vK+2}, 128, v{vK}
    v_xor_b32 v{vK+3}, 192, v{vK}
    v_add_u32 v{vV}, v{vSw}, v{vX+7}
    v_add_u32 v{vV+1}, v{vSw+1}, v{vX+7}
    v_lshlrev_b32 v{vX+7}, 8, v{vX+1}
    v_lshl_add_u32 v{vKR}, v{vX+6}, 4, v{vX+7}
    v_add_u32 v{vKR}, s32, v{vKR}
    v_xor_b32 v{vKR+1}, 64, v{vKR}
    v_xor_b32 v{vKR+2}, 128, v{vKR}
    v_xor_b32 v{vKR+3}, 192, v{vKR}
    v_lshrrev_b32 v{vX+2}, 2, v{vL}
    v_and_b32 v{vX+5}, 3, v{vL}
    v_lshlrev_b32 v{vX+6}, 8, v{vX+2}
    v_and_b32 v{vX+7}, 7, v{vX+2}
    v_lshl_add_u32 v{vX+6}, v{vX+7}, 5, v{vX+6}
    v_lshl_add_u32 v{vX+6}, v{vX+5}, 3, v{vX+6}
    v_add_u32 v{vVR}, s32, v{vX+6}
    ''')
    for ct in range(1,8): e(f'v_xor_b32 v{vVR+ct}, {ct<<5}, v{vVR}')
    e(f'''
    v_mov_b32 v{vFl}, {L_FLAG}
    v_mov_b32 v{vOne}, 1
    s_cmp_ge_u32 s2, 224
    s_cbranch_scc1 L_go2
    s_barrier
    L_go2:
    ''')
    K0=upos('K',0); V0=upos('V',0); NX=K0+16
    for n in range(cfg.D0, K0+8): issue(n)
    def stage(u):
        wait_landed(K0+u)
        for k in range(4):
            r=ST+(u%8)*16+4*k
            e(f'ds_read_b128 v[{r}:{r+3}], v{vKR+k} offset:{slot("K",u)}')
    def qk(u):
        for k in range(4):
            r=ST+(u%8)*16+4*k
            e(f'v_mfma_f32_16x16x32_bf16 v[{S+4*u}:{S+4*u+3}], v[{r}:{r+3}], v[{Q+4*k}:{Q+4*k+3}], '+('0' if k==0 else f'v[{S+4*u}:{S+4*u+3}]'))
    vM=vX; vLs=vX+1; t0=vX+2
    def rnd(u):
        for h in range(2):
            a0=S+4*u+2*h; a1=a0+1; t=t0+h
            if cfg.round_s:
                e(f'''v_cvt_pk_bf16_f32 v{t}, v{a0}, v{a1}
                v_lshlrev_b32 v{a0}, 16, v{t}
                v_and_b32 v{a1}, 0xffff0000, v{t}''')
            e(f'v_mul_f32 v{a0}, s42, v{a0}\nv_mul_f32 v{a1}, s42, v{a1}')
            if cfg.round_s:
                e(f'''v_cvt_pk_bf16_f32 v{t}, v{a0}, v{a1}
                v_lshlrev_b32 v{a0}, 16, v{t}
                v_and_b32 v{a1}, 0xffff0000, v{t}''')
            if u==0 and h==0: e(f'v_max_f32 v{vM}, v{a0}, v{a1}')
            else: e(f'v_max3_f32 v{vM}, v{vM}, v{a0}, v{a1}')
    for u in range(8):
        stage(u); e('s_waitcnt lgkmcnt(0)'); issue(K0+8+u)
    stamp(e,cfg,1)
    lds_spin(e,cfg,F_Q,4,vFl,vT)
    stamp(e,cfg,2)
    e(f'''
    v_and_b32 v{vX+6}, 7, v{vL}
    v_mul_u32_u24 v{vX+6}, {QSTR}, v{vX+6}
    v_lshl_add_u32 v{vX+6}, v{vR}, 4, v{vX+6}
    v_add_u32 v{vX+6}, {L_QOP}, v{vX+6}
    s_mov_b32 s42, {SCALE:#x}
    s_mov_b32 s43, {LOG2E:#x}
    ''')
    for k in range(4): e(f'ds_read_b128 v[{Q+4*k}:{Q+4*k+3}], v{vX+6} offset:{64*k}')
    e('s_waitcnt lgkmcnt(0)')
    for u in range(D):
        qk(u); stage(8+u); e('s_waitcnt lgkmcnt(0)'); issue(NX+u)
    for u in range(D,8):
        qk(u); stage(8+u)
    e('s_waitcnt lgkmcnt(0)')
    for u in range(8,16): qk(u)
    nxt=[NX+D]
    def more():
        if nxt[0]<V0+8: issue(nxt[0]); nxt[0]+=1
    more()
    for u in range(16):
        rnd(u)
        if u in (5,10,15): more()
    e(f'''
    v_mov_b32 v{t0}, v{vM}
    v_permlane32_swap_b32 v{t0}, v{vM}
    v_max_f32 v{vM}, v{vM}, v{t0}
    v_mov_b32 v{t0}, v{vM}
    v_permlane16_swap_b32 v{t0}, v{vM}
    v_max_f32 v{vM}, v{vM}, v{t0}
    v_mul_f32 v{vM}, s43, v{vM}
    ''')
    for u in range(16):
        for r in range(4): e(f'v_fma_f32 v{S+4*u+r}, v{S+4*u+r}, s43, -v{vM}')
        for r in range(4): e(f'v_exp_f32 v{S+4*u+r}, v{S+4*u+r}')
        if u==0: e(f'v_add_f32 v{vLs}, v{S}, v{S+1}')
        else: e(f'v_add_f32 v{vLs}, v{vLs}, v{S+4*u}\nv_add_f32 v{vLs}, v{vLs}, v{S+4*u+1}')
        e(f'''v_cvt_pk_bf16_f32 v{P+2*u}, v{S+4*u}, v{S+4*u+1}
        v_add_f32 v{vLs}, v{vLs}, v{S+4*u+2}
        v_add_f32 v{vLs}, v{vLs}, v{S+4*u+3}
        v_cvt_pk_bf16_f32 v{P+2*u+1}, v{S+4*u+2}, v{S+4*u+3}''')
        if u in (7,): more()
    e(f'''
    v_mov_b32 v{t0}, v{vLs}
    v_permlane32_swap_b32 v{t0}, v{vLs}
    v_add_f32 v{vLs}, v{vLs}, v{t0}
    v_mov_b32 v{t0}, v{vLs}
    v_permlane16_swap_b32 v{t0}, v{vLs}
    v_add_f32 v{vLs}, v{vLs}, v{t0}
    s_lshl_b32 s40, s3, 6
    s_add_u32 s40, s40, {L_ML}
    v_lshl_add_u32 v{t0}, v{vL}, 3, s40
    s_mov_b64 exec, 0xff
    ds_write_b64 v{t0}, v[{vM}:{vM+1}]
    s_waitcnt lgkmcnt(0)
    s_mov_b64 exec, -1
    ''')
    lds_signal(e,F_ML,vFl,vOne)
    stamp(e,cfg,3)
    while nxt[0]<V0+8: more()
    for j in range(8):
        wait_landed(V0+2*j+1)
        if j==7: stamp(e,cfg,4)
        for ct in range(8):
            for hf in range(2):
                r=VF+4*ct+2*hf
                e(f'ds_read_b64_tr_b16 v[{r}:{r+1}], v{vVR+ct} offset:{slot("V",2*j+hf)}')
        for ct in range(8):
            e(f's_waitcnt lgkmcnt({14-2*ct})')
            e(f'v_mfma_f32_16x16x32_bf16 v[{O+4*ct}:{O+4*ct+3}], v[{VF+4*ct}:{VF+4*ct+3}], v[{P+4*j}:{P+4*j+3}], '+('0' if j==0 else f'v[{O+4*ct}:{O+4*ct+3}]'))
        for k in range(2):
            if V0+2*j+8+k < len(UNITS): issue(V0+2*j+8+k)
        if j==cfg.vsig: lds_signal(e,F_V,vFl,vOne)
        if j==6:
            e(f'''
            v_and_b32 v{t0}, 15, v{vL}
            v_mul_u32_u24 v{t0}, {OSTR}, v{t0}
            v_lshl_add_u32 v{t0}, v{vR}, 4, v{t0}
            v_add_u32 v{t0}, s32, v{t0}
            v_add_u32 v{t0}, {(slot('V',15)+4096)%RING}, v{t0}
            s_mov_b32 s40, 0x00ff00ff
            s_mov_b32 s41, 0x00ff00ff
            ''')
    e('s_mov_b64 exec, s[40:41]')
    for ct in range(8): e(f'ds_write_b128 v{t0}, v[{O+4*ct}:{O+4*ct+3}] offset:{64*ct}')
    e('s_waitcnt lgkmcnt(0)\ns_mov_b64 exec, -1')
    lds_signal(e,F_O,vFl,vOne)
    stamp(e,cfg,5)
    stamps_out(e,cfg,8,vX+4)
    if cfg.stamps:
        e(f'''s_lshl_b32 s40, s2, 2
        s_add_u32 s40, s40, s3
        s_lshl_b32 s40, s40, 8
        s_add_u32 s40, s40, {WS_STAMP+0x40000}
        v_lshl_add_u32 v46, v{vL}, 2, s40
        global_store_dword v46, v47, s[{P_WS}:{P_WS+1}]''')
    e('s_waitcnt lgkmcnt(0)\ns_endpgm')

def aux(e, cfg):
    vL=1; vFl=2; vOne=3; vT=4; vRow=5; vRd=6; vRr=7; vA=8
    X2=64; X0=96; X1=128; WO=160; WJ=192
    OOFF=(slot('V',15)+4096)%RING
    e.c('================= aux waves =================')
    e('L_aux:')
    e(f'''
    s_setprio {cfg.prio}
    s_sub_u32 s3, s3, 4
    s_lshl_b32 s32, s3, 15
    v_lshlrev_b32 v{vRow}, 4, v{vL}
    v_mov_b32 v{vFl}, {L_FLAG}
    v_mov_b32 v{vOne}, 1
    v_mov_b32 v16, 0
    v_lshl_add_u32 v{vA+1}, v{vL}, 2, v{vFl}
    ds_write_b32 v{vA+1}, v16
    v_mov_b32 v32, -1
    v_mov_b32 v33, -1
    v_mov_b32 v34, -1
    v_mov_b32 v35, -1
    v_and_b32 v{vA+2}, 3, v{vL}
    v_lshrrev_b32 v{vA+3}, 4, v{vL}
    v_lshlrev_b32 v{vA}, 11, v{vA+2}
    v_lshl_add_u32 v{vA}, v{vA+3}, 4, v{vA}
    s_lshl_b32 s40, s36, 9
    s_lshl_b32 s41, s3, 7
    s_add_u32 s40, s40, s41
    v_add_u32 v{vA}, s40, v{vA}
    s_lshl_b32 s40, s3, 11
    v_add_u32 v{vA+1}, s40, v{vRow}
    s_waitcnt lgkmcnt(0)
    ''')
    stamp(e,cfg,0)
    srd(e,SWS,P_WS,WS_END)
    lh=e.label('Lnohead')
    e(f'''
    s_cmp_lt_u32 s2, 224
    s_cbranch_scc1 {lh}
    s_cmp_lg_u32 s3, 3
    s_cbranch_scc1 {lh}
    s_sub_u32 s41, s2, 224
    s_mul_i32 s40, s41, {HEADSH}
    s_add_u32 s40, s40, {WS_MU}
    ''')
    for i in range(13):
        if i and i%4==0: e('s_add_u32 s40, s40, 4096')
        if i==12: e('s_mov_b64 exec, 3')
        e(f'buffer_store_dwordx4 v[32:35], v{vRow}, s[{SWS}:{SWS+3}], s40 offen offset:{(i&3)*1024} sc1')
    e(f'''
    s_lshl_b32 s41, s41, 2
    v_mov_b32 v{vA+4}, s41
    s_waitcnt vmcnt(0)
    s_mov_b64 exec, 1
    global_store_dword v{vA+4}, v{vOne}, s[{P_DBG}:{P_DBG+1}] sc1
    s_mov_b64 exec, -1
    {lh}:
    s_cmp_eq_u32 s33, 1
    s_cselect_b32 s48, s{P_X}, s{P_C}
    s_cselect_b32 s49, s{P_X+1}, s{P_C+1}
    global_load_dwordx4 v[16:19], v{vA}, s[48:49]
    global_load_dwordx4 v[20:23], v{vA}, s[48:49] offset:64
    global_load_dwordx4 v[24:27], v{vA+1}, s[{P_X}:{P_X+1}]
    global_load_dwordx4 v[28:31], v{vA+1}, s[{P_X}:{P_X+1}] offset:1024
    s_barrier
    s_mov_b32 s50, 0
    s_lshl_b32 s40, s3, 11
    s_add_u32 s40, s40, {L_RED}
    v_add_u32 v{vRd}, s40, v{vRow}
    s_lshl_b32 s40, s3, 2
    s_add_u32 s40, s40, {L_RED}
    v_lshl_add_u32 v{vRr}, v{vL}, 5, s40
    ''')
    lc=e.label('Lclr3'); lc2=e.label('Lclrd')
    e(f'''
    s_mul_i32 s40, s2, 10624
    s_mul_i32 s41, s3, 3072
    s_add_u32 s40, s40, s41
    s_cmp_eq_u32 s3, 3
    s_cbranch_scc1 {lc}
    buffer_store_dwordx4 v[32:35], v{vRow}, s[{SWS}:{SWS+3}], s40 offen sc1
    buffer_store_dwordx4 v[32:35], v{vRow}, s[{SWS}:{SWS+3}], s40 offen offset:1024 sc1
    buffer_store_dwordx4 v[32:35], v{vRow}, s[{SWS}:{SWS+3}], s40 offen offset:2048 sc1
    s_waitcnt vmcnt(3)
    s_branch {lc2}
    {lc}:
    buffer_store_dwordx4 v[32:35], v{vRow}, s[{SWS}:{SWS+3}], s40 offen sc1
    s_mov_b64 exec, 0xffffff
    buffer_store_dwordx4 v[32:35], v{vRow}, s[{SWS}:{SWS+3}], s40 offen offset:1024 sc1
    s_mov_b64 exec, -1
    s_waitcnt vmcnt(2)
    {lc2}:
    ''')
    stamp(e,cfg,14)
    def auxbar():
        e('s_add_u32 s50, s50, 4\ns_waitcnt lgkmcnt(0)')
        lds_signal(e,F_AUX,vFl,vOne)
        lds_spin(e,cfg,F_AUX,'s50',vFl,vT)
    def go1():
        l=e.label('Lgo'); d=e.label('Lgod'); la=e.label('Lnogo')
        e(f'''
        s_cmp_lg_u32 s3, 3
        s_cbranch_scc1 {la}
        v_and_b32 v{vA}, 31, v{vL}
        v_lshlrev_b32 v{vA}, 2, v{vA}
        s_mov_b32 s41, 0
        {l}:
        global_load_dword v{vA+1}, v{vA}, s[{P_DBG}:{P_DBG+1}] sc1
        s_add_u32 s41, s41, 1
        s_waitcnt vmcnt(0)
        v_cmp_ne_u32 vcc, 1, v{vA+1}
        s_cbranch_vccz {d}
        s_sleep {cfg.sleep_head}
        s_cmp_lt_u32 s41, {cfg.gpoll}
        s_cbranch_scc1 {l}
        {d}:
        ''')
        stamp(e,cfg,15)
        e(f'{la}:\ns_waitcnt vmcnt(0)')
    def arrive():
        la=e.label('Lnoarr')
        e(f'''
        s_cmp_lg_u32 s3, 3
        s_cbranch_scc1 {la}
        s_lshl_b32 s40, s2, 2
        s_add_u32 s40, s40, {WS_SA}
        v_mov_b32 v{vA}, 0
        s_mov_b64 exec, 1
        buffer_store_dword v{vOne}, v{vA}, s[{SWS}:{SWS+3}], s40 offen sc1
        s_mov_b64 exec, -1
        {la}:
        ''')
    def gbar1():
        l1=e.label('Lgb1')
        e(f's_cmp_lg_u32 s3, 0\ns_cbranch_scc1 {l1}\ns_mov_b32 s40, {WS_SA}')
        gather(e,cfg,[(60,4,vRow,'s40',0)],vT,cfg.sleep_head)
        e(f'{l1}:')
    def pickup(kind, dsts):
        gi=GROUPS.index(kind)
        e(f'''v_lshrrev_b32 v{vA+7}, 2, v{vL}
        v_lshlrev_b32 v{vA}, 8, v{vA+7}
        v_and_b32 v{vA+7}, 7, v{vA+7}
        v_lshl_add_u32 v{vA}, v{vA+7}, 5, v{vA}
        v_and_b32 v{vA+7}, 3, v{vL}
        v_lshl_add_u32 v{vA}, v{vA+7}, 3, v{vA}
        v_add_u32 v{vA}, s32, v{vA}''')
        for ct in range(1,8): e(f'v_xor_b32 v{vA+ct}, {ct<<5}, v{vA}')
        lds_spin(e,cfg,F_LAND+4*gi,4,vFl,vT)
        for t,W in enumerate(dsts):
            sk=None
            if isinstance(W,tuple):
                W=W[0]; sk=e.label('Lsk'); e(f's_cmp_lt_u32 s2, 224\ns_cbranch_scc1 {sk}')
            for ct in range(8):
                for hf in range(2):
                    r=W+4*ct+2*hf
                    e(f'ds_read_b64_tr_b16 v[{r}:{r+1}], v{vA+ct} offset:{slot(kind,2*t+hf)}')
            if sk: e(f'{sk}:')
        e('s_waitcnt lgkmcnt(0)')
        lds_signal(e,F_CONS+4*gi,vFl,vOne)
    def mm(As, Ws, accs, redoff=0):
        for t,(a_,W) in enumerate(zip(As,Ws)):
            for ct in range(8):
                e(f'v_mfma_f32_16x16x32_bf16 v[{accs[ct]}:{accs[ct]+3}], v[{a_}:{a_+3}], v[{W+4*ct}:{W+4*ct+3}], '+('0' if t==0 else f'v[{accs[ct]}:{accs[ct]+3}]'))
        e('s_mov_b64 exec, 0xffff')
        for ct in range(8): e(f'ds_write_b128 v{vRd}, v[{accs[ct]}:{accs[ct]+3}] offset:{redoff+256*ct}')
        e('s_mov_b64 exec, -1')
    def redsum(dst, redoff=0):
        for w in range(4):
            e(f'v_add_u32 v{vA+w}, {redoff+2048*w}, v{vRr}' if (w or redoff) else f'v_mov_b32 v{vA}, v{vRr}')
            e(f'ds_read2_b32 v[{dst+2*w}:{dst+2*w+1}], v{vA+w} offset0:0 offset1:4')
        e(f'''s_waitcnt lgkmcnt(2)
        v_pk_add_f32 v[{dst}:{dst+1}], v[{dst}:{dst+1}], v[{dst+2}:{dst+3}]
        s_waitcnt lgkmcnt(0)
        v_pk_add_f32 v[{dst+4}:{dst+5}], v[{dst+4}:{dst+5}], v[{dst+6}:{dst+7}]
        v_pk_add_f32 v[{dst}:{dst+1}], v[{dst}:{dst+1}], v[{dst+4}:{dst+5}]
        v_min_u32 v{dst}, -2, v{dst}
        v_min_u32 v{dst+1}, -2, v{dst+1}''')
    JACC=[24+4*i for i in range(8)]
    def job_pub(base, width, cgoff):
        redsum(24)
        e(f'''
        s_lshl_b32 s40, s36, 2
        s_add_u32 s40, s40, s3
        s_mul_i32 s40, s40, {width*4}
        s_lshl_b32 s41, s39, 9
        s_add_u32 s40, s40, s41
        s_add_u32 s40, s40, {base+cgoff*512}
        v_lshlrev_b32 v{vA}, 3, v{vL}
        buffer_store_dwordx2 v[24:25], v{vA}, s[{SWS}:{SWS+3}], s40 offen sc1
        ''')
    def silu_A():
        unpack(e,16,32,8)
        for i in range(16): e(f'v_mul_f32 v{48+i}, 0xbfb8aa3b, v{32+i}')
        for i in range(16): e(f'v_exp_f32 v{48+i}, v{48+i}')
        for i in range(16): e(f'v_add_f32 v{48+i}, 1.0, v{48+i}')
        for i in range(16): e(f'v_rcp_f32 v{48+i}, v{48+i}')
        for i in range(16): e(f'v_mul_f32 v{32+i}, v{32+i}, v{48+i}')
        for i in range(8): e(f'v_cvt_pk_bf16_f32 v{16+i}, v{32+2*i}, v{33+2*i}')
    def aoff(dst, pstr, bstr, gstr):
        e(f'''v_bfe_u32 v{vA+5}, v{vL}, 2, 2
        v_and_b32 v{vA+6}, 3, v{vL}
        v_lshrrev_b32 v{vA+7}, 4, v{vL}
        v_mul_u32_u24 v{dst}, {pstr}, v{vA+5}
        v_mul_u32_u24 v{vA+6}, {bstr}, v{vA+6}
        v_mul_u32_u24 v{vA+7}, {gstr}, v{vA+7}
        v_add3_u32 v{dst}, v{dst}, v{vA+6}, v{vA+7}''')
    def dppsum(r0, n):
        for r in (4,8):
            for i in range(n): e(f'v_add_f32_dpp v{r0+i}, v{r0+i}, v{r0+i} row_ror:{r} row_mask:0xf bank_mask:0xf')
    def allred_s(op, xs, t, rors=(4,8), swaps=('v_permlane16_swap_b32','v_permlane32_swap_b32')):
        for r in rors:
            for x in xs: e(f'{op}_dpp v{x}, v{x}, v{x} row_ror:{r} row_mask:0xf bank_mask:0xf')
        for sw in swaps:
            for k,x in enumerate(xs): e(f'v_mov_b32 v{t+k}, v{x}')
            for k,x in enumerate(xs): e(f'{sw} v{t+k}, v{x}')
            for k,x in enumerate(xs): e(f'{op} v{x}, v{x}, v{t+k}')
    def gather_q():
        e(f'''
        s_lshr_b32 s40, s37, 2
        s_lshl_b32 s40, s40, 14
        s_and_b32 s41, s37, 3
        s_lshl_b32 s41, s41, 12
        s_add_u32 s40, s40, s41
        s_lshl_b32 s41, s3, 10
        s_add_u32 s40, s40, s41
        s_add_u32 s52, s40, {WS_Q}
        s_add_u32 s53, s52, 65536
        s_add_u32 s54, s52, 131072
        s_add_u32 s55, s52, 196608
        ''')
        gather(e,cfg,[(24+4*i,4,vRow,f's{52+i}',0) for i in range(4)],vT,cfg.sleep_head)
        e(f'''
        v_pk_add_f32 v[24:25], v[24:25], v[28:29]
        v_pk_add_f32 v[26:27], v[26:27], v[30:31]
        v_pk_add_f32 v[32:33], v[32:33], v[36:37]
        v_pk_add_f32 v[34:35], v[34:35], v[38:39]
        v_pk_add_f32 v[24:25], v[24:25], v[32:33]
        v_pk_add_f32 v[26:27], v[26:27], v[34:35]
        s_mul_i32 s40, s3, {2*QSTR}
        s_add_u32 s40, s40, {L_QOP}
        v_lshrrev_b32 v{vA}, 5, v{vL}
        v_mul_u32_u24 v{vA}, {QSTR}, v{vA}
        v_and_b32 v{vA+1}, 31, v{vL}
        v_lshl_add_u32 v{vA}, v{vA+1}, 3, v{vA}
        v_add_u32 v{vA}, s40, v{vA}
        v_cvt_pk_bf16_f32 v24, v24, v25
        v_cvt_pk_bf16_f32 v25, v26, v27
        ds_write_b64 v{vA}, v[24:25]
        s_waitcnt lgkmcnt(0)
        ''')
        lds_signal(e,F_Q,vFl,vOne)
    early = cfg.order=='A'
    def wpick():
        pickup('WO',[WO]); pickup('XA',[X0,X1]); pickup('XB',[X2,(WJ,)])
    def njobs():
        gbar1(); auxbar()
        job_pub(WS_MN,4096,-16)
        ln=e.label('Lnoj23')
        e(f's_cmp_lt_u32 s2, 224\ns_cbranch_scc1 {ln}')
        auxbar(); mm([16,20],[X0,X1],JACC); auxbar(); job_pub(WS_MN,4096,-8)
        auxbar(); mm([16,20],[X2,WJ],JACC); auxbar(); job_pub(WS_MN,4096,0)
        e(f'{ln}:')
    e('''
    s_cmp_eq_u32 s33, 1
    s_cbranch_scc1 L_roleQ
    ''')
    silu_A(); go1(); pickup('J',[WJ,WJ+32]); mm([16,20],[WJ,WJ+32],JACC); auxbar()
    e('s_cmp_eq_u32 s33, 2\ns_cbranch_scc1 L_roleN')
    job_pub(WS_MU,2048,0)
    arrive()
    stamp(e,cfg,1)
    if early: wpick()
    stamp(e,cfg,2)
    e('s_branch L_common')
    e('L_roleN:')
    arrive()
    stamp(e,cfg,1)
    if early: wpick(); njobs()
    stamp(e,cfg,2)
    e('s_branch L_common')
    e('L_roleQ:')
    unpack(e,24,32,8)
    mu=24; var=25; a_=26; b_=27
    e(f'v_add_f32 v{mu}, v32, v33\nv_add_f32 v{a_}, v34, v35')
    for i in range(4,16,2): e(f'v_add_f32 v{mu}, v{mu}, v{32+i}\nv_add_f32 v{a_}, v{a_}, v{33+i}')
    e(f'v_add_f32 v{mu}, v{mu}, v{a_}')
    allreduce64(e,'v_add_f32',mu,a_)
    e(f'v_mul_f32 v{mu}, 0x3a800000, v{mu}')
    e(f'v_sub_f32 v{a_}, v32, v{mu}\nv_sub_f32 v{b_}, v33, v{mu}\nv_mul_f32 v{var}, v{a_}, v{a_}\nv_mul_f32 v28, v{b_}, v{b_}')
    for i in range(2,16,2):
        e(f'v_sub_f32 v{a_}, v{32+i}, v{mu}\nv_sub_f32 v{b_}, v{33+i}, v{mu}\nv_fmac_f32 v{var}, v{a_}, v{a_}\nv_fmac_f32 v28, v{b_}, v{b_}')
    e(f'v_add_f32 v{var}, v{var}, v28')
    allreduce64(e,'v_add_f32',var,a_)
    e(f'v_mul_f32 v{var}, 0x3a800000, v{var}')
    def finish_stats(mu,var):
        if cfg.round_ln: rnd1(e,mu); rnd1(e,var)
        e(f'v_add_f32 v{var}, 0x3727c5ac, v{var}')
        if cfg.round_ln: rnd1(e,var)
        e(f'v_sqrt_f32 v{var}, v{var}')
        if cfg.round_ln: rnd1(e,var)
        e(f'v_rcp_f32 v{var}, v{var}')
    finish_stats(mu,var)
    e(f'''
    s_lshl_b32 s40, s3, 3
    s_add_u32 s40, s40, {L_ST}
    v_mov_b32 v{vA}, s40
    ds_write_b64 v{vA}, v[24:25]
    ''')
    go1()
    pickup('J',[WJ,WJ+32])
    auxbar(); arrive()
    e(f'''
    v_and_b32 v{vA}, 3, v{vL}
    v_lshlrev_b32 v{vA}, 3, v{vA}
    v_add_u32 v{vA}, {L_ST}, v{vA}
    ds_read_b64 v[24:25], v{vA}
    ''')
    def normalise(X,n,mu,rs,t):
        for i in range(n): e(f'v_sub_f32 v{X+i}, v{X+i}, v{mu}')
        if cfg.round_ln: rnd_vec(e,X,n,t)
        for i in range(n): e(f'v_mul_f32 v{X+i}, v{X+i}, v{rs}')
        if cfg.round_ln: rnd_vec(e,X,n,t)
    unpack(e,16,48,8)
    e('s_waitcnt lgkmcnt(0)')
    normalise(48,16,24,25,26)
    if early: wpick()
    stamp(e,cfg,1)
    aoff(vA, 32768, 8192, 32)
    e(f'''
    s_lshl_b32 s40, s36, 10
    s_lshl_b32 s41, s3, 8
    s_add_u32 s40, s40, s41
    s_add_u32 s52, s40, {WS_MU}
    s_add_u32 s53, s52, 4096
    ''')
    gather(e,cfg,[(16+4*i,4,vA,'s52',(i>>1)*128+(i&1)*16) for i in range(4)]+[(32+4*i,4,vA,'s53',(i>>1)*128+(i&1)*16) for i in range(4)],vT,cfg.sleep_head)
    dppsum(16,32)
    rnd_vec(e,16,32,vA)
    def modulate(X,n,T1,SB,out,t,prep=True):
        if prep:
            for i in range(n): e(f'v_add_f32 v{T1+i}, 1.0, v{T1+i}')
            if cfg.round_ln: rnd_vec(e,T1,n,t)
        for i in range(n): e(f'v_mul_f32 v{X+i}, v{X+i}, v{T1+i}')
        if cfg.round_ln: rnd_vec(e,X,n,t)
        for i in range(n): e(f'v_add_f32 v{X+i}, v{X+i}, v{SB+i}')
        for i in range(n//2): e(f'v_cvt_pk_bf16_f32 v{out+i}, v{X+2*i}, v{X+2*i+1}')
    modulate(48,16,32,16,16,vA)
    mm([16,20],[WJ,WJ+32],JACC); auxbar()
    job_pub(WS_Q,4096,0)
    stamp(e,cfg,2)
    e('L_common:')
    gather_q()
    stamp(e,cfg,3)
    lj=e.label('Lj2'); lk=e.label('Lj2d')
    if not early:
        wpick()
        e(f's_cmp_eq_u32 s33, 2\ns_cbranch_scc1 {lj}')
        gbar1()
        e(f's_branch {lk}\n{lj}:')
        njobs()
        e(f'{lk}:')
    else:
        e(f's_cmp_eq_u32 s33, 2\ns_cbranch_scc1 {lk}')
        gbar1()
        e(f'{lk}:')
    auxbar()
    F=192; RX=196; T1=204; SB=212; AC2=[220+4*i for i in range(8)]
    lds_spin(e,cfg,F_ML,4,vFl,vT)
    lm=e.label('Lnoml')
    e(f'''
    s_cmp_lg_u32 s3, 0
    s_cbranch_scc1 {lm}
    v_and_b32 v{vA}, 7, v{vL}
    v_lshlrev_b32 v{vA+1}, 3, v{vA}
    v_add_u32 v{vA}, {L_ML}, v{vA+1}
    ds_read_b64 v[16:17], v{vA}
    ds_read_b64 v[18:19], v{vA} offset:64
    ds_read_b64 v[20:21], v{vA} offset:128
    ds_read_b64 v[22:23], v{vA} offset:192
    s_lshl_b32 s40, s37, 10
    s_lshl_b32 s41, s38, 6
    s_add_u32 s40, s40, s41
    s_add_u32 s40, s40, {WS_ML}
    s_waitcnt lgkmcnt(0)
    v_max3_f32 v24, v16, v18, v20
    v_max_f32 v24, v24, v22
    v_sub_f32 v16, v16, v24
    v_sub_f32 v18, v18, v24
    v_sub_f32 v20, v20, v24
    v_sub_f32 v22, v22, v24
    v_exp_f32 v16, v16
    v_exp_f32 v18, v18
    v_exp_f32 v20, v20
    v_exp_f32 v22, v22
    v_mul_f32 v25, v16, v17
    v_fmac_f32 v25, v18, v19
    v_fmac_f32 v25, v20, v21
    v_fmac_f32 v25, v22, v23
    v_min_u32 v24, -2, v24
    v_min_u32 v25, -2, v25
    s_mov_b64 exec, 0xff
    buffer_store_dwordx2 v[24:25], v{vA+1}, s[{SWS}:{SWS+3}], s40 offen sc1
    s_mov_b64 exec, -1
    {lm}:
    ''')
    aoff(vA, 65536, 16384, 32)
    e(f'''
    s_and_b32 s40, s2, 7
    s_lshl_b32 s40, s40, 9
    s_lshl_b32 s41, s3, 7
    s_add_u32 s40, s40, s41
    s_add_u32 s52, s40, {WS_MN+4096}
    s_add_u32 s53, s52, 4096
    ''')
    gather(e,cfg,[(SB,4,vA,'s52',0),(SB+4,4,vA,'s52',16),(T1,4,vA,'s53',0),(T1+4,4,vA,'s53',16)],vT,cfg.sleep_head)
    dppsum(T1,16)
    rnd_vec(e,T1,16,16)
    for i in range(8): e(f'v_add_f32 v{T1+i}, 1.0, v{T1+i}')
    if cfg.round_ln: rnd_vec(e,T1,8,16)
    vOc=48; vOs=49; vH1=50; vYs=53; vRo=54; vH3=55; vZs=56; vXs=57; vSt=58; vOc2=59
    lr=e.label('Lnored')
    e(f'''
    v_and_b32 v{vA}, 15, v{vL}
    v_lshlrev_b32 v{vRo}, 3, v{vA}
    v_lshrrev_b32 v{vA+1}, 5, v{vL}
    v_lshl_add_u32 v{vRo}, v{vA+1}, 2, v{vRo}
    s_cmp_ge_u32 s2, 64
    s_cbranch_scc1 {lr}
    s_cmp_lg_u32 s3, 0
    s_cbranch_scc1 {lr}
    s_lshl_b32 s40, s2, 7
    v_add_u32 v{vA+1}, s40, v{vRo}
    global_load_dword v32, v{vA+1}, s[{P_X}:{P_X+1}]
    v_lshlrev_b32 v{vA}, 1, v{vRo}
    s_lshl_b32 s40, s38, 14
    s_lshl_b32 s41, s37, 8
    s_add_u32 s40, s40, s41
    s_add_u32 s52, s40, {WS_MN}
    ''')
    for i in range(1,8): e(f's_add_u32 s{52+i}, s52, {(i&3)*65536+(i>>2)*12288}')
    gather(e,cfg,[(16+2*i,2,vA,f's{52+i}',0) for i in range(8)],vT,cfg.sleep_head)
    for o,dst in ((16,RX+2),(24,RX+4)):
        e(f'''v_pk_add_f32 v[{o}:{o+1}], v[{o}:{o+1}], v[{o+2}:{o+3}]
        v_pk_add_f32 v[{o+4}:{o+5}], v[{o+4}:{o+5}], v[{o+6}:{o+7}]
        v_pk_add_f32 v[{dst}:{dst+1}], v[{o}:{o+1}], v[{o+4}:{o+5}]''')
    rnd_vec(e,RX+2,4,16)
    unpack(e,32,RX,1)
    e(f'{lr}:')
    aoff(vH1, 2048, 131072, 16)
    aoff(vH3, 16, 28672, 64)
    aoff(vXs, 0, 4096, 16)
    e(f'''
    s_lshl_b32 s40, s3, 1
    v_lshrrev_b32 v{vA}, 5, v{vL}
    v_add_u32 v{vA+2}, s40, v{vA}
    v_mul_u32_u24 v{vOc}, {OSTR}, v{vA+2}
    v_and_b32 v{vA+1}, 31, v{vL}
    v_lshl_add_u32 v{vOc}, v{vA+1}, 4, v{vOc}
    v_add_u32 v{vOc}, {OOFF}, v{vOc}
    v_add_u32 v{vOc2}, 0x10000, v{vOc}
    v_lshlrev_b32 v{vOs}, 3, v{vL}
    s_lshl_b32 s52, s37, 15
    s_lshl_b32 s40, s38, 11
    s_add_u32 s52, s52, s40
    s_lshl_b32 s40, s3, 9
    s_add_u32 s52, s52, s40
    s_bfe_u32 s40, s2, 0x20003
    s_lshl_b32 s53, s40, 15
    s_and_b32 s40, s2, 7
    s_lshl_b32 s40, s40, 8
    s_add_u32 s53, s53, s40
    s_lshl_b32 s40, s3, 6
    s_add_u32 s53, s53, s40
    s_add_u32 s54, s53, 8192
    s_add_u32 s55, s53, 16384
    s_add_u32 s56, s53, 24576
    v_lshlrev_b32 v{vYs}, 13, v{vA}
    v_lshl_add_u32 v{vYs}, v{vA+1}, 3, v{vYs}
    s_lshl_b32 s57, s3, 17
    s_lshr_b32 s40, s2, 5
    s_lshl_b32 s40, s40, 14
    s_add_u32 s57, s57, s40
    s_and_b32 s40, s2, 31
    s_lshl_b32 s40, s40, 8
    s_add_u32 s57, s57, s40
    s_add_u32 s57, s57, {WS_Y}
    v_mul_u32_u24 v{vZs}, 7168, v{vA}
    v_lshl_add_u32 v{vZs}, v{vA+1}, 3, v{vZs}
    s_and_b32 s40, s63, 7
    s_lshl_b32 s41, s3, 3
    s_add_u32 s41, s41, s40
    s_mul_i32 s59, s41, 14336
    s_lshr_b32 s43, s63, 3
    s_lshl_b32 s42, s43, 8
    s_add_u32 s59, s59, s42
    s_add_u32 s59, s59, {WS_Z}
    s_and_b32 s40, s2, 7
    s_lshr_b32 s41, s2, 3
    s_lshl_b32 s58, s40, 9
    s_lshr_b32 s42, s3, 1
    s_lshl_b32 s42, s42, 8
    s_add_u32 s58, s58, s42
    s_and_b32 s42, s3, 1
    s_lshl_b32 s42, s42, 6
    s_add_u32 s58, s58, s42
    s_add_u32 s58, s58, {WS_X1}
    v_and_b32 v{vA+2}, 3, v{vL}
    v_lshlrev_b32 v{vSt}, 12, v{vA+2}
    v_lshrrev_b32 v{vA+2}, 2, v{vL}
    v_lshl_add_u32 v{vSt}, v{vA+2}, 8, v{vSt}
    s_mov_b32 s49, {WS_X1}
    s_lshl_b32 s40, s40, 2
    s_add_u32 s40, s40, s3
    s_mul_i32 s60, s40, 28672
    s_lshl_b32 s41, s41, 10
    s_add_u32 s60, s60, s41
    s_add_u32 s60, s60, {WS_GU}
    s_lshl_b32 s40, s3, 8
    s_lshl_b32 s43, s43, 10
    s_add_u32 s48, s43, s40
    s_add_u32 s48, s48, {WS_GU}
    s_mov_b32 s61, 0x3f80
    s_mov_b32 s62, 0x3f800000
    ''')
    lf=e.label('Lnof')
    e(f's_cmp_lg_u32 s3, 0\ns_cbranch_scc1 {lf}')
    lds_spin(e,cfg,F_V,1,vFl,vT)
    e(f's_lshl_b32 s40, s37, 10\ns_add_u32 s40, s40, {WS_ML}')
    gather(e,cfg,[(16,4,vRow,'s40',0)],vT,cfg.sleep_ml)
    e('v_mov_b32 v20, v16\nv_mov_b32 v22, v18')
    allred_s('v_max_f32',[20,22],24)
    e('''
    v_sub_f32 v16, v16, v20
    v_sub_f32 v18, v18, v22
    v_exp_f32 v16, v16
    v_exp_f32 v18, v18
    v_mul_f32 v21, v16, v17
    v_mul_f32 v23, v18, v19
    ''')
    allred_s('v_add_f32',[21,23],24)
    e(f'''
    v_rcp_f32 v21, v21
    v_rcp_f32 v23, v23
    v_add_u32 v{vA}, {L_ST}, v{vRow}
    s_mov_b64 exec, 15
    ds_write_b128 v{vA}, v[20:23]
    s_waitcnt lgkmcnt(0)
    s_mov_b64 exec, -1
    ''')
    lds_signal(e,F_F,vFl,vOne)
    e(f'''
    {lf}:
    s_lshl_b32 s40, s3, 4
    v_lshrrev_b32 v{vA+1}, 5, v{vL}
    v_lshl_add_u32 v{vA}, v{vA+1}, 3, s40
    v_add_u32 v{vA+1}, {L_ST}, v{vA}
    v_add_u32 v{vA}, {L_ML}, v{vA}
    ds_read_b32 v{F}, v{vA}
    ds_read_b32 v{F+1}, v{vA} offset:64
    ds_read_b32 v{F+2}, v{vA} offset:128
    ds_read_b32 v{F+3}, v{vA} offset:192
    ''')
    lds_spin(e,cfg,F_F,1,vFl,vT)
    e(f'ds_read_b64 v[20:21], v{vA+1}\ns_waitcnt lgkmcnt(0)')
    for k in range(4): e(f'v_sub_f32 v{F+k}, v{F+k}, v20')
    for k in range(4): e(f'v_exp_f32 v{F+k}, v{F+k}')
    for k in range(4): e(f'v_mul_f32 v{F+k}, v{F+k}, v21')
    stamp(e,cfg,4)
    e.c('---- tail: combine the four waves of this workgroup')
    lds_spin(e,cfg,F_O,4,vFl,vT)
    stamp(e,cfg,5)
    e(f'''
    ds_read_b128 v[16:19], v{vOc}
    ds_read_b128 v[20:23], v{vOc} offset:{RING}
    ds_read_b128 v[24:27], v{vOc2}
    ds_read_b128 v[28:31], v{vOc2} offset:{RING}
    s_waitcnt lgkmcnt(3)
    ''')
    for r in range(4): e(f'v_mul_f32 v{16+r}, v{16+r}, v{F}')
    for k in range(1,4):
        e(f's_waitcnt lgkmcnt({3-k})')
        for r in range(4): e(f'v_fmac_f32 v{16+r}, v{16+4*k+r}, v{F+k}')
    e(f'''
    v_cvt_pk_bf16_f32 v16, v16, v17
    v_cvt_pk_bf16_f32 v17, v18, v19
    v_min_u32 v16, -2, v16
    v_min_u32 v17, -2, v17
    buffer_store_dwordx2 v[16:17], v{vOs}, s[{SWS}:{SWS+3}], s52 offen sc1
    s_waitcnt vmcnt(0)
    ''')
    e.c('---- H1 + output projection')
    gather(e,cfg,[(16,4,vH1,'s53',0),(20,4,vH1,'s54',0),(24,4,vH1,'s55',0),(28,4,vH1,'s56',0)],vT,cfg.sleep_tail)
    stamp(e,cfg,6)
    for i in range(4):
        e(f'v_lshlrev_b32 v{32+2*i}, 16, v{16+i}\nv_and_b32 v{33+2*i}, 0xffff0000, v{16+i}')
    for j in range(1,4):
        for i in range(4):
            e(f'v_dot2_f32_bf16 v{32+2*i}, v{16+4*j+i}, s61, v{32+2*i}\nv_dot2_f32_bf16 v{33+2*i}, v{16+4*j+i}, s62, v{33+2*i}')
    dppsum(32,8)
    for i in range(4): e(f'v_cvt_pk_bf16_f32 v{16+i}, v{32+2*i}, v{33+2*i}')
    mm([16],[WO],AC2)
    e('s_waitcnt lgkmcnt(0)\ns_barrier')
    redsum(16)
    e(f'''
    buffer_store_dwordx2 v[16:17], v{vYs}, s[{SWS}:{SWS+3}], s57 offen sc1
    s_cmp_ge_u32 s2, 224
    s_cbranch_scc1 L_fin
    s_waitcnt vmcnt(0)
    ''')
    stamp(e,cfg,7)
    def red_tail(n):
        for i in range(1,n):
            e(f'v_pk_add_f32 v[16:17], v[16:17], v[{16+4*i}:{17+4*i}]\nv_pk_add_f32 v[18:19], v[18:19], v[{18+4*i}:{19+4*i}]')
        e('''
        v_permlane32_swap_b32 v16, v18
        v_permlane32_swap_b32 v17, v19
        v_add_f32 v16, v16, v18
        v_add_f32 v17, v17, v19
        v_mov_b32 v18, v16
        v_mov_b32 v19, v17
        v_permlane16_swap_b32 v18, v16
        v_permlane16_swap_b32 v19, v17
        v_add_f32 v16, v16, v18
        v_add_f32 v17, v17, v19
        ''')
    def gate_res(G,X,dst):
        rnd_vec(e,16,2,18)
        e(f'v_mul_f32 v16, v16, v{G}\nv_mul_f32 v17, v17, v{G+1}')
        rnd_vec(e,16,2,18)
        e(f'v_add_f32 v16, v16, v{X}\nv_add_f32 v17, v17, v{X+1}\nv_cvt_pk_bf16_f32 v{dst}, v16, v17')
    e.c('---- H2a: reducers')
    l2=e.label('Lnoh2a')
    e(f'''
    s_cmp_ge_u32 s2, 64
    s_cbranch_scc1 {l2}
    s_cmp_lg_u32 s3, 0
    s_cbranch_scc1 {l2}
    s_lshl_b32 s40, s2, 13
    s_add_u32 s40, s40, {WS_Y}
    s_add_u32 s51, s40, 4096
    ''')
    gather(e,cfg,[(16+4*i,4,vRow,'s40' if i<4 else 's51',(i&3)*1024) for i in range(8)],vT,cfg.sleep_tail)
    red_tail(8)
    gate_res(RX+2,RX,16)
    e(f'''
    v_min_u32 v16, -2, v16
    s_lshl_b32 s40, s2, 8
    s_add_u32 s40, s40, {WS_X1}
    s_mov_b32 s42, 0xffff
    s_mov_b32 s43, 0xffff
    s_mov_b64 exec, s[42:43]
    buffer_store_dword v16, v{vRo}, s[{SWS}:{SWS+3}], s40 offen sc1
    s_mov_b64 exec, -1
    v_lshlrev_b32 v{RX}, 16, v16
    v_and_b32 v{RX+1}, 0xffff0000, v16
    v_add_f32 v18, v{RX}, v{RX+1}
    v_mul_f32 v19, v{RX}, v{RX}
    v_fmac_f32 v19, v{RX+1}, v{RX+1}
    ''')
    allred_s('v_add_f32',[18,19],20,rors=(8,4,2,1),swaps=('v_permlane32_swap_b32',))
    e(f'''
    v_min_u32 v18, -2, v18
    v_min_u32 v19, -2, v19
    v_mov_b32 v20, 128
    s_mov_b64 exec, 1
    buffer_store_dwordx2 v[18:19], v20, s[{SWS}:{SWS+3}], s40 offen sc1
    s_mov_b64 exec, -1
    s_waitcnt vmcnt(0)
    {l2}:
    ''')
    stamp(e,cfg,8)
    e.c('---- H2b + gate/up')
    gather(e,cfg,[(16,4,vXs,'s58',0),(20,2,vSt,'s49',128)],vT,cfg.sleep_tail)
    stamp(e,cfg,9)
    unpack(e,16,32,4)
    allred_s('v_add_f32',[20,21],22)
    e(f'''
    v_mul_f32 v20, 0x3a800000, v20
    v_mul_f32 v21, 0x3a800000, v21
    v_fma_f32 v21, -v20, v20, v21
    v_max_f32 v21, 0, v21
    ''')
    finish_stats(20,21)
    normalise(32,8,20,21,22)
    modulate(32,8,T1,SB,16,22,prep=False)
    mm([16],[X0],AC2)
    mm([16],[X1],[20+4*i for i in range(7)]+[60],8192)
    e('s_waitcnt lgkmcnt(0)\ns_barrier')
    redsum(16); redsum(24,8192)
    e(f'''
    v_mov_b32 v18, v17
    v_mov_b32 v17, v24
    v_mov_b32 v19, v25
    buffer_store_dwordx4 v[16:19], v{vRow}, s[{SWS}:{SWS+3}], s60 offen sc1
    s_waitcnt vmcnt(0)
    s_barrier
    ''')
    stamp(e,cfg,10)
    e.c('---- H3a + down projection')
    for i in range(1,8): e(f's_add_u32 s{51+i}, s48, {i*114688}')
    gather(e,cfg,[(16+4*i,4,vH3,'s48' if i==0 else f's{51+i}',0) for i in range(8)],vT,cfg.sleep_tail)
    stamp(e,cfg,11)
    for st_ in (4,2,1):
        for i in range(st_):
            e(f'v_pk_add_f32 v[{16+4*i}:{17+4*i}], v[{16+4*i}:{17+4*i}], v[{16+4*(i+st_)}:{17+4*(i+st_)}]\nv_pk_add_f32 v[{18+4*i}:{19+4*i}], v[{18+4*i}:{19+4*i}], v[{18+4*(i+st_)}:{19+4*(i+st_)}]')
    rnd_vec(e,16,4,20)
    e('''
    v_mul_f32 v20, 0xbfb8aa3b, v16
    v_mul_f32 v21, 0xbfb8aa3b, v18
    v_exp_f32 v20, v20
    v_exp_f32 v21, v21
    v_add_f32 v20, 1.0, v20
    v_add_f32 v21, 1.0, v21
    v_rcp_f32 v20, v20
    v_rcp_f32 v21, v21
    v_mul_f32 v16, v16, v20
    v_mul_f32 v18, v18, v21
    v_cvt_pk_bf16_f32 v20, v16, v18
    v_lshlrev_b32 v16, 16, v20
    v_and_b32 v18, 0xffff0000, v20
    v_mul_f32 v16, v16, v17
    v_mul_f32 v18, v18, v19
    v_cvt_pk_bf16_f32 v16, v16, v18
    v_mov_b32_dpp v17, v16 row_shl:4 row_mask:0xf bank_mask:0xf bound_ctrl:1
    v_mov_b32_dpp v18, v16 row_shl:8 row_mask:0xf bank_mask:0xf bound_ctrl:1
    v_mov_b32_dpp v19, v16 row_shl:12 row_mask:0xf bank_mask:0xf bound_ctrl:1
    ''')
    mm([16],[X2],AC2)
    e('s_waitcnt lgkmcnt(0)\ns_barrier')
    redsum(16)
    e(f'''
    buffer_store_dwordx2 v[16:17], v{vZs}, s[{SWS}:{SWS+3}], s59 offen sc1
    s_cmp_ge_u32 s2, 64
    s_cbranch_scc1 L_fin
    s_waitcnt vmcnt(0)
    s_barrier
    s_cmp_lg_u32 s3, 0
    s_cbranch_scc1 L_fin
    s_mul_i32 s40, s2, 7168
    s_add_u32 s40, s40, {WS_Z}
    s_add_u32 s51, s40, 4096
    ''')
    e.c('---- H3b: final reducers')
    gather(e,cfg,[(16+4*i,4,vRow,'s40' if i<4 else 's51',(i&3)*1024) for i in range(7)],vT,cfg.sleep_tail)
    stamp(e,cfg,12)
    red_tail(7)
    gate_res(RX+4,RX,16)
    e(f'''
    s_lshl_b32 s40, s2, 7
    v_add_u32 v{vA}, s40, v{vRo}
    s_mov_b32 s42, 0xffff
    s_mov_b32 s43, 0xffff
    s_mov_b64 exec, s[42:43]
    global_store_dword v{vA}, v16, s[{P_OUT}:{P_OUT+1}]
    s_mov_b64 exec, -1
    L_fin:
    ''')
    stamp(e,cfg,13)
    if cfg.stamps: e('s_add_u32 s3, s3, 4')
    stamps_out(e,cfg,16,vA)
    e('s_endpgm')

def gen(cfg):
    set_order(cfg.order)
    e=A()
    e(f'''
    s_cmp_ge_u32 s2, 256
    s_cbranch_scc1 L_exit
    s_load_dwordx16 s[4:19], s[0:1], 0
    s_load_dwordx8 s[20:27], s[0:1], 64
    s_load_dwordx4 s[28:31], s[0:1], 96
    v_lshrrev_b32 v2, 6, v0
    v_and_b32 v1, 63, v0
    v_readfirstlane_b32 s3, v2
    s_getpc_b64 s[48:49]
    L_pc:
    s_sub_u32 s48, s48, L_pc-{KN}
    s_subb_u32 s49, s49, 0
    v_and_b32 v3, 0xff, v0
    v_lshlrev_b32 v3, 7, v3
    s_cmp_ge_u32 s3, 4
    s_cbranch_scc1 L_nopf
    global_load_dword v255, v3, s[48:49]
    L_nopf:
    ''')
    roles(e)
    e('s_cmp_ge_u32 s3, 4\ns_cbranch_scc1 L_aux')
    stream(e,cfg)
    aux(e,cfg)
    e('L_exit:\ns_endpgm')
    e('.p2align 8\n.fill (32768+256-(.-'+KN+'))/4, 4, 0xbf800000')
    hdr = f'; fused adaLN + GQA decode attention + SwiGLU block, one launch (generated by gen2.py)\n; @launch grid=(256,1,1) block=(512,1,1) lds={LDS_BYTES}\n.amdgcn_target "amdgcn-amd-amdhsa--gfx950"\n'
    return hdr + khead(KN) + e.text() + kd(KN, 256)

if __name__=='__main__':
    cfg=Cfg()
    out=sys.argv[1]
    for kv in sys.argv[2:]:
        k,val=kv.split('=')
        cur=getattr(cfg,k)
        setattr(cfg,k, (val not in ('0','False')) if isinstance(cur,bool) else type(cur)(val) if not isinstance(cur,int) else int(val,0))
    open(out,'w').write(gen(cfg))
```

```python
import sys
from asmgen import *
KN='adaLN_cond__gqa_block_cached__glu_gated_swiglu__decode_kernel'

import os
PAD = int(os.environ.get('PAD','128'))
OS  = 2048+PAD
YS  = 8192+PAD
GS  = 14336+PAD
ZS  = 7168+PAD
MNS = 12288+PAD
MGS = 4096+PAD
MUS = 8192+PAD
QS  = 16384+PAD
WS_O   = 0
WS_Y   = WS_O+256*OS
WS_GU  = WS_Y+64*YS
WS_Z   = WS_GU+32*GS
WS_MN  = WS_Z+64*ZS
WS_MG  = WS_MN+16*MNS
WS_ML  = WS_MG+32*MGS
WS_X1  = WS_ML+16384
WS_ST  = WS_X1+8192
FLATSH = -(-(WS_ST+2048)//(256*128))*128
WS_MU  = 256*FLATSH
WS_Q   = WS_MU+16*MUS
WS_SA  = WS_Q+16*QS
HEADSH = -(-(WS_SA+1024-WS_MU)//(32*128))*128
WS_END = WS_MU+32*HEADSH
assert 8192 < FLATSH <= 8192+2048 and 12288 < HEADSH <= 13312
WS_STAMP = 0x400000
RING = 0x8000
L_RED  = 0x20000
L_AX   = 0x22400; XSTR = 320
L_QOP  = 0x24000; QSTR = 272
L_ML   = 0x24900
L_ST   = 0x24A00
L_FLAG = 0x24B00
LDS_BYTES = 0x24C00
OSTR = 528
F_LAND = 0
F_CONS = 32
F_Q = 64; F_ML = 68; F_O = 72; F_AUX = 76; F_V = 80; F_F = 84; F_P = 88; F_M = 92
P_X,P_K,P_V,P_WQ,P_WO,P_BX,P_W1,P_W3,P_W2,P_C,P_WM,P_OUT,P_DBG,P_WS = [4+2*i for i in range(14)]
LOG2E = 0x3fb8aa3b
SCALE = 0x3db504f3

class Cfg:
    D=2; D0=4
    N=4
    NV=4
    deep=16
    vsig=3
    sleep_ml=32
    pol='nt'
    stamps=False
    round_s=True
    round_ln=True
    sleep_head=8
    sleep_tail=1
    order='A'
    qgate=0
    ack='1111'
    dly='0,0,0,0,0'
    tstamps=True
    round_ln2=True
    fine=False
    pairs=False
    NL=4; NH=8
    adapt=True
    lightdeep=True
    qafter=5
    NK=4; kdeep=16
    sleep_q=8
    hold=False
    prio=2
    gpoll=8192
    lpoll=1<<17

from gen1 import lds_signal, stamp, srd, allreduce64, unpack, rnd_vec, rnd1
import gen1
gen1.WS_STAMP = WS_STAMP
from gen1 import stamps_out, lds_spin, gather
SWS=44

def roles(e):
    e('''
    s_and_b32 s37, s2, 15
    s_lshr_b32 s38, s2, 4
    s_and_b32 s36, s2, 1
    s_lshr_b32 s40, s2, 2
    s_and_b32 s40, s40, 2
    s_or_b32 s36, s36, s40
    s_cmp_ge_u32 s2, 64
    s_cselect_b32 s33, 1, 0
    s_cselect_b32 s40, 16, 0
    s_cmp_ge_u32 s2, 192
    s_cselect_b32 s33, 2, s33
    s_cselect_b32 s40, 32, s40
    s_lshl_b32 s39, s38, 2
    s_sub_u32 s39, s39, s40
    s_bfe_u32 s40, s2, 0x20001
    s_add_u32 s39, s39, s40
    s_xor_b32 s101, s39, 2
    s_add_u32 s101, s101, 8
    s_cmp_eq_u32 s33, 1
    s_mov_b32 s35, 12288
    s_cselect_b32 s35, 8192, s35
    s_lshl_b32 s40, s36, 8
    s_mul_i32 s34, s40, s35
    s_lshl_b32 s40, s39, 8
    s_add_u32 s34, s34, s40
    s_and_b32 s40, s2, 7
    s_mul_i32 s63, s40, 28
    s_lshr_b32 s40, s2, 3
    s_add_u32 s63, s63, s40
    ''')

UNITS=[]
GROUPS=['J','WO','X0','X1','X2','X3']
def set_order(order):
    U=lambda k,n: [(k,i) for i in range(n)]
    W=U('WO',2)+U('X0',2)+U('X1',2)+U('X2',2)+U('X3',2)
    K=U('K',16)
    if order=='A': UNITS[:] = U('J',4)+W+K+U('V',16)
    elif order=='C':
        mix=[]
        for i in range(8): mix+=[W[i],K[i]]
        UNITS[:] = U('J',4)+mix+W[8:]+K[8:]+U('V',16)
    elif order=='D':
        mix=[]
        for i in range(8): mix+=[K[i],W[i]]
        UNITS[:] = U('J',4)+mix+W[8:]+K[8:]+U('V',16)
def upos(kind,i): return UNITS.index((kind,i))
def slot(kind,i): return (upos(kind,i)%8)*4096

def stream(e, cfg):
    D=cfg.D; pol=cfg.pol
    vL=1; vK=2; vV=6; vW=8; vSw=10; vR=12; vFl=13; vOne=14; vT=15
    vKR=16; vVR=20; vX=28; vRJ=45
    Q=48; S=64; ST=128; P=128; O=160; VF=192
    SK,SV,SW = 44,48,52
    e.c('================= stream waves =================')
    e('L_stream:')
    stamp(e,cfg,0)
    e(f'''
    v_lshrrev_b32 v{vR}, 4, v{vL}
    v_and_b32 v{vX+1}, 15, v{vL}
    v_lshlrev_b32 v{vX+6}, 1, v{vR}
    v_xor_b32 v{vX+6}, v{vX+6}, v{vX+1}
    v_lshlrev_b32 v{vSw}, 4, v{vX+6}
    v_xor_b32 v{vSw+1}, 128, v{vSw}
    v_and_b32 v{vRJ}, 2, v{vR}
    v_lshlrev_b32 v{vRJ}, 1, v{vRJ}
    v_and_or_b32 v{vRJ}, v{vR}, 1, v{vRJ}
    s_lshl_b32 s32, s3, 15
    s_mov_b32 s{SW+3}, 0x20000
    s_cmp_lt_u32 s2, 224
    s_cselect_b32 s96, 0, {1 if cfg.lightdeep else 0}
    s_cbranch_scc1 L_go
    s_barrier
    L_go:
    s_waitcnt lgkmcnt(0)
    ''')
    st = dict(issued=0, landed=-1, signaled=set())
    def pairwait(n,k):
        if not cfg.pairs or n<cfg.D0: return
        tot=4*n+k
        known=4*(st['landed']+1)
        if tot-known>cfg.NH:
            e(f's_waitcnt vmcnt({cfg.NH})'); note_landed((tot-cfg.NH)//4-1)
        if tot-known>cfg.NL and cfg.NL<cfg.NH:
            lb=e.label('Lw')
            e(f's_cmp_lg_u32 s96, 0\ns_cbranch_scc1 {lb}\ns_waitcnt vmcnt({cfg.NL})\n{lb}:')
    def dma(voff, srdreg, soff, i):
        e(f'buffer_load_dwordx4 v{voff}, s[{srdreg}:{srdreg+3}], {soff} offen offset:{i*1024} {pol} lds')
    def tile_setup(kind, t):
        def ptr(a,b): e(f's_cselect_b32 s{SW}, s{a}, s{b}\ns_cselect_b32 s{SW+1}, s{a+1}, s{b+1}')
        if kind=='J':
            if t==0:
                e('s_cmp_eq_u32 s33, 1'); ptr(P_WQ,P_WM)
                e(f'''s_mov_b32 s{SW+2}, {1024*6144*2}
                s_cselect_b32 s{SW+2}, {1024*4096*2}, s{SW+2}
                s_mov_b32 s56, s35
                s_lshl_b32 s40, s3, 6
                s_mul_i32 s58, s40, s35
                s_add_u32 s58, s58, s34
                s_mov_b32 s57, s58''')
            else: e('s_lshl_b32 s40, s35, 1\ns_add_u32 s57, s58, s40')
        elif kind=='WO':
            e(f'''s_mov_b32 s{SW}, s{P_WO}
            s_mov_b32 s{SW+1}, s{P_WO+1}
            s_mov_b32 s{SW+2}, {4096*1024*2}
            s_mov_b32 s56, 2048
            s_and_b32 s40, s2, 7
            s_lshl_b32 s57, s40, 18
            s_lshl_b32 s40, s3, 21
            s_add_u32 s57, s57, s40
            s_bfe_u32 s40, s2, 0x20003
            s_lshl_b32 s40, s40, 16
            s_add_u32 s57, s57, s40
            s_lshr_b32 s40, s2, 5
            s_lshl_b32 s40, s40, 8
            s_add_u32 s57, s57, s40''')
        elif kind in ('X0','X1'):
            t = int(kind[1])
            if t==0:
                e(f'''s_and_b32 s40, s2, 7
                s_lshl_b32 s40, s40, 2
                s_add_u32 s40, s40, s3
                s_mul_i32 s59, s40, {32*7168}
                s_lshr_b32 s40, s2, 3
                s_lshl_b32 s40, s40, 8
                s_add_u32 s59, s59, s40''')
            e(f'''s_sub_u32 s40, s101, s39
            s_lshl_b32 s40, s40, 8
            s_add_u32 s40, s40, s58
            s_add_u32 s40, s40, {t*2*12288}
            s_cmp_lt_u32 s2, 224''')
            ptr(P_W3 if t else P_W1, P_WM)
            e(f'''s_mov_b32 s{SW+2}, {1024*6144*2}
            s_cselect_b32 s{SW+2}, {1024*3584*2}, s{SW+2}
            s_mov_b32 s56, 12288
            s_cselect_b32 s56, 7168, s56
            s_cselect_b32 s57, s59, s40''')
        elif kind=='X2':
            e(f'''s_lshr_b32 s40, s63, 3
            s_lshl_b32 s57, s40, 18
            s_lshl_b32 s40, s3, 16
            s_add_u32 s57, s57, s40
            s_and_b32 s40, s63, 7
            s_lshl_b32 s40, s40, 8
            s_add_u32 s57, s57, s40
            s_mov_b32 s{SW}, s{P_W2}
            s_mov_b32 s{SW+1}, s{P_W2+1}
            s_cmp_lt_u32 s2, 224
            s_cselect_b32 s{SW+2}, {1024*3584*2}, 0
            s_mov_b32 s56, 2048''')
        elif kind=='X3':
            e(f'''s_and_b32 s40, s2, 7
            s_lshl_b32 s40, s40, 2
            s_add_u32 s40, s40, s3
            s_mul_i32 s57, s40, {32*12288}
            s_lshr_b32 s40, s2, 3
            s_lshl_b32 s40, s40, 8
            s_add_u32 s57, s57, s40
            s_add_u32 s57, s57, {40*256}
            s_mov_b32 s{SW}, s{P_WM}
            s_mov_b32 s{SW+1}, s{P_WM+1}
            s_cmp_lt_u32 s2, 64
            s_cselect_b32 s{SW+2}, {1024*6144*2}, 0
            s_mov_b32 s56, 12288''')
        if kind=='J': e(f'v_mov_b32 v{vX+8}, v{vRJ}\ns_mov_b32 s41, 1')
        elif kind in ('WO','X2','X3'): e(f'v_mov_b32 v{vX+8}, v{vR}\ns_mov_b32 s41, 0')
        else: e(f's_cselect_b64 vcc, 0, -1\ns_cselect_b32 s41, 0, 1\nv_cndmask_b32 v{vX+8}, v{vR}, v{vRJ}, vcc')
        e(f'''v_mad_u32_u24 v{vW}, v{vX+8}, s56, v{vSw}
        v_mad_u32_u24 v{vW+1}, v{vX+8}, s56, v{vSw+1}
        s_lshl_b32 s61, s56, s41
        s_lshl_b32 s60, s61, 3
        s_sub_u32 s60, s60, 1024
        s_lshl_b32 s61, s61, 2''')
    def emit_unit(n):
        kind,i = UNITS[n]
        if kind in GROUPS:
            if (i&1)==0: tile_setup(kind,i>>1); e('s_mov_b32 s41, s57')
            else: e('s_add_u32 s41, s57, s61')
            e(f's_add_u32 m0, s32, {(n%8)*4096}')
            for k in range(4):
                if k%2==0: pairwait(n,k)
                dma(vW+(k&1), SW, 's41', k)
                if k<3: e('s_add_u32 s41, s41, s60')
        else:
            e(f's_add_u32 s41, s62, {i*16384}\ns_add_u32 m0, s32, {(n%8)*4096}')
            for k in range(4):
                if k%2==0: pairwait(n,k)
                dma((vK+k) if kind=='K' else (vV+(k&1)), SK if kind=='K' else SV, 's41', k)
    def note_landed(n):
        st['landed']=max(st['landed'],n)
        for gi,g in enumerate(GROUPS):
            last=max(k for k,u in enumerate(UNITS) if u[0]==g)
            if last<=st['landed'] and g not in st['signaled']:
                st['signaled'].add(g); lds_signal(e, F_LAND+4*gi, vFl, vOne)
                if g=='J': stamp(e,cfg,6)
    consumed=set()
    def issue(n):
        assert n==st['issued']
        if cfg.pairs and n==5: wait_landed(3)
        if n>=cfg.D0 and not cfg.pairs:
            N = cfg.NV if n>=upos('V',0)+cfg.deep else (cfg.NK if upos('K',min(cfg.kdeep,15))+(cfg.kdeep>15)<=n<upos('V',0) else cfg.N)
            full = n-1-(N+3)//4
            if st['landed']<n-1-N//4:
                e(f's_waitcnt vmcnt({N})'); note_landed(full)
        if n>=8 and UNITS[n-8][0]=='K' and UNITS[n-8][1]<8:
            stage(UNITS[n-8][1]); e('s_waitcnt lgkmcnt(0)')
        if n>=8:
            g=UNITS[n-8][0]
            if g in GROUPS and g not in consumed:
                last=max(k for k,u in enumerate(UNITS) if u[0]==g)
                if g not in st['signaled']: wait_landed(last)
                consumed.add(g); lds_spin(e,cfg,F_CONS+4*GROUPS.index(g),4,vFl,vT)
                if g=='J': stamp(e,cfg,7)
        if cfg.stamps: e(f's_memrealtime s[82:83]\ns_waitcnt lgkmcnt(0)\nv_writelane_b32 v47, s82, {n}')
        emit_unit(n); st['issued']=n+1
        if cfg.qgate and n==cfg.qgate: lds_signal(e,F_P,vFl,vOne)
    def stage(u):
        wait_landed(upos('K',u))
        for k in range(4):
            r=ST+(u%8)*16+4*k
            e(f'ds_read_b128 v[{r}:{r+3}], v{vKR+k} offset:{slot("K",u)}')
    def wait_landed(n):
        if st['landed']>=n: return
        e(f's_waitcnt vmcnt({4*(st["issued"]-1-n)})'); note_landed(n)
    for n in range(cfg.D0): issue(n)
    srd(e,SK,P_K,0x4000000); srd(e,SV,P_V,0x4000000)
    e(f'''
    s_lshl_b32 s62, s37, 22
    s_lshl_b32 s40, s38, 18
    s_add_u32 s62, s62, s40
    s_lshl_b32 s40, s3, 12
    s_add_u32 s62, s62, s40
    v_xor_b32 v{vX+6}, v{vX+1}, v{vR}
    v_lshlrev_b32 v{vX+7}, 8, v{vR}
    v_lshl_add_u32 v{vK}, v{vX+6}, 4, v{vX+7}
    v_xor_b32 v{vK+1}, 64, v{vK}
    v_xor_b32 v{vK+2}, 128, v{vK}
    v_xor_b32 v{vK+3}, 192, v{vK}
    v_add_u32 v{vV}, v{vSw}, v{vX+7}
    v_add_u32 v{vV+1}, v{vSw+1}, v{vX+7}
    v_lshlrev_b32 v{vX+7}, 8, v{vX+1}
    v_lshl_add_u32 v{vKR}, v{vX+6}, 4, v{vX+7}
    v_add_u32 v{vKR}, s32, v{vKR}
    v_xor_b32 v{vKR+1}, 64, v{vKR}
    v_xor_b32 v{vKR+2}, 128, v{vKR}
    v_xor_b32 v{vKR+3}, 192, v{vKR}
    v_lshrrev_b32 v{vX+2}, 2, v{vL}
    v_and_b32 v{vX+5}, 3, v{vL}
    v_lshlrev_b32 v{vX+6}, 8, v{vX+2}
    v_and_b32 v{vX+7}, 7, v{vX+2}
    v_lshl_add_u32 v{vX+6}, v{vX+7}, 5, v{vX+6}
    v_lshl_add_u32 v{vX+6}, v{vX+5}, 3, v{vX+6}
    v_add_u32 v{vVR}, s32, v{vX+6}
    ''')
    for ct in range(1,8): e(f'v_xor_b32 v{vVR+ct}, {ct<<5}, v{vVR}')
    e(f'''
    v_mov_b32 v{vFl}, {L_FLAG}
    v_mov_b32 v{vOne}, 1
    s_cmp_ge_u32 s2, 224
    s_cbranch_scc1 L_go2
    s_barrier
    L_go2:
    ''')
    V0=upos('V',0); NX=upos('K',15)+1
    for n in range(cfg.D0, NX): issue(n)
    def qk(u):
        for k in range(4):
            r=ST+(u%8)*16+4*k
            e(f'v_mfma_f32_16x16x32_bf16 v[{S+4*u}:{S+4*u+3}], v[{r}:{r+3}], v[{Q+4*k}:{Q+4*k+3}], '+('0' if k==0 else f'v[{S+4*u}:{S+4*u+3}]'))
    vM=vX; vLs=vX+1; t0=vX+2
    def rnd(u):
        for h in range(2):
            a0=S+4*u+2*h; a1=a0+1; t=t0+h
            if cfg.round_s:
                e(f'''v_cvt_pk_bf16_f32 v{t}, v{a0}, v{a1}
                v_lshlrev_b32 v{a0}, 16, v{t}
                v_and_b32 v{a1}, 0xffff0000, v{t}''')
            e(f'v_mul_f32 v{a0}, s42, v{a0}\nv_mul_f32 v{a1}, s42, v{a1}')
            if cfg.round_s:
                e(f'''v_cvt_pk_bf16_f32 v{t}, v{a0}, v{a1}
                v_lshlrev_b32 v{a0}, 16, v{t}
                v_and_b32 v{a1}, 0xffff0000, v{t}''')
            if u==0 and h==0: e(f'v_max_f32 v{vM}, v{a0}, v{a1}')
            else: e(f'v_max3_f32 v{vM}, v{vM}, v{a0}, v{a1}')
    stamp(e,cfg,1)
    lds_spin(e,cfg,F_Q,4,vFl,vT)
    stamp(e,cfg,2)
    e(f'''
    v_and_b32 v{vX+6}, 7, v{vL}
    v_mul_u32_u24 v{vX+6}, {QSTR}, v{vX+6}
    v_lshl_add_u32 v{vX+6}, v{vR}, 4, v{vX+6}
    v_add_u32 v{vX+6}, {L_QOP}, v{vX+6}
    s_mov_b32 s42, {SCALE:#x}
    s_mov_b32 s43, {LOG2E:#x}
    ''')
    for k in range(4): e(f'ds_read_b128 v[{Q+4*k}:{Q+4*k+3}], v{vX+6} offset:{64*k}')
    if cfg.adapt: e(f'ds_read_b32 v{vT}, v{vFl} offset:{F_M}')
    e('s_waitcnt lgkmcnt(0)')
    if cfg.adapt: e(f'v_readfirstlane_b32 s96, v{vT}')
    for u in range(D):
        qk(u); stage(8+u); e('s_waitcnt lgkmcnt(0)'); issue(NX+u)
    for u in range(D,8):
        qk(u); stage(8+u)
    e('s_waitcnt lgkmcnt(0)')
    for u in range(8,16): qk(u)
    nxt=[NX+D]
    def more():
        if nxt[0]<V0+8: issue(nxt[0]); nxt[0]+=1
    more()
    for u in range(16):
        rnd(u)
        if u in (5,10,15): more()
    e(f'''
    v_mov_b32 v{t0}, v{vM}
    v_permlane32_swap_b32 v{t0}, v{vM}
    v_max_f32 v{vM}, v{vM}, v{t0}
    v_mov_b32 v{t0}, v{vM}
    v_permlane16_swap_b32 v{t0}, v{vM}
    v_max_f32 v{vM}, v{vM}, v{t0}
    v_mul_f32 v{vM}, s43, v{vM}
    ''')
    for u in range(16):
        for r in range(4): e(f'v_fma_f32 v{S+4*u+r}, v{S+4*u+r}, s43, -v{vM}')
        for r in range(4): e(f'v_exp_f32 v{S+4*u+r}, v{S+4*u+r}')
        if u==0: e(f'v_add_f32 v{vLs}, v{S}, v{S+1}')
        else: e(f'v_add_f32 v{vLs}, v{vLs}, v{S+4*u}\nv_add_f32 v{vLs}, v{vLs}, v{S+4*u+1}')
        e(f'''v_cvt_pk_bf16_f32 v{P+2*u}, v{S+4*u}, v{S+4*u+1}
        v_add_f32 v{vLs}, v{vLs}, v{S+4*u+2}
        v_add_f32 v{vLs}, v{vLs}, v{S+4*u+3}
        v_cvt_pk_bf16_f32 v{P+2*u+1}, v{S+4*u+2}, v{S+4*u+3}''')
        if u in (7,): more()
    e(f'''
    v_mov_b32 v{t0}, v{vLs}
    v_permlane32_swap_b32 v{t0}, v{vLs}
    v_add_f32 v{vLs}, v{vLs}, v{t0}
    v_mov_b32 v{t0}, v{vLs}
    v_permlane16_swap_b32 v{t0}, v{vLs}
    v_add_f32 v{vLs}, v{vLs}, v{t0}
    s_lshl_b32 s40, s3, 6
    s_add_u32 s40, s40, {L_ML}
    v_lshl_add_u32 v{t0}, v{vL}, 3, s40
    s_mov_b64 exec, 0xff
    ds_write_b64 v{t0}, v[{vM}:{vM+1}]
    s_waitcnt lgkmcnt(0)
    s_mov_b64 exec, -1
    ''')
    lds_signal(e,F_ML,vFl,vOne)
    stamp(e,cfg,3)
    while nxt[0]<V0+8: more()
    for j in range(8):
        wait_landed(V0+2*j+1)
        if j==7: stamp(e,cfg,4)
        for ct in range(8):
            for hf in range(2):
                r=VF+4*ct+2*hf
                e(f'ds_read_b64_tr_b16 v[{r}:{r+1}], v{vVR+ct} offset:{slot("V",2*j+hf)}')
        for ct in range(8):
            e(f's_waitcnt lgkmcnt({14-2*ct})')
            e(f'v_mfma_f32_16x16x32_bf16 v[{O+4*ct}:{O+4*ct+3}], v[{VF+4*ct}:{VF+4*ct+3}], v[{P+4*j}:{P+4*j+3}], '+('0' if j==0 else f'v[{O+4*ct}:{O+4*ct+3}]'))
        for k in range(2):
            if V0+2*j+8+k < len(UNITS): issue(V0+2*j+8+k)
        if j==cfg.vsig: lds_signal(e,F_V,vFl,vOne)
        if j==6:
            e(f'''
            v_and_b32 v{t0}, 15, v{vL}
            v_mul_u32_u24 v{t0}, {OSTR}, v{t0}
            v_lshl_add_u32 v{t0}, v{vR}, 4, v{t0}
            v_add_u32 v{t0}, s32, v{t0}
            v_add_u32 v{t0}, {(slot('V',15)+4096)%RING}, v{t0}
            s_mov_b32 s40, 0x00ff00ff
            s_mov_b32 s41, 0x00ff00ff
            ''')
    e('s_mov_b64 exec, s[40:41]')
    for ct in range(8): e(f'ds_write_b128 v{t0}, v[{O+4*ct}:{O+4*ct+3}] offset:{64*ct}')
    e('s_waitcnt lgkmcnt(0)\ns_mov_b64 exec, -1')
    lds_signal(e,F_O,vFl,vOne)
    stamp(e,cfg,5)
    stamps_out(e,cfg,8,vX+4)
    if cfg.stamps:
        e(f'''s_lshl_b32 s40, s2, 2
        s_add_u32 s40, s40, s3
        s_lshl_b32 s40, s40, 8
        s_add_u32 s40, s40, {WS_STAMP+0x40000}
        v_lshl_add_u32 v46, v{vL}, 2, s40
        global_store_dword v46, v47, s[{P_WS}:{P_WS+1}]''')
    e('s_waitcnt lgkmcnt(0)\ns_endpgm')

def aux(e, cfg):
    vL=1; vFl=2; vOne=3; vT=4; vRow=5; vRd=6; vRr=7; vA=8
    X2=64; X0=96; X1=128; WO=160; WJ=192
    OOFF=(slot('V',15)+4096)%RING
    e.c('================= aux waves =================')
    e('L_aux:')
    e(f'''
    s_setprio {cfg.prio}
    s_sub_u32 s3, s3, 4
    s_lshl_b32 s32, s3, 15
    v_lshlrev_b32 v{vRow}, 4, v{vL}
    v_mov_b32 v{vFl}, {L_FLAG}
    v_mov_b32 v{vOne}, 1
    v_mov_b32 v16, 0
    v_lshl_add_u32 v{vA+1}, v{vL}, 2, v{vFl}
    ds_write_b32 v{vA+1}, v16
    v_mov_b32 v32, -1
    v_mov_b32 v33, -1
    v_mov_b32 v34, -1
    v_mov_b32 v35, -1
    v_bfe_u32 v{vA+2}, v{vL}, 2, 2
    v_lshrrev_b32 v{vA+3}, 4, v{vL}
    v_and_b32 v{vA+6}, 3, v{vL}
    v_lshl_add_u32 v{vA+3}, v{vA+3}, 2, v{vA+6}
    v_lshlrev_b32 v{vA+2}, 11, v{vA+2}
    v_lshl_add_u32 v{vA}, v{vA+3}, 3, v{vA+2}
    s_lshl_b32 s40, s36, 9
    s_lshl_b32 s41, s3, 7
    s_add_u32 s40, s40, s41
    v_add_u32 v{vA}, s40, v{vA}
    s_lshl_b32 s40, s3, 11
    v_add_u32 v{vA+1}, s40, v{vRow}
    v_lshl_add_u32 v{vA+5}, v{vA+3}, 2, v{vA+2}
    s_and_b32 s40, s2, 7
    s_lshl_b32 s40, s40, 8
    s_lshl_b32 s41, s3, 6
    s_add_u32 s40, s40, s41
    v_add_u32 v{vA+5}, s40, v{vA+5}
    s_waitcnt lgkmcnt(0)
    ''')
    stamp(e,cfg,0)
    srd(e,SWS,P_WS,WS_END)
    lh=e.label('Lnohead')
    e(f'''
    s_cmp_lt_u32 s2, 224
    s_cbranch_scc1 {lh}
    s_cmp_lg_u32 s3, 3
    s_cbranch_scc1 {lh}_b
    s_sub_u32 s41, s2, 224
    s_mul_i32 s40, s41, {HEADSH}
    s_add_u32 s40, s40, {WS_MU}
    ''')
    for i in range(13):
        if i and i%4==0: e('s_add_u32 s40, s40, 4096')
        if i==12: e(f's_mov_b64 exec, {hex((1<<((HEADSH-12288)//16))-1)}' if HEADSH-12288<=512 else f's_mov_b32 exec_hi, {hex((1<<((HEADSH-12288)//16-32))-1)}')
        e(f'buffer_store_dwordx4 v[32:35], v{vRow}, s[{SWS}:{SWS+3}], s40 offen offset:{(i&3)*1024} sc1')
    e(f'''
    s_lshl_b32 s41, s41, 2
    v_mov_b32 v{vA+4}, s41
    {'s_waitcnt vmcnt(0)' if cfg.hold else 's_barrier'}
    {'s_mov_b64 exec, 1' if cfg.hold else 's_waitcnt vmcnt(0)'}
    s_mov_b64 exec, 1
    global_store_dword v{vA+4}, v{vOne}, s[{P_DBG}:{P_DBG+1}] sc1
    s_mov_b64 exec, -1
    {'' if cfg.hold else 's_branch '+lh}
    {lh}_b:
    s_barrier
    {lh}:
    s_cmp_eq_u32 s33, 1
    s_cselect_b32 s48, s{P_X}, s{P_C}
    s_cselect_b32 s49, s{P_X+1}, s{P_C+1}
    global_load_dwordx2 v[16:17], v{vA}, s[48:49]
    global_load_dword v18, v{vA+5}, s[{P_C}:{P_C+1}]
    s_cbranch_scc0 L_nox
    global_load_dwordx4 v[24:27], v{vA+1}, s[{P_X}:{P_X+1}]
    global_load_dwordx4 v[28:31], v{vA+1}, s[{P_X}:{P_X+1}] offset:1024
    L_nox:
    s_cmp_ge_u32 s2, 224
    s_cbranch_scc1 L_nobar
    s_barrier
    L_nobar:
    s_mov_b32 s50, 0
    s_mul_i32 s40, s3, 2304
    s_add_u32 s40, s40, {L_RED}
    v_lshrrev_b32 v{vA+2}, 4, v{vL}
    v_mul_u32_u24 v{vRd}, 576, v{vA+2}
    v_and_b32 v{vA+2}, 15, v{vL}
    v_lshl_add_u32 v{vRd}, v{vA+2}, 2, v{vRd}
    v_add_u32 v{vRd}, s40, v{vRd}
    s_mul_i32 s40, s3, 576
    s_add_u32 s40, s40, {L_RED}
    v_lshl_add_u32 v{vRr}, v{vL}, 3, s40
    ''')
    lc=e.label('Lclr3'); lc2=e.label('Lclrd')
    rem=FLATSH-8192
    e(f'''
    s_mul_i32 s40, s2, {FLATSH}
    s_lshl_b32 s41, s3, 11
    s_add_u32 s41, s40, s41
    buffer_store_dwordx4 v[32:35], v{vRow}, s[{SWS}:{SWS+3}], s41 offen sc1
    buffer_store_dwordx4 v[32:35], v{vRow}, s[{SWS}:{SWS+3}], s41 offen offset:1024 sc1
    s_cmp_ge_u32 s3, 2
    s_cbranch_scc1 {lc}
    s_waitcnt vmcnt(2)
    s_branch {lc2}
    {lc}:
    s_and_b32 s41, s3, 1
    s_mul_i32 s41, s41, {rem//2}
    s_add_u32 s40, s40, s41
    s_add_u32 s40, s40, 8192
    v_cmp_gt_u32 vcc, {rem//32}, v{vL}
    s_and_b64 exec, exec, vcc
    buffer_store_dwordx4 v[32:35], v{vRow}, s[{SWS}:{SWS+3}], s40 offen sc1
    s_mov_b64 exec, -1
    s_waitcnt vmcnt(3)
    {lc2}:
    ''')
    stamp(e,cfg,14)
    def auxbar():
        e('s_add_u32 s50, s50, 4\ns_waitcnt lgkmcnt(0)')
        lds_signal(e,F_AUX,vFl,vOne)
        lds_spin(e,cfg,F_AUX,'s50',vFl,vT)
    def go1():
        l=e.label('Lgo'); d=e.label('Lgod'); la=e.label('Lnogo')
        e(f'''
        s_cmp_lg_u32 s3, 3
        s_cbranch_scc1 {la}
        v_and_b32 v{vA}, 31, v{vL}
        v_lshlrev_b32 v{vA}, 2, v{vA}
        s_mov_b32 s41, 0
        {l}:
        global_load_dword v{vA+1}, v{vA}, s[{P_DBG}:{P_DBG+1}] sc1
        s_add_u32 s41, s41, 1
        s_waitcnt vmcnt(0)
        v_cmp_ne_u32 vcc, 1, v{vA+1}
        s_cbranch_vccz {d}
        s_sleep {cfg.sleep_head}
        s_cmp_lt_u32 s41, {cfg.gpoll}
        s_cbranch_scc1 {l}
        {d}:
        ''')
        stamp(e,cfg,15)
        e(f'{la}:\ns_waitcnt vmcnt(0)')
    def arrive():
        la=e.label('Lnoarr')
        e(f'''
        s_cmp_lg_u32 s3, 3
        s_cbranch_scc1 {la}
        s_lshl_b32 s40, s2, 2
        s_add_u32 s40, s40, {WS_SA}
        v_mov_b32 v{vA}, 0
        s_mov_b64 exec, 1
        buffer_store_dword v{vOne}, v{vA}, s[{SWS}:{SWS+3}], s40 offen sc1
        s_mov_b64 exec, -1
        {la}:
        ''')
    def gbar1():
        l1=e.label('Lgb1')
        e(f's_cmp_lg_u32 s3, 0\ns_cbranch_scc1 {l1}\ns_mov_b32 s40, {WS_SA}')
        gather(e,cfg,[(60,4,vRow,'s40',0)],vT,cfg.sleep_head)
        e(f'{l1}:')
    def pickup(kind, dsts):
        gi=GROUPS.index(kind)
        e(f'''v_lshrrev_b32 v{vA+7}, 2, v{vL}
        v_lshlrev_b32 v{vA}, 8, v{vA+7}
        v_and_b32 v{vA+7}, 7, v{vA+7}
        v_lshl_add_u32 v{vA}, v{vA+7}, 5, v{vA}
        v_and_b32 v{vA+7}, 3, v{vL}
        v_lshl_add_u32 v{vA}, v{vA+7}, 3, v{vA}
        v_add_u32 v{vA}, s32, v{vA}''')
        for ct in range(1,8): e(f'v_xor_b32 v{vA+ct}, {ct<<5}, v{vA}')
        lds_spin(e,cfg,F_LAND+4*gi,4,vFl,vT)
        for t,W in enumerate(dsts):
            sk=None
            if isinstance(W,tuple):
                W=W[0]; sk=e.label('Lsk'); e(f's_cmp_ge_u32 s2, 64\ns_cbranch_scc1 {sk}')
            for ct in range(8):
                for hf in range(2):
                    r=W+4*ct+2*hf
                    e(f'ds_read_b64_tr_b16 v[{r}:{r+1}], v{vA+ct} offset:{slot(kind,2*t+hf)}')
            if sk: e(f'{sk}:')
        e('s_waitcnt lgkmcnt(0)')
        lds_signal(e,F_CONS+4*gi,vFl,vOne)
    def pickup_cols(kind, W):
        gi=GROUPS.index(kind)
        e(f'''v_lshrrev_b32 v{vA+7}, 2, v{vL}
        v_lshlrev_b32 v{vA}, 8, v{vA+7}
        v_and_b32 v{vA+7}, 7, v{vA+7}
        s_lshl_b32 s40, s3, 1
        v_xor_b32 v{vA+7}, s40, v{vA+7}
        v_lshl_add_u32 v{vA}, v{vA+7}, 5, v{vA}
        v_and_b32 v{vA+7}, 3, v{vL}
        v_lshl_add_u32 v{vA}, v{vA+7}, 3, v{vA}
        v_xor_b32 v{vA+1}, 32, v{vA}
        v_add_u32 v{vA+2}, 0x10000, v{vA}
        v_add_u32 v{vA+3}, 0x10000, v{vA+1}''')
        lds_spin(e,cfg,F_LAND+4*gi,4,vFl,vT)
        for t in range(4):
            for j in range(2):
                for hf in range(2):
                    r=W+8*t+4*j+2*hf
                    e(f'ds_read_b64_tr_b16 v[{r}:{r+1}], v{vA+2*(t>>1)+j} offset:{(t&1)*RING+slot(kind,hf)}')
        e('s_waitcnt lgkmcnt(0)')
        lds_signal(e,F_CONS+4*gi,vFl,vOne)
    def pickup_x(kind, W):
        la=e.label('Lpl'); lb=e.label('Lpld')
        e(f's_cmp_ge_u32 s2, 224\ns_cbranch_scc1 {la}')
        pickup_cols(kind,W)
        e(f's_branch {lb}\n{la}:')
        pickup(kind,[W])
        e(f'{lb}:')
    def mmx(Ws, accs, vXr):
        e('s_waitcnt lgkmcnt(0)\ns_barrier')
        for t in range(4): e(f'ds_read_b128 v[{16+4*t}:{19+4*t}], v{vXr} offset:{64*t}')
        for t in range(4):
            e(f's_waitcnt lgkmcnt({3-t})')
            for m,W in enumerate(Ws):
                for j in range(2):
                    ac=accs[2*m+j]
                    e(f'v_mfma_f32_16x16x32_bf16 v[{ac}:{ac+3}], v[{16+4*t}:{19+4*t}], v[{W+8*t+4*j}:{W+8*t+4*j+3}], '+('0' if t==0 else f'v[{ac}:{ac+3}]'))
    def mm(As, Ws, accs, redoff=0):
        for t,(a_,W) in enumerate(zip(As,Ws)):
            for ct in range(8):
                e(f'v_mfma_f32_16x16x32_bf16 v[{accs[ct]}:{accs[ct]+3}], v[{a_}:{a_+3}], v[{W+4*ct}:{W+4*ct+3}], '+('0' if t==0 else f'v[{accs[ct]}:{accs[ct]+3}]'))
        for ct in range(8): e(f'ds_write_b32 v{vRd}, v{accs[ct]} offset:{64*ct}')
    JACC=[24+4*i for i in range(8)]
    def job_pub(base, rs, cgoff, skq='s36', scg='s39'):
        for w in range(4): e(f'ds_read_b64 v[{24+2*w}:{25+2*w}], v{vRr} offset:{2304*w}')
        e(f'''
        s_lshl_b32 s40, {skq}, 2
        s_add_u32 s40, s40, s3
        s_mul_i32 s40, s40, {rs}
        s_lshl_b32 s41, {scg}, 9
        s_add_u32 s40, s40, s41
        s_add_u32 s40, s40, {base+cgoff*512}
        v_lshlrev_b32 v{vA}, 3, v{vL}
        s_waitcnt lgkmcnt(0)
        ''')
        sum4(24,24)
        e(f'''
        v_min_u32 v24, -2, v24
        v_min_u32 v25, -2, v25
        buffer_store_dwordx2 v[24:25], v{vA}, s[{SWS}:{SWS+3}], s40 offen sc1
        ''')
    def spread(r):
        for k in (1,2,3,0): e(f'v_mov_b32_dpp v{r+k}, v{r} quad_perm:[{k},{k},{k},{k}] row_mask:0xf bank_mask:0xf')
    def silu_A():
        unpack(e,16,32,3)
        for i in range(6): e(f'v_mul_f32 v{48+i}, 0xbfb8aa3b, v{32+i}')
        for i in range(6): e(f'v_exp_f32 v{48+i}, v{48+i}')
        for i in range(6): e(f'v_add_f32 v{48+i}, 1.0, v{48+i}')
        for i in range(6): e(f'v_rcp_f32 v{48+i}, v{48+i}')
        for i in range(6): e(f'v_mul_f32 v{32+i}, v{32+i}, v{48+i}')
        e('v_cvt_pk_bf16_f32 v16, v32, v33\nv_cvt_pk_bf16_f32 v20, v34, v35\nv_cvt_pk_bf16_f32 v56, v36, v37')
        spread(16); spread(20); spread(56)
    def sum4(r, dst):
        e(f'''v_pk_add_f32 v[{r}:{r+1}], v[{r}:{r+1}], v[{r+2}:{r+3}]
        v_pk_add_f32 v[{r+4}:{r+5}], v[{r+4}:{r+5}], v[{r+6}:{r+7}]
        v_pk_add_f32 v[{dst}:{dst+1}], v[{r}:{r+1}], v[{r+4}:{r+5}]''')
    def aoff(dst, pstr, bstr, gstr):
        e(f'''v_bfe_u32 v{vA+5}, v{vL}, 2, 2
        v_and_b32 v{vA+6}, 3, v{vL}
        v_lshrrev_b32 v{vA+7}, 4, v{vL}
        v_mul_u32_u24 v{dst}, {pstr}, v{vA+5}
        v_mul_u32_u24 v{vA+6}, {bstr}, v{vA+6}
        v_mul_u32_u24 v{vA+7}, {gstr}, v{vA+7}
        v_add3_u32 v{dst}, v{dst}, v{vA+6}, v{vA+7}''')
    def dppsum(r0, n):
        for r in (4,8):
            for i in range(n): e(f'v_add_f32_dpp v{r0+i}, v{r0+i}, v{r0+i} row_ror:{r} row_mask:0xf bank_mask:0xf')
    def allred_s(op, xs, t, rors=(4,8), swaps=('v_permlane16_swap_b32','v_permlane32_swap_b32')):
        for r in rors:
            for x in xs: e(f'{op}_dpp v{x}, v{x}, v{x} row_ror:{r} row_mask:0xf bank_mask:0xf')
        for sw in swaps:
            for k,x in enumerate(xs): e(f'v_mov_b32 v{t+k}, v{x}')
            for k,x in enumerate(xs): e(f'{sw} v{t+k}, v{x}')
            for k,x in enumerate(xs): e(f'{op} v{x}, v{x}, v{t+k}')
    def gather_q():
        e(f'''
        s_lshr_b32 s40, s37, 2
        s_mul_i32 s40, s40, {QS}
        s_and_b32 s41, s37, 3
        s_lshl_b32 s41, s41, 12
        s_add_u32 s40, s40, s41
        s_lshl_b32 s41, s3, 10
        s_add_u32 s40, s40, s41
        s_add_u32 s52, s40, {WS_Q}
        s_add_u32 s53, s52, {4*QS}
        s_add_u32 s54, s52, {8*QS}
        s_add_u32 s55, s52, {12*QS}
        ''')
        gather(e,cfg,[(24+4*i,4,vRow,f's{52+i}',0) for i in range(4)],vT,cfg.sleep_q)
        e(f'''
        s_mov_b32 s42, s41
        v_pk_add_f32 v[24:25], v[24:25], v[28:29]
        v_pk_add_f32 v[26:27], v[26:27], v[30:31]
        v_pk_add_f32 v[32:33], v[32:33], v[36:37]
        v_pk_add_f32 v[34:35], v[34:35], v[38:39]
        v_pk_add_f32 v[24:25], v[24:25], v[32:33]
        v_pk_add_f32 v[26:27], v[26:27], v[34:35]
        s_mul_i32 s40, s3, {2*QSTR}
        s_add_u32 s40, s40, {L_QOP}
        v_lshrrev_b32 v{vA}, 5, v{vL}
        v_mul_u32_u24 v{vA}, {QSTR}, v{vA}
        v_and_b32 v{vA+1}, 31, v{vL}
        v_lshl_add_u32 v{vA}, v{vA+1}, 3, v{vA}
        v_add_u32 v{vA}, s40, v{vA}
        v_cvt_pk_bf16_f32 v24, v24, v25
        v_cvt_pk_bf16_f32 v25, v26, v27
        ds_write_b64 v{vA}, v[24:25]
        ''')
        if cfg.adapt:
            lb=e.label('Lld')
            e(f's_cmp_lg_u32 s42, 1\ns_cbranch_scc1 {lb}')
            lds_signal(e,F_M,vFl,vOne)
            e(f'{lb}:')
        e('s_waitcnt lgkmcnt(0)')
        lds_signal(e,F_Q,vFl,vOne)
    early = True
    def wpick(a=0,b=5):
        for g,d in [('WO',WO),('X0',X0),('X1',X1),('X2',X2),('X3',WJ)][a:b]:
            if g in ('WO','X2'): pickup_cols(g,d)
            elif g=='X3': pickup(g,[(d,)])
            else: pickup_x(g,d)
    def njobs():
        gbar1(); auxbar()
        job_pub(WS_MN,MNS,-16)
        ln=e.label('Lnoj2')
        e(f's_cmp_lt_u32 s2, 224\ns_cbranch_scc1 {ln}')
        auxbar(); mm([16,20],[X0,X1],JACC); auxbar(); job_pub(WS_MN,MNS,-16,scg='s101')
        e(f'{ln}:')
    def gjob():
        lg=e.label('Lnog')
        e(f's_cmp_ge_u32 s2, 64\ns_cbranch_scc1 {lg}')
        mm([56],[WJ],JACC); auxbar()
        e('s_and_b32 s42, s2, 7\ns_lshr_b32 s43, s2, 3')
        job_pub(WS_MG,MGS,0,'s42','s43')
        auxbar()
        e(f'{lg}:')
    e('''
    s_cmp_eq_u32 s33, 1
    s_cbranch_scc1 L_roleQ
    ''')
    silu_A(); go1(); pickup('J',[WJ,WJ+32]); mm([16,20],[WJ,WJ+32],JACC); auxbar()
    e('s_cmp_eq_u32 s33, 2\ns_cbranch_scc1 L_roleN')
    job_pub(WS_MU,MUS,0)
    arrive()
    stamp(e,cfg,1)
    if early: wpick()
    stamp(e,cfg,2)
    e('s_branch L_common')
    e('L_roleN:')
    arrive()
    stamp(e,cfg,1)
    if early: wpick(); njobs()
    stamp(e,cfg,2)
    e('s_branch L_common')
    e('L_roleQ:')
    unpack(e,24,32,8)
    mu=24; var=25; a_=26; b_=27
    e(f'v_add_f32 v{mu}, v32, v33\nv_add_f32 v{a_}, v34, v35')
    for i in range(4,16,2): e(f'v_add_f32 v{mu}, v{mu}, v{32+i}\nv_add_f32 v{a_}, v{a_}, v{33+i}')
    e(f'v_add_f32 v{mu}, v{mu}, v{a_}')
    allreduce64(e,'v_add_f32',mu,a_)
    e(f'v_mul_f32 v{mu}, 0x3a800000, v{mu}')
    e(f'v_sub_f32 v{a_}, v32, v{mu}\nv_sub_f32 v{b_}, v33, v{mu}\nv_mul_f32 v{var}, v{a_}, v{a_}\nv_mul_f32 v28, v{b_}, v{b_}')
    for i in range(2,16,2):
        e(f'v_sub_f32 v{a_}, v{32+i}, v{mu}\nv_sub_f32 v{b_}, v{33+i}, v{mu}\nv_fmac_f32 v{var}, v{a_}, v{a_}\nv_fmac_f32 v28, v{b_}, v{b_}')
    e(f'v_add_f32 v{var}, v{var}, v28')
    allreduce64(e,'v_add_f32',var,a_)
    e(f'v_mul_f32 v{var}, 0x3a800000, v{var}')
    def finish_stats(mu,var):
        if cfg.round_ln: rnd1(e,mu); rnd1(e,var)
        e(f'v_add_f32 v{var}, 0x3727c5ac, v{var}')
        if cfg.round_ln: rnd1(e,var)
        e(f'v_sqrt_f32 v{var}, v{var}')
        if cfg.round_ln: rnd1(e,var)
        e(f'v_rcp_f32 v{var}, v{var}')
    finish_stats(mu,var)
    e(f'''
    s_lshl_b32 s40, s3, 3
    s_add_u32 s40, s40, {L_ST}
    v_mov_b32 v{vA}, s40
    ds_write_b64 v{vA}, v[24:25]
    ''')
    go1()
    pickup('J',[WJ,WJ+32])
    auxbar(); arrive()
    e(f'''
    v_bfe_u32 v{vA}, v{vL}, 2, 2
    v_lshlrev_b32 v{vA}, 3, v{vA}
    v_add_u32 v{vA}, {L_ST}, v{vA}
    ds_read_b64 v[24:25], v{vA}
    ''')
    def normalise(X,n,mu,rs,t):
        for i in range(n): e(f'v_sub_f32 v{X+i}, v{X+i}, v{mu}')
        if cfg.round_ln: rnd_vec(e,X,n,t)
        for i in range(n): e(f'v_mul_f32 v{X+i}, v{X+i}, v{rs}')
        if cfg.round_ln: rnd_vec(e,X,n,t)
    unpack(e,16,60,2)
    e('s_waitcnt lgkmcnt(0)')
    normalise(60,4,24,25,26)
    wpick(0,cfg.qafter)
    stamp(e,cfg,1)
    aoff(vA, MUS, 16, 64)
    e(f'''
    s_lshl_b32 s40, s36, 10
    s_lshl_b32 s41, s3, 8
    s_add_u32 s40, s40, s41
    s_add_u32 s52, s40, {WS_MU}
    ''')
    for i in range(1,8): e(f's_add_u32 s{52+i}, s52, {(i&3)*4*MUS+(i>>2)*4096}')
    gather(e,cfg,[(16+4*i,4,vA,f's{52+i}',0) for i in range(8)],vT,cfg.sleep_head)
    for m in range(2):
        for h in range(2):
            r=16+16*m+2*h
            e(f'''v_pk_add_f32 v[{r}:{r+1}], v[{r}:{r+1}], v[{r+4}:{r+5}]
            v_pk_add_f32 v[{r+8}:{r+9}], v[{r+8}:{r+9}], v[{r+12}:{r+13}]
            v_pk_add_f32 v[{48+4*m+2*h}:{49+4*m+2*h}], v[{r}:{r+1}], v[{r+8}:{r+9}]''')
    rnd_vec(e,48,8,vA)
    def modulate(X,n,T1,SB,out,t,prep=True):
        if prep:
            for i in range(n): e(f'v_add_f32 v{T1+i}, 1.0, v{T1+i}')
            if cfg.round_ln: rnd_vec(e,T1,n,t)
        for i in range(n): e(f'v_mul_f32 v{X+i}, v{X+i}, v{T1+i}')
        if cfg.round_ln: rnd_vec(e,X,n,t)
        for i in range(n): e(f'v_add_f32 v{X+i}, v{X+i}, v{SB+i}')
        for i in range(n//2): e(f'v_cvt_pk_bf16_f32 v{out+i}, v{X+2*i}, v{X+2*i+1}')
    modulate(60,4,52,48,24,vA)
    e('v_mov_b32 v16, v24\nv_mov_b32 v20, v25')
    spread(16); spread(20)
    mm([16,20],[WJ,WJ+32],JACC); auxbar()
    job_pub(WS_Q,QS,0)
    stamp(e,cfg,2)
    wpick(cfg.qafter,5)
    e('L_common:')
    if cfg.qgate: lds_spin(e,cfg,F_P,4,vFl,vT)
    gather_q()
    stamp(e,cfg,3)
    lj=e.label('Lj2'); lk=e.label('Lj2d')
    if not early:
        wpick()
        e(f's_cmp_eq_u32 s33, 2\ns_cbranch_scc1 {lj}')
        gbar1()
        e(f's_branch {lk}\n{lj}:')
        njobs()
        e(f'{lk}:')
    else:
        e(f's_cmp_eq_u32 s33, 2\ns_cbranch_scc1 {lk}')
        gbar1()
        e(f'{lk}:')
    auxbar()
    gjob()
    F=192; RX=196; T1=204; SB=206; AC2=[220+4*i for i in range(8)]
    lds_spin(e,cfg,F_ML,4,vFl,vT)
    lm=e.label('Lnoml')
    e(f'''
    s_cmp_lg_u32 s3, 0
    s_cbranch_scc1 {lm}
    v_and_b32 v{vA}, 7, v{vL}
    v_lshlrev_b32 v{vA+1}, 3, v{vA}
    v_add_u32 v{vA}, {L_ML}, v{vA+1}
    ds_read_b64 v[16:17], v{vA}
    ds_read_b64 v[18:19], v{vA} offset:64
    ds_read_b64 v[20:21], v{vA} offset:128
    ds_read_b64 v[22:23], v{vA} offset:192
    s_lshl_b32 s40, s37, 10
    s_lshl_b32 s41, s38, 6
    s_add_u32 s40, s40, s41
    s_add_u32 s40, s40, {WS_ML}
    s_waitcnt lgkmcnt(0)
    v_max3_f32 v24, v16, v18, v20
    v_max_f32 v24, v24, v22
    v_sub_f32 v16, v16, v24
    v_sub_f32 v18, v18, v24
    v_sub_f32 v20, v20, v24
    v_sub_f32 v22, v22, v24
    v_exp_f32 v16, v16
    v_exp_f32 v18, v18
    v_exp_f32 v20, v20
    v_exp_f32 v22, v22
    v_mul_f32 v25, v16, v17
    v_fmac_f32 v25, v18, v19
    v_fmac_f32 v25, v20, v21
    v_fmac_f32 v25, v22, v23
    v_min_u32 v24, -2, v24
    v_min_u32 v25, -2, v25
    s_mov_b64 exec, 0xff
    buffer_store_dwordx2 v[24:25], v{vA+1}, s[{SWS}:{SWS+3}], s40 offen sc1
    s_mov_b64 exec, -1
    {lm}:
    ''')
    aoff(vA, 4*MNS, 32, MNS)
    e(f'''
    s_and_b32 s40, s2, 7
    s_lshl_b32 s40, s40, 9
    s_lshl_b32 s41, s3, 7
    s_add_u32 s40, s40, s41
    s_add_u32 s52, s40, {WS_MN+4096}
    s_add_u32 s53, s52, 4096
    ''')
    gather(e,cfg,[(16,4,vA,'s52',0),(20,4,vA,'s52',16),(24,4,vA,'s53',0),(28,4,vA,'s53',16)],vT,cfg.sleep_head)
    dppsum(16,16)
    e(f'''
    s_mov_b32 s42, 0xf0f0f0f0
    s_mov_b32 s43, 0xf0f0f0f0
    s_mov_b32 s40, 0xff00ff00
    s_mov_b32 s41, 0xff00ff00
    ''')
    for r,dst in ((16,SB),(17,SB+1),(24,T1),(25,T1+1)):
        e(f'''v_cndmask_b32 v{r}, v{r}, v{r+2}, s[42:43]
        v_cndmask_b32 v{r+4}, v{r+4}, v{r+6}, s[42:43]
        v_cndmask_b32 v{dst}, v{r}, v{r+4}, s[40:41]''')
    rnd_vec(e,T1,4,16)
    for i in range(2): e(f'v_add_f32 v{T1+i}, 1.0, v{T1+i}')
    if cfg.round_ln: rnd_vec(e,T1,2,16)
    vOc=48; vOs=49; vH1=50; vYs=53; vRo=54; vH3=55; vZs=56; vXs=57; vSt=58; vOc2=59; vGs=51; vXr=52; vXw=60
    lr=e.label('Lnored')
    e(f'''
    v_and_b32 v{vA}, 15, v{vL}
    v_lshlrev_b32 v{vRo}, 3, v{vA}
    v_lshrrev_b32 v{vA+1}, 5, v{vL}
    v_lshl_add_u32 v{vRo}, v{vA+1}, 2, v{vRo}
    s_cmp_ge_u32 s2, 64
    s_cbranch_scc1 {lr}
    s_cmp_lg_u32 s3, 0
    s_cbranch_scc1 {lr}
    s_lshl_b32 s40, s2, 7
    v_add_u32 v{vA+1}, s40, v{vRo}
    global_load_dword v32, v{vA+1}, s[{P_X}:{P_X+1}]
    v_lshlrev_b32 v{vA}, 1, v{vRo}
    s_mul_i32 s40, s38, {MNS}
    s_lshl_b32 s41, s37, 8
    s_add_u32 s40, s40, s41
    s_add_u32 s52, s40, {WS_MN}
    s_mul_i32 s40, s38, {MGS}
    s_add_u32 s40, s40, s41
    s_add_u32 s56, s40, {WS_MG}
    v_add_u32 v{vA+1}, {16*MGS}, v{vA}
    ''')
    for i in range(1,4): e(f's_add_u32 s{52+i}, s52, {i*4*MNS}\ns_add_u32 s{56+i}, s56, {i*4*MGS}')
    gather(e,cfg,[(16+2*i,2,vA,f's{52+i}',0) for i in range(8)]+[(34+2*i,2,vA+1,f's{56+i}',0) for i in range(4)],vT,cfg.sleep_head)
    sum4(16,RX+2); sum4(24,24); sum4(34,34)
    e(f'v_pk_add_f32 v[{RX+4}:{RX+5}], v[24:25], v[34:35]')
    rnd_vec(e,RX+2,4,16)
    unpack(e,32,RX,1)
    e(f'{lr}:')
    aoff(vH1, OS, 16, 64*OS)
    aoff(vH3, 8, 32, GS)
    aoff(vXs, 4, 16, 2048)
    aoff(vYs, 16, 4, 16*YS)
    aoff(vZs, 16, 4, 16*ZS)
    aoff(vGs, 16, 4, GS)
    aoff(vXr, XSTR, 0, 16)
    aoff(vXw, 4, 16, XSTR)
    aoff(vSt, 128, 8, 512)
    e(f'''
    v_add_u32 v{vXr}, {L_AX}, v{vXr}
    s_lshl_b32 s40, s3, 6
    s_add_u32 s40, s40, {L_AX}
    v_add_u32 v{vXw}, s40, v{vXw}
    s_lshl_b32 s40, s3, 1
    v_lshrrev_b32 v{vA}, 5, v{vL}
    v_add_u32 v{vA+2}, s40, v{vA}
    v_mul_u32_u24 v{vOc}, {OSTR}, v{vA+2}
    v_and_b32 v{vA+1}, 31, v{vL}
    v_lshl_add_u32 v{vOc}, v{vA+1}, 4, v{vOc}
    v_add_u32 v{vOc}, {OOFF}, v{vOc}
    v_add_u32 v{vOc2}, 0x10000, v{vOc}
    v_lshlrev_b32 v{vOs}, 3, v{vL}
    s_lshl_b32 s52, s37, 4
    s_add_u32 s52, s52, s38
    s_mul_i32 s52, s52, {OS}
    s_lshl_b32 s40, s3, 9
    s_add_u32 s52, s52, s40
    s_mul_i32 s53, s3, {16*OS}
    s_and_b32 s40, s2, 7
    s_lshl_b32 s40, s40, 8
    s_add_u32 s53, s53, s40
    s_bfe_u32 s40, s2, 0x20003
    s_lshl_b32 s40, s40, 6
    s_add_u32 s53, s53, s40
    s_add_u32 s54, s53, {4*OS}
    s_add_u32 s55, s53, {8*OS}
    s_add_u32 s56, s53, {12*OS}
    s_lshr_b32 s42, s3, 1
    s_and_b32 s43, s3, 1
    s_lshl_b32 s43, s43, 7
    s_lshr_b32 s40, s2, 5
    s_lshl_b32 s40, s40, 1
    s_add_u32 s40, s40, s42
    s_mul_i32 s57, s40, {YS}
    s_and_b32 s40, s2, 31
    s_lshl_b32 s40, s40, 8
    s_add_u32 s57, s57, s40
    s_add_u32 s57, s57, s43
    s_add_u32 s57, s57, {WS_Y}
    s_and_b32 s40, s63, 7
    s_lshl_b32 s40, s40, 1
    s_add_u32 s40, s40, s42
    s_mul_i32 s59, s40, {ZS}
    s_add_u32 s59, s59, s43
    s_lshr_b32 s43, s63, 3
    s_lshl_b32 s42, s43, 8
    s_add_u32 s59, s59, s42
    s_add_u32 s59, s59, {WS_Z}
    s_and_b32 s40, s2, 7
    s_lshl_b32 s58, s40, 8
    s_lshl_b32 s42, s3, 6
    s_add_u32 s58, s58, s42
    s_add_u32 s58, s58, {WS_X1}
    s_mov_b32 s49, {WS_ST}
    s_mul_i32 s60, s40, {4*GS}
    s_lshr_b32 s41, s2, 3
    s_lshl_b32 s41, s41, 9
    s_add_u32 s60, s60, s41
    s_lshl_b32 s40, s3, 7
    s_add_u32 s60, s60, s40
    s_add_u32 s60, s60, {WS_GU}
    s_lshl_b32 s43, s43, 9
    s_add_u32 s48, s43, s40
    s_add_u32 s48, s48, {WS_GU}
    s_mov_b32 s61, 0x3f80
    s_mov_b32 s62, 0x3f800000
    s_mov_b32 s96, 0x000f000f
    s_mov_b32 s97, 0x000f000f
    ''')
    lf=e.label('Lnof')
    e(f's_cmp_lg_u32 s3, 0\ns_cbranch_scc1 {lf}')
    lds_spin(e,cfg,F_V,1,vFl,vT)
    e(f's_lshl_b32 s40, s37, 10\ns_add_u32 s40, s40, {WS_ML}')
    gather(e,cfg,[(16,4,vRow,'s40',0)],vT,cfg.sleep_ml)
    e('v_mov_b32 v20, v16\nv_mov_b32 v22, v18')
    allred_s('v_max_f32',[20,22],24)
    e('''
    v_sub_f32 v16, v16, v20
    v_sub_f32 v18, v18, v22
    v_exp_f32 v16, v16
    v_exp_f32 v18, v18
    v_mul_f32 v21, v16, v17
    v_mul_f32 v23, v18, v19
    ''')
    allred_s('v_add_f32',[21,23],24)
    e(f'''
    v_rcp_f32 v21, v21
    v_rcp_f32 v23, v23
    v_add_u32 v{vA}, {L_ST}, v{vRow}
    s_mov_b64 exec, 15
    ds_write_b128 v{vA}, v[20:23]
    s_waitcnt lgkmcnt(0)
    s_mov_b64 exec, -1
    ''')
    lds_signal(e,F_F,vFl,vOne)
    e(f'''
    {lf}:
    s_lshl_b32 s40, s3, 4
    v_lshrrev_b32 v{vA+1}, 5, v{vL}
    v_lshl_add_u32 v{vA}, v{vA+1}, 3, s40
    v_add_u32 v{vA+1}, {L_ST}, v{vA}
    v_add_u32 v{vA}, {L_ML}, v{vA}
    ds_read_b32 v{F}, v{vA}
    ds_read_b32 v{F+1}, v{vA} offset:64
    ds_read_b32 v{F+2}, v{vA} offset:128
    ds_read_b32 v{F+3}, v{vA} offset:192
    ''')
    lds_spin(e,cfg,F_F,1,vFl,vT)
    e(f'ds_read_b64 v[20:21], v{vA+1}\ns_waitcnt lgkmcnt(0)')
    for k in range(4): e(f'v_sub_f32 v{F+k}, v{F+k}, v20')
    for k in range(4): e(f'v_exp_f32 v{F+k}, v{F+k}')
    for k in range(4): e(f'v_mul_f32 v{F+k}, v{F+k}, v21')
    stamp(e,cfg,4)
    e.c('---- tail: combine the four waves of this workgroup')
    lds_spin(e,cfg,F_O,4,vFl,vT)
    stamp(e,cfg,5)
    e(f'''
    ds_read_b128 v[16:19], v{vOc}
    ds_read_b128 v[20:23], v{vOc} offset:{RING}
    ds_read_b128 v[24:27], v{vOc2}
    ds_read_b128 v[28:31], v{vOc2} offset:{RING}
    s_waitcnt lgkmcnt(3)
    ''')
    for r in range(4): e(f'v_mul_f32 v{16+r}, v{16+r}, v{F}')
    for k in range(1,4):
        e(f's_waitcnt lgkmcnt({3-k})')
        for r in range(4): e(f'v_fmac_f32 v{16+r}, v{16+4*k+r}, v{F+k}')
    e(f'''
    v_cvt_pk_bf16_f32 v16, v16, v17
    v_cvt_pk_bf16_f32 v17, v18, v19
    v_min_u32 v16, -2, v16
    v_min_u32 v17, -2, v17
    buffer_store_dwordx2 v[16:17], v{vOs}, s[{SWS}:{SWS+3}], s52 offen sc1
    ''')
    def look(i, acki=None):
        if acki is not None and cfg.ack[acki]=='1': e('s_waitcnt vmcnt(0)')
        d=int(cfg.dly.split(',')[i])
        if d: e(f's_sleep {d}')
    def tstamp(i):
        if cfg.tstamps: stamp(e,cfg,i)
    look(0,0)
    def fast(loads, compute, check):
        d=e.label('Lfd')
        for dst,n,voff,soff,imm in loads:
            op={1:'dword',2:'dwordx2',4:'dwordx4'}[n]
            e(f'buffer_load_{op} {v(dst,n)}, v{voff}, s[{SWS}:{SWS+3}], {soff} offen offset:{imm} sc1')
        e('s_waitcnt vmcnt(0)')
        compute(); check()
        e(f's_cbranch_vccz {d}')
        gather(e,cfg,loads,vT,cfg.sleep_tail)
        if cfg.fine: e(f's_min_u32 s41, s41, 255\ns_lshl_b32 s41, s41, {8*fast.n}\ns_or_b32 s99, s99, s41')
        compute()
        e(f'{d}:')
        fast.n+=1
    fast.n=0
    if cfg.fine: e('s_mov_b32 s99, 0')
    def store2(accs, voff, soff):
        for j,ac in enumerate(accs):
            e(f'v_min_u32 v{ac}, -2, v{ac}\nbuffer_store_dword v{ac}, v{voff}, s[{SWS}:{SWS+3}], {soff} offen offset:{64*j} sc1')
    e.c('---- H1 + output projection')
    gather(e,cfg,[(16,4,vH1,'s53',0),(20,4,vH1,'s54',0),(24,4,vH1,'s55',0),(28,4,vH1,'s56',0)],vT,cfg.sleep_tail)
    tstamp(6)
    for i in range(4):
        e(f'v_lshlrev_b32 v{32+2*i}, 16, v{16+i}\nv_and_b32 v{33+2*i}, 0xffff0000, v{16+i}')
    for j in range(1,4):
        for i in range(4):
            e(f'v_dot2_f32_bf16 v{32+2*i}, v{16+4*j+i}, s61, v{32+2*i}\nv_dot2_f32_bf16 v{33+2*i}, v{16+4*j+i}, s62, v{33+2*i}')
    dppsum(32,8)
    for i in range(4): e(f'v_cvt_pk_bf16_f32 v{16+i}, v{32+2*i}, v{33+2*i}')
    e(f's_mov_b64 exec, s[96:97]\nds_write_b128 v{vXw}, v[16:19]\ns_mov_b64 exec, -1')
    mmx([WO],[32,36],vXr)
    store2([32,36],vYs,'s57')
    e('s_cmp_ge_u32 s2, 224\ns_cbranch_scc1 L_fin')
    tstamp(7)
    def red_tail(n):
        lst=list(range(n))
        while len(lst)>1:
            nx=[]
            for i in range(0,len(lst)-1,2):
                a_,b_=16+4*lst[i],16+4*lst[i+1]
                e(f'v_pk_add_f32 v[{a_}:{a_+1}], v[{a_}:{a_+1}], v[{b_}:{b_+1}]\nv_pk_add_f32 v[{a_+2}:{a_+3}], v[{a_+2}:{a_+3}], v[{b_+2}:{b_+3}]')
                nx.append(lst[i])
            if len(lst)%2: nx.append(lst[-1])
            lst=nx
        e('''
        v_permlane32_swap_b32 v16, v18
        v_permlane32_swap_b32 v17, v19
        v_pk_add_f32 v[16:17], v[16:17], v[18:19]
        v_mov_b32 v18, v16
        v_mov_b32 v19, v17
        v_permlane16_swap_b32 v18, v16
        v_permlane16_swap_b32 v19, v17
        v_pk_add_f32 v[16:17], v[16:17], v[18:19]
        ''')
    def gate_res(G,X,dst):
        rnd_vec(e,16,2,18)
        e(f'v_pk_mul_f32 v[16:17], v[16:17], v[{G}:{G+1}]')
        rnd_vec(e,16,2,18)
        e(f'v_pk_add_f32 v[16:17], v[16:17], v[{X}:{X+1}]\nv_cvt_pk_bf16_f32 v{dst}, v16, v17')
    nan2=lambda a_,b_: (lambda: e(f'v_cmp_u_f32 vcc, v{a_}, v{b_}'))
    e.c('---- H2a: reducers')
    l2=e.label('Lnoh2a')
    e(f'''
    s_cmp_ge_u32 s2, 64
    s_cbranch_scc1 {l2}
    s_cmp_lg_u32 s3, 0
    s_cbranch_scc1 {l2}
    s_mul_i32 s40, s2, {YS}
    s_add_u32 s40, s40, {WS_Y}
    s_add_u32 s51, s40, 4096
    s_lshl_b32 s52, s2, 7
    s_add_u32 s52, s52, {WS_X1}
    s_lshr_b32 s53, s2, 2
    s_lshl_b32 s53, s53, 7
    s_and_b32 s54, s2, 3
    s_lshl_b32 s54, s54, 3
    s_add_u32 s53, s53, s54
    s_add_u32 s53, s53, {WS_ST}
    s_mov_b32 s54, 0xffff
    s_mov_b32 s55, 0xffff
    v_mov_b32 v61, 0
    ''')
    look(1,1)
    if cfg.fine: stamp(e,cfg,14)
    fast([(16+4*i,4,vRow,'s40' if i<4 else 's51',(i&3)*1024) for i in range(8)], lambda: red_tail(8), nan2(16,17))
    if cfg.fine: stamp(e,cfg,15)
    gate_res(RX+2,RX,16)
    e(f'''
    v_min_u32 v16, -2, v16
    v_lshlrev_b32 v{RX}, 16, v16
    v_and_b32 v{RX+1}, 0xffff0000, v16
    s_mov_b64 exec, s[54:55]
    buffer_store_dword v16, v{vRo}, s[{SWS}:{SWS+3}], s52 offen sc1
    s_mov_b64 exec, -1
    v_add_f32 v18, v{RX}, v{RX+1}
    v_mul_f32 v19, v{RX}, v{RX}
    v_fmac_f32 v19, v{RX+1}, v{RX+1}
    ''')
    allred_s('v_add_f32',[18,19],20,rors=(8,4,2,1),swaps=('v_permlane32_swap_b32',))
    e(f'''
    v_min_u32 v18, -2, v18
    v_min_u32 v19, -2, v19
    s_mov_b64 exec, 1
    buffer_store_dwordx2 v[18:19], v61, s[{SWS}:{SWS+3}], s53 offen sc1
    s_mov_b64 exec, -1
    ''')
    tstamp(8)
    e(f'''
    s_waitcnt vmcnt(0)
    s_branch {l2}_r
    {l2}:
    ''')
    look(2)
    e(f'{l2}_r:')
    e.c('---- H2b + gate/up')
    def ln2():
        unpack(e,16,32,1)
        allred_s('v_add_f32',[20,21],22,rors=(1,2,4,8),swaps=())
        e(f'''
        v_mul_f32 v20, 0x3a800000, v20
        v_mul_f32 v21, 0x3a800000, v21
        v_fma_f32 v21, -v20, v20, v21
        v_cmp_u_f32 s[42:43], v21, v21
        v_max_f32 v21, 0, v21
        ''')
        if cfg.round_ln2:
            finish_stats(20,21)
            normalise(32,2,20,21,22)
            modulate(32,2,T1,SB,16,22,prep=False)
        else:
            e(f'''
            v_add_f32 v21, 0x3727c5ac, v21
            v_rsq_f32 v21, v21
            v_sub_f32 v32, v32, v20
            v_sub_f32 v33, v33, v20
            v_mul_f32 v32, v32, v21
            v_mul_f32 v33, v33, v21
            v_fma_f32 v32, v32, v{T1}, v{SB}
            v_fma_f32 v33, v33, v{T1+1}, v{SB+1}
            v_cvt_pk_bf16_f32 v16, v32, v33
            ''')
        e(f'ds_write_b32 v{vXw}, v16')
    fast([(16,1,vXs,'s58',0),(20,2,vSt,'s49',0)], ln2, lambda: e('v_cmp_u_f32 vcc, v32, v33\ns_or_b64 vcc, vcc, s[42:43]'))
    tstamp(9)
    mmx([X0,X1],[32,36,40,44],vXr)
    for i in range(1,8): e(f's_add_u32 s{51+i}, s48, {i*4*GS}')
    for j in range(2): e(f'v_cvt_pk_bf16_f32 v{32+4*j}, v{32+4*j}, v{40+4*j}')
    store2([32,36],vGs,'s60')
    tstamp(10)
    e.c('---- H3a + down projection')
    look(3,2)
    if cfg.fine: stamp(e,cfg,1)
    def gusum():
        e('''v_lshlrev_b32 v32, 16, v16
        v_and_b32 v33, 0xffff0000, v16
        v_lshlrev_b32 v34, 16, v17
        v_and_b32 v35, 0xffff0000, v17''')
        for i in range(1,8):
            e(f'''v_dot2_f32_bf16 v32, v{16+2*i}, s61, v32
            v_dot2_f32_bf16 v33, v{16+2*i}, s62, v33
            v_dot2_f32_bf16 v34, v{17+2*i}, s61, v34
            v_dot2_f32_bf16 v35, v{17+2*i}, s62, v35''')
    fast([(16+2*i,2,vH3,'s48' if i==0 else f's{51+i}',0) for i in range(8)], gusum, nan2(32,34))
    tstamp(11)
    rnd_vec(e,32,4,20)
    e(f'''
    v_mul_f32 v20, 0xbfb8aa3b, v32
    v_mul_f32 v21, 0xbfb8aa3b, v34
    v_exp_f32 v20, v20
    v_exp_f32 v21, v21
    v_add_f32 v20, 1.0, v20
    v_add_f32 v21, 1.0, v21
    v_rcp_f32 v20, v20
    v_rcp_f32 v21, v21
    v_mul_f32 v32, v32, v20
    v_mul_f32 v34, v34, v21
    v_cvt_pk_bf16_f32 v20, v32, v34
    v_lshlrev_b32 v32, 16, v20
    v_and_b32 v34, 0xffff0000, v20
    v_mul_f32 v32, v32, v33
    v_mul_f32 v34, v34, v35
    v_cvt_pk_bf16_f32 v16, v32, v34
    ds_write_b32 v{vXw}, v16
    ''')
    mmx([X2],[32,36],vXr)
    store2([32,36],vZs,'s59')
    e(f'''
    s_cmp_ge_u32 s2, 64
    s_cbranch_scc1 L_fin
    s_cmp_lg_u32 s3, 0
    s_cbranch_scc1 L_fin
    s_mul_i32 s40, s2, {ZS}
    s_add_u32 s40, s40, {WS_Z}
    s_add_u32 s51, s40, 4096
    s_lshl_b32 s52, s2, 7
    v_add_u32 v{vA}, s52, v{vRo}
    s_mov_b32 s54, 0xffff
    s_mov_b32 s55, 0xffff
    ''')
    e.c('---- H3b: final reducers')
    if cfg.fine: stamp(e,cfg,2)
    look(4,3)
    if cfg.fine: stamp(e,cfg,3)
    fast([(16+4*i,4,vRow,'s40' if i<4 else 's51',(i&3)*1024) for i in range(7)], lambda: red_tail(7), nan2(16,17))
    tstamp(12)
    gate_res(RX+4,RX,16)
    e(f'''
    s_mov_b64 exec, s[54:55]
    global_store_dword v{vA}, v16, s[{P_OUT}:{P_OUT+1}]
    s_mov_b64 exec, -1
    L_fin:
    ''')
    stamp(e,cfg,13)
    if cfg.stamps: e('s_add_u32 s3, s3, 4')
    if cfg.fine: e('s_waitcnt lgkmcnt(0)\ns_mov_b32 s72, s99\ns_mov_b32 s73, 0')
    stamps_out(e,cfg,16,vA)
    e('s_endpgm')

def gen(cfg):
    set_order(cfg.order)
    e=A()
    e(f'''
    s_cmp_ge_u32 s2, 256
    s_cbranch_scc1 L_exit
    s_load_dwordx16 s[4:19], s[0:1], 0
    s_load_dwordx8 s[20:27], s[0:1], 64
    s_load_dwordx4 s[28:31], s[0:1], 96
    v_lshrrev_b32 v2, 6, v0
    v_and_b32 v1, 63, v0
    v_readfirstlane_b32 s3, v2
    s_getpc_b64 s[48:49]
    L_pc:
    s_sub_u32 s48, s48, L_pc-{KN}
    s_subb_u32 s49, s49, 0
    v_lshlrev_b32 v3, 7, v0
    s_cmp_ge_u32 s3, 5
    s_cbranch_scc1 L_nopf
    global_load_dword v255, v3, s[48:49]
    L_nopf:
    ''')
    roles(e)
    e('s_cmp_ge_u32 s3, 4\ns_cbranch_scc1 L_aux')
    stream(e,cfg)
    aux(e,cfg)
    e('L_exit:\ns_endpgm')
    e('.p2align 8\n.fill (40960+256-(.-'+KN+'))/4, 4, 0xbf800000')
    hdr = f'; fused adaLN + GQA decode attention + SwiGLU block, one launch (generated by gen2.py) {getattr(cfg,"args","")}\n; @launch grid=(256,1,1) block=(512,1,1) lds={LDS_BYTES}\n.amdgcn_target "amdgcn-amd-amdhsa--gfx950"\n'
    return hdr + khead(KN) + e.text() + kd(KN, 256)

if __name__=='__main__':
    cfg=Cfg()
    out=sys.argv[1]
    cfg.args=' '.join(sys.argv[2:])
    for kv in sys.argv[2:]:
        k,val=kv.split('=')
        cur=getattr(cfg,k)
        setattr(cfg,k, (val not in ('0','False')) if isinstance(cur,bool) else type(cur)(val) if not isinstance(cur,int) else int(val,0))
    open(out,'w').write(gen(cfg))
```

```python
import sys
from asmgen import *
KN='adaLN_cond__gqa_block_cached__glu_gated_swiglu__decode_kernel'

import os
PAD = int(os.environ.get('PAD','128'))
OS  = 2048+PAD
YS  = 8192+PAD
GS  = 14336+PAD
ZS  = 7168+PAD
MNS = 12288+PAD
MGS = 4096+PAD
MUS = 8192+PAD
QS  = 16384+PAD
WS_O   = 0
WS_Y   = WS_O+256*OS
WS_GU  = WS_Y+64*YS
WS_Z   = WS_GU+32*GS
WS_MN  = WS_Z+64*ZS
WS_MG  = WS_MN+16*MNS
WS_ML  = WS_MG+32*MGS
WS_X1  = WS_ML+16384
WS_ST  = WS_X1+8192
FLATSH = -(-(WS_ST+2048)//(256*128))*128
WS_MU  = 256*FLATSH
WS_Q   = WS_MU+16*MUS
WS_SA  = WS_Q+16*QS
HEADSH = -(-(WS_SA+1024-WS_MU)//(32*128))*128
WS_END = WS_MU+32*HEADSH
assert 8192 < FLATSH <= 8192+2048 and 12288 < HEADSH <= 13312
WS_STAMP = 0x400000
RING = 0x8000
L_RED  = 0x20000
L_AX   = 0x22400; XSTR = 320
L_QOP  = 0x24000; QSTR = 272
L_ML   = 0x24900
L_ST   = 0x24A00
L_FLAG = 0x24B00
LDS_BYTES = 0x24C00
OSTR = 528
F_LAND = 0
F_CONS = 32
F_Q = 64; F_ML = 68; F_O = 72; F_AUX = 76; F_V = 80; F_F = 84; F_P = 88; F_M = 92
P_X,P_K,P_V,P_WQ,P_WO,P_BX,P_W1,P_W3,P_W2,P_C,P_WM,P_OUT,P_DBG,P_WS = [4+2*i for i in range(14)]
LOG2E = 0x3fb8aa3b
SCALE = 0x3db504f3

class Cfg:
    D=2; D0=4
    N=4
    NV=4
    deep=16
    vsig=3
    sleep_ml=32
    pol='nt'
    stamps=False
    round_s=True
    round_ln=True
    sleep_head=8
    sleep_tail=1
    order='A'
    qgate=0
    ack='1111'
    dly='0,0,0,0,0'
    tstamps=True
    defer=''
    round_ln2=True
    fine=False
    pairs=False
    NL=4; NH=8
    adapt=0
    rank=13
    lightdeep=True
    qafter=5
    NK=4; kdeep=16
    sleep_q=8
    hold=False
    prio=2
    gpoll=8192
    lpoll=1<<17

from gen1 import lds_signal, stamp, srd, allreduce64, unpack, rnd_vec, rnd1
import gen1
gen1.WS_STAMP = WS_STAMP
from gen1 import stamps_out, lds_spin, gather
SWS=44

def roles(e):
    e('''
    s_and_b32 s37, s2, 15
    s_lshr_b32 s38, s2, 4
    s_and_b32 s36, s2, 1
    s_lshr_b32 s40, s2, 2
    s_and_b32 s40, s40, 2
    s_or_b32 s36, s36, s40
    s_cmp_ge_u32 s2, 64
    s_cselect_b32 s33, 1, 0
    s_cselect_b32 s40, 16, 0
    s_cmp_ge_u32 s2, 192
    s_cselect_b32 s33, 2, s33
    s_cselect_b32 s40, 32, s40
    s_lshl_b32 s39, s38, 2
    s_sub_u32 s39, s39, s40
    s_bfe_u32 s40, s2, 0x20001
    s_add_u32 s39, s39, s40
    s_xor_b32 s101, s39, 2
    s_add_u32 s101, s101, 8
    s_cmp_eq_u32 s33, 1
    s_mov_b32 s35, 12288
    s_cselect_b32 s35, 8192, s35
    s_lshl_b32 s40, s36, 8
    s_mul_i32 s34, s40, s35
    s_lshl_b32 s40, s39, 8
    s_add_u32 s34, s34, s40
    s_and_b32 s40, s2, 7
    s_mul_i32 s63, s40, 28
    s_lshr_b32 s40, s2, 3
    s_add_u32 s63, s63, s40
    ''')

UNITS=[]
GROUPS=['J','WO','X0','X1','X2','X3']
def set_order(order, defer=''):
    U=lambda k,n: [(k,i) for i in range(n)]
    W=U('WO',2)+U('X0',2)+U('X1',2)+([] if '2' in defer else U('X2',2))+U('X3',2)
    K=U('K',16)
    if order=='A': UNITS[:] = U('J',4)+W+K+U('V',16)
    elif order=='C':
        mix=[]
        for i in range(8): mix+=[W[i],K[i]]
        UNITS[:] = U('J',4)+mix+W[8:]+K[8:]+U('V',16)
    elif order=='D':
        mix=[]
        for i in range(8): mix+=[K[i],W[i]]
        UNITS[:] = U('J',4)+mix+W[8:]+K[8:]+U('V',16)
def upos(kind,i): return UNITS.index((kind,i))
def slot(kind,i): return (upos(kind,i)%8)*4096

def stream(e, cfg):
    D=cfg.D; pol=cfg.pol
    vL=1; vK=2; vV=6; vW=8; vSw=10; vR=12; vFl=13; vOne=14; vT=15
    vKR=16; vVR=20; vX=28; vRJ=45
    Q=48; S=64; ST=128; P=128; O=160; VF=192
    SK,SV,SW = 44,48,52
    e.c('================= stream waves =================')
    e('L_stream:')
    stamp(e,cfg,0)
    e(f'''
    v_lshrrev_b32 v{vR}, 4, v{vL}
    v_and_b32 v{vX+1}, 15, v{vL}
    v_lshlrev_b32 v{vX+6}, 1, v{vR}
    v_xor_b32 v{vX+6}, v{vX+6}, v{vX+1}
    v_lshlrev_b32 v{vSw}, 4, v{vX+6}
    v_xor_b32 v{vSw+1}, 128, v{vSw}
    v_and_b32 v{vRJ}, 2, v{vR}
    v_lshlrev_b32 v{vRJ}, 1, v{vRJ}
    v_and_or_b32 v{vRJ}, v{vR}, 1, v{vRJ}
    s_lshl_b32 s32, s3, 15
    s_mov_b32 s{SW+3}, 0x20000
    s_cmp_lt_u32 s2, 224
    s_cselect_b32 s96, 0, {1 if cfg.lightdeep else 0}
    s_cbranch_scc1 L_go
    s_barrier
    L_go:
    s_waitcnt lgkmcnt(0)
    ''')
    st = dict(issued=0, landed=-1, signaled=set())
    def pairwait(n,k):
        if not cfg.pairs or n<cfg.D0: return
        tot=4*n+k
        known=4*(st['landed']+1)
        if tot-known>cfg.NH:
            e(f's_waitcnt vmcnt({cfg.NH})'); note_landed((tot-cfg.NH)//4-1)
        if tot-known>cfg.NL and cfg.NL<cfg.NH:
            lb=e.label('Lw')
            e(f's_cmp_lg_u32 s96, 0\ns_cbranch_scc1 {lb}\ns_waitcnt vmcnt({cfg.NL})\n{lb}:')
    def dma(voff, srdreg, soff, i):
        e(f'buffer_load_dwordx4 v{voff}, s[{srdreg}:{srdreg+3}], {soff} offen offset:{i*1024} {pol} lds')
    def tile_setup(kind, t):
        def ptr(a,b): e(f's_cselect_b32 s{SW}, s{a}, s{b}\ns_cselect_b32 s{SW+1}, s{a+1}, s{b+1}')
        if kind=='J':
            if t==0:
                e('s_cmp_eq_u32 s33, 1'); ptr(P_WQ,P_WM)
                e(f'''s_mov_b32 s{SW+2}, {1024*6144*2}
                s_cselect_b32 s{SW+2}, {1024*4096*2}, s{SW+2}
                s_mov_b32 s56, s35
                s_lshl_b32 s40, s3, 6
                s_mul_i32 s58, s40, s35
                s_add_u32 s58, s58, s34
                s_mov_b32 s57, s58''')
            else: e('s_lshl_b32 s40, s35, 1\ns_add_u32 s57, s58, s40')
        elif kind=='WO':
            e(f'''s_mov_b32 s{SW}, s{P_WO}
            s_mov_b32 s{SW+1}, s{P_WO+1}
            s_mov_b32 s{SW+2}, {4096*1024*2}
            s_mov_b32 s56, 2048
            s_and_b32 s40, s2, 7
            s_lshl_b32 s57, s40, 18
            s_lshl_b32 s40, s3, 21
            s_add_u32 s57, s57, s40
            s_bfe_u32 s40, s2, 0x20003
            s_lshl_b32 s40, s40, 16
            s_add_u32 s57, s57, s40
            s_lshr_b32 s40, s2, 5
            s_lshl_b32 s40, s40, 8
            s_add_u32 s57, s57, s40''')
        elif kind in ('X0','X1'):
            t = int(kind[1])
            if t==0:
                e(f'''s_and_b32 s40, s2, 7
                s_lshl_b32 s40, s40, 2
                s_add_u32 s40, s40, s3
                s_mul_i32 s59, s40, {32*7168}
                s_lshr_b32 s40, s2, 3
                s_lshl_b32 s40, s40, 8
                s_add_u32 s59, s59, s40''')
            e(f'''s_sub_u32 s40, s101, s39
            s_lshl_b32 s40, s40, 8
            s_add_u32 s40, s40, s58
            s_add_u32 s40, s40, {t*2*12288}
            s_cmp_lt_u32 s2, 224''')
            ptr(P_W3 if t else P_W1, P_WM)
            e(f'''s_mov_b32 s{SW+2}, {1024*6144*2}
            s_cselect_b32 s{SW+2}, {0 if str(t) in cfg.defer else 1024*3584*2}, s{SW+2}
            s_mov_b32 s56, 12288
            s_cselect_b32 s56, 7168, s56
            s_cselect_b32 s57, s59, s40''')
        elif kind=='X2':
            e(f'''s_lshr_b32 s40, s63, 3
            s_lshl_b32 s57, s40, 18
            s_lshl_b32 s40, s3, 16
            s_add_u32 s57, s57, s40
            s_and_b32 s40, s63, 7
            s_lshl_b32 s40, s40, 8
            s_add_u32 s57, s57, s40
            s_mov_b32 s{SW}, s{P_W2}
            s_mov_b32 s{SW+1}, s{P_W2+1}
            s_cmp_lt_u32 s2, 224
            s_cselect_b32 s{SW+2}, {1024*3584*2}, 0
            s_mov_b32 s56, 2048''')
        elif kind=='X3':
            e(f'''s_and_b32 s40, s2, 7
            s_lshl_b32 s40, s40, 2
            s_add_u32 s40, s40, s3
            s_mul_i32 s57, s40, {32*12288}
            s_lshr_b32 s40, s2, 3
            s_lshl_b32 s40, s40, 8
            s_add_u32 s57, s57, s40
            s_add_u32 s57, s57, {40*256}
            s_mov_b32 s{SW}, s{P_WM}
            s_mov_b32 s{SW+1}, s{P_WM+1}
            s_cmp_lt_u32 s2, 64
            s_cselect_b32 s{SW+2}, {1024*6144*2}, 0
            s_mov_b32 s56, 12288''')
        if kind=='J': e(f'v_mov_b32 v{vX+8}, v{vRJ}\ns_mov_b32 s41, 1')
        elif kind in ('WO','X2','X3'): e(f'v_mov_b32 v{vX+8}, v{vR}\ns_mov_b32 s41, 0')
        else: e(f's_cselect_b64 vcc, 0, -1\ns_cselect_b32 s41, 0, 1\nv_cndmask_b32 v{vX+8}, v{vR}, v{vRJ}, vcc')
        e(f'''v_mad_u32_u24 v{vW}, v{vX+8}, s56, v{vSw}
        v_mad_u32_u24 v{vW+1}, v{vX+8}, s56, v{vSw+1}
        s_lshl_b32 s61, s56, s41
        s_lshl_b32 s60, s61, 3
        s_sub_u32 s60, s60, 1024
        s_lshl_b32 s61, s61, 2''')
    def emit_unit(n):
        kind,i = UNITS[n]
        if kind in GROUPS:
            if (i&1)==0: tile_setup(kind,i>>1); e('s_mov_b32 s41, s57')
            else: e('s_add_u32 s41, s57, s61')
            e(f's_add_u32 m0, s32, {(n%8)*4096}')
            for k in range(4):
                if k%2==0: pairwait(n,k)
                dma(vW+(k&1), SW, 's41', k)
                if k<3: e('s_add_u32 s41, s41, s60')
        else:
            e(f's_add_u32 s41, s62, {i*16384}\ns_add_u32 m0, s32, {(n%8)*4096}')
            for k in range(4):
                if k%2==0: pairwait(n,k)
                dma((vK+k) if kind=='K' else (vV+(k&1)), SK if kind=='K' else SV, 's41', k)
    def note_landed(n):
        st['landed']=max(st['landed'],n)
        for gi,g in enumerate(GROUPS):
            if (g,0) not in UNITS: continue
            last=max(k for k,u in enumerate(UNITS) if u[0]==g)
            if last<=st['landed'] and g not in st['signaled']:
                st['signaled'].add(g); lds_signal(e, F_LAND+4*gi, vFl, vOne)
                if g=='J': stamp(e,cfg,6)
    consumed=set()
    def issue(n):
        assert n==st['issued']
        if cfg.pairs and n==5: wait_landed(3)
        if n>=cfg.D0 and not cfg.pairs:
            N = cfg.NV if n>=upos('V',0)+cfg.deep else (cfg.NK if upos('K',min(cfg.kdeep,15))+(cfg.kdeep>15)<=n<upos('V',0) else cfg.N)
            full = n-1-(N+3)//4
            if st['landed']<n-1-N//4:
                e(f's_waitcnt vmcnt({N})'); note_landed(full)
        if n>=8 and UNITS[n-8][0]=='K' and UNITS[n-8][1]<8:
            stage(UNITS[n-8][1]); e('s_waitcnt lgkmcnt(0)')
        if n>=8:
            g=UNITS[n-8][0]
            if g in GROUPS and g not in consumed:
                last=max(k for k,u in enumerate(UNITS) if u[0]==g)
                if g not in st['signaled']: wait_landed(last)
                consumed.add(g); lds_spin(e,cfg,F_CONS+4*GROUPS.index(g),4,vFl,vT)
                if g=='J': stamp(e,cfg,7)
        if cfg.stamps: e(f's_memrealtime s[82:83]\ns_waitcnt lgkmcnt(0)\nv_writelane_b32 v47, s82, {n}')
        emit_unit(n); st['issued']=n+1
        if cfg.qgate and n==cfg.qgate: lds_signal(e,F_P,vFl,vOne)
    def stage(u):
        wait_landed(upos('K',u))
        for k in range(4):
            r=ST+(u%8)*16+4*k
            e(f'ds_read_b128 v[{r}:{r+3}], v{vKR+k} offset:{slot("K",u)}')
    def wait_landed(n):
        if st['landed']>=n: return
        e(f's_waitcnt vmcnt({4*(st["issued"]-1-n)})'); note_landed(n)
    for n in range(cfg.D0): issue(n)
    srd(e,SK,P_K,0x4000000); srd(e,SV,P_V,0x4000000)
    e(f'''
    s_lshl_b32 s62, s37, 22
    s_lshl_b32 s40, s38, 18
    s_add_u32 s62, s62, s40
    s_lshl_b32 s40, s3, 12
    s_add_u32 s62, s62, s40
    v_xor_b32 v{vX+6}, v{vX+1}, v{vR}
    v_lshlrev_b32 v{vX+7}, 8, v{vR}
    v_lshl_add_u32 v{vK}, v{vX+6}, 4, v{vX+7}
    v_xor_b32 v{vK+1}, 64, v{vK}
    v_xor_b32 v{vK+2}, 128, v{vK}
    v_xor_b32 v{vK+3}, 192, v{vK}
    v_add_u32 v{vV}, v{vSw}, v{vX+7}
    v_add_u32 v{vV+1}, v{vSw+1}, v{vX+7}
    v_lshlrev_b32 v{vX+7}, 8, v{vX+1}
    v_lshl_add_u32 v{vKR}, v{vX+6}, 4, v{vX+7}
    v_add_u32 v{vKR}, s32, v{vKR}
    v_xor_b32 v{vKR+1}, 64, v{vKR}
    v_xor_b32 v{vKR+2}, 128, v{vKR}
    v_xor_b32 v{vKR+3}, 192, v{vKR}
    v_lshrrev_b32 v{vX+2}, 2, v{vL}
    v_and_b32 v{vX+5}, 3, v{vL}
    v_lshlrev_b32 v{vX+6}, 8, v{vX+2}
    v_and_b32 v{vX+7}, 7, v{vX+2}
    v_lshl_add_u32 v{vX+6}, v{vX+7}, 5, v{vX+6}
    v_lshl_add_u32 v{vX+6}, v{vX+5}, 3, v{vX+6}
    v_add_u32 v{vVR}, s32, v{vX+6}
    ''')
    for ct in range(1,8): e(f'v_xor_b32 v{vVR+ct}, {ct<<5}, v{vVR}')
    e(f'''
    v_mov_b32 v{vFl}, {L_FLAG}
    v_mov_b32 v{vOne}, 1
    s_cmp_ge_u32 s2, 224
    s_cbranch_scc1 L_go2
    s_barrier
    L_go2:
    ''')
    V0=upos('V',0); NX=upos('K',15)+1
    for n in range(cfg.D0, NX): issue(n)
    def qk(u):
        for k in range(4):
            r=ST+(u%8)*16+4*k
            e(f'v_mfma_f32_16x16x32_bf16 v[{S+4*u}:{S+4*u+3}], v[{r}:{r+3}], v[{Q+4*k}:{Q+4*k+3}], '+('0' if k==0 else f'v[{S+4*u}:{S+4*u+3}]'))
    vM=vX; vLs=vX+1; t0=vX+2
    def rnd(u):
        for h in range(2):
            a0=S+4*u+2*h; a1=a0+1; t=t0+h
            if cfg.round_s:
                e(f'''v_cvt_pk_bf16_f32 v{t}, v{a0}, v{a1}
                v_lshlrev_b32 v{a0}, 16, v{t}
                v_and_b32 v{a1}, 0xffff0000, v{t}''')
            e(f'v_mul_f32 v{a0}, s42, v{a0}\nv_mul_f32 v{a1}, s42, v{a1}')
            if cfg.round_s:
                e(f'''v_cvt_pk_bf16_f32 v{t}, v{a0}, v{a1}
                v_lshlrev_b32 v{a0}, 16, v{t}
                v_and_b32 v{a1}, 0xffff0000, v{t}''')
            if u==0 and h==0: e(f'v_max_f32 v{vM}, v{a0}, v{a1}')
            else: e(f'v_max3_f32 v{vM}, v{vM}, v{a0}, v{a1}')
    stamp(e,cfg,1)
    lds_spin(e,cfg,F_Q,4,vFl,vT)
    stamp(e,cfg,2)
    e(f'''
    v_and_b32 v{vX+6}, 7, v{vL}
    v_mul_u32_u24 v{vX+6}, {QSTR}, v{vX+6}
    v_lshl_add_u32 v{vX+6}, v{vR}, 4, v{vX+6}
    v_add_u32 v{vX+6}, {L_QOP}, v{vX+6}
    s_mov_b32 s42, {SCALE:#x}
    s_mov_b32 s43, {LOG2E:#x}
    ''')
    for k in range(4): e(f'ds_read_b128 v[{Q+4*k}:{Q+4*k+3}], v{vX+6} offset:{64*k}')
    if cfg.adapt==1: e(f'ds_read_b32 v{vT}, v{vFl} offset:{F_M}')
    e('s_waitcnt lgkmcnt(0)')
    if cfg.adapt==1: e(f'v_readfirstlane_b32 s96, v{vT}')
    if cfg.adapt!=1: e('s_mov_b32 s96, 0')
    for u in range(D):
        qk(u); stage(8+u); e('s_waitcnt lgkmcnt(0)'); issue(NX+u)
    for u in range(D,8):
        qk(u); stage(8+u)
    e('s_waitcnt lgkmcnt(0)')
    for u in range(8,16): qk(u)
    nxt=[NX+D]
    def more():
        if nxt[0]<V0+8:
            if cfg.adapt==2 and nxt[0]>=V0+7:
                e(f'ds_read_b32 v{vT}, v{vFl} offset:{F_M}\ns_waitcnt lgkmcnt(0)\nv_readfirstlane_b32 s96, v{vT}')
            issue(nxt[0]); nxt[0]+=1
    more()
    for u in range(16):
        rnd(u)
        if u in (5,10,15): more()
    e(f'''
    v_mov_b32 v{t0}, v{vM}
    v_permlane32_swap_b32 v{t0}, v{vM}
    v_max_f32 v{vM}, v{vM}, v{t0}
    v_mov_b32 v{t0}, v{vM}
    v_permlane16_swap_b32 v{t0}, v{vM}
    v_max_f32 v{vM}, v{vM}, v{t0}
    v_mul_f32 v{vM}, s43, v{vM}
    ''')
    for u in range(16):
        for r in range(4): e(f'v_fma_f32 v{S+4*u+r}, v{S+4*u+r}, s43, -v{vM}')
        for r in range(4): e(f'v_exp_f32 v{S+4*u+r}, v{S+4*u+r}')
        if u==0: e(f'v_add_f32 v{vLs}, v{S}, v{S+1}')
        else: e(f'v_add_f32 v{vLs}, v{vLs}, v{S+4*u}\nv_add_f32 v{vLs}, v{vLs}, v{S+4*u+1}')
        e(f'''v_cvt_pk_bf16_f32 v{P+2*u}, v{S+4*u}, v{S+4*u+1}
        v_add_f32 v{vLs}, v{vLs}, v{S+4*u+2}
        v_add_f32 v{vLs}, v{vLs}, v{S+4*u+3}
        v_cvt_pk_bf16_f32 v{P+2*u+1}, v{S+4*u+2}, v{S+4*u+3}''')
        if u in (7,): more()
    e(f'''
    v_mov_b32 v{t0}, v{vLs}
    v_permlane32_swap_b32 v{t0}, v{vLs}
    v_add_f32 v{vLs}, v{vLs}, v{t0}
    v_mov_b32 v{t0}, v{vLs}
    v_permlane16_swap_b32 v{t0}, v{vLs}
    v_add_f32 v{vLs}, v{vLs}, v{t0}
    s_lshl_b32 s40, s3, 6
    s_add_u32 s40, s40, {L_ML}
    v_lshl_add_u32 v{t0}, v{vL}, 3, s40
    s_mov_b64 exec, 0xff
    ds_write_b64 v{t0}, v[{vM}:{vM+1}]
    s_waitcnt lgkmcnt(0)
    s_mov_b64 exec, -1
    ''')
    lds_signal(e,F_ML,vFl,vOne)
    stamp(e,cfg,3)
    while nxt[0]<V0+8: more()
    for j in range(8):
        wait_landed(V0+2*j+1)
        if j==7: stamp(e,cfg,4)
        for ct in range(8):
            for hf in range(2):
                r=VF+4*ct+2*hf
                e(f'ds_read_b64_tr_b16 v[{r}:{r+1}], v{vVR+ct} offset:{slot("V",2*j+hf)}')
        for ct in range(8):
            e(f's_waitcnt lgkmcnt({14-2*ct})')
            e(f'v_mfma_f32_16x16x32_bf16 v[{O+4*ct}:{O+4*ct+3}], v[{VF+4*ct}:{VF+4*ct+3}], v[{P+4*j}:{P+4*j+3}], '+('0' if j==0 else f'v[{O+4*ct}:{O+4*ct+3}]'))
        if cfg.adapt==2 and j<3:
            e(f'ds_read_b32 v{vT}, v{vFl} offset:{F_M}\ns_waitcnt lgkmcnt(0)\nv_readfirstlane_b32 s96, v{vT}')
        for k in range(2):
            if V0+2*j+8+k < len(UNITS): issue(V0+2*j+8+k)
        if j==cfg.vsig: lds_signal(e,F_V,vFl,vOne)
        if j==6:
            e(f'''
            v_and_b32 v{t0}, 15, v{vL}
            v_mul_u32_u24 v{t0}, {OSTR}, v{t0}
            v_lshl_add_u32 v{t0}, v{vR}, 4, v{t0}
            v_add_u32 v{t0}, s32, v{t0}
            v_add_u32 v{t0}, {(slot('V',15)+4096)%RING}, v{t0}
            s_mov_b32 s40, 0x00ff00ff
            s_mov_b32 s41, 0x00ff00ff
            ''')
    e('s_mov_b64 exec, s[40:41]')
    for ct in range(8): e(f'ds_write_b128 v{t0}, v[{O+4*ct}:{O+4*ct+3}] offset:{64*ct}')
    e('s_waitcnt lgkmcnt(0)\ns_mov_b64 exec, -1')
    lds_signal(e,F_O,vFl,vOne)
    stamp(e,cfg,5)
    stamps_out(e,cfg,8,vX+4)
    if cfg.stamps:
        e(f'''s_lshl_b32 s40, s2, 2
        s_add_u32 s40, s40, s3
        s_lshl_b32 s40, s40, 8
        s_add_u32 s40, s40, {WS_STAMP+0x40000}
        v_lshl_add_u32 v46, v{vL}, 2, s40
        global_store_dword v46, v47, s[{P_WS}:{P_WS+1}]''')
    e('s_waitcnt lgkmcnt(0)\ns_endpgm')

def aux(e, cfg):
    vL=1; vFl=2; vOne=3; vT=4; vRow=5; vRd=6; vRr=7; vA=8
    X2=64; X0=96; X1=128; WO=160; WJ=192
    OOFF=(slot('V',15)+4096)%RING
    e.c('================= aux waves =================')
    e('L_aux:')
    e(f'''
    s_setprio {cfg.prio}
    s_sub_u32 s3, s3, 4
    s_lshl_b32 s32, s3, 15
    v_lshlrev_b32 v{vRow}, 4, v{vL}
    v_mov_b32 v{vFl}, {L_FLAG}
    v_mov_b32 v{vOne}, 1
    v_mov_b32 v16, 0
    v_lshl_add_u32 v{vA+1}, v{vL}, 2, v{vFl}
    ds_write_b32 v{vA+1}, v16
    v_mov_b32 v32, -1
    v_mov_b32 v33, -1
    v_mov_b32 v34, -1
    v_mov_b32 v35, -1
    v_bfe_u32 v{vA+2}, v{vL}, 2, 2
    v_lshrrev_b32 v{vA+3}, 4, v{vL}
    v_and_b32 v{vA+6}, 3, v{vL}
    v_lshl_add_u32 v{vA+3}, v{vA+3}, 2, v{vA+6}
    v_lshlrev_b32 v{vA+2}, 11, v{vA+2}
    v_lshl_add_u32 v{vA}, v{vA+3}, 3, v{vA+2}
    s_lshl_b32 s40, s36, 9
    s_lshl_b32 s41, s3, 7
    s_add_u32 s40, s40, s41
    v_add_u32 v{vA}, s40, v{vA}
    s_lshl_b32 s40, s3, 11
    v_add_u32 v{vA+1}, s40, v{vRow}
    v_lshl_add_u32 v{vA+5}, v{vA+3}, 2, v{vA+2}
    s_and_b32 s40, s2, 7
    s_lshl_b32 s40, s40, 8
    s_lshl_b32 s41, s3, 6
    s_add_u32 s40, s40, s41
    v_add_u32 v{vA+5}, s40, v{vA+5}
    s_waitcnt lgkmcnt(0)
    ''')
    stamp(e,cfg,0)
    srd(e,SWS,P_WS,WS_END)
    lh=e.label('Lnohead')
    e(f'''
    s_cmp_lt_u32 s2, 224
    s_cbranch_scc1 {lh}
    s_cmp_lg_u32 s3, 3
    s_cbranch_scc1 {lh}_b
    s_sub_u32 s41, s2, 224
    s_mul_i32 s40, s41, {HEADSH}
    s_add_u32 s40, s40, {WS_MU}
    ''')
    for i in range(13):
        if i and i%4==0: e('s_add_u32 s40, s40, 4096')
        if i==12: e(f's_mov_b64 exec, {hex((1<<((HEADSH-12288)//16))-1)}' if HEADSH-12288<=512 else f's_mov_b32 exec_hi, {hex((1<<((HEADSH-12288)//16-32))-1)}')
        e(f'buffer_store_dwordx4 v[32:35], v{vRow}, s[{SWS}:{SWS+3}], s40 offen offset:{(i&3)*1024} sc1')
    e(f'''
    s_lshl_b32 s41, s41, 2
    v_mov_b32 v{vA+4}, s41
    {'s_waitcnt vmcnt(0)' if cfg.hold else 's_barrier'}
    {'s_mov_b64 exec, 1' if cfg.hold else 's_waitcnt vmcnt(0)'}
    s_mov_b64 exec, 1
    global_store_dword v{vA+4}, v{vOne}, s[{P_DBG}:{P_DBG+1}] sc1
    s_mov_b64 exec, -1
    {'' if cfg.hold else 's_branch '+lh}
    {lh}_b:
    s_barrier
    {lh}:
    s_cmp_eq_u32 s33, 1
    s_cselect_b32 s48, s{P_X}, s{P_C}
    s_cselect_b32 s49, s{P_X+1}, s{P_C+1}
    global_load_dwordx2 v[16:17], v{vA}, s[48:49]
    global_load_dword v18, v{vA+5}, s[{P_C}:{P_C+1}]
    s_cbranch_scc0 L_nox
    global_load_dwordx4 v[24:27], v{vA+1}, s[{P_X}:{P_X+1}]
    global_load_dwordx4 v[28:31], v{vA+1}, s[{P_X}:{P_X+1}] offset:1024
    L_nox:
    s_cmp_ge_u32 s2, 224
    s_cbranch_scc1 L_nobar
    s_barrier
    L_nobar:
    s_mov_b32 s50, 0
    s_mul_i32 s40, s3, 2304
    s_add_u32 s40, s40, {L_RED}
    v_lshrrev_b32 v{vA+2}, 4, v{vL}
    v_mul_u32_u24 v{vRd}, 576, v{vA+2}
    v_and_b32 v{vA+2}, 15, v{vL}
    v_lshl_add_u32 v{vRd}, v{vA+2}, 2, v{vRd}
    v_add_u32 v{vRd}, s40, v{vRd}
    s_mul_i32 s40, s3, 576
    s_add_u32 s40, s40, {L_RED}
    v_lshl_add_u32 v{vRr}, v{vL}, 3, s40
    ''')
    lc=e.label('Lclr3'); lc2=e.label('Lclrd')
    rem=FLATSH-8192
    e(f'''
    s_mul_i32 s40, s2, {FLATSH}
    s_lshl_b32 s41, s3, 11
    s_add_u32 s41, s40, s41
    buffer_store_dwordx4 v[32:35], v{vRow}, s[{SWS}:{SWS+3}], s41 offen sc1
    buffer_store_dwordx4 v[32:35], v{vRow}, s[{SWS}:{SWS+3}], s41 offen offset:1024 sc1
    s_cmp_ge_u32 s3, 2
    s_cbranch_scc1 {lc}
    s_waitcnt vmcnt(2)
    s_branch {lc2}
    {lc}:
    s_and_b32 s41, s3, 1
    s_mul_i32 s41, s41, {rem//2}
    s_add_u32 s40, s40, s41
    s_add_u32 s40, s40, 8192
    v_cmp_gt_u32 vcc, {rem//32}, v{vL}
    s_and_b64 exec, exec, vcc
    buffer_store_dwordx4 v[32:35], v{vRow}, s[{SWS}:{SWS+3}], s40 offen sc1
    s_mov_b64 exec, -1
    s_waitcnt vmcnt(3)
    {lc2}:
    ''')
    stamp(e,cfg,14)
    def auxbar():
        e('s_add_u32 s50, s50, 4\ns_waitcnt lgkmcnt(0)')
        lds_signal(e,F_AUX,vFl,vOne)
        lds_spin(e,cfg,F_AUX,'s50',vFl,vT)
    def go1():
        l=e.label('Lgo'); d=e.label('Lgod'); la=e.label('Lnogo')
        e(f'''
        s_cmp_lg_u32 s3, 3
        s_cbranch_scc1 {la}
        v_and_b32 v{vA}, 31, v{vL}
        v_lshlrev_b32 v{vA}, 2, v{vA}
        s_mov_b32 s41, 0
        {l}:
        global_load_dword v{vA+1}, v{vA}, s[{P_DBG}:{P_DBG+1}] sc1
        s_add_u32 s41, s41, 1
        s_waitcnt vmcnt(0)
        v_cmp_ne_u32 vcc, 1, v{vA+1}
        s_cbranch_vccz {d}
        s_sleep {cfg.sleep_head}
        s_cmp_lt_u32 s41, {cfg.gpoll}
        s_cbranch_scc1 {l}
        {d}:
        ''')
        stamp(e,cfg,15)
        e(f'{la}:\ns_waitcnt vmcnt(0)')
    def arrive():
        la=e.label('Lnoarr')
        e(f'''
        s_cmp_lg_u32 s3, 3
        s_cbranch_scc1 {la}
        s_lshl_b32 s40, s2, 2
        s_add_u32 s40, s40, {WS_SA}
        v_mov_b32 v{vA}, 0
        s_mov_b64 exec, 1
        buffer_store_dword v{vOne}, v{vA}, s[{SWS}:{SWS+3}], s40 offen sc1
        s_mov_b64 exec, -1
        {la}:
        ''')
    def gbar1():
        l1=e.label('Lgb1')
        e(f's_cmp_lg_u32 s3, 0\ns_cbranch_scc1 {l1}\ns_mov_b32 s40, {WS_SA}')
        gather(e,cfg,[(60,4,vRow,'s40',0)],vT,cfg.sleep_head)
        e(f'{l1}:')
    def pickup(kind, dsts):
        gi=GROUPS.index(kind)
        e(f'''v_lshrrev_b32 v{vA+7}, 2, v{vL}
        v_lshlrev_b32 v{vA}, 8, v{vA+7}
        v_and_b32 v{vA+7}, 7, v{vA+7}
        v_lshl_add_u32 v{vA}, v{vA+7}, 5, v{vA}
        v_and_b32 v{vA+7}, 3, v{vL}
        v_lshl_add_u32 v{vA}, v{vA+7}, 3, v{vA}
        v_add_u32 v{vA}, s32, v{vA}''')
        for ct in range(1,8): e(f'v_xor_b32 v{vA+ct}, {ct<<5}, v{vA}')
        lds_spin(e,cfg,F_LAND+4*gi,4,vFl,vT)
        for t,W in enumerate(dsts):
            sk=None
            if isinstance(W,tuple):
                W=W[0]; sk=e.label('Lsk'); e(f's_cmp_ge_u32 s2, 64\ns_cbranch_scc1 {sk}')
            for ct in range(8):
                for hf in range(2):
                    r=W+4*ct+2*hf
                    e(f'ds_read_b64_tr_b16 v[{r}:{r+1}], v{vA+ct} offset:{slot(kind,2*t+hf)}')
            if sk: e(f'{sk}:')
        e('s_waitcnt lgkmcnt(0)')
        lds_signal(e,F_CONS+4*gi,vFl,vOne)
    def pickup_cols(kind, W, base=None):
        gi=GROUPS.index(kind)
        e(f'''v_lshrrev_b32 v{vA+7}, 2, v{vL}
        v_lshlrev_b32 v{vA}, 8, v{vA+7}
        v_and_b32 v{vA+7}, 7, v{vA+7}
        s_lshl_b32 s40, s3, 1
        v_xor_b32 v{vA+7}, s40, v{vA+7}
        v_lshl_add_u32 v{vA}, v{vA+7}, 5, v{vA}
        v_and_b32 v{vA+7}, 3, v{vL}
        v_lshl_add_u32 v{vA}, v{vA+7}, 3, v{vA}
        v_xor_b32 v{vA+1}, 32, v{vA}
        v_add_u32 v{vA+2}, 0x10000, v{vA}
        v_add_u32 v{vA+3}, 0x10000, v{vA+1}''')
        if base is None: lds_spin(e,cfg,F_LAND+4*gi,4,vFl,vT)
        for t in range(4):
            for j in range(2):
                for hf in range(2):
                    r=W+8*t+4*j+2*hf
                    e(f'ds_read_b64_tr_b16 v[{r}:{r+1}], v{vA+2*(t>>1)+j} offset:{(t&1)*RING+(slot(kind,hf) if base is None else base+4096*hf)}')
        if base is None:
            e('s_waitcnt lgkmcnt(0)')
            lds_signal(e,F_CONS+4*gi,vFl,vOne)
    def pickup_x(kind, W):
        la=e.label('Lpl'); lb=e.label('Lpld')
        e(f's_cmp_ge_u32 s2, 224\ns_cbranch_scc1 {la}')
        if kind[1] in cfg.defer: lds_signal(e,F_CONS+4*GROUPS.index(kind),vFl,vOne)
        else: pickup_cols(kind,W)
        e(f's_branch {lb}\n{la}:')
        pickup(kind,[W])
        e(f'{lb}:')
    def mmx(Ws, accs, vXr):
        e('s_waitcnt lgkmcnt(0)\ns_barrier')
        for t in range(4): e(f'ds_read_b128 v[{16+4*t}:{19+4*t}], v{vXr} offset:{64*t}')
        for t in range(4):
            e(f's_waitcnt lgkmcnt({3-t})')
            for m,W in enumerate(Ws):
                for j in range(2):
                    ac=accs[2*m+j]
                    e(f'v_mfma_f32_16x16x32_bf16 v[{ac}:{ac+3}], v[{16+4*t}:{19+4*t}], v[{W+8*t+4*j}:{W+8*t+4*j+3}], '+('0' if t==0 else f'v[{ac}:{ac+3}]'))
    def mm(As, Ws, accs, redoff=0):
        for t,(a_,W) in enumerate(zip(As,Ws)):
            for ct in range(8):
                e(f'v_mfma_f32_16x16x32_bf16 v[{accs[ct]}:{accs[ct]+3}], v[{a_}:{a_+3}], v[{W+4*ct}:{W+4*ct+3}], '+('0' if t==0 else f'v[{accs[ct]}:{accs[ct]+3}]'))
        for ct in range(8): e(f'ds_write_b32 v{vRd}, v{accs[ct]} offset:{64*ct}')
    JACC=[24+4*i for i in range(8)]
    def job_pub(base, rs, cgoff, skq='s36', scg='s39'):
        for w in range(4): e(f'ds_read_b64 v[{24+2*w}:{25+2*w}], v{vRr} offset:{2304*w}')
        e(f'''
        s_lshl_b32 s40, {skq}, 2
        s_add_u32 s40, s40, s3
        s_mul_i32 s40, s40, {rs}
        s_lshl_b32 s41, {scg}, 9
        s_add_u32 s40, s40, s41
        s_add_u32 s40, s40, {base+cgoff*512}
        v_lshlrev_b32 v{vA}, 3, v{vL}
        s_waitcnt lgkmcnt(0)
        ''')
        sum4(24,24)
        e(f'''
        v_min_u32 v24, -2, v24
        v_min_u32 v25, -2, v25
        buffer_store_dwordx2 v[24:25], v{vA}, s[{SWS}:{SWS+3}], s40 offen sc1
        ''')
    def spread(r):
        for k in (1,2,3,0): e(f'v_mov_b32_dpp v{r+k}, v{r} quad_perm:[{k},{k},{k},{k}] row_mask:0xf bank_mask:0xf')
    def silu_A():
        unpack(e,16,32,3)
        for i in range(6): e(f'v_mul_f32 v{48+i}, 0xbfb8aa3b, v{32+i}')
        for i in range(6): e(f'v_exp_f32 v{48+i}, v{48+i}')
        for i in range(6): e(f'v_add_f32 v{48+i}, 1.0, v{48+i}')
        for i in range(6): e(f'v_rcp_f32 v{48+i}, v{48+i}')
        for i in range(6): e(f'v_mul_f32 v{32+i}, v{32+i}, v{48+i}')
        e('v_cvt_pk_bf16_f32 v16, v32, v33\nv_cvt_pk_bf16_f32 v20, v34, v35\nv_cvt_pk_bf16_f32 v56, v36, v37')
        spread(16); spread(20); spread(56)
    def sum4(r, dst):
        e(f'''v_pk_add_f32 v[{r}:{r+1}], v[{r}:{r+1}], v[{r+2}:{r+3}]
        v_pk_add_f32 v[{r+4}:{r+5}], v[{r+4}:{r+5}], v[{r+6}:{r+7}]
        v_pk_add_f32 v[{dst}:{dst+1}], v[{r}:{r+1}], v[{r+4}:{r+5}]''')
    def aoff(dst, pstr, bstr, gstr):
        e(f'''v_bfe_u32 v{vA+5}, v{vL}, 2, 2
        v_and_b32 v{vA+6}, 3, v{vL}
        v_lshrrev_b32 v{vA+7}, 4, v{vL}
        v_mul_u32_u24 v{dst}, {pstr}, v{vA+5}
        v_mul_u32_u24 v{vA+6}, {bstr}, v{vA+6}
        v_mul_u32_u24 v{vA+7}, {gstr}, v{vA+7}
        v_add3_u32 v{dst}, v{dst}, v{vA+6}, v{vA+7}''')
    def dppsum(r0, n):
        for r in (4,8):
            for i in range(n): e(f'v_add_f32_dpp v{r0+i}, v{r0+i}, v{r0+i} row_ror:{r} row_mask:0xf bank_mask:0xf')
    def allred_s(op, xs, t, rors=(4,8), swaps=('v_permlane16_swap_b32','v_permlane32_swap_b32')):
        for r in rors:
            for x in xs: e(f'{op}_dpp v{x}, v{x}, v{x} row_ror:{r} row_mask:0xf bank_mask:0xf')
        for sw in swaps:
            for k,x in enumerate(xs): e(f'v_mov_b32 v{t+k}, v{x}')
            for k,x in enumerate(xs): e(f'{sw} v{t+k}, v{x}')
            for k,x in enumerate(xs): e(f'{op} v{x}, v{x}, v{t+k}')
    def gather_q():
        e(f'''
        s_lshr_b32 s40, s37, 2
        s_mul_i32 s40, s40, {QS}
        s_and_b32 s41, s37, 3
        s_lshl_b32 s41, s41, 12
        s_add_u32 s40, s40, s41
        s_lshl_b32 s41, s3, 10
        s_add_u32 s40, s40, s41
        s_add_u32 s52, s40, {WS_Q}
        s_add_u32 s53, s52, {4*QS}
        s_add_u32 s54, s52, {8*QS}
        s_add_u32 s55, s52, {12*QS}
        ''')
        gather(e,cfg,[(24+4*i,4,vRow,f's{52+i}',0) for i in range(4)],vT,cfg.sleep_q)
        e(f'''
        s_mov_b32 s42, s41
        v_pk_add_f32 v[24:25], v[24:25], v[28:29]
        v_pk_add_f32 v[26:27], v[26:27], v[30:31]
        v_pk_add_f32 v[32:33], v[32:33], v[36:37]
        v_pk_add_f32 v[34:35], v[34:35], v[38:39]
        v_pk_add_f32 v[24:25], v[24:25], v[32:33]
        v_pk_add_f32 v[26:27], v[26:27], v[34:35]
        s_mul_i32 s40, s3, {2*QSTR}
        s_add_u32 s40, s40, {L_QOP}
        v_lshrrev_b32 v{vA}, 5, v{vL}
        v_mul_u32_u24 v{vA}, {QSTR}, v{vA}
        v_and_b32 v{vA+1}, 31, v{vL}
        v_lshl_add_u32 v{vA}, v{vA+1}, 3, v{vA}
        v_add_u32 v{vA}, s40, v{vA}
        v_cvt_pk_bf16_f32 v24, v24, v25
        v_cvt_pk_bf16_f32 v25, v26, v27
        ds_write_b64 v{vA}, v[24:25]
        ''')
        if cfg.adapt==1:
            lb=e.label('Lld')
            e(f's_cmp_lg_u32 s42, 1\ns_cbranch_scc1 {lb}')
            lds_signal(e,F_M,vFl,vOne)
            e(f'{lb}:')
        e('s_waitcnt lgkmcnt(0)')
        lds_signal(e,F_Q,vFl,vOne)
    early = True
    def wpick(a=0,b=5):
        for g,d in [('WO',WO),('X0',X0),('X1',X1),('X2',X2),('X3',WJ)][a:b]:
            if (g,0) not in UNITS: continue
            if g in ('WO','X2'): pickup_cols(g,d)
            elif g=='X3': pickup(g,[(d,)])
            else: pickup_x(g,d)
    def njobs():
        gbar1(); auxbar()
        job_pub(WS_MN,MNS,-16)
        ln=e.label('Lnoj2')
        e(f's_cmp_lt_u32 s2, 224\ns_cbranch_scc1 {ln}')
        auxbar(); mm([16,20],[X0,X1],JACC); auxbar(); job_pub(WS_MN,MNS,-16,scg='s101')
        e(f'{ln}:')
    def gjob():
        lg=e.label('Lnog')
        e(f's_cmp_ge_u32 s2, 64\ns_cbranch_scc1 {lg}')
        mm([56],[WJ],JACC); auxbar()
        e('s_and_b32 s42, s2, 7\ns_lshr_b32 s43, s2, 3')
        job_pub(WS_MG,MGS,0,'s42','s43')
        auxbar()
        e(f'{lg}:')
    e('''
    s_cmp_eq_u32 s33, 1
    s_cbranch_scc1 L_roleQ
    ''')
    silu_A(); go1(); pickup('J',[WJ,WJ+32]); mm([16,20],[WJ,WJ+32],JACC); auxbar()
    e('s_cmp_eq_u32 s33, 2\ns_cbranch_scc1 L_roleN')
    job_pub(WS_MU,MUS,0)
    arrive()
    stamp(e,cfg,1)
    if early: wpick()
    stamp(e,cfg,2)
    e('s_branch L_common')
    e('L_roleN:')
    arrive()
    stamp(e,cfg,1)
    if early: wpick(); njobs()
    stamp(e,cfg,2)
    e('s_branch L_common')
    e('L_roleQ:')
    unpack(e,24,32,8)
    mu=24; var=25; a_=26; b_=27
    e(f'v_add_f32 v{mu}, v32, v33\nv_add_f32 v{a_}, v34, v35')
    for i in range(4,16,2): e(f'v_add_f32 v{mu}, v{mu}, v{32+i}\nv_add_f32 v{a_}, v{a_}, v{33+i}')
    e(f'v_add_f32 v{mu}, v{mu}, v{a_}')
    allreduce64(e,'v_add_f32',mu,a_)
    e(f'v_mul_f32 v{mu}, 0x3a800000, v{mu}')
    e(f'v_sub_f32 v{a_}, v32, v{mu}\nv_sub_f32 v{b_}, v33, v{mu}\nv_mul_f32 v{var}, v{a_}, v{a_}\nv_mul_f32 v28, v{b_}, v{b_}')
    for i in range(2,16,2):
        e(f'v_sub_f32 v{a_}, v{32+i}, v{mu}\nv_sub_f32 v{b_}, v{33+i}, v{mu}\nv_fmac_f32 v{var}, v{a_}, v{a_}\nv_fmac_f32 v28, v{b_}, v{b_}')
    e(f'v_add_f32 v{var}, v{var}, v28')
    allreduce64(e,'v_add_f32',var,a_)
    e(f'v_mul_f32 v{var}, 0x3a800000, v{var}')
    def finish_stats(mu,var):
        if cfg.round_ln: rnd1(e,mu); rnd1(e,var)
        e(f'v_add_f32 v{var}, 0x3727c5ac, v{var}')
        if cfg.round_ln: rnd1(e,var)
        e(f'v_sqrt_f32 v{var}, v{var}')
        if cfg.round_ln: rnd1(e,var)
        e(f'v_rcp_f32 v{var}, v{var}')
    finish_stats(mu,var)
    e(f'''
    s_lshl_b32 s40, s3, 3
    s_add_u32 s40, s40, {L_ST}
    v_mov_b32 v{vA}, s40
    ds_write_b64 v{vA}, v[24:25]
    ''')
    go1()
    pickup('J',[WJ,WJ+32])
    auxbar(); arrive()
    e(f'''
    v_bfe_u32 v{vA}, v{vL}, 2, 2
    v_lshlrev_b32 v{vA}, 3, v{vA}
    v_add_u32 v{vA}, {L_ST}, v{vA}
    ds_read_b64 v[24:25], v{vA}
    ''')
    def normalise(X,n,mu,rs,t):
        for i in range(n): e(f'v_sub_f32 v{X+i}, v{X+i}, v{mu}')
        if cfg.round_ln: rnd_vec(e,X,n,t)
        for i in range(n): e(f'v_mul_f32 v{X+i}, v{X+i}, v{rs}')
        if cfg.round_ln: rnd_vec(e,X,n,t)
    unpack(e,16,60,2)
    e('s_waitcnt lgkmcnt(0)')
    normalise(60,4,24,25,26)
    wpick(0,cfg.qafter)
    stamp(e,cfg,1)
    aoff(vA, MUS, 16, 64)
    e(f'''
    s_lshl_b32 s40, s36, 10
    s_lshl_b32 s41, s3, 8
    s_add_u32 s40, s40, s41
    s_add_u32 s52, s40, {WS_MU}
    ''')
    for i in range(1,8): e(f's_add_u32 s{52+i}, s52, {(i&3)*4*MUS+(i>>2)*4096}')
    gather(e,cfg,[(16+4*i,4,vA,f's{52+i}',0) for i in range(8)],vT,cfg.sleep_head)
    for m in range(2):
        for h in range(2):
            r=16+16*m+2*h
            e(f'''v_pk_add_f32 v[{r}:{r+1}], v[{r}:{r+1}], v[{r+4}:{r+5}]
            v_pk_add_f32 v[{r+8}:{r+9}], v[{r+8}:{r+9}], v[{r+12}:{r+13}]
            v_pk_add_f32 v[{48+4*m+2*h}:{49+4*m+2*h}], v[{r}:{r+1}], v[{r+8}:{r+9}]''')
    rnd_vec(e,48,8,vA)
    def modulate(X,n,T1,SB,out,t,prep=True):
        if prep:
            for i in range(n): e(f'v_add_f32 v{T1+i}, 1.0, v{T1+i}')
            if cfg.round_ln: rnd_vec(e,T1,n,t)
        for i in range(n): e(f'v_mul_f32 v{X+i}, v{X+i}, v{T1+i}')
        if cfg.round_ln: rnd_vec(e,X,n,t)
        for i in range(n): e(f'v_add_f32 v{X+i}, v{X+i}, v{SB+i}')
        for i in range(n//2): e(f'v_cvt_pk_bf16_f32 v{out+i}, v{X+2*i}, v{X+2*i+1}')
    modulate(60,4,52,48,24,vA)
    e('v_mov_b32 v16, v24\nv_mov_b32 v20, v25')
    spread(16); spread(20)
    mm([16,20],[WJ,WJ+32],JACC); auxbar()
    job_pub(WS_Q,QS,0)
    stamp(e,cfg,2)
    wpick(cfg.qafter,5)
    e('L_common:')
    if cfg.qgate: lds_spin(e,cfg,F_P,4,vFl,vT)
    gather_q()
    stamp(e,cfg,3)
    lj=e.label('Lj2'); lk=e.label('Lj2d')
    if not early:
        wpick()
        e(f's_cmp_eq_u32 s33, 2\ns_cbranch_scc1 {lj}')
        gbar1()
        e(f's_branch {lk}\n{lj}:')
        njobs()
        e(f'{lk}:')
    else:
        e(f's_cmp_eq_u32 s33, 2\ns_cbranch_scc1 {lk}')
        gbar1()
        e(f'{lk}:')
    auxbar()
    gjob()
    F=192; RX=196; T1=204; SB=206; AC2=[220+4*i for i in range(8)]
    lds_spin(e,cfg,F_ML,4,vFl,vT)
    lm=e.label('Lnoml')
    e(f'''
    s_cmp_lg_u32 s3, 0
    s_cbranch_scc1 {lm}
    v_and_b32 v{vA}, 7, v{vL}
    v_lshlrev_b32 v{vA+1}, 3, v{vA}
    v_add_u32 v{vA}, {L_ML}, v{vA+1}
    ds_read_b64 v[16:17], v{vA}
    ds_read_b64 v[18:19], v{vA} offset:64
    ds_read_b64 v[20:21], v{vA} offset:128
    ds_read_b64 v[22:23], v{vA} offset:192
    s_lshl_b32 s40, s37, 10
    s_lshl_b32 s41, s38, 6
    s_add_u32 s40, s40, s41
    s_add_u32 s40, s40, {WS_ML}
    s_waitcnt lgkmcnt(0)
    v_max3_f32 v24, v16, v18, v20
    v_max_f32 v24, v24, v22
    v_sub_f32 v16, v16, v24
    v_sub_f32 v18, v18, v24
    v_sub_f32 v20, v20, v24
    v_sub_f32 v22, v22, v24
    v_exp_f32 v16, v16
    v_exp_f32 v18, v18
    v_exp_f32 v20, v20
    v_exp_f32 v22, v22
    v_mul_f32 v25, v16, v17
    v_fmac_f32 v25, v18, v19
    v_fmac_f32 v25, v20, v21
    v_fmac_f32 v25, v22, v23
    v_min_u32 v24, -2, v24
    v_min_u32 v25, -2, v25
    s_mov_b64 exec, 0xff
    buffer_store_dwordx2 v[24:25], v{vA+1}, s[{SWS}:{SWS+3}], s40 offen sc1
    s_mov_b64 exec, -1
    ''')
    if cfg.adapt==2:
        e(f'''
        s_lshl_b32 s40, s37, 10
        s_add_u32 s40, s40, {WS_ML}
        buffer_load_dword v16, v{vRow}, s[{SWS}:{SWS+3}], s40 offen sc1
        s_waitcnt vmcnt(0)
        v_cmp_ne_u32 vcc, -1, v16
        s_bcnt1_i32_b64 s40, vcc
        s_cmp_lt_u32 s40, {4*cfg.rank}
        s_cbranch_scc1 {lm}
        ''')
        lds_signal(e,F_M,vFl,vOne)
    e(f'{lm}:')
    lsb=e.label('Lnosb')
    e(f's_cmp_ge_u32 s2, 224\ns_cbranch_scc1 {lsb}')
    aoff(vA, 4*MNS, 32, MNS)
    e(f'''
    s_and_b32 s40, s2, 7
    s_lshl_b32 s40, s40, 9
    s_lshl_b32 s41, s3, 7
    s_add_u32 s40, s40, s41
    s_add_u32 s52, s40, {WS_MN+4096}
    s_add_u32 s53, s52, 4096
    ''')
    gather(e,cfg,[(16,4,vA,'s52',0),(20,4,vA,'s52',16),(24,4,vA,'s53',0),(28,4,vA,'s53',16)],vT,cfg.sleep_head)
    dppsum(16,16)
    e(f'''
    s_mov_b32 s42, 0xf0f0f0f0
    s_mov_b32 s43, 0xf0f0f0f0
    s_mov_b32 s40, 0xff00ff00
    s_mov_b32 s41, 0xff00ff00
    ''')
    for r,dst in ((16,SB),(17,SB+1),(24,T1),(25,T1+1)):
        e(f'''v_cndmask_b32 v{r}, v{r}, v{r+2}, s[42:43]
        v_cndmask_b32 v{r+4}, v{r+4}, v{r+6}, s[42:43]
        v_cndmask_b32 v{dst}, v{r}, v{r+4}, s[40:41]''')
    rnd_vec(e,T1,4,16)
    for i in range(2): e(f'v_add_f32 v{T1+i}, 1.0, v{T1+i}')
    if cfg.round_ln: rnd_vec(e,T1,2,16)
    e(f'{lsb}:')
    vOc=48; vOs=49; vH1=50; vYs=53; vRo=54; vH3=55; vZs=56; vXs=57; vSt=58; vOc2=59; vGs=51; vXr=52; vXw=60
    lr=e.label('Lnored')
    e(f'''
    v_and_b32 v{vA}, 15, v{vL}
    v_lshlrev_b32 v{vRo}, 3, v{vA}
    v_lshrrev_b32 v{vA+1}, 5, v{vL}
    v_lshl_add_u32 v{vRo}, v{vA+1}, 2, v{vRo}
    s_cmp_lt_u32 s2, 224
    s_cbranch_scc1 {lr}
    s_cmp_ge_u32 s3, 2
    s_cbranch_scc1 {lr}
    s_sub_u32 s98, s2, 224
    s_lshl_b32 s98, s98, 1
    s_add_u32 s98, s98, s3
    s_lshl_b32 s40, s98, 7
    v_add_u32 v{vA+1}, s40, v{vRo}
    global_load_dword v32, v{vA+1}, s[{P_X}:{P_X+1}]
    v_lshlrev_b32 v{vA}, 1, v{vRo}
    s_lshr_b32 s42, s98, 4
    s_mul_i32 s40, s42, {MNS}
    s_and_b32 s41, s98, 15
    s_lshl_b32 s41, s41, 8
    s_add_u32 s40, s40, s41
    s_add_u32 s52, s40, {WS_MN}
    s_mul_i32 s40, s42, {MGS}
    s_add_u32 s40, s40, s41
    s_add_u32 s56, s40, {WS_MG}
    v_add_u32 v{vA+1}, {16*MGS}, v{vA}
    ''')
    for i in range(1,4): e(f's_add_u32 s{52+i}, s52, {i*4*MNS}\ns_add_u32 s{56+i}, s56, {i*4*MGS}')
    gather(e,cfg,[(16+2*i,2,vA,f's{52+i}',0) for i in range(8)]+[(34+2*i,2,vA+1,f's{56+i}',0) for i in range(4)],vT,cfg.sleep_head)
    sum4(16,RX+2); sum4(24,24); sum4(34,34)
    e(f'v_pk_add_f32 v[{RX+4}:{RX+5}], v[24:25], v[34:35]')
    rnd_vec(e,RX+2,4,16)
    unpack(e,32,RX,1)
    e(f'{lr}:')
    aoff(vH1, OS, 16, 64*OS)
    aoff(vH3, 8, 32, GS)
    aoff(vXs, 4, 16, 2048)
    aoff(vYs, 16, 4, 16*YS)
    aoff(vZs, 16, 4, 16*ZS)
    aoff(vGs, 16, 4, GS)
    aoff(vXr, XSTR, 0, 16)
    aoff(vXw, 4, 16, XSTR)
    aoff(vSt, 128, 8, 512)
    e(f'''
    v_add_u32 v{vXr}, {L_AX}, v{vXr}
    s_lshl_b32 s40, s3, 6
    s_add_u32 s40, s40, {L_AX}
    v_add_u32 v{vXw}, s40, v{vXw}
    s_lshl_b32 s40, s3, 1
    v_lshrrev_b32 v{vA}, 5, v{vL}
    v_add_u32 v{vA+2}, s40, v{vA}
    v_mul_u32_u24 v{vOc}, {OSTR}, v{vA+2}
    v_and_b32 v{vA+1}, 31, v{vL}
    v_lshl_add_u32 v{vOc}, v{vA+1}, 4, v{vOc}
    v_add_u32 v{vOc}, {OOFF}, v{vOc}
    v_add_u32 v{vOc2}, 0x10000, v{vOc}
    v_lshlrev_b32 v{vOs}, 3, v{vL}
    s_lshl_b32 s52, s37, 4
    s_add_u32 s52, s52, s38
    s_mul_i32 s52, s52, {OS}
    s_lshl_b32 s40, s3, 9
    s_add_u32 s52, s52, s40
    s_mul_i32 s53, s3, {16*OS}
    s_and_b32 s40, s2, 7
    s_lshl_b32 s40, s40, 8
    s_add_u32 s53, s53, s40
    s_bfe_u32 s40, s2, 0x20003
    s_lshl_b32 s40, s40, 6
    s_add_u32 s53, s53, s40
    s_add_u32 s54, s53, {4*OS}
    s_add_u32 s55, s53, {8*OS}
    s_add_u32 s56, s53, {12*OS}
    s_lshr_b32 s42, s3, 1
    s_and_b32 s43, s3, 1
    s_lshl_b32 s43, s43, 7
    s_lshr_b32 s40, s2, 5
    s_lshl_b32 s40, s40, 1
    s_add_u32 s40, s40, s42
    s_mul_i32 s57, s40, {YS}
    s_and_b32 s40, s2, 31
    s_lshl_b32 s40, s40, 8
    s_add_u32 s57, s57, s40
    s_add_u32 s57, s57, s43
    s_add_u32 s57, s57, {WS_Y}
    s_and_b32 s40, s63, 7
    s_lshl_b32 s40, s40, 1
    s_add_u32 s40, s40, s42
    s_mul_i32 s59, s40, {ZS}
    s_add_u32 s59, s59, s43
    s_lshr_b32 s43, s63, 3
    s_lshl_b32 s42, s43, 8
    s_add_u32 s59, s59, s42
    s_add_u32 s59, s59, {WS_Z}
    s_and_b32 s40, s2, 7
    s_lshl_b32 s58, s40, 8
    s_lshl_b32 s42, s3, 6
    s_add_u32 s58, s58, s42
    s_add_u32 s58, s58, {WS_X1}
    s_mov_b32 s49, {WS_ST}
    s_mul_i32 s60, s40, {4*GS}
    s_lshr_b32 s41, s2, 3
    s_lshl_b32 s41, s41, 9
    s_add_u32 s60, s60, s41
    s_lshl_b32 s40, s3, 7
    s_add_u32 s60, s60, s40
    s_add_u32 s60, s60, {WS_GU}
    s_lshl_b32 s43, s43, 9
    s_add_u32 s48, s43, s40
    s_add_u32 s48, s48, {WS_GU}
    s_mov_b32 s61, 0x3f80
    s_mov_b32 s62, 0x3f800000
    s_mov_b32 s96, 0x000f000f
    s_mov_b32 s97, 0x000f000f
    s_mov_b32 s10, {1024*3584*2}
    s_mov_b32 s11, 0x20000
    v_lshrrev_b32 v{vA}, 4, v{vL}
    v_and_b32 v{vA+1}, 15, v{vL}
    v_lshlrev_b32 v{vA+2}, 1, v{vA}
    v_xor_b32 v{vA+2}, v{vA+2}, v{vA+1}
    v_lshlrev_b32 v{vA+2}, 4, v{vA+2}
    v_lshl_add_u32 v61, v{vA}, 11, v{vA+2}
    v_xor_b32 v62, 128, v61
    v_mul_u32_u24 v63, 7168, v{vA}
    v_add_u32 v63, v63, v{vA+2}
    s_lshr_b32 s40, s63, 3
    s_lshl_b32 s100, s40, 18
    s_lshl_b32 s40, s3, 16
    s_add_u32 s100, s100, s40
    s_and_b32 s40, s63, 7
    s_lshl_b32 s40, s40, 8
    s_add_u32 s100, s100, s40
    s_and_b32 s40, s2, 7
    s_lshl_b32 s40, s40, 2
    s_add_u32 s40, s40, s3
    s_mul_i32 s12, s40, {32*7168}
    s_lshr_b32 s40, s2, 3
    s_lshl_b32 s40, s40, 8
    s_add_u32 s12, s12, s40
    ''')
    lf=e.label('Lnof')
    e(f's_cmp_lg_u32 s3, 0\ns_cbranch_scc1 {lf}')
    lds_spin(e,cfg,F_V,1,vFl,vT)
    e(f's_lshl_b32 s40, s37, 10\ns_add_u32 s40, s40, {WS_ML}')
    gather(e,cfg,[(16,4,vRow,'s40',0)],vT,cfg.sleep_ml)
    e('v_mov_b32 v20, v16\nv_mov_b32 v22, v18')
    allred_s('v_max_f32',[20,22],24)
    e('''
    v_sub_f32 v16, v16, v20
    v_sub_f32 v18, v18, v22
    v_exp_f32 v16, v16
    v_exp_f32 v18, v18
    v_mul_f32 v21, v16, v17
    v_mul_f32 v23, v18, v19
    ''')
    allred_s('v_add_f32',[21,23],24)
    e(f'''
    v_rcp_f32 v21, v21
    v_rcp_f32 v23, v23
    v_add_u32 v{vA}, {L_ST}, v{vRow}
    s_mov_b64 exec, 15
    ds_write_b128 v{vA}, v[20:23]
    s_waitcnt lgkmcnt(0)
    s_mov_b64 exec, -1
    ''')
    lds_signal(e,F_F,vFl,vOne)
    e(f'''
    {lf}:
    s_lshl_b32 s40, s3, 4
    v_lshrrev_b32 v{vA+1}, 5, v{vL}
    v_lshl_add_u32 v{vA}, v{vA+1}, 3, s40
    v_add_u32 v{vA+1}, {L_ST}, v{vA}
    v_add_u32 v{vA}, {L_ML}, v{vA}
    ds_read_b32 v{F}, v{vA}
    ds_read_b32 v{F+1}, v{vA} offset:64
    ds_read_b32 v{F+2}, v{vA} offset:128
    ds_read_b32 v{F+3}, v{vA} offset:192
    ''')
    lds_spin(e,cfg,F_F,1,vFl,vT)
    e(f'ds_read_b64 v[20:21], v{vA+1}\ns_waitcnt lgkmcnt(0)')
    for k in range(4): e(f'v_sub_f32 v{F+k}, v{F+k}, v20')
    for k in range(4): e(f'v_exp_f32 v{F+k}, v{F+k}')
    for k in range(4): e(f'v_mul_f32 v{F+k}, v{F+k}, v21')
    stamp(e,cfg,4)
    e.c('---- tail: combine the four waves of this workgroup')
    lds_spin(e,cfg,F_O,4,vFl,vT)
    stamp(e,cfg,5)
    e(f'''
    ds_read_b128 v[16:19], v{vOc}
    ds_read_b128 v[20:23], v{vOc} offset:{RING}
    ds_read_b128 v[24:27], v{vOc2}
    ds_read_b128 v[28:31], v{vOc2} offset:{RING}
    s_waitcnt lgkmcnt(3)
    ''')
    for r in range(4): e(f'v_mul_f32 v{16+r}, v{16+r}, v{F}')
    for k in range(1,4):
        e(f's_waitcnt lgkmcnt({3-k})')
        for r in range(4): e(f'v_fmac_f32 v{16+r}, v{16+4*k+r}, v{F+k}')
    e(f'''
    v_cvt_pk_bf16_f32 v16, v16, v17
    v_cvt_pk_bf16_f32 v17, v18, v19
    v_min_u32 v16, -2, v16
    v_min_u32 v17, -2, v17
    buffer_store_dwordx2 v[16:17], v{vOs}, s[{SWS}:{SWS+3}], s52 offen sc1
    ''')
    def look(i, acki=None):
        if acki is not None and cfg.ack[acki]=='1': e('s_waitcnt vmcnt(0)')
        d=int(cfg.dly.split(',')[i])
        if d: e(f's_sleep {d}')
    def tstamp(i):
        if cfg.tstamps: stamp(e,cfg,i)
    look(0,0)
    def fast(loads, compute, check):
        d=e.label('Lfd')
        for dst,n,voff,soff,imm in loads:
            op={1:'dword',2:'dwordx2',4:'dwordx4'}[n]
            e(f'buffer_load_{op} {v(dst,n)}, v{voff}, s[{SWS}:{SWS+3}], {soff} offen offset:{imm} sc1')
        e('s_waitcnt vmcnt(0)')
        compute(); check()
        e(f's_cbranch_vccz {d}')
        gather(e,cfg,loads,vT,cfg.sleep_tail)
        if cfg.fine: e(f's_min_u32 s41, s41, 255\ns_lshl_b32 s41, s41, {8*fast.n}\ns_or_b32 s99, s99, s41')
        compute()
        e(f'{d}:')
        fast.n+=1
    fast.n=0
    if cfg.fine: e('s_mov_b32 s99, 0')
    def store2(accs, voff, soff):
        for j,ac in enumerate(accs):
            e(f'v_min_u32 v{ac}, -2, v{ac}\nbuffer_store_dword v{ac}, v{voff}, s[{SWS}:{SWS+3}], {soff} offen offset:{64*j} sc1')
    e.c('---- H1 + output projection')
    gather(e,cfg,[(16,4,vH1,'s53',0),(20,4,vH1,'s54',0),(24,4,vH1,'s55',0),(28,4,vH1,'s56',0)],vT,cfg.sleep_tail)
    tstamp(6)
    for i in range(4):
        e(f'v_lshlrev_b32 v{32+2*i}, 16, v{16+i}\nv_and_b32 v{33+2*i}, 0xffff0000, v{16+i}')
    for j in range(1,4):
        for i in range(4):
            e(f'v_dot2_f32_bf16 v{32+2*i}, v{16+4*j+i}, s61, v{32+2*i}\nv_dot2_f32_bf16 v{33+2*i}, v{16+4*j+i}, s62, v{33+2*i}')
    dppsum(32,8)
    for i in range(4): e(f'v_cvt_pk_bf16_f32 v{16+i}, v{32+2*i}, v{33+2*i}')
    e(f's_mov_b64 exec, s[96:97]\nds_write_b128 v{vXw}, v[16:19]\ns_mov_b64 exec, -1')
    mmx([WO],[32,36],vXr)
    store2([32,36],vYs,'s57')
    tstamp(7)
    e('s_cmp_ge_u32 s2, 224\ns_cbranch_scc1 L_red')
    def red_tail(n):
        lst=list(range(n))
        while len(lst)>1:
            nx=[]
            for i in range(0,len(lst)-1,2):
                a_,b_=16+4*lst[i],16+4*lst[i+1]
                e(f'v_pk_add_f32 v[{a_}:{a_+1}], v[{a_}:{a_+1}], v[{b_}:{b_+1}]\nv_pk_add_f32 v[{a_+2}:{a_+3}], v[{a_+2}:{a_+3}], v[{b_+2}:{b_+3}]')
                nx.append(lst[i])
            if len(lst)%2: nx.append(lst[-1])
            lst=nx
        e('''
        v_permlane32_swap_b32 v16, v18
        v_permlane32_swap_b32 v17, v19
        v_pk_add_f32 v[16:17], v[16:17], v[18:19]
        v_mov_b32 v18, v16
        v_mov_b32 v19, v17
        v_permlane16_swap_b32 v18, v16
        v_permlane16_swap_b32 v19, v17
        v_pk_add_f32 v[16:17], v[16:17], v[18:19]
        ''')
    def gate_res(G,X,dst):
        rnd_vec(e,16,2,18)
        e(f'v_pk_mul_f32 v[16:17], v[16:17], v[{G}:{G+1}]')
        rnd_vec(e,16,2,18)
        e(f'v_pk_add_f32 v[16:17], v[16:17], v[{X}:{X+1}]\nv_cvt_pk_bf16_f32 v{dst}, v16, v17')
    nan2=lambda a_,b_: (lambda: e(f'v_cmp_u_f32 vcc, v{a_}, v{b_}'))
    if '0' in cfg.defer or '1' in cfg.defer: e('v_mov_b32 v14, v63\nv_xor_b32 v15, 128, v63')
    DEF=[(k,{'0':P_W1,'1':P_W3,'2':P_W2}[k]) for k in cfg.defer]
    for n,(k,p) in enumerate(DEF):
        rs = 2048 if k=='2' else 7168
        e(f's_mov_b32 s8, s{p}\ns_mov_b32 s9, s{p+1}')
        for I in range(8):
            if I%4==0: e(f's_add_u32 m0, s32, {n*8192+(I>>2)*4096}')
            e(f's_add_u32 s41, s{100 if k=="2" else 12}, {(8*(I&3)+4*(I>>2))*rs-1024*(I&3)}')
            e(f'buffer_load_dwordx4 v{(61 if k=="2" else 14)+(I&1)}, s[8:11], s41 offen offset:{(I&3)*1024} {cfg.pol} lds')
    look(2)
    if DEF: e('s_waitcnt vmcnt(0)')
    if any(k!='2' for k,p in DEF):
        e('s_barrier')
        for n,(k,p) in enumerate(DEF):
            if k!='2': pickup_cols('X'+k, X0 if k=='0' else X1, n*8192)
    e.c('---- H2b + gate/up')
    def ln2():
        unpack(e,16,32,1)
        allred_s('v_add_f32',[20,21],22,rors=(1,2,4,8),swaps=())
        e(f'''
        v_mul_f32 v20, 0x3a800000, v20
        v_mul_f32 v21, 0x3a800000, v21
        v_fma_f32 v21, -v20, v20, v21
        v_cmp_u_f32 s[42:43], v21, v21
        v_max_f32 v21, 0, v21
        ''')
        if cfg.round_ln2:
            finish_stats(20,21)
            normalise(32,2,20,21,22)
            modulate(32,2,T1,SB,16,22,prep=False)
        else:
            e(f'''
            v_add_f32 v21, 0x3727c5ac, v21
            v_rsq_f32 v21, v21
            v_sub_f32 v32, v32, v20
            v_sub_f32 v33, v33, v20
            v_mul_f32 v32, v32, v21
            v_mul_f32 v33, v33, v21
            v_fma_f32 v32, v32, v{T1}, v{SB}
            v_fma_f32 v33, v33, v{T1+1}, v{SB+1}
            v_cvt_pk_bf16_f32 v16, v32, v33
            ''')
        e(f'ds_write_b32 v{vXw}, v16')
    fast([(16,1,vXs,'s58',0),(20,2,vSt,'s49',0)], ln2, lambda: e('v_cmp_u_f32 vcc, v32, v33\ns_or_b64 vcc, vcc, s[42:43]'))
    tstamp(9)
    mmx([X0,X1],[32,36,40,44],vXr)
    for i in range(1,8): e(f's_add_u32 s{51+i}, s48, {i*4*GS}')
    for j in range(2): e(f'v_cvt_pk_bf16_f32 v{32+4*j}, v{32+4*j}, v{40+4*j}')
    store2([32,36],vGs,'s60')
    tstamp(10)
    for n,(k,p) in enumerate(DEF):
        if k=='2': pickup_cols('X2', X2, n*8192)
    e.c('---- H3a + down projection')
    look(3,2)
    if cfg.fine: stamp(e,cfg,1)
    def gusum():
        e('''v_lshlrev_b32 v32, 16, v16
        v_and_b32 v33, 0xffff0000, v16
        v_lshlrev_b32 v34, 16, v17
        v_and_b32 v35, 0xffff0000, v17''')
        for i in range(1,8):
            e(f'''v_dot2_f32_bf16 v32, v{16+2*i}, s61, v32
            v_dot2_f32_bf16 v33, v{16+2*i}, s62, v33
            v_dot2_f32_bf16 v34, v{17+2*i}, s61, v34
            v_dot2_f32_bf16 v35, v{17+2*i}, s62, v35''')
    fast([(16+2*i,2,vH3,'s48' if i==0 else f's{51+i}',0) for i in range(8)], gusum, nan2(32,34))
    tstamp(11)
    rnd_vec(e,32,4,20)
    e(f'''
    v_mul_f32 v20, 0xbfb8aa3b, v32
    v_mul_f32 v21, 0xbfb8aa3b, v34
    v_exp_f32 v20, v20
    v_exp_f32 v21, v21
    v_add_f32 v20, 1.0, v20
    v_add_f32 v21, 1.0, v21
    v_rcp_f32 v20, v20
    v_rcp_f32 v21, v21
    v_mul_f32 v32, v32, v20
    v_mul_f32 v34, v34, v21
    v_cvt_pk_bf16_f32 v20, v32, v34
    v_lshlrev_b32 v32, 16, v20
    v_and_b32 v34, 0xffff0000, v20
    v_mul_f32 v32, v32, v33
    v_mul_f32 v34, v34, v35
    v_cvt_pk_bf16_f32 v16, v32, v34
    ds_write_b32 v{vXw}, v16
    ''')
    mmx([X2],[32,36],vXr)
    store2([32,36],vZs,'s59')
    if cfg.fine: stamp(e,cfg,2)
    e('s_branch L_fin\nL_red:')
    e.c('---- H2a: reducers')
    l2=e.label('Lnoh2a')
    e(f'''
    s_cmp_ge_u32 s3, 2
    s_cbranch_scc1 L_fin
    s_mul_i32 s40, s98, {YS}
    s_add_u32 s40, s40, {WS_Y}
    s_add_u32 s51, s40, 4096
    s_lshl_b32 s52, s98, 7
    s_add_u32 s52, s52, {WS_X1}
    s_lshr_b32 s53, s98, 2
    s_lshl_b32 s53, s53, 7
    s_and_b32 s54, s98, 3
    s_lshl_b32 s54, s54, 3
    s_add_u32 s53, s53, s54
    s_add_u32 s53, s53, {WS_ST}
    s_mov_b32 s54, 0xffff
    s_mov_b32 s55, 0xffff
    v_mov_b32 v61, 0
    ''')
    look(1,1)
    if cfg.fine: stamp(e,cfg,14)
    fast([(16+4*i,4,vRow,'s40' if i<4 else 's51',(i&3)*1024) for i in range(8)], lambda: red_tail(8), nan2(16,17))
    if cfg.fine: stamp(e,cfg,15)
    gate_res(RX+2,RX,16)
    e(f'''
    v_min_u32 v16, -2, v16
    v_lshlrev_b32 v{RX}, 16, v16
    v_and_b32 v{RX+1}, 0xffff0000, v16
    s_mov_b64 exec, s[54:55]
    buffer_store_dword v16, v{vRo}, s[{SWS}:{SWS+3}], s52 offen sc1
    s_mov_b64 exec, -1
    v_add_f32 v18, v{RX}, v{RX+1}
    v_mul_f32 v19, v{RX}, v{RX}
    v_fmac_f32 v19, v{RX+1}, v{RX+1}
    ''')
    allred_s('v_add_f32',[18,19],20,rors=(8,4,2,1),swaps=('v_permlane32_swap_b32',))
    e(f'''
    v_min_u32 v18, -2, v18
    v_min_u32 v19, -2, v19
    s_mov_b64 exec, 1
    buffer_store_dwordx2 v[18:19], v61, s[{SWS}:{SWS+3}], s53 offen sc1
    s_mov_b64 exec, -1
    ''')
    tstamp(8)
    e(f'''
    s_mul_i32 s40, s98, {ZS}
    s_add_u32 s40, s40, {WS_Z}
    s_add_u32 s51, s40, 4096
    s_lshl_b32 s52, s98, 7
    v_add_u32 v{vA}, s52, v{vRo}
    ''')
    e.c('---- H3b: final reducers')
    look(4)
    if cfg.fine: stamp(e,cfg,3)
    fast([(16+4*i,4,vRow,'s40' if i<4 else 's51',(i&3)*1024) for i in range(7)], lambda: red_tail(7), nan2(16,17))
    tstamp(12)
    gate_res(RX+4,RX,16)
    e(f'''
    s_mov_b64 exec, s[54:55]
    global_store_dword v{vA}, v16, s[{P_OUT}:{P_OUT+1}]
    s_mov_b64 exec, -1
    L_fin:
    ''')
    stamp(e,cfg,13)
    if cfg.stamps: e('s_add_u32 s3, s3, 4')
    if cfg.fine: e('s_waitcnt lgkmcnt(0)\ns_mov_b32 s72, s99\ns_mov_b32 s73, 0')
    stamps_out(e,cfg,16,vA)
    e('s_endpgm')

def gen(cfg):
    set_order(cfg.order, cfg.defer)
    e=A()
    e(f'''
    s_cmp_ge_u32 s2, 256
    s_cbranch_scc1 L_exit
    s_load_dwordx16 s[4:19], s[0:1], 0
    s_load_dwordx8 s[20:27], s[0:1], 64
    s_load_dwordx4 s[28:31], s[0:1], 96
    v_lshrrev_b32 v2, 6, v0
    v_and_b32 v1, 63, v0
    v_readfirstlane_b32 s3, v2
    s_getpc_b64 s[48:49]
    L_pc:
    s_sub_u32 s48, s48, L_pc-{KN}
    s_subb_u32 s49, s49, 0
    v_lshlrev_b32 v3, 7, v0
    s_cmp_ge_u32 s3, 5
    s_cbranch_scc1 L_nopf
    global_load_dword v255, v3, s[48:49]
    L_nopf:
    ''')
    roles(e)
    e('s_cmp_ge_u32 s3, 4\ns_cbranch_scc1 L_aux')
    stream(e,cfg)
    aux(e,cfg)
    e('L_exit:\ns_endpgm')
    e('.p2align 8\n.fill (40960+256-(.-'+KN+'))/4, 4, 0xbf800000')
    hdr = f'; fused adaLN + GQA decode attention + SwiGLU block, one launch (generated by gen2.py) {getattr(cfg,"args","")}\n; @launch grid=(256,1,1) block=(512,1,1) lds={LDS_BYTES}\n.amdgcn_target "amdgcn-amd-amdhsa--gfx950"\n'
    return hdr + khead(KN) + e.text() + kd(KN, 256)

if __name__=='__main__':
    cfg=Cfg()
    out=sys.argv[1]
    cfg.args=' '.join(sys.argv[2:])
    for kv in sys.argv[2:]:
        k,val=kv.split('=')
        cur=getattr(cfg,k)
        setattr(cfg,k, (val not in ('0','False')) if isinstance(cur,bool) else type(cur)(val) if not isinstance(cur,int) else int(val,0))
    open(out,'w').write(gen(cfg))
```

```python
import sys
from asmgen import *
KN='adaLN_cond__gqa_block_cached__glu_gated_swiglu__decode_kernel'

WS_O   = 0x000000
WS_Y   = 0x080000
WS_Z   = 0x100000
WS_MN  = 0x140000
WS_ML  = 0x148000
WS_X1  = 0x14C000
WS_HH  = 0x14E000
WS_FLAT= 0x158000
WS_MU  = 0x158000
WS_Q   = 0x15C000
WS_SA  = 0x164000
WS_END = 0x166000
WS_STAMP = 0x200000
RING = 0x8000
L_ASRC = 0x20000; ASTR = 2112
L_RED  = 0x22100
L_QOP  = 0x24100; QSTR = 272
L_ML   = 0x24A00
L_FLAG = 0x24B00
LDS_BYTES = 0x24C00
OSTR = 528
F_LAND = 0
F_CONS = 32
F_Q = 64; F_ML = 68; F_O = 72; F_AUX = 76
P_X,P_K,P_V,P_WQ,P_WO,P_BX,P_W1,P_W3,P_W2,P_C,P_WM,P_OUT,P_DBG,P_WS = [4+2*i for i in range(14)]
LOG2E = 0x3fb8aa3b
SCALE = 0x3db504f3

class Cfg:
    D=2
    pol='nt'
    stamps=False
    round_s=True
    round_ln=True
    sleep_head=8
    sleep_tail=1
    order='B'
    codepf=True
    nojob=False
    prio=2
    late_arrive=False
    D0=4
    DW=4
    gpoll=8192
    lpoll=1<<17

def lds_spin(e, cfg, flag, target, vaddr, vtmp, stmp=40, sleep=None):
    l=e.label('Lsp'); d=e.label('Lspd')
    e(f'''
    s_mov_b32 s{stmp+1}, 0
    {l}:
    ds_read_b32 v{vtmp}, v{vaddr} offset:{flag}
    s_add_u32 s{stmp+1}, s{stmp+1}, 1
    s_waitcnt lgkmcnt(0)
    v_readfirstlane_b32 s{stmp}, v{vtmp}
    s_cmp_ge_u32 s{stmp}, {target}
    s_cbranch_scc1 {d}
    {('s_sleep %d'%(getattr(cfg,'lsleep',0) if sleep is None else sleep)) if (getattr(cfg,'lsleep',0) if sleep is None else sleep) else ''}
    s_cmp_lt_u32 s{stmp+1}, {cfg.lpoll}
    s_cbranch_scc1 {l}
    {d}:
    ''')

def lds_signal(e, flag, vaddr, vone):
    e(f'''
    s_mov_b64 exec, 1
    ds_add_u32 v{vaddr}, v{vone} offset:{flag}
    s_mov_b64 exec, -1
    ''')

def stamp(e, cfg, i):
    if cfg.stamps: e(f's_memrealtime s[{64+2*i}:{65+2*i}]')

def stamps_out(e, cfg, n, vt):
    if not cfg.stamps: return
    e(f'''
    s_waitcnt lgkmcnt(0)
    s_lshl_b32 s40, s2, 3
    s_add_u32 s40, s40, s3
    s_lshl_b32 s40, s40, 7
    s_add_u32 s40, s40, {WS_STAMP}
    v_mov_b32 v{vt}, s40
    s_mov_b64 exec, 1
    ''')
    for i in range(n):
        e(f'v_mov_b32 v{vt+2}, s{64+2*i}\nv_mov_b32 v{vt+3}, s{65+2*i}\nglobal_store_dwordx2 v{vt}, v[{vt+2}:{vt+3}], s[{P_WS}:{P_WS+1}] offset:{8*i}')
    e('s_mov_b64 exec, -1')

def srd(e, d, p, size):
    e(f's_mov_b32 s{d}, s{p}\ns_mov_b32 s{d+1}, s{p+1}\ns_mov_b32 s{d+2}, {size}\ns_mov_b32 s{d+3}, 0x20000')

def roles(e):
    e('''
    s_and_b32 s37, s2, 15
    s_lshr_b32 s38, s2, 4
    s_and_b32 s40, s2, 7
    s_lshr_b32 s41, s2, 3
    s_mul_i32 s36, s40, 28
    s_add_u32 s36, s36, s41
    s_and_b32 s41, s41, 1
    s_cmp_ge_u32 s38, 4
    s_cselect_b32 s33, 1, 0
    s_cmp_ge_u32 s38, 12
    s_cselect_b32 s33, 2, s33
    s_cmp_eq_u32 s33, 1
    s_mov_b32 s35, 12288
    s_cselect_b32 s35, 8192, s35
    s_cselect_b32 s42, 8, 24
    s_cmp_eq_u32 s33, 0
    s_cselect_b32 s42, 0, s42
    s_cselect_b32 s43, 3, 4
    s_lshl_b32 s40, s40, s43
    s_lshl_b32 s43, s38, 1
    s_add_u32 s40, s40, s43
    s_add_u32 s40, s40, s41
    s_sub_u32 s39, s40, s42
    s_lshl_b32 s34, s39, 6
    s_cmp_eq_u32 s33, 2
    s_cselect_b32 s40, 4096, 0
    s_add_u32 s34, s34, s40
    ''')

UNITS = []
def set_order(order):
    U=lambda k,n: [(k,i) for i in range(n)]
    W=U('WO',2)+U('W13',4)+U('W2',2)+U('J2',4)
    if order=='A': UNITS[:] = U('J',4)+W+U('K',16)+U('V',16)
    elif order=='B': UNITS[:] = U('J',4)+U('K',16)+W+U('V',16)
GROUPS = ['J','WO','W13','W2','J2']
def upos(kind,i): return UNITS.index((kind,i))
def slot(kind,i): return (upos(kind,i)%8)*4096

def stream(e, cfg):
    D=cfg.D; pol=cfg.pol
    vL=1; vK=2; vV=6; vJ=8; vW=9; v13=11; v2=12; vFl=13; vOne=14; vT=15
    vKR=16; vVR=20; vX=28
    Q=48; S=64; ST=128; P=128; O=160; VF=192
    SK,SV,SJ,SJ2,SWO,SW1,SW3,SW2 = 44,48,52,56,60,84,88,92
    e.c('================= stream waves =================')
    e('L_stream:')
    stamp(e,cfg,0)
    e(f'''
    v_lshrrev_b32 v{vX}, 4, v{vL}
    v_and_b32 v{vX+1}, 15, v{vL}
    v_lshrrev_b32 v{vX+2}, 2, v{vL}
    v_mul_lo_u32 v{vJ}, v{vX+2}, s35
    v_lshrrev_b32 v{vX+3}, 5, v{vL}
    v_lshlrev_b32 v{vX+4}, 1, v{vX+3}
    v_and_b32 v{vX+5}, 3, v{vL}
    v_xor_b32 v{vX+4}, v{vX+4}, v{vX+5}
    v_lshl_add_u32 v{vJ}, v{vX+4}, 4, v{vJ}
    s_lshl_b32 s32, s3, 15
    s_waitcnt lgkmcnt(0)
    s_cmp_eq_u32 s33, 1
    s_cselect_b32 s{SJ}, s{P_WQ}, s{P_WM}
    s_cselect_b32 s{SJ+1}, s{P_WQ+1}, s{P_WM+1}
    s_mov_b32 s{SJ+2}, {1024*6144*2}
    s_cselect_b32 s{SJ+2}, {1024*4096*2}, s{SJ+2}
    s_mov_b32 s{SJ+3}, 0x20000
    {'s_mov_b32 s%d, 0'%(SJ+2) if cfg.nojob else ''}
    s_lshl_b32 s96, s3, 8
    s_mul_i32 s96, s96, s35
    s_add_u32 s96, s96, s34
    s_lshl_b32 s97, s35, 4
    s_sub_u32 s97, s97, 1024
    s_lshl_b32 s98, s35, 6
    ''')
    st = dict(issued=0, landed=-1, signaled=set())
    def dma(voff, srdreg, soff, i):
        e(f'buffer_load_dwordx4 v{voff}, s[{srdreg}:{srdreg+3}], {soff} offen offset:{i*1024} {pol} lds')
    def emit_unit(n):
        kind,i = UNITS[n]
        e(f's_add_u32 m0, s32, {(n%8)*4096}')
        if kind in ('J','J2'):
            sr = SJ if kind=='J' else SJ2
            if (kind,i)==('J2',0): e('s_add_u32 s96, s99, 512')
            if (kind,i)==('J',0): e('s_mov_b32 s99, s96')
            e('s_mov_b32 s41, s96')
            for k in range(4):
                dma(vJ, sr, 's41', k)
                if k<3: e('s_add_u32 s41, s41, s97')
            e('s_add_u32 s96, s96, s98')
        elif kind=='WO':
            for k in range(4):
                e(f's_add_u32 s41, s100, {(8*k+4*i)*2048-1024*k}')
                dma(vW+(k&1), SWO, 's41', k)
        elif kind=='W13':
            for k in range(4):
                I=4*i+k; t=I>>1; mat=I&1
                e(f's_add_u32 s41, s101, {32*t*7168}')
                if k: e(f's_add_u32 m0, s32, {(n%8)*4096+1024*k}')
                dma(v13, SW3 if mat else SW1, 's41', 0)
        elif kind=='W2':
            for k in range(4):
                I=4*i+k
                row = 32*(I>>2)+16*(I&1)+4*((I>>1)&1)
                e(f's_add_u32 s41, s81, {row*2048-1024*k}')
                dma(v2, SW2, 's41', k)
        elif kind in ('K','V'):
            e(f's_add_u32 s41, s80, {i*16384}')
            for k in range(4):
                dma((vK+k) if kind=='K' else (vV+(k&1)), SK if kind=='K' else SV, 's41', k)
    def note_landed(n):
        st['landed']=max(st['landed'],n)
        for gi,g in enumerate(GROUPS):
            last=max(k for k,u in enumerate(UNITS) if u[0]==g)
            if last<=st['landed'] and g not in st['signaled']:
                st['signaled'].add(g); lds_signal(e, F_LAND+4*gi, vFl, vOne)
                if g=='J': stamp(e,cfg,6)
    consumed=set()
    def issue(n):
        assert n==st['issued']
        Dn = cfg.DW if UNITS[n][0] in ('W13','J2') or (n and UNITS[n-1][0] in ('W13','J2')) else D
        if n>=max(Dn,cfg.D0) and st['landed']<n-Dn:
            e(f's_waitcnt vmcnt({4*(Dn-1)})'); note_landed(n-Dn)
        if n>=8:
            g=UNITS[n-8][0]
            if g in GROUPS and g not in consumed:
                last=max(k for k,u in enumerate(UNITS) if u[0]==g)
                if g not in st['signaled']:
                    wait_landed(last)
                consumed.add(g); lds_spin(e,cfg,F_CONS+4*GROUPS.index(g),4,vFl,vT)
                if g=='J': stamp(e,cfg,7)
        if cfg.stamps: e(f's_memrealtime s[82:83]\ns_waitcnt lgkmcnt(0)\nv_writelane_b32 v47, s82, {n}')
        emit_unit(n); st['issued']=n+1
    def wait_landed(n):
        if st['landed']>=n: return
        e(f's_waitcnt vmcnt({4*(st["issued"]-1-n)})'); note_landed(n)
    e('s_cmp_lt_u32 s2, 248\ns_cbranch_scc1 L_go\ns_barrier\nL_go:')
    for n in range(cfg.D0): issue(n)
    srd(e,SK,P_K,0x4000000); srd(e,SV,P_V,0x4000000); srd(e,SWO,P_WO,4096*1024*2)
    e(f'''
    s_cmp_eq_u32 s33, 2
    s_cselect_b32 s{SJ2+2}, {1024*6144*2}, 0
    s_mov_b32 s{SJ2}, s{P_WM}
    s_mov_b32 s{SJ2+1}, s{P_WM+1}
    s_mov_b32 s{SJ2+3}, 0x20000
    s_cmp_lt_u32 s2, 224
    s_cselect_b32 s{SW1+2}, {1024*3584*2}, 0
    s_cselect_b32 s{SW3+2}, {1024*3584*2}, 0
    s_cselect_b32 s{SW2+2}, {1024*3584*2}, 0
    s_mov_b32 s{SW1}, s{P_W1}
    s_mov_b32 s{SW1+1}, s{P_W1+1}
    s_mov_b32 s{SW1+3}, 0x20000
    s_mov_b32 s{SW3}, s{P_W3}
    s_mov_b32 s{SW3+1}, s{P_W3+1}
    s_mov_b32 s{SW3+3}, 0x20000
    s_mov_b32 s{SW2}, s{P_W2}
    s_mov_b32 s{SW2+1}, s{P_W2+1}
    s_mov_b32 s{SW2+3}, 0x20000
    ''')
    e(f'''
    s_lshl_b32 s80, s37, 22
    s_lshl_b32 s40, s38, 18
    s_add_u32 s80, s80, s40
    s_lshl_b32 s40, s3, 12
    s_add_u32 s80, s80, s40
    s_and_b32 s40, s2, 31
    s_lshl_b32 s100, s40, 18
    s_lshl_b32 s40, s3, 16
    s_add_u32 s100, s100, s40
    s_lshr_b32 s40, s2, 5
    s_lshl_b32 s40, s40, 8
    s_add_u32 s100, s100, s40
    s_mul_i32 s101, s3, {256*7168}
    s_lshl_b32 s40, s36, 5
    s_add_u32 s101, s101, s40
    s_lshr_b32 s40, s36, 4
    s_lshl_b32 s81, s40, 19
    s_lshl_b32 s40, s3, 17
    s_add_u32 s81, s81, s40
    s_and_b32 s40, s36, 15
    s_lshl_b32 s40, s40, 7
    s_add_u32 s81, s81, s40
    v_xor_b32 v{vX+6}, v{vX+1}, v{vX}
    v_lshlrev_b32 v{vX+7}, 8, v{vX}
    v_lshl_add_u32 v{vK}, v{vX+6}, 4, v{vX+7}
    v_xor_b32 v{vK+1}, 64, v{vK}
    v_xor_b32 v{vK+2}, 128, v{vK}
    v_xor_b32 v{vK+3}, 192, v{vK}
    v_lshlrev_b32 v{vX+6}, 1, v{vX}
    v_xor_b32 v{vX+6}, v{vX+6}, v{vX+1}
    v_lshl_add_u32 v{vV}, v{vX+6}, 4, v{vX+7}
    v_xor_b32 v{vV+1}, 128, v{vV}
    v_lshlrev_b32 v{vX+7}, 11, v{vX}
    v_lshl_add_u32 v{vW}, v{vX+6}, 4, v{vX+7}
    v_xor_b32 v{vW+1}, 128, v{vW}
    ; w13: sigma = 8*((l>>3)&3) + 4*(l>>5) + ((l>>1)&3)
    v_bfe_u32 v{vX+6}, v{vL}, 3, 2
    v_lshlrev_b32 v{vX+6}, 3, v{vX+6}
    v_lshl_add_u32 v{vX+6}, v{vX+3}, 2, v{vX+6}
    v_bfe_u32 v{vX+7}, v{vL}, 1, 2
    v_add_u32 v{vX+6}, v{vX+6}, v{vX+7}
    v_mul_u32_u24 v{vX+6}, 7168, v{vX+6}
    v_and_b32 v{vX+7}, 1, v{vL}
    v_lshl_add_u32 v{v13}, v{vX+7}, 4, v{vX+6}
    v_bfe_u32 v{vX+6}, v{vL}, 3, 2
    v_lshl_add_u32 v{vX+6}, v{vX+3}, 3, v{vX+6}
    v_lshlrev_b32 v{vX+6}, 11, v{vX+6}
    v_lshlrev_b32 v{vX+7}, 1, v{vX}
    v_and_b32 v{vX+8}, 7, v{vL}
    v_xor_b32 v{vX+7}, v{vX+7}, v{vX+8}
    v_lshl_add_u32 v{v2}, v{vX+7}, 4, v{vX+6}
    v_xor_b32 v{vX+6}, v{vX}, v{vX+1}
    v_lshlrev_b32 v{vX+7}, 8, v{vX+1}
    v_lshl_add_u32 v{vKR}, v{vX+6}, 4, v{vX+7}
    v_add_u32 v{vKR}, s32, v{vKR}
    v_xor_b32 v{vKR+1}, 64, v{vKR}
    v_xor_b32 v{vKR+2}, 128, v{vKR}
    v_xor_b32 v{vKR+3}, 192, v{vKR}
    v_lshlrev_b32 v{vX+6}, 8, v{vX+2}
    v_and_b32 v{vX+7}, 7, v{vX+2}
    v_lshl_add_u32 v{vX+6}, v{vX+7}, 5, v{vX+6}
    v_lshl_add_u32 v{vX+6}, v{vX+5}, 3, v{vX+6}
    v_add_u32 v{vVR}, s32, v{vX+6}
    ''')
    for ct in range(1,8): e(f'v_xor_b32 v{vVR+ct}, {ct<<5}, v{vVR}')
    e(f'''
    v_mov_b32 v{vFl}, {L_FLAG}
    v_mov_b32 v{vOne}, 1
    s_cmp_ge_u32 s2, 248
    s_cbranch_scc1 L_go2
    s_barrier
    L_go2:
    ''')
    K0=upos('K',0); V0=upos('V',0)
    for n in range(cfg.D0, K0+8): issue(n)
    NX=K0+16
    def stage(u):
        wait_landed(K0+u)
        for k in range(4):
            r=ST+(u%8)*16+4*k
            e(f'ds_read_b128 v[{r}:{r+3}], v{vKR+k} offset:{slot("K",u)}')
    def qk(u):
        for k in range(4):
            r=ST+(u%8)*16+4*k
            e(f'v_mfma_f32_16x16x32_bf16 v[{S+4*u}:{S+4*u+3}], v[{r}:{r+3}], v[{Q+4*k}:{Q+4*k+3}], '+('0' if k==0 else f'v[{S+4*u}:{S+4*u+3}]'))
    vM=vX; vLs=vX+1; t0=vX+2
    def rnd(u):
        for h in range(2):
            a0=S+4*u+2*h; a1=a0+1; t=t0+h
            if cfg.round_s:
                e(f'''v_cvt_pk_bf16_f32 v{t}, v{a0}, v{a1}
                v_lshlrev_b32 v{a0}, 16, v{t}
                v_and_b32 v{a1}, 0xffff0000, v{t}''')
            e(f'v_mul_f32 v{a0}, s42, v{a0}\nv_mul_f32 v{a1}, s42, v{a1}')
            if cfg.round_s:
                e(f'''v_cvt_pk_bf16_f32 v{t}, v{a0}, v{a1}
                v_lshlrev_b32 v{a0}, 16, v{t}
                v_and_b32 v{a1}, 0xffff0000, v{t}''')
            if u==0 and h==0: e(f'v_max_f32 v{vM}, v{a0}, v{a1}')
            else: e(f'v_max3_f32 v{vM}, v{vM}, v{a0}, v{a1}')
    for u in range(8):
        stage(u); e('s_waitcnt lgkmcnt(0)'); issue(K0+8+u)
    stamp(e,cfg,1)
    lds_spin(e,cfg,F_Q,1,vFl,vT)
    stamp(e,cfg,2)
    e(f'''
    v_and_b32 v{vX+6}, 7, v{vL}
    v_mul_u32_u24 v{vX+6}, {QSTR}, v{vX+6}
    v_lshrrev_b32 v{vX+7}, 4, v{vL}
    v_lshl_add_u32 v{vX+6}, v{vX+7}, 4, v{vX+6}
    v_add_u32 v{vX+6}, {L_QOP}, v{vX+6}
    s_mov_b32 s42, {SCALE:#x}
    s_mov_b32 s43, {LOG2E:#x}
    ''')
    for k in range(4): e(f'ds_read_b128 v[{Q+4*k}:{Q+4*k+3}], v{vX+6} offset:{64*k}')
    e('s_waitcnt lgkmcnt(0)')
    for u in range(D):
        qk(u); stage(8+u); e('s_waitcnt lgkmcnt(0)'); issue(NX+u)
    for u in range(D,8):
        qk(u); stage(8+u)
    e('s_waitcnt lgkmcnt(0)')
    for u in range(8,16): qk(u)
    nxt=[NX+D]
    def more():
        if nxt[0]<V0+8: issue(nxt[0]); nxt[0]+=1
    more()
    for u in range(16):
        rnd(u)
        if u in (5,10,15): more()
    e(f'''
    v_mov_b32 v{t0}, v{vM}
    v_permlane32_swap_b32 v{t0}, v{vM}
    v_max_f32 v{vM}, v{vM}, v{t0}
    v_mov_b32 v{t0}, v{vM}
    v_permlane16_swap_b32 v{t0}, v{vM}
    v_max_f32 v{vM}, v{vM}, v{t0}
    v_mul_f32 v{vM}, s43, v{vM}
    ''')
    for u in range(16):
        for r in range(4): e(f'v_fma_f32 v{S+4*u+r}, v{S+4*u+r}, s43, -v{vM}')
        for r in range(4): e(f'v_exp_f32 v{S+4*u+r}, v{S+4*u+r}')
        if u==0: e(f'v_add_f32 v{vLs}, v{S}, v{S+1}')
        else: e(f'v_add_f32 v{vLs}, v{vLs}, v{S+4*u}\nv_add_f32 v{vLs}, v{vLs}, v{S+4*u+1}')
        e(f'''v_cvt_pk_bf16_f32 v{P+2*u}, v{S+4*u}, v{S+4*u+1}
        v_add_f32 v{vLs}, v{vLs}, v{S+4*u+2}
        v_add_f32 v{vLs}, v{vLs}, v{S+4*u+3}
        v_cvt_pk_bf16_f32 v{P+2*u+1}, v{S+4*u+2}, v{S+4*u+3}''')
        if u in (7,): more()
    e(f'''
    v_mov_b32 v{t0}, v{vLs}
    v_permlane32_swap_b32 v{t0}, v{vLs}
    v_add_f32 v{vLs}, v{vLs}, v{t0}
    v_mov_b32 v{t0}, v{vLs}
    v_permlane16_swap_b32 v{t0}, v{vLs}
    v_add_f32 v{vLs}, v{vLs}, v{t0}
    s_lshl_b32 s40, s3, 6
    s_add_u32 s40, s40, {L_ML}
    v_lshl_add_u32 v{t0}, v{vL}, 3, s40
    s_mov_b64 exec, 0xff
    ds_write_b64 v{t0}, v[{vM}:{vM+1}]
    s_waitcnt lgkmcnt(0)
    s_mov_b64 exec, -1
    ''')
    lds_signal(e,F_ML,vFl,vOne)
    while nxt[0]<V0+8: more()
    stamp(e,cfg,3)
    for j in range(8):
        wait_landed(V0+2*j+1)
        if j==7: stamp(e,cfg,4)
        for ct in range(8):
            for hf in range(2):
                r=VF+4*ct+2*hf
                e(f'ds_read_b64_tr_b16 v[{r}:{r+1}], v{vVR+ct} offset:{slot("V",2*j+hf)}')
        for ct in range(8):
            e(f's_waitcnt lgkmcnt({14-2*ct})')
            e(f'v_mfma_f32_16x16x32_bf16 v[{O+4*ct}:{O+4*ct+3}], v[{VF+4*ct}:{VF+4*ct+3}], v[{P+4*j}:{P+4*j+3}], '+('0' if j==0 else f'v[{O+4*ct}:{O+4*ct+3}]'))
        for k in range(2):
            if V0+2*j+8+k < len(UNITS): issue(V0+2*j+8+k)
        if j==6:
            e(f'''
            v_and_b32 v{t0}, 15, v{vL}
            v_mul_u32_u24 v{t0}, {OSTR}, v{t0}
            v_lshrrev_b32 v{t0+1}, 4, v{vL}
            v_lshl_add_u32 v{t0}, v{t0+1}, 4, v{t0}
            v_add_u32 v{t0}, s32, v{t0}
            s_mov_b32 s40, 0x00ff00ff
            s_mov_b32 s41, 0x00ff00ff
            ''')
    e('s_mov_b64 exec, s[40:41]')
    for ct in range(8): e(f'ds_write_b128 v{t0}, v[{O+4*ct}:{O+4*ct+3}] offset:{64*ct}')
    e('s_waitcnt lgkmcnt(0)\ns_mov_b64 exec, -1')
    lds_signal(e,F_O,vFl,vOne)
    stamp(e,cfg,5)
    stamps_out(e,cfg,8,vX+4)
    if cfg.stamps:
        e(f'''s_lshl_b32 s40, s2, 2
        s_add_u32 s40, s40, s3
        s_lshl_b32 s40, s40, 8
        s_add_u32 s40, s40, {WS_STAMP+0x40000}
        v_lshl_add_u32 v46, v{vL}, 2, s40
        global_store_dword v46, v47, s[{P_WS}:{P_WS+1}]''')
    e('s_waitcnt lgkmcnt(0)\ns_endpgm')

SWS=44
def gather(e, cfg, loads, vchk, sleep, pre_exec=None, masked=True, backoff=None):
    l=e.label('Lg'); d=e.label('Lgd')
    e(f's_mov_b32 s41, 0')
    e(f'{l}:')
    regs=[]
    for ld in loads:
        dst,n,voff,soff,imm = ld[:5]
        op={1:'dword',2:'dwordx2',4:'dwordx4'}[n]
        ex = ld[5] if len(ld)>5 else None
        if ex: e(f's_mov_b64 s[42:43], exec\ns_and_b64 exec, exec, {ex}\ns_cbranch_execz {l}_s')
        e(f'buffer_load_{op} {v(dst,n)}, v{voff}, s[{SWS}:{SWS+3}], {soff} offen offset:{imm} sc1')
        if ex: e(f'{l}_s:\ns_mov_b64 exec, s[42:43]')
        regs+=list(range(dst,dst+n))
    e('s_waitcnt vmcnt(0)')
    if len(regs)==1: chk=regs[0]
    else:
        chk=vchk
        if len(regs)==2: e(f'v_max_u32 v{chk}, v{regs[0]}, v{regs[1]}'); rest=[]
        else: e(f'v_max3_u32 v{chk}, v{regs[0]}, v{regs[1]}, v{regs[2]}'); rest=regs[3:]
        while rest:
            if len(rest)==1: e(f'v_max_u32 v{chk}, v{chk}, v{rest[0]}'); rest=[]
            else: e(f'v_max3_u32 v{chk}, v{chk}, v{rest[0]}, v{rest[1]}'); rest=rest[2:]
    e(f'''
    v_cmp_eq_u32 vcc, -1, v{chk}
    s_add_u32 s41, s41, 1
    s_cbranch_vccz {d}
    ''')
    if masked: e('s_mov_b64 exec, vcc')
    if backoff:
        e(f's_bcnt1_i32_b64 s42, vcc\ns_cmp_le_u32 s42, {backoff[0]}\ns_cbranch_scc1 {l}_q\ns_sleep {backoff[1]}\n{l}_q:')
    if sleep: e(f's_sleep {sleep}')
    e(f'''
    s_cmp_lt_u32 s41, {cfg.gpoll}
    s_cbranch_scc1 {l}
    {d}:
    s_mov_b64 exec, -1
    ''')

def allreduce64(e, op, x, t):
    for r in (8,4,2,1):
        e(f'{op}_dpp v{x}, v{x}, v{x} row_ror:{r} row_mask:0xf bank_mask:0xf')
    for sw in ('v_permlane16_swap_b32','v_permlane32_swap_b32'):
        e(f'v_mov_b32 v{t}, v{x}\n{sw} v{t}, v{x}\n{op} v{x}, v{x}, v{t}')

def unpack(e, src, dst, n):
    for i in range(n):
        e(f'v_lshlrev_b32 v{dst+2*i}, 16, v{src+i}\nv_and_b32 v{dst+2*i+1}, 0xffff0000, v{src+i}')
def rnd_vec(e, x, n, t):
    for i in range(0,n,2):
        tt=t+((i//2)&1)
        e(f'v_cvt_pk_bf16_f32 v{tt}, v{x+i}, v{x+i+1}\nv_lshlrev_b32 v{x+i}, 16, v{tt}\nv_and_b32 v{x+i+1}, 0xffff0000, v{tt}')
def rnd1(e, x):
    e(f'v_cvt_pk_bf16_f32 v{x}, v{x}, v{x}\nv_lshlrev_b32 v{x}, 16, v{x}')

def layernorm(e, cfg, X, t):
    mu=t; var=t+1; a=t+2; b=t+3
    e(f'v_add_f32 v{mu}, v{X}, v{X+1}\nv_add_f32 v{a}, v{X+2}, v{X+3}')
    for i in range(4,16,2): e(f'v_add_f32 v{mu}, v{mu}, v{X+i}\nv_add_f32 v{a}, v{a}, v{X+i+1}')
    e(f'v_add_f32 v{mu}, v{mu}, v{a}')
    allreduce64(e,'v_add_f32',mu,a)
    e(f'v_mul_f32 v{mu}, 0x3a800000, v{mu}')
    e(f'v_sub_f32 v{a}, v{X}, v{mu}\nv_sub_f32 v{b}, v{X+1}, v{mu}\nv_mul_f32 v{var}, v{a}, v{a}\nv_mul_f32 v{t+4}, v{b}, v{b}')
    for i in range(2,16,2):
        e(f'v_sub_f32 v{a}, v{X+i}, v{mu}\nv_sub_f32 v{b}, v{X+i+1}, v{mu}\nv_fmac_f32 v{var}, v{a}, v{a}\nv_fmac_f32 v{t+4}, v{b}, v{b}')
    e(f'v_add_f32 v{var}, v{var}, v{t+4}')
    allreduce64(e,'v_add_f32',var,a)
    e(f'v_mul_f32 v{var}, 0x3a800000, v{var}')
    if cfg.round_ln:
        rnd1(e,mu); rnd1(e,var)
    e(f'v_add_f32 v{var}, 0x3727c5ac, v{var}')
    if cfg.round_ln: rnd1(e,var)
    e(f'v_sqrt_f32 v{var}, v{var}')
    if cfg.round_ln: rnd1(e,var)
    e(f'v_rcp_f32 v{var}, v{var}')
    for i in range(16): e(f'v_sub_f32 v{X+i}, v{X+i}, v{mu}')
    if cfg.round_ln: rnd_vec(e,X,16,a)
    for i in range(16): e(f'v_mul_f32 v{X+i}, v{X+i}, v{var}')
    if cfg.round_ln: rnd_vec(e,X,16,a)

def modulate(e, cfg, X, T1, SB, out, t):
    for i in range(16): e(f'v_mul_f32 v{X+i}, v{X+i}, v{T1+i}')
    if cfg.round_ln: rnd_vec(e,X,16,t)
    for i in range(16): e(f'v_add_f32 v{X+i}, v{X+i}, v{SB+i}')
    for i in range(8): e(f'v_cvt_pk_bf16_f32 v{out+i}, v{X+2*i}, v{X+2*i+1}')

def aux(e, cfg):
    vL=1; vFl=2; vOne=3; vT=4; vRow=5; vAs=6; vAr=7; vA=8
    W2=64; W13=96; WO=160; WJ=192
    sA=3
    e.c('================= aux waves =================')
    e('L_aux:')
    e(f'''
    s_setprio {cfg.prio}
    s_sub_u32 s3, s3, 4
    s_lshl_b32 s32, s3, 15
    v_lshlrev_b32 v{vRow}, 4, v{vL}
    v_mov_b32 v{vFl}, {L_FLAG}
    v_mov_b32 v{vOne}, 1
    v_mov_b32 v16, 0
    v_lshl_add_u32 v{vA+1}, v{vL}, 2, v{vFl}
    ds_write_b32 v{vA+1}, v16
    s_waitcnt lgkmcnt(0)
    ''')
    stamp(e,cfg,0)
    srd(e,SWS,P_WS,WS_END)
    lh=e.label('Lnohead')
    e(f'''
    v_mov_b32 v32, -1
    v_mov_b32 v33, -1
    v_mov_b32 v34, -1
    v_mov_b32 v35, -1
    s_cmp_lt_u32 s2, 248
    s_cbranch_scc1 {lh}
    s_cmp_lg_u32 s3, 3
    s_cbranch_scc1 {lh}
    s_sub_u32 s41, s2, 248
    s_mul_i32 s40, s41, 7168
    s_add_u32 s40, s40, {WS_MU}
    ''')
    for i in range(7):
        if i==4: e('s_add_u32 s40, s40, 4096')
        e(f'buffer_store_dwordx4 v[32:35], v{vRow}, s[{SWS}:{SWS+3}], s40 offen offset:{(i&3)*1024} sc1')
    e(f'''
    s_lshl_b32 s41, s41, 2
    v_mov_b32 v{vA+1}, s41
    s_waitcnt vmcnt(0)
    s_mov_b64 exec, 1
    global_store_dword v{vA+1}, v{vOne}, s[{P_DBG}:{P_DBG+1}] sc1
    s_mov_b64 exec, -1
    {lh}:
    ''')
    e(f'''
    s_lshl_b32 s40, s3, 11
    v_add_u32 v{vA}, s40, v{vRow}
    global_load_dwordx4 v[16:19], v{vA}, s[{P_C}:{P_C+1}]
    global_load_dwordx4 v[20:23], v{vA}, s[{P_C}:{P_C+1}] offset:1024
    global_load_dwordx4 v[24:27], v{vA}, s[{P_X}:{P_X+1}]
    global_load_dwordx4 v[28:31], v{vA}, s[{P_X}:{P_X+1}] offset:1024
    s_barrier
    s_mov_b32 s50, 0
    s_mul_i32 s40, s3, {ASTR}
    s_add_u32 s40, s40, {L_ASRC}
    v_add_u32 v{vAs}, s40, v{vRow}
    v_and_b32 v{vA+1}, 3, v{vL}
    v_mul_u32_u24 v{vAr}, {ASTR}, v{vA+1}
    v_lshrrev_b32 v{vA+2}, 4, v{vL}
    v_lshl_add_u32 v{vAr}, v{vA+2}, 4, v{vAr}
    s_lshl_b32 s40, s3, 9
    s_add_u32 s40, s40, {L_ASRC}
    v_add_u32 v{vAr}, s40, v{vAr}
    ''')
    lc=e.label('Lnoclr')
    e(f'''
    s_cmp_lg_u32 s3, 3
    s_cbranch_scc1 {lc}
    s_mul_i32 s40, s2, 5504
    buffer_store_dwordx4 v[32:35], v{vRow}, s[{SWS}:{SWS+3}], s40 offen sc1
    buffer_store_dwordx4 v[32:35], v{vRow}, s[{SWS}:{SWS+3}], s40 offen offset:1024 sc1
    buffer_store_dwordx4 v[32:35], v{vRow}, s[{SWS}:{SWS+3}], s40 offen offset:2048 sc1
    buffer_store_dwordx4 v[32:35], v{vRow}, s[{SWS}:{SWS+3}], s40 offen offset:3072 sc1
    s_add_u32 s40, s40, 4096
    buffer_store_dwordx4 v[32:35], v{vRow}, s[{SWS}:{SWS+3}], s40 offen sc1
    s_mov_b64 exec, 0xffffff
    buffer_store_dwordx4 v[32:35], v{vRow}, s[{SWS}:{SWS+3}], s40 offen offset:1024 sc1
    s_mov_b64 exec, -1
    {lc}:
    ''')
    def auxbar():
        e('s_add_u32 s50, s50, 4\ns_waitcnt lgkmcnt(0)')
        lds_signal(e,F_AUX,vFl,vOne)
        lds_spin(e,cfg,F_AUX,'s50',vFl,vT)
    def go1():
        l=e.label('Lgo'); d=e.label('Lgod'); la=e.label('Lnoarr')
        e(f'''
        s_cmp_lg_u32 s3, 3
        s_cbranch_scc1 {la}
        v_and_b32 v{vA}, 7, v{vL}
        v_lshlrev_b32 v{vA}, 2, v{vA}
        s_mov_b32 s41, 0
        {l}:
        global_load_dword v{vA+1}, v{vA}, s[{P_DBG}:{P_DBG+1}] sc1
        s_add_u32 s41, s41, 1
        s_waitcnt vmcnt(0)
        v_cmp_ne_u32 vcc, 1, v{vA+1}
        s_cbranch_vccz {d}
        s_sleep {cfg.sleep_head}
        s_cmp_lt_u32 s41, {cfg.gpoll}
        s_cbranch_scc1 {l}
        {d}:
        ''')
        stamp(e,cfg,15)
        e(f'''
        s_lshl_b32 s40, s2, 2
        s_add_u32 s40, s40, {WS_SA}
        v_mov_b32 v{vA}, 0
        s_mov_b64 exec, 1
        buffer_store_dword v{vOne}, v{vA}, s[{SWS}:{SWS+3}], s40 offen sc1
        s_mov_b64 exec, -1
        {la}:
        ''')
    def gbar1():
        l1=e.label('Lgb1')
        e(f's_cmp_lg_u32 s3, 0\ns_cbranch_scc1 {l1}\ns_mov_b32 s40, {WS_SA}')
        gather(e,cfg,[(16,4,vRow,'s40',0)],vT,cfg.sleep_head)
        e(f'{l1}:')
    def trbase(kind):
        e(f'v_lshrrev_b32 v{vA+4}, 4, v{vL}\nv_bfe_u32 v{vA+5}, v{vL}, 2, 2\nv_and_b32 v{vA+6}, 3, v{vL}')
        g,r,c=vA+4,vA+5,vA+6; t=vA+7
        if kind in ('J','J2'):
            e(f'''v_lshl_add_u32 v{t}, v{g}, 3, v{r}
            v_lshlrev_b32 v{vA}, 6, v{t}
            v_lshl_add_u32 v{vA}, v{c}, 3, v{vA}
            v_and_b32 v{t}, 1, v{g}
            v_lshl_add_u32 v{vA}, v{t}, 5, v{vA}
            v_add_u32 v{vA}, s32, v{vA}
            v_xor_b32 v{vA+1}, 32, v{vA}''')
        elif kind=='WO':
            e(f'''v_lshrrev_b32 v{t}, 2, v{vL}
            v_lshlrev_b32 v{vA}, 8, v{t}
            v_and_b32 v{t}, 7, v{t}
            v_lshl_add_u32 v{vA}, v{t}, 5, v{vA}
            v_lshl_add_u32 v{vA}, v{c}, 3, v{vA}
            v_add_u32 v{vA}, s32, v{vA}''')
        elif kind=='W13':
            e(f'''v_lshlrev_b32 v{vA}, 3, v{vL}
            v_add_u32 v{vA}, s32, v{vA}''')
        elif kind=='W2':
            e(f'''v_lshrrev_b32 v{t}, 5, v{vL}
            v_lshlrev_b32 v{vA}, 10, v{t}
            v_bfe_u32 v{t}, v{vL}, 2, 3
            v_lshl_add_u32 v{vA}, v{t}, 7, v{vA}
            v_lshrrev_b32 v{t}, 1, v{t}
            v_xor_b32 v{t}, s3, v{t}
            v_lshl_add_u32 v{vA}, v{t}, 5, v{vA}
            v_lshl_add_u32 v{vA}, v{c}, 3, v{vA}
            v_add_u32 v{vA+1}, 0x10000, v{vA}''')
    def pickup(kind):
        gi=GROUPS.index(kind)
        trbase(kind)
        lds_spin(e,cfg,F_LAND+4*gi,4,vFl,vT)
        if kind in ('J','J2'):
            for t in range(8):
                for ct in range(2):
                    for hf in range(2):
                        r=WJ+8*t+4*ct+2*hf
                        e(f'ds_read_b64_tr_b16 v[{r}:{r+1}], v{vA+ct} offset:{slot(kind,t>>1)+(t&1)*2048+hf*256}')
        elif kind=='WO':
            for ct in range(8):
                if ct: e(f'v_xor_b32 v{vA+1+(ct&1)}, {ct<<5}, v{vA}')
                for hf in range(2):
                    r=WO+4*ct+2*hf
                    e(f'ds_read_b64_tr_b16 v[{r}:{r+1}], v{vA+1+(ct&1) if ct else vA} offset:{slot(kind,hf)}')
        elif kind=='W13':
            for I in range(16):
                for hf in range(2):
                    r=W13+4*I+2*hf
                    e(f'ds_read_b64_tr_b16 v[{r}:{r+1}], v{vA} offset:{slot(kind,I>>2)+(I&3)*1024+512*hf}')
        elif kind=='W2':
            for t in range(8):
                for hf in range(2):
                    r=W2+4*t+2*hf
                    e(f'ds_read_b64_tr_b16 v[{r}:{r+1}], v{vA+(t>>2)} offset:{((t>>1)&1)*RING+slot(kind,t&1)+2*hf*1024}')
        e('s_waitcnt lgkmcnt(0)')
        lds_signal(e,F_CONS+4*gi,vFl,vOne)
    def skip_group(kind):
        lds_signal(e,F_CONS+4*GROUPS.index(kind),vFl,vOne)
    def gemv(W, acc=16, af=24):
        for t in range(8): e(f'ds_read_b128 v[{af+4*t}:{af+4*t+3}], v{vAr} offset:{64*t}')
        e(f'''
        s_lshl_b32 s40, s3, 9
        s_add_u32 s40, s40, {L_RED}
        v_add_u32 v{vA}, s40, v{vRow}
        ''')
        for t in range(8):
            e(f's_waitcnt lgkmcnt({7-t})')
            for ct in range(2):
                e(f'v_mfma_f32_16x16x32_bf16 v[{acc+4*ct}:{acc+4*ct+3}], v[{af+4*t}:{af+4*t+3}], v[{W+8*t+4*ct}:{W+8*t+4*ct+3}], '+('0' if t==0 else f'v[{acc+4*ct}:{acc+4*ct+3}]'))
        e(f'''
        s_mov_b64 exec, 0xffff
        ds_write_b128 v{vA}, v[{acc}:{acc+3}]
        ds_write_b128 v{vA}, v[{acc+4}:{acc+7}] offset:256
        s_mov_b64 exec, -1
        ''')
    def job_finish(base, rowshift, scol):
        e(f'''
        s_lshl_b32 s40, s3, 2
        s_add_u32 s40, s40, {L_RED}
        v_lshl_add_u32 v{vA}, v{vL}, 5, s40
        s_mov_b64 exec, 0xffff
        ds_read2_b32 v[16:17], v{vA} offset0:0 offset1:4
        ds_read2_b32 v[18:19], v{vA} offset0:128 offset1:132
        v_add_u32 v{vA}, 1024, v{vA}
        ds_read2_b32 v[20:21], v{vA} offset0:0 offset1:4
        ds_read2_b32 v[22:23], v{vA} offset0:128 offset1:132
        s_lshl_b32 s40, s3, {rowshift}
        s_lshl_b32 s41, {scol}, 6
        s_add_u32 s40, s40, s41
        s_add_u32 s40, s40, {base}
        v_lshlrev_b32 v{vA+1}, 2, v{vL}
        s_waitcnt lgkmcnt(0)
        v_add_f32 v16, v16, v18
        v_add_f32 v17, v17, v19
        v_add_f32 v20, v20, v22
        v_add_f32 v21, v21, v23
        v_add_f32 v16, v16, v20
        v_add_f32 v17, v17, v21
        v_cvt_pk_bf16_f32 v16, v16, v17
        v_min_u32 v16, -2, v16
        buffer_store_dword v16, v{vA+1}, s[{SWS}:{SWS+3}], s40 offen sc1
        s_mov_b64 exec, -1
        ''')
    def silu_row():
        e('s_waitcnt vmcnt(2)' if False else '')
        unpack(e,16,32,8)
        for i in range(16): e(f'v_mul_f32 v{48+i}, 0xbfb8aa3b, v{32+i}')
        for i in range(16): e(f'v_exp_f32 v{48+i}, v{48+i}')
        for i in range(16): e(f'v_add_f32 v{48+i}, 1.0, v{48+i}')
        for i in range(16): e(f'v_rcp_f32 v{48+i}, v{48+i}')
        for i in range(16): e(f'v_mul_f32 v{32+i}, v{32+i}, v{48+i}')
        for i in range(8): e(f'v_cvt_pk_bf16_f32 v{16+i}, v{32+2*i}, v{33+2*i}')
        e(f'ds_write_b128 v{vAs}, v[16:19]\nds_write_b128 v{vAs}, v[20:23] offset:1024')
    def gather_q():
        lq=e.label('Lnoq')
        e(f'''
        s_cmp_lg_u32 s3, 0
        s_cbranch_scc1 {lq}
        s_lshl_b32 s40, s37, 11
        s_add_u32 s40, s40, {WS_Q}
        ''')
        gather(e,cfg,[(16,4,vRow,'s40',0),(20,4,vRow,'s40',1024)],vT,cfg.sleep_head)
        e(f'''
        v_lshrrev_b32 v{vA}, 4, v{vL}
        v_mul_u32_u24 v{vA}, {QSTR}, v{vA}
        v_and_b32 v{vA+1}, 15, v{vL}
        v_lshl_add_u32 v{vA}, v{vA+1}, 4, v{vA}
        v_add_u32 v{vA}, {L_QOP}, v{vA}
        ds_write_b128 v{vA}, v[16:19]
        ds_write_b128 v{vA}, v[20:23] offset:{4*QSTR}
        s_waitcnt lgkmcnt(0)
        ''')
        lds_signal(e,F_Q,vFl,vOne)
        e(f'{lq}:')
    lw=e.label('Lw3'); lw2=e.label('Lw3d')
    e(f'''
    s_cmp_eq_u32 s3, 3
    s_cbranch_scc1 {lw}
    s_waitcnt vmcnt(0)
    s_branch {lw2}
    {lw}:
    s_waitcnt vmcnt(6)
    {lw2}:
    ''')
    stamp(e,cfg,14)
    e(f'''
    s_cmp_eq_u32 s33, 1
    s_cbranch_scc1 L_roleQ
    s_cmp_eq_u32 s33, 2
    s_cbranch_scc1 L_roleN
    ''')
    early = cfg.order=='A'
    e.c('---- role U')
    silu_row(); pickup('J'); auxbar(); gemv(WJ); go1(); auxbar()
    job_finish(WS_MU,12,'s39')
    stamp(e,cfg,1)
    if early: pickup('WO'); pickup('W13'); pickup('W2'); skip_group('J2')
    stamp(e,cfg,2)
    e('s_branch L_common')
    e('L_roleN:')
    silu_row(); pickup('J'); auxbar(); gemv(WJ); go1(); auxbar()
    def job1fin():
        gbar1(); auxbar()
        job_finish(WS_MN,13,'s39')
    def job2():
        pickup('J2')
        auxbar(); gemv(WJ); auxbar()
        e('s_add_u32 s51, s39, 8')
        job_finish(WS_MN,13,'s51')
    stamp(e,cfg,1)
    if early:
        pickup('WO'); pickup('W13'); pickup('W2'); job1fin(); job2()
    stamp(e,cfg,2)
    e('s_branch L_common')
    e('L_roleQ:')
    unpack(e,24,32,8)
    layernorm(e,cfg,32,16)
    pickup('J')
    go1()
    if early: pickup('WO'); pickup('W13'); pickup('W2'); skip_group('J2')
    auxbar()
    stamp(e,cfg,1)
    e(f's_lshl_b32 s40, s3, 12\ns_add_u32 s40, s40, {WS_MU}')
    gather(e,cfg,[(16,4,vRow,'s40',0),(20,4,vRow,'s40',1024),(24,4,vRow,'s40',2048),(28,4,vRow,'s40',3072)],vT,cfg.sleep_head)
    unpack(e,24,48,8)
    for i in range(16): e(f'v_add_f32 v{48+i}, 1.0, v{48+i}')
    if cfg.round_ln: rnd_vec(e,48,16,24)
    for i in range(16): e(f'v_mul_f32 v{32+i}, v{32+i}, v{48+i}')
    if cfg.round_ln: rnd_vec(e,32,16,24)
    unpack(e,16,48,8)
    for i in range(16): e(f'v_add_f32 v{32+i}, v{32+i}, v{48+i}')
    for i in range(8): e(f'v_cvt_pk_bf16_f32 v{16+i}, v{32+2*i}, v{33+2*i}')
    e(f'ds_write_b128 v{vAs}, v[16:19]\nds_write_b128 v{vAs}, v[20:23] offset:1024')
    auxbar(); gemv(WJ); auxbar()
    job_finish(WS_Q,13,'s39')
    stamp(e,cfg,2)
    e('L_common:')
    gather_q()
    stamp(e,cfg,3)
    lj=e.label('Lj2'); lk=e.label('Lj2d')
    if not early:
        pickup('WO'); pickup('W13'); pickup('W2')
        e(f's_cmp_eq_u32 s33, 2\ns_cbranch_scc1 {lj}')
        skip_group('J2'); gbar1()
        e(f's_branch {lk}\n{lj}:')
        job1fin(); job2()
        e(f'{lk}:')
    else:
        e(f's_cmp_eq_u32 s33, 2\ns_cbranch_scc1 {lk}')
        gbar1()
        e(f'{lk}:')
    auxbar()
    T1=224; SB=240; F=192; RX=196
    lds_spin(e,cfg,F_ML,4,vFl,vT)
    lm=e.label('Lnoml')
    e(f'''
    s_cmp_lg_u32 s3, 0
    s_cbranch_scc1 {lm}
    v_and_b32 v{vA}, 7, v{vL}
    v_lshlrev_b32 v{vA+1}, 3, v{vA}
    v_add_u32 v{vA}, {L_ML}, v{vA+1}
    ds_read_b64 v[16:17], v{vA}
    ds_read_b64 v[18:19], v{vA} offset:64
    ds_read_b64 v[20:21], v{vA} offset:128
    ds_read_b64 v[22:23], v{vA} offset:192
    s_lshl_b32 s40, s37, 10
    s_lshl_b32 s41, s38, 6
    s_add_u32 s40, s40, s41
    s_add_u32 s40, s40, {WS_ML}
    s_waitcnt lgkmcnt(0)
    v_max3_f32 v24, v16, v18, v20
    v_max_f32 v24, v24, v22
    v_sub_f32 v16, v16, v24
    v_sub_f32 v18, v18, v24
    v_sub_f32 v20, v20, v24
    v_sub_f32 v22, v22, v24
    v_exp_f32 v16, v16
    v_exp_f32 v18, v18
    v_exp_f32 v20, v20
    v_exp_f32 v22, v22
    v_mul_f32 v25, v16, v17
    v_fmac_f32 v25, v18, v19
    v_fmac_f32 v25, v20, v21
    v_fmac_f32 v25, v22, v23
    v_min_u32 v24, -2, v24
    v_min_u32 v25, -2, v25
    s_mov_b64 exec, 0xff
    buffer_store_dwordx2 v[24:25], v{vA+1}, s[{SWS}:{SWS+3}], s40 offen sc1
    s_mov_b64 exec, -1
    {lm}:
    ''')
    e(f's_lshl_b32 s40, s3, 13\ns_add_u32 s40, s40, {WS_MN+2048}')
    gather(e,cfg,[(16,4,vRow,'s40',0),(20,4,vRow,'s40',1024),(24,4,vRow,'s40',2048),(28,4,vRow,'s40',3072)],vT,cfg.sleep_head)
    unpack(e,16,SB,8); unpack(e,24,T1,8)
    for i in range(16): e(f'v_add_f32 v{T1+i}, 1.0, v{T1+i}')
    if cfg.round_ln: rnd_vec(e,T1,16,24)
    lr=e.label('Lnored')
    e(f'''
    s_cmp_ge_u32 s2, 64
    s_cbranch_scc1 {lr}
    s_cmp_lg_u32 s3, 0
    s_cbranch_scc1 {lr}
    v_and_b32 v{vA}, 15, v{vL}
    v_lshlrev_b32 v{vA}, 3, v{vA}
    v_lshrrev_b32 v{vA+1}, 5, v{vL}
    v_lshl_add_u32 v{vA}, v{vA+1}, 2, v{vA}
    s_lshl_b32 s40, s2, 7
    v_add_u32 v{vA+1}, s40, v{vA}
    global_load_dword v18, v{vA+1}, s[{P_X}:{P_X+1}]
    s_lshl_b32 s40, s38, 13
    s_lshl_b32 s51, s37, 7
    s_add_u32 s40, s40, s51
    s_add_u32 s40, s40, {WS_MN}
    s_add_u32 s51, s40, 6144
    ''')
    gather(e,cfg,[(16,1,vA,'s40',0),(17,1,vA,'s51',0)],vT,cfg.sleep_head)
    unpack(e,18,RX,1); unpack(e,16,RX+2,1); unpack(e,17,RX+4,1)
    e(f'{lr}:')
    e(f's_lshl_b32 s40, s37, 10\ns_add_u32 s40, s40, {WS_ML}')
    gather(e,cfg,[(16,4,vRow,'s40',0)],vT,cfg.sleep_head)
    e(f'''
    s_lshl_b32 s40, s3, 4
    s_add_u32 s40, s40, {L_ML}
    v_lshrrev_b32 v{vA+1}, 5, v{vL}
    v_lshl_add_u32 v{vA}, v{vA+1}, 3, s40
    ds_read_b32 v{F}, v{vA}
    ds_read_b32 v{F+1}, v{vA} offset:64
    ds_read_b32 v{F+2}, v{vA} offset:128
    ds_read_b32 v{F+3}, v{vA} offset:192
    v_mov_b32 v20, v16
    v_mov_b32 v21, v18
    ''')
    def allred_s(op, xs, t):
        for r in (4,8):
            for x in xs: e(f'{op}_dpp v{x}, v{x}, v{x} row_ror:{r} row_mask:0xf bank_mask:0xf')
        for sw in ('v_permlane16_swap_b32','v_permlane32_swap_b32'):
            for k,x in enumerate(xs): e(f'v_mov_b32 v{t+k}, v{x}')
            for k,x in enumerate(xs): e(f'{sw} v{t+k}, v{x}')
            for k,x in enumerate(xs): e(f'{op} v{x}, v{x}, v{t+k}')
    allred_s('v_max_f32',[20,21],24)
    e('''
    v_sub_f32 v16, v16, v20
    v_sub_f32 v18, v18, v21
    v_exp_f32 v16, v16
    v_exp_f32 v18, v18
    v_mul_f32 v22, v16, v17
    v_mul_f32 v23, v18, v19
    ''')
    allred_s('v_add_f32',[22,23],24)
    e(f'''
    v_readlane_b32 s40, v20, s3
    v_readlane_b32 s41, v21, s3
    v_readlane_b32 s42, v22, s3
    v_readlane_b32 s43, v23, s3
    v_cmp_gt_u32 vcc, 32, v{vL}
    v_mov_b32 v20, s40
    v_mov_b32 v21, s41
    v_mov_b32 v22, s42
    v_mov_b32 v23, s43
    v_cndmask_b32 v20, v21, v20, vcc
    v_cndmask_b32 v22, v23, v22, vcc
    v_rcp_f32 v22, v22
    s_waitcnt lgkmcnt(0)
    ''')
    for k in range(4): e(f'v_sub_f32 v{F+k}, v{F+k}, v20')
    for k in range(4): e(f'v_exp_f32 v{F+k}, v{F+k}')
    for k in range(4): e(f'v_mul_f32 v{F+k}, v{F+k}, v22')
    stamp(e,cfg,4)
    vOc=48; vOs=49; vH1=50; vRd=51; vRr=52; vYs=53; vRo=54; vH3=55; vZs=56; vHr=57; vHs=58
    e(f'''
    s_lshl_b32 s40, s3, 1
    v_lshrrev_b32 v{vA}, 5, v{vL}
    v_add_u32 v{vA}, s40, v{vA}
    v_mul_u32_u24 v{vOc}, {OSTR}, v{vA}
    v_and_b32 v{vA+1}, 31, v{vL}
    v_lshl_add_u32 v{vOc}, v{vA+1}, 4, v{vOc}
    v_add_u32 v{vOc+11}, 0x10000, v{vOc}
    v_lshlrev_b32 v{vOs}, 3, v{vL}
    s_lshl_b32 s52, s37, 15
    s_lshl_b32 s40, s38, 11
    s_add_u32 s52, s52, s40
    s_lshl_b32 s40, s3, 9
    s_add_u32 s52, s52, s40
    v_and_b32 v{vA}, 3, v{vL}
    v_lshlrev_b32 v{vH1}, 17, v{vA}
    v_bfe_u32 v{vA+1}, v{vL}, 2, 2
    v_lshl_add_u32 v{vH1}, v{vA+1}, 11, v{vH1}
    v_lshrrev_b32 v{vA+2}, 4, v{vL}
    v_lshl_add_u32 v{vH1}, v{vA+2}, 4, v{vH1}
    s_bfe_u32 s40, s2, 0x20003
    s_lshl_b32 s53, s40, 15
    s_and_b32 s40, s2, 7
    s_lshl_b32 s40, s40, 8
    s_add_u32 s53, s53, s40
    s_lshl_b32 s40, s3, 6
    s_add_u32 s53, s53, s40
    s_add_u32 s54, s53, 8192
    s_add_u32 s55, s53, 16384
    s_add_u32 s56, s53, 24576
    s_lshl_b32 s40, s3, 11
    s_add_u32 s40, s40, {L_RED}
    v_add_u32 v{vRd}, s40, v{vRow}
    s_lshl_b32 s40, s3, 2
    s_add_u32 s40, s40, {L_RED}
    v_lshl_add_u32 v{vRr}, v{vL}, 5, s40
    v_lshrrev_b32 v{vA}, 5, v{vL}
    v_lshlrev_b32 v{vYs}, 13, v{vA}
    v_and_b32 v{vA}, 31, v{vL}
    v_lshl_add_u32 v{vYs}, v{vA}, 3, v{vYs}
    s_lshl_b32 s57, s3, 17
    s_lshr_b32 s40, s2, 5
    s_lshl_b32 s40, s40, 14
    s_add_u32 s57, s57, s40
    s_and_b32 s40, s2, 31
    s_lshl_b32 s40, s40, 8
    s_add_u32 s57, s57, s40
    s_add_u32 s57, s57, {WS_Y}
    v_and_b32 v{vA}, 15, v{vL}
    v_lshlrev_b32 v{vRo}, 3, v{vA}
    v_lshrrev_b32 v{vA+1}, 5, v{vL}
    v_lshl_add_u32 v{vRo}, v{vA+1}, 2, v{vRo}
    ; H3a: (g>>1)*128 + (m>>2)*32 + (g&1)*16
    v_lshlrev_b32 v{vH3}, 7, v{vA+1}
    v_bfe_u32 v{vA+2}, v{vL}, 2, 2
    v_lshl_add_u32 v{vH3}, v{vA+2}, 5, v{vH3}
    v_bfe_u32 v{vA+2}, v{vL}, 4, 1
    v_lshl_add_u32 v{vH3}, v{vA+2}, 4, v{vH3}
    s_lshr_b32 s40, s36, 4
    s_lshl_b32 s58, s40, 11
    s_add_u32 s58, s58, {WS_HH}
    v_lshrrev_b32 v{vA+2}, 4, v{vL}
    v_mul_u32_u24 v{vZs}, {16*3584}, v{vA+2}
    v_lshl_add_u32 v{vZs}, v{vA}, 2, v{vZs}
    s_lshl_b32 s59, s40, 8
    s_and_b32 s40, s36, 15
    s_mul_i32 s40, s40, 3584
    s_add_u32 s59, s59, s40
    s_lshl_b32 s40, s3, 6
    s_add_u32 s59, s59, s40
    s_add_u32 s59, s59, {WS_Z}
    v_lshlrev_b32 v{vHr}, 4, v{vA}
    v_lshl_add_u32 v{vHr}, v{vA+2}, 2, v{vHr}
    v_add_u32 v{vHr}, {L_RED}, v{vHr}
    v_lshlrev_b32 v{vHs}, 1, v{vL}
    s_lshl_b32 s60, s36, 7
    s_add_u32 s60, s60, {WS_HH}
    s_mov_b32 s61, 0x3f80
    s_mov_b32 s62, 0x3f800000
    ''')
    e.c('---- tail: combine the four waves of this workgroup')
    lds_spin(e,cfg,F_O,4,vFl,vT)
    stamp(e,cfg,5)
    e(f'''
    ds_read_b128 v[16:19], v{vOc}
    ds_read_b128 v[20:23], v{vOc} offset:{RING}
    ds_read_b128 v[24:27], v{vOc+11}
    ds_read_b128 v[28:31], v{vOc+11} offset:{RING}
    s_waitcnt lgkmcnt(3)
    ''')
    for r in range(4): e(f'v_mul_f32 v{16+r}, v{16+r}, v{F}')
    for k in range(1,4):
        e(f's_waitcnt lgkmcnt({3-k})')
        for r in range(4): e(f'v_fmac_f32 v{16+r}, v{16+4*k+r}, v{F+k}')
    e(f'''
    v_cvt_pk_bf16_f32 v16, v16, v17
    v_cvt_pk_bf16_f32 v17, v18, v19
    v_min_u32 v16, -2, v16
    v_min_u32 v17, -2, v17
    buffer_store_dwordx2 v[16:17], v{vOs}, s[{SWS}:{SWS+3}], s52 offen sc1
    s_waitcnt vmcnt(0)
    ''')
    e.c('---- H1 + output projection')
    gather(e,cfg,[(16,4,vH1,'s53',0),(20,4,vH1,'s54',0),(24,4,vH1,'s55',0),(28,4,vH1,'s56',0)],vT,cfg.sleep_tail)
    stamp(e,cfg,6)
    for i in range(4):
        e(f'v_lshlrev_b32 v{32+2*i}, 16, v{16+i}\nv_and_b32 v{33+2*i}, 0xffff0000, v{16+i}')
    for j in range(1,4):
        for i in range(4):
            e(f'v_dot2_f32_bf16 v{32+2*i}, v{16+4*j+i}, s61, v{32+2*i}\nv_dot2_f32_bf16 v{33+2*i}, v{16+4*j+i}, s62, v{33+2*i}')
    for r in (4,8):
        for i in range(8): e(f'v_add_f32_dpp v{32+i}, v{32+i}, v{32+i} row_ror:{r} row_mask:0xf bank_mask:0xf')
    for i in range(4): e(f'v_cvt_pk_bf16_f32 v{16+i}, v{32+2*i}, v{33+2*i}')
    ACC=204-4
    ACC=16+4
    accs=[20,24,28,32,36,40,44,204]
    for ct in range(8): e(f'v_mfma_f32_16x16x32_bf16 v[{accs[ct]}:{accs[ct]+3}], v[16:19], v[{WO+4*ct}:{WO+4*ct+3}], 0')
    e('s_mov_b64 exec, 0xffff')
    for ct in range(8): e(f'ds_write_b128 v{vRd}, v[{accs[ct]}:{accs[ct]+3}] offset:{256*ct}')
    e(f'''
    s_mov_b64 exec, -1
    s_waitcnt lgkmcnt(0)
    s_barrier
    ds_read2_b32 v[16:17], v{vRr} offset0:0 offset1:4
    v_add_u32 v{vA}, 2048, v{vRr}
    ds_read2_b32 v[18:19], v{vA} offset0:0 offset1:4
    v_add_u32 v{vA+1}, 4096, v{vRr}
    ds_read2_b32 v[20:21], v{vA+1} offset0:0 offset1:4
    v_add_u32 v{vA+2}, 6144, v{vRr}
    ds_read2_b32 v[22:23], v{vA+2} offset0:0 offset1:4
    s_waitcnt lgkmcnt(2)
    v_add_f32 v16, v16, v18
    v_add_f32 v17, v17, v19
    s_waitcnt lgkmcnt(0)
    v_add_f32 v20, v20, v22
    v_add_f32 v21, v21, v23
    v_add_f32 v16, v16, v20
    v_add_f32 v17, v17, v21
    v_min_u32 v16, -2, v16
    v_min_u32 v17, -2, v17
    buffer_store_dwordx2 v[16:17], v{vYs}, s[{SWS}:{SWS+3}], s57 offen sc1
    s_cmp_ge_u32 s2, 224
    s_cbranch_scc1 L_fin
    s_waitcnt vmcnt(0)
    ''')
    stamp(e,cfg,7)
    def red_tail(n):
        for i in range(1,n):
            e(f'v_pk_add_f32 v[16:17], v[16:17], v[{16+4*i}:{17+4*i}]\nv_pk_add_f32 v[18:19], v[18:19], v[{18+4*i}:{19+4*i}]')
        e('''
        v_permlane32_swap_b32 v16, v18
        v_permlane32_swap_b32 v17, v19
        v_add_f32 v16, v16, v18
        v_add_f32 v17, v17, v19
        v_mov_b32 v18, v16
        v_mov_b32 v19, v17
        v_permlane16_swap_b32 v18, v16
        v_permlane16_swap_b32 v19, v17
        v_add_f32 v16, v16, v18
        v_add_f32 v17, v17, v19
        ''')
    def gate_res(G,X,dst):
        rnd_vec(e,16,2,18)
        e(f'v_mul_f32 v16, v16, v{G}\nv_mul_f32 v17, v17, v{G+1}')
        rnd_vec(e,16,2,18)
        e(f'v_add_f32 v16, v16, v{X}\nv_add_f32 v17, v17, v{X+1}\nv_cvt_pk_bf16_f32 v{dst}, v16, v17')
    e.c('---- H2a: reducers')
    l2=e.label('Lnoh2a')
    e(f'''
    s_cmp_ge_u32 s2, 64
    s_cbranch_scc1 {l2}
    s_cmp_lg_u32 s3, 0
    s_cbranch_scc1 {l2}
    s_lshl_b32 s40, s2, 13
    s_add_u32 s40, s40, {WS_Y}
    s_add_u32 s51, s40, 4096
    ''')
    gather(e,cfg,[(16+4*i,4,vRow,'s40' if i<4 else 's51',(i&3)*1024) for i in range(8)],vT,cfg.sleep_tail)
    red_tail(8)
    gate_res(RX+2,RX,16)
    e(f'''
    v_min_u32 v16, -2, v16
    s_lshl_b32 s40, s2, 7
    s_add_u32 s40, s40, {WS_X1}
    s_mov_b32 s42, 0xffff
    s_mov_b32 s43, 0xffff
    s_mov_b64 exec, s[42:43]
    buffer_store_dword v16, v{vRo}, s[{SWS}:{SWS+3}], s40 offen sc1
    s_mov_b64 exec, -1
    v_lshlrev_b32 v{RX}, 16, v16
    v_and_b32 v{RX+1}, 0xffff0000, v16
    s_waitcnt vmcnt(0)
    {l2}:
    ''')
    stamp(e,cfg,8)
    e.c('---- H2b + gate/up')
    e(f's_lshl_b32 s40, s3, 11\ns_add_u32 s40, s40, {WS_X1}')
    gather(e,cfg,[(16,4,vRow,'s40',0),(20,4,vRow,'s40',1024)],vT,cfg.sleep_tail)
    stamp(e,cfg,9)
    unpack(e,16,32,8)
    layernorm(e,cfg,32,16)
    modulate(e,cfg,32,T1,SB,16,24)
    e(f'''
    ds_write_b128 v{vAs}, v[16:19]
    ds_write_b128 v{vAs}, v[20:23] offset:1024
    s_waitcnt lgkmcnt(0)
    s_barrier
    ''')
    gemv(W13, acc=204, af=16)
    l5=e.label('Lnoh')
    e(f'''
    s_waitcnt lgkmcnt(0)
    s_barrier
    s_cmp_lg_u32 s3, 0
    s_cbranch_scc1 {l5}
    ds_read2_b32 v[16:17], v{vHr} offset0:0 offset1:64
    ds_read2_b32 v[18:19], v{vHr} offset0:128 offset1:192
    v_add_u32 v{vA}, 1024, v{vHr}
    ds_read2_b32 v[20:21], v{vA} offset0:0 offset1:64
    ds_read2_b32 v[22:23], v{vA} offset0:128 offset1:192
    s_waitcnt lgkmcnt(2)
    v_add_f32 v16, v16, v18
    v_add_f32 v17, v17, v19
    s_waitcnt lgkmcnt(0)
    v_add_f32 v20, v20, v22
    v_add_f32 v21, v21, v23
    v_add_f32 v16, v16, v20
    v_add_f32 v17, v17, v21
    ''')
    rnd_vec(e,16,2,18)
    e(f'''
    v_mul_f32 v18, 0xbfb8aa3b, v16
    v_exp_f32 v18, v18
    v_add_f32 v18, 1.0, v18
    v_rcp_f32 v18, v18
    v_mul_f32 v16, v16, v18
    ''')
    rnd1(e,16)
    e(f'''
    v_mul_f32 v16, v16, v17
    v_mov_b32_dpp v17, v16 quad_perm:[1,1,3,3] row_mask:0xf bank_mask:0xf
    v_cvt_pk_bf16_f32 v16, v16, v17
    v_min_u32 v16, -2, v16
    s_mov_b32 s42, 0x55555555
    s_mov_b32 s43, 0x55555555
    s_mov_b64 exec, s[42:43]
    buffer_store_dword v16, v{vHs}, s[{SWS}:{SWS+3}], s60 offen sc1
    s_mov_b64 exec, -1
    s_waitcnt vmcnt(0)
    {l5}:
    s_barrier
    ''')
    stamp(e,cfg,10)
    e.c('---- H3a + down projection')
    gather(e,cfg,[(16+4*t,4,vH3,'s58',256*t) for t in range(8)],vT,cfg.sleep_tail)
    stamp(e,cfg,11)
    for t in range(8):
        acc=204+4*(t&1)
        e(f'v_mfma_f32_16x16x32_bf16 v[{acc}:{acc+3}], v[{16+4*t}:{19+4*t}], v[{W2+4*t}:{W2+4*t+3}], '+('0' if t<2 else f'v[{acc}:{acc+3}]'))
    e(f'''
    v_add_f32 v16, v204, v208
    v_min_u32 v16, -2, v16
    buffer_store_dword v16, v{vZs}, s[{SWS}:{SWS+3}], s59 offen sc1
    s_cmp_ge_u32 s2, 64
    s_cbranch_scc1 L_fin
    s_waitcnt vmcnt(0)
    s_barrier
    s_cmp_lg_u32 s3, 0
    s_cbranch_scc1 L_fin
    s_mul_i32 s40, s2, 3584
    s_add_u32 s40, s40, {WS_Z}
    v_mov_b32 v28, 0
    v_mov_b32 v29, 0
    v_mov_b32 v30, 0
    v_mov_b32 v31, 0
    s_mov_b32 s52, -1
    s_mov_b32 s53, 0
    ''')
    e.c('---- H3b: final reducers')
    gather(e,cfg,[(16,4,vRow,'s40',0),(20,4,vRow,'s40',1024),(24,4,vRow,'s40',2048),(28,4,vRow,'s40',3072,'s[52:53]')],vT,cfg.sleep_tail)
    stamp(e,cfg,12)
    red_tail(4)
    gate_res(RX+4,RX,16)
    e(f'''
    s_lshl_b32 s40, s2, 7
    v_add_u32 v{vA}, s40, v{vRo}
    s_mov_b32 s42, 0xffff
    s_mov_b32 s43, 0xffff
    s_mov_b64 exec, s[42:43]
    global_store_dword v{vA}, v16, s[{P_OUT}:{P_OUT+1}]
    s_mov_b64 exec, -1
    L_fin:
    ''')
    stamp(e,cfg,13)
    if cfg.stamps: e('s_add_u32 s3, s3, 4')
    stamps_out(e,cfg,16,vA)
    e('s_endpgm')

def gen(cfg):
    set_order(cfg.order)
    e=A()
    e(f'''
    s_cmp_ge_u32 s2, 256
    s_cbranch_scc1 L_exit
    s_load_dwordx16 s[4:19], s[0:1], 0
    s_load_dwordx8 s[20:27], s[0:1], 64
    s_load_dwordx4 s[28:31], s[0:1], 96
    v_lshrrev_b32 v2, 6, v0
    v_and_b32 v1, 63, v0
    v_readfirstlane_b32 s3, v2
    ''')
    if cfg.codepf:
        e(f'''
        s_getpc_b64 s[48:49]
        L_pc:
        s_sub_u32 s48, s48, L_pc-{KN}
        s_subb_u32 s49, s49, 0
        v_and_b32 v3, 0xff, v0
        v_lshlrev_b32 v3, 7, v3
        s_cmp_ge_u32 s3, 4
        s_cbranch_scc1 L_nopf
        global_load_dword v255, v3, s[48:49]
        L_nopf:
        ''')
    roles(e)
    e('s_cmp_ge_u32 s3, 4\ns_cbranch_scc1 L_aux')
    stream(e,cfg)
    aux(e,cfg)
    e('L_exit:\ns_endpgm')
    e('.p2align 8\n.fill (32768+256-(.-'+KN+'))/4, 4, 0xbf800000')
    hdr = open('adaLN_cond__gqa_block_cached__glu_gated_swiglu__decode.s.ref').read().split('; Override launch')[0] if False else ''
    hdr += f'; fused adaLN + GQA decode attention + SwiGLU block, one launch (generated by gen1.py)\n; @launch grid=(256,1,1) block=(512,1,1) lds={LDS_BYTES}\n.amdgcn_target "amdgcn-amd-amdhsa--gfx950"\n'
    return hdr + khead(KN) + e.text() + kd(KN, 256)

if __name__=='__main__':
    cfg=Cfg()
    out=sys.argv[1]
    for kv in sys.argv[2:]:
        k,val=kv.split('=')
        cur=getattr(cfg,k)
        setattr(cfg,k, (val not in ('0','False')) if isinstance(cur,bool) else type(cur)(val) if not isinstance(cur,int) else int(val,0))
    open(out,'w').write(gen(cfg))
```

```python
def build(odd=0.6, c3=0.0035, unit=0.57, qx=0.15, lx=0.3, verbose=False):
    W=range(256)
    X=lambda w:w&7; I=lambda w:w>>3
    light=[w for w in W if X(w)&1 and I(w)>=24]
    j5={w:28*X(w)+4*(X(w)&1)+I(w) for w in W if w not in light}
    cost={w:(42 if w in light else 44)*unit+(odd if X(w)&1 else 0)+(lx if w in light else 0) for w in W}
    for w,j in j5.items():
        if (j>>3)&3==1: cost[w]+=256*c3
    cheap=lambda ws: sorted(ws,key=lambda w:(round(cost[w],6),I(w),X(w)))
    U=[];N1=[];Q=[]
    for x in range(8):
        ws=cheap([w for w in W if X(w)==x and w not in light])
        if x&1: N1+=ws[:8]; Q+=ws[8:]
        else: U+=ws[:16]; Q+=ws[16:]
    for w in Q: cost[w]+=qx
    job={}; extra={}; hasG={}
    def give(ws, jobs, dst):
        slow=[j for j in jobs if j[1]&3==1]; fast=[j for j in jobs if j[1]&3!=1]
        ws=cheap(ws)
        for w,j in zip(ws,slow+fast):
            dst[w]=j
            if j[1]&3==1: cost[w]+=256*c3
    give(U,[(k,c) for c in range(16) for k in range(4)],job)
    give(Q,[(k,c) for c in range(32) for k in range(4)],job)
    for k in range(4):
        slow=[c for c in range(16,40) if c&3==1]; fast=[c for c in range(16,40) if c&3!=1]
        for w in N1[k::4]: job[w]=(k,fast.pop())
        for w in light[k::4]:
            job[w]=(k,fast.pop())
            c=slow.pop() if slow else fast.pop()
            extra[w]=c
            if c&3==1: cost[w]+=256*c3
    ws=cheap(U+N1)[:64]
    for w in ws: cost[w]+=2*unit
    G=[(k,c) for c in range(8) for k in range(8)]
    G=[g for g in G if g[1]&3==1]+[g for g in G if g[1]&3!=1]
    for w,g in zip(cheap(ws),G):
        extra[w]=g[0]|(g[1]<<3); hasG[w]=1
        if g[1]&3==1: cost[w]+=128*c3
    j6={}
    for x in range(8):
        ws=cheap([w for w in j5 if X(w)==x]); base=(28*x+4*(x&1))>>3
        items=[(r,c) for r in range(base,base+len(ws)//8) for c in range(8)]
        items=[t for t in items if t[1]&3==1]+[t for t in items if t[1]&3!=1]
        for w,(r,c) in zip(ws,items):
            j6[w]=r*8+c
            if c&3==1: cost[w]+=128*c3
    w4={}
    for x in range(8):
        ws=cheap([w for w in W if X(w)==x])
        items=[(d,c) for c in range(8) for d in range(4)]
        items=[t for t in items if t[1]&3==1]+[t for t in items if t[1]&3!=1]
        for w,(d,c) in zip(ws,items):
            w4[w]=x+8*d+32*c
            if c&3==1: cost[w]+=128*c3
    rho={}
    for n,w in enumerate(U+Q+N1+light): rho[w]=n
    tab=[]
    for w in W:
        k,c=job[w]; rs=8192 if w in Q else 12288
        tab.append((256*k*rs+256*c, rho[w]|(k<<8)|(c<<10)|(extra.get(w,0)<<16)|(hasG.get(w,0)<<24), j5.get(w,0)|(j6.get(w,0)<<8)|(w4[w]<<16), rs))
    if verbose:
        for r in range(16): print(' '.join('%5.1f'%cost[16*r+i] for i in range(16)))
        print(max(cost.values()), sum(cost.values())/256)
    return tab, rho
if __name__=='__main__':
    t,r=build(verbose=True)
    assert len({(a[1]>>8&3,a[1]>>10&63,a[3]) for a in t})==256
    assert len({a[2]>>16 for a in t})==256
```

```python
import sys
from asmgen import *
KN='adaLN_cond__gqa_block_cached__glu_gated_swiglu__decode_kernel'

import os
PAD = int(os.environ.get('PAD','128'))
OS  = 2048+PAD
YS  = 8192+PAD
GS  = 14336+PAD
ZS  = 7168+PAD
MNS = 12288+PAD
MGS = 4096+PAD
MUS = 8192+PAD
QS  = 16384+PAD
WS_O   = 0
WS_Y   = WS_O+256*OS
WS_GU  = WS_Y+64*YS
WS_Z   = WS_GU+32*GS
WS_MN  = WS_Z+64*ZS
WS_MG  = WS_MN+16*MNS
WS_ML  = WS_MG+32*MGS
WS_X1  = WS_ML+16384
WS_ST  = WS_X1+8192
WS_TS  = WS_ST+2048
WS_Q   = WS_TS+16384
FLATSH = -(-(WS_Q+16*QS)//(256*128))*128
WS_MU  = 256*FLATSH
WS_H   = WS_MU+16*MUS
WS_SA  = WS_H+8192
WS_END = WS_SA+1024
WS_STAMP = 0x400000
RING = 0x8000
L_RED  = 0x20000
L_AX   = 0x22400; XSTR = 320
L_QOP  = 0x24000; QSTR = 272
L_ML   = 0x24900
L_ST   = 0x24A00
L_FLAG = 0x24B00
LDS_BYTES = 0x24C00
OSTR = 528
F_LAND = 0
F_CONS = 32
F_Q = 64; F_ML = 68; F_O = 72; F_AUX = 76; F_V = 80; F_F = 84; F_P = 88; F_M = 92; F_P2 = 96
P_X,P_K,P_V,P_WQ,P_WO,P_BX,P_W1,P_W3,P_W2,P_C,P_WM,P_OUT,P_DBG,P_WS = [4+2*i for i in range(14)]
LOG2E = 0x3fb8aa3b
SCALE = 0x3db504f3

class Cfg:
    D=2; D0=4
    N=4
    NV=4
    deep=16
    vsig=2
    sleep_ml=32
    pol='nt'
    stamps=False
    round_s=True
    round_ln=True
    sleep_head=16
    sleep_tail=1
    order='E'
    qgate=25
    ack='1111'
    dly='0,3,48,2,92'
    tstamps=True
    safter=3
    odd=0.6; c3=0.0035; qx=0.15; lx=1.0
    hgate=19
    hafter=3
    bo_n=16; bo_s=0
    cpol='sc1'
    kill=''
    lsleep=0
    prio2=2
    sprio=0
    ustamps=True
    defer=''
    round_ln2=False
    fine=False
    pairs=True
    NL=6; NH=8
    adapt=0
    rank=13
    lightdeep=False
    qafter=5
    NK=4; kdeep=16
    sleep_q=12
    hold=False
    prio=2
    gpoll=8192
    lpoll=1<<17

from gen1 import lds_signal, stamp, srd, allreduce64, unpack, rnd_vec, rnd1
import gen1
gen1.WS_STAMP = WS_STAMP
from gen1 import stamps_out, lds_spin, gather
SWS=44

def roles(e):
    e(f'''
    s_and_b32 s37, s2, 15
    s_lshr_b32 s38, s2, 4
    s_waitcnt lgkmcnt(0)
    s_mov_b32 s34, s92
    s_mov_b32 s35, s95
    s_and_b32 s99, s93, 255
    s_cmp_ge_u32 s99, 64
    s_cselect_b32 s33, 1, 0
    s_cmp_ge_u32 s99, 192
    s_cselect_b32 s33, 2, s33
    s_bfe_u32 s36, s93, 0x20008
    s_bfe_u32 s39, s93, 0x6000a
    s_bfe_u32 s101, s93, 0x80010
    s_lshr_b32 s0, s93, 24
    s_and_b32 s63, s94, 255
    s_bfe_u32 s1, s94, 0x80008
    s_lshr_b32 s14, s94, 16
    ''')

UNITS=[]
GROUPS=['J','WO','X0','X1','X2','X3']
def set_order(order, defer=''):
    U=lambda k,n: [(k,i) for i in range(n)]
    W=U('WO',2)+U('X0',2)+U('X1',2)+([] if '2' in defer else U('X2',2))+U('X3',2)
    K=U('K',16)
    if order=='A': UNITS[:] = U('J',4)+W+K+U('V',16)
    elif order=='E': UNITS[:] = U('J',4)+W[:2]+W[6:]+W[2:6]+K+U('V',16)
    elif order=='F': UNITS[:] = U('J',4)+W[6:]+W[:6]+K+U('V',16)
    elif order=='G': UNITS[:] = U('J',4)+W[:2]+W[6:]+K[:2]+W[2:6]+K[2:]+U('V',16)
    elif order=='C':
        mix=[]
        for i in range(8): mix+=[W[i],K[i]]
        UNITS[:] = U('J',4)+mix+W[8:]+K[8:]+U('V',16)
    elif order=='D':
        mix=[]
        for i in range(8): mix+=[K[i],W[i]]
        UNITS[:] = U('J',4)+mix+W[8:]+K[8:]+U('V',16)
def upos(kind,i): return UNITS.index((kind,i))
def slot(kind,i): return (upos(kind,i)%8)*4096

def stream(e, cfg):
    D=cfg.D; pol=cfg.pol
    vL=1; vK=2; vV=6; vW=8; vSw=10; vR=12; vFl=13; vOne=14; vT=15
    vKR=16; vVR=20; vX=28; vRJ=45
    Q=48; S=64; ST=128; P=128; O=160; VF=192
    SK,SV,SW = 44,48,52
    e.c('================= stream waves =================')
    e('L_stream:')
    if cfg.sprio: e(f's_setprio {cfg.sprio}')
    stamp(e,cfg,0)
    e(f'''
    v_lshrrev_b32 v{vR}, 4, v{vL}
    v_and_b32 v{vX+1}, 15, v{vL}
    v_lshlrev_b32 v{vX+6}, 1, v{vR}
    v_xor_b32 v{vX+6}, v{vX+6}, v{vX+1}
    v_lshlrev_b32 v{vSw}, 4, v{vX+6}
    v_xor_b32 v{vSw+1}, 128, v{vSw}
    v_and_b32 v{vRJ}, 2, v{vR}
    v_lshlrev_b32 v{vRJ}, 1, v{vRJ}
    v_and_or_b32 v{vRJ}, v{vR}, 1, v{vRJ}
    s_lshl_b32 s32, s3, 15
    s_mov_b32 s{SW+3}, 0x20000
    s_cmp_lt_u32 s99, 224
    s_cselect_b32 s96, 0, {1 if cfg.lightdeep else 0}
    s_cmp_lt_u32 s99, 255
    s_cbranch_scc1 L_go
    s_barrier
    L_go:
    s_waitcnt lgkmcnt(0)
    ''')
    st = dict(issued=0, landed=-1, signaled=set())
    def pairwait(n,k):
        if not cfg.pairs or n<cfg.D0: return
        tot=4*n+k
        known=4*(st['landed']+1)
        if tot-known>cfg.NH:
            e(f's_waitcnt vmcnt({cfg.NH})'); note_landed((tot-cfg.NH)//4-1)
        if tot-known>cfg.NL and cfg.NL<cfg.NH:
            lb=e.label('Lw')
            e(f's_cmp_lg_u32 s96, 0\ns_cbranch_scc1 {lb}\ns_waitcnt vmcnt({cfg.NL})\n{lb}:')
    def dma(voff, srdreg, soff, i):
        e(f'buffer_load_dwordx4 v{voff}, s[{srdreg}:{srdreg+3}], {soff} offen offset:{i*1024} {pol} lds')
    def tile_setup(kind, t):
        def ptr(a,b): e(f's_cselect_b32 s{SW}, s{a}, s{b}\ns_cselect_b32 s{SW+1}, s{a+1}, s{b+1}')
        if kind=='J':
            if t==0:
                e('s_cmp_eq_u32 s33, 1'); ptr(P_WQ,P_WM)
                e(f'''s_mov_b32 s{SW+2}, {1024*6144*2}
                s_cselect_b32 s{SW+2}, {1024*4096*2}, s{SW+2}
                s_mov_b32 s56, s35
                s_lshl_b32 s40, s3, 6
                s_mul_i32 s58, s40, s35
                s_add_u32 s58, s58, s34
                s_mov_b32 s57, s58''')
            else: e('s_lshl_b32 s40, s35, 1\ns_add_u32 s57, s58, s40')
        elif kind=='WO':
            e(f'''s_mov_b32 s{SW}, s{P_WO}
            s_mov_b32 s{SW+1}, s{P_WO+1}
            s_mov_b32 s{SW+2}, {4096*1024*2}
            s_mov_b32 s56, 2048
            s_and_b32 s40, s14, 7
            s_lshl_b32 s57, s40, 18
            s_lshl_b32 s40, s3, 21
            s_add_u32 s57, s57, s40
            s_bfe_u32 s40, s14, 0x20003
            s_lshl_b32 s40, s40, 16
            s_add_u32 s57, s57, s40
            s_lshr_b32 s40, s14, 5
            s_lshl_b32 s40, s40, 8
            s_add_u32 s57, s57, s40''')
        elif kind in ('X0','X1'):
            t = int(kind[1])
            if t==0:
                e(f'''s_and_b32 s40, s63, 7
                s_lshl_b32 s40, s40, 2
                s_add_u32 s40, s40, s3
                s_mul_i32 s59, s40, {32*7168}
                s_lshr_b32 s40, s63, 3
                s_lshl_b32 s40, s40, 8
                s_add_u32 s59, s59, s40''')
            e(f'''s_sub_u32 s40, s101, s39
            s_lshl_b32 s40, s40, 8
            s_add_u32 s40, s40, s58
            s_add_u32 s40, s40, {t*2*12288}
            s_cmp_lt_u32 s99, 224''')
            ptr(P_W3 if t else P_W1, P_WM)
            e(f'''s_mov_b32 s{SW+2}, {1024*6144*2}
            s_cselect_b32 s{SW+2}, {0 if str(t) in cfg.defer else 1024*3584*2}, s{SW+2}
            s_mov_b32 s56, 12288
            s_cselect_b32 s56, 7168, s56
            s_cselect_b32 s57, s59, s40''')
        elif kind=='X2':
            e(f'''s_lshr_b32 s40, s1, 3
            s_lshl_b32 s57, s40, 18
            s_lshl_b32 s40, s3, 16
            s_add_u32 s57, s57, s40
            s_and_b32 s40, s1, 7
            s_lshl_b32 s40, s40, 8
            s_add_u32 s57, s57, s40
            s_mov_b32 s{SW}, s{P_W2}
            s_mov_b32 s{SW+1}, s{P_W2+1}
            s_cmp_lt_u32 s99, 224
            s_cselect_b32 s{SW+2}, {1024*3584*2}, 0
            s_mov_b32 s56, 2048''')
        elif kind=='X3':
            e(f'''s_and_b32 s40, s101, 7
            s_lshl_b32 s40, s40, 2
            s_add_u32 s40, s40, s3
            s_mul_i32 s57, s40, {32*12288}
            s_lshr_b32 s40, s101, 3
            s_lshl_b32 s40, s40, 8
            s_add_u32 s57, s57, s40
            s_add_u32 s57, s57, {40*256}
            s_mov_b32 s{SW}, s{P_WM}
            s_mov_b32 s{SW+1}, s{P_WM+1}
            s_cmp_lg_u32 s0, 0
            s_cselect_b32 s{SW+2}, {1024*6144*2}, 0
            s_mov_b32 s56, 12288''')
        if kind=='J': e(f'v_mov_b32 v{vX+8}, v{vRJ}\ns_mov_b32 s41, 1')
        elif kind in ('WO','X2','X3'): e(f'v_mov_b32 v{vX+8}, v{vR}\ns_mov_b32 s41, 0')
        else: e(f's_cselect_b64 vcc, 0, -1\ns_cselect_b32 s41, 0, 1\nv_cndmask_b32 v{vX+8}, v{vR}, v{vRJ}, vcc')
        e(f'''v_mad_u32_u24 v{vW}, v{vX+8}, s56, v{vSw}
        v_mad_u32_u24 v{vW+1}, v{vX+8}, s56, v{vSw+1}
        s_lshl_b32 s61, s56, s41
        s_lshl_b32 s60, s61, 3
        s_sub_u32 s60, s60, 1024
        s_lshl_b32 s61, s61, 2''')
    def emit_unit(n):
        kind,i = UNITS[n]
        if kind in GROUPS:
            if (i&1)==0: tile_setup(kind,i>>1); e('s_mov_b32 s41, s57')
            else: e('s_add_u32 s41, s57, s61')
            e(f's_add_u32 m0, s32, {(n%8)*4096}')
            for k in range(4):
                if k%2==0: pairwait(n,k)
                dma(vW+(k&1), SW, 's41', k)
                if k<3: e('s_add_u32 s41, s41, s60')
        else:
            e(f's_add_u32 s41, s62, {i*16384}\ns_add_u32 m0, s32, {(n%8)*4096}')
            for k in range(4):
                if k%2==0: pairwait(n,k)
                dma((vK+k) if kind=='K' else (vV+(k&1)), SK if kind=='K' else SV, 's41', k)
    def note_landed(n):
        st['landed']=max(st['landed'],n)
        for gi,g in enumerate(GROUPS):
            if (g,0) not in UNITS: continue
            last=max(k for k,u in enumerate(UNITS) if u[0]==g)
            if last<=st['landed'] and g not in st['signaled']:
                st['signaled'].add(g); lds_signal(e, F_LAND+4*gi, vFl, vOne)
                if g=='J': stamp(e,cfg,6)
    consumed=set()
    def issue(n):
        assert n==st['issued']
        if cfg.pairs and n==5: wait_landed(3)
        if n>=cfg.D0 and not cfg.pairs:
            N = cfg.NV if n>=upos('V',0)+cfg.deep else (cfg.NK if upos('K',min(cfg.kdeep,15))+(cfg.kdeep>15)<=n<upos('V',0) else cfg.N)
            full = n-1-(N+3)//4
            if st['landed']<n-1-N//4:
                e(f's_waitcnt vmcnt({N})'); note_landed(full)
        if n>=8 and UNITS[n-8][0]=='K' and UNITS[n-8][1]<8:
            stage(UNITS[n-8][1]); e('s_waitcnt lgkmcnt(0)')
        if n>=8:
            g=UNITS[n-8][0]
            if g in GROUPS and g not in consumed:
                last=max(k for k,u in enumerate(UNITS) if u[0]==g)
                if g not in st['signaled']: wait_landed(last)
                consumed.add(g); lds_spin(e,cfg,F_CONS+4*GROUPS.index(g),4,vFl,vT)
                if g=='J': stamp(e,cfg,7)
        if cfg.stamps and cfg.ustamps: e(f's_memrealtime s[82:83]\ns_waitcnt lgkmcnt(0)\nv_writelane_b32 v47, s82, {n}')
        emit_unit(n); st['issued']=n+1
        if cfg.qgate and n==cfg.qgate: lds_signal(e,F_P,vFl,vOne)
        if cfg.hgate and n==cfg.hgate: lds_signal(e,F_P2,vFl,vOne)
    def stage(u):
        wait_landed(upos('K',u))
        for k in range(4):
            r=ST+(u%8)*16+4*k
            e(f'ds_read_b128 v[{r}:{r+3}], v{vKR+k} offset:{slot("K",u)}')
    def wait_landed(n):
        if st['landed']>=n: return
        e(f's_waitcnt vmcnt({4*(st["issued"]-1-n)})'); note_landed(n)
    for n in range(cfg.D0): issue(n)
    srd(e,SK,P_K,0x4000000); srd(e,SV,P_V,0x4000000)
    e(f'''
    s_lshl_b32 s62, s37, 22
    s_lshl_b32 s40, s38, 18
    s_add_u32 s62, s62, s40
    s_lshl_b32 s40, s3, 12
    s_add_u32 s62, s62, s40
    v_xor_b32 v{vX+6}, v{vX+1}, v{vR}
    v_lshlrev_b32 v{vX+7}, 8, v{vR}
    v_lshl_add_u32 v{vK}, v{vX+6}, 4, v{vX+7}
    v_xor_b32 v{vK+1}, 64, v{vK}
    v_xor_b32 v{vK+2}, 128, v{vK}
    v_xor_b32 v{vK+3}, 192, v{vK}
    v_add_u32 v{vV}, v{vSw}, v{vX+7}
    v_add_u32 v{vV+1}, v{vSw+1}, v{vX+7}
    v_lshlrev_b32 v{vX+7}, 8, v{vX+1}
    v_lshl_add_u32 v{vKR}, v{vX+6}, 4, v{vX+7}
    v_add_u32 v{vKR}, s32, v{vKR}
    v_xor_b32 v{vKR+1}, 64, v{vKR}
    v_xor_b32 v{vKR+2}, 128, v{vKR}
    v_xor_b32 v{vKR+3}, 192, v{vKR}
    v_lshrrev_b32 v{vX+2}, 2, v{vL}
    v_and_b32 v{vX+5}, 3, v{vL}
    v_lshlrev_b32 v{vX+6}, 8, v{vX+2}
    v_and_b32 v{vX+7}, 7, v{vX+2}
    v_lshl_add_u32 v{vX+6}, v{vX+7}, 5, v{vX+6}
    v_lshl_add_u32 v{vX+6}, v{vX+5}, 3, v{vX+6}
    v_add_u32 v{vVR}, s32, v{vX+6}
    ''')
    for ct in range(1,8): e(f'v_xor_b32 v{vVR+ct}, {ct<<5}, v{vVR}')
    e(f'''
    v_mov_b32 v{vFl}, {L_FLAG}
    v_mov_b32 v{vOne}, 1
    s_cmp_ge_u32 s99, 255
    s_cbranch_scc1 L_go2
    s_barrier
    L_go2:
    ''')
    V0=upos('V',0); NX=upos('K',15)+1
    for n in range(cfg.D0, NX): issue(n)
    def qk(u):
        for k in range(4):
            r=ST+(u%8)*16+4*k
            e(f'v_mfma_f32_16x16x32_bf16 v[{S+4*u}:{S+4*u+3}], v[{r}:{r+3}], v[{Q+4*k}:{Q+4*k+3}], '+('0' if k==0 else f'v[{S+4*u}:{S+4*u+3}]'))
    vM=vX; vLs=vX+1; t0=vX+2
    def rnd(u):
        for h in range(2):
            a0=S+4*u+2*h; a1=a0+1; t=t0+h
            if cfg.round_s:
                e(f'''v_cvt_pk_bf16_f32 v{t}, v{a0}, v{a1}
                v_lshlrev_b32 v{a0}, 16, v{t}
                v_and_b32 v{a1}, 0xffff0000, v{t}''')
            e(f'v_mul_f32 v{a0}, s42, v{a0}\nv_mul_f32 v{a1}, s42, v{a1}')
            if cfg.round_s:
                e(f'''v_cvt_pk_bf16_f32 v{t}, v{a0}, v{a1}
                v_lshlrev_b32 v{a0}, 16, v{t}
                v_and_b32 v{a1}, 0xffff0000, v{t}''')
            if u==0 and h==0: e(f'v_max_f32 v{vM}, v{a0}, v{a1}')
            else: e(f'v_max3_f32 v{vM}, v{vM}, v{a0}, v{a1}')
    stamp(e,cfg,1)
    lds_spin(e,cfg,F_Q,4,vFl,vT)
    stamp(e,cfg,2)
    e(f'''
    v_and_b32 v{vX+6}, 7, v{vL}
    v_mul_u32_u24 v{vX+6}, {QSTR}, v{vX+6}
    v_lshl_add_u32 v{vX+6}, v{vR}, 4, v{vX+6}
    v_add_u32 v{vX+6}, {L_QOP}, v{vX+6}
    s_mov_b32 s42, {SCALE:#x}
    s_mov_b32 s43, {LOG2E:#x}
    ''')
    for k in range(4): e(f'ds_read_b128 v[{Q+4*k}:{Q+4*k+3}], v{vX+6} offset:{64*k}')
    if cfg.adapt==1: e(f'ds_read_b32 v{vT}, v{vFl} offset:{F_M}')
    e('s_waitcnt lgkmcnt(0)')
    if cfg.adapt==1: e(f'v_readfirstlane_b32 s96, v{vT}')
    if cfg.adapt!=1: e('s_mov_b32 s96, 0')
    for u in range(D):
        qk(u); stage(8+u); e('s_waitcnt lgkmcnt(0)'); issue(NX+u)
    for u in range(D,8):
        qk(u); stage(8+u)
    e('s_waitcnt lgkmcnt(0)')
    for u in range(8,16): qk(u)
    nxt=[NX+D]
    def more():
        if nxt[0]<V0+8:
            if cfg.adapt==2 and nxt[0]>=V0+7:
                e(f'ds_read_b32 v{vT}, v{vFl} offset:{F_M}\ns_waitcnt lgkmcnt(0)\nv_readfirstlane_b32 s96, v{vT}')
            issue(nxt[0]); nxt[0]+=1
    more()
    for u in range(16):
        rnd(u)
        if u in (5,10,15): more()
    e(f'''
    v_mov_b32 v{t0}, v{vM}
    v_permlane32_swap_b32 v{t0}, v{vM}
    v_max_f32 v{vM}, v{vM}, v{t0}
    v_mov_b32 v{t0}, v{vM}
    v_permlane16_swap_b32 v{t0}, v{vM}
    v_max_f32 v{vM}, v{vM}, v{t0}
    v_mul_f32 v{vM}, s43, v{vM}
    ''')
    for u in range(16):
        for r in range(4): e(f'v_fma_f32 v{S+4*u+r}, v{S+4*u+r}, s43, -v{vM}')
        for r in range(4): e(f'v_exp_f32 v{S+4*u+r}, v{S+4*u+r}')
        if u==0: e(f'v_add_f32 v{vLs}, v{S}, v{S+1}')
        else: e(f'v_add_f32 v{vLs}, v{vLs}, v{S+4*u}\nv_add_f32 v{vLs}, v{vLs}, v{S+4*u+1}')
        e(f'''v_cvt_pk_bf16_f32 v{P+2*u}, v{S+4*u}, v{S+4*u+1}
        v_add_f32 v{vLs}, v{vLs}, v{S+4*u+2}
        v_add_f32 v{vLs}, v{vLs}, v{S+4*u+3}
        v_cvt_pk_bf16_f32 v{P+2*u+1}, v{S+4*u+2}, v{S+4*u+3}''')
        if u in (7,): more()
    e(f'''
    v_mov_b32 v{t0}, v{vLs}
    v_permlane32_swap_b32 v{t0}, v{vLs}
    v_add_f32 v{vLs}, v{vLs}, v{t0}
    v_mov_b32 v{t0}, v{vLs}
    v_permlane16_swap_b32 v{t0}, v{vLs}
    v_add_f32 v{vLs}, v{vLs}, v{t0}
    s_lshl_b32 s40, s3, 6
    s_add_u32 s40, s40, {L_ML}
    v_lshl_add_u32 v{t0}, v{vL}, 3, s40
    s_mov_b64 exec, 0xff
    ds_write_b64 v{t0}, v[{vM}:{vM+1}]
    s_waitcnt lgkmcnt(0)
    s_mov_b64 exec, -1
    ''')
    lds_signal(e,F_ML,vFl,vOne)
    stamp(e,cfg,3)
    while nxt[0]<V0+8: more()
    for j in range(8):
        wait_landed(V0+2*j+1)
        if j==7: stamp(e,cfg,4)
        for ct in range(8):
            for hf in range(2):
                r=VF+4*ct+2*hf
                e(f'ds_read_b64_tr_b16 v[{r}:{r+1}], v{vVR+ct} offset:{slot("V",2*j+hf)}')
        for ct in range(8):
            e(f's_waitcnt lgkmcnt({14-2*ct})')
            e(f'v_mfma_f32_16x16x32_bf16 v[{O+4*ct}:{O+4*ct+3}], v[{VF+4*ct}:{VF+4*ct+3}], v[{P+4*j}:{P+4*j+3}], '+('0' if j==0 else f'v[{O+4*ct}:{O+4*ct+3}]'))
        if cfg.adapt==2 and j<3:
            e(f'ds_read_b32 v{vT}, v{vFl} offset:{F_M}\ns_waitcnt lgkmcnt(0)\nv_readfirstlane_b32 s96, v{vT}')
        for k in range(2):
            if V0+2*j+8+k < len(UNITS): issue(V0+2*j+8+k)
        if j==cfg.vsig: lds_signal(e,F_V,vFl,vOne)
        if j==6:
            e(f'''
            v_and_b32 v{t0}, 15, v{vL}
            v_mul_u32_u24 v{t0}, {OSTR}, v{t0}
            v_lshl_add_u32 v{t0}, v{vR}, 4, v{t0}
            v_add_u32 v{t0}, s32, v{t0}
            v_add_u32 v{t0}, {(slot('V',15)+4096)%RING}, v{t0}
            s_mov_b32 s40, 0x00ff00ff
            s_mov_b32 s41, 0x00ff00ff
            ''')
    e('s_mov_b64 exec, s[40:41]')
    for ct in range(8): e(f'ds_write_b128 v{t0}, v[{O+4*ct}:{O+4*ct+3}] offset:{64*ct}')
    e('s_waitcnt lgkmcnt(0)\ns_mov_b64 exec, -1')
    lds_signal(e,F_O,vFl,vOne)
    stamp(e,cfg,5)
    stamps_out(e,cfg,8,vX+4)
    if cfg.stamps:
        e(f'''s_lshl_b32 s40, s2, 2
        s_add_u32 s40, s40, s3
        s_lshl_b32 s40, s40, 8
        s_add_u32 s40, s40, {WS_STAMP+0x40000}
        v_lshl_add_u32 v46, v{vL}, 2, s40
        global_store_dword v46, v47, s[{P_WS}:{P_WS+1}]''')
    e('s_waitcnt lgkmcnt(0)\ns_endpgm')

def aux(e, cfg):
    global gather
    real_gather = gen1.gather
    phase = ['h']
    def gather(e, cfg, loads, vchk, sleep, **kw):
        if phase[0] in cfg.kill: e('s_mov_b32 s41, 1'); return
        real_gather(e, cfg, loads, vchk, sleep, **kw)
    vL=1; vFl=2; vOne=3; vT=4; vRow=5; vRd=6; vRr=7; vA=8
    X2=64; X0=96; X1=128; WO=160; WJ=192
    vHq=62; vRo=63; RN=64; RX=66
    OOFF=(slot('V',15)+4096)%RING
    e.c('================= aux waves =================')
    e('L_aux:')
    e(f'''
    s_setprio {cfg.prio}
    s_sub_u32 s3, s3, 4
    s_lshl_b32 s32, s3, 15
    v_lshlrev_b32 v{vRow}, 4, v{vL}
    v_mov_b32 v{vFl}, {L_FLAG}
    v_mov_b32 v{vOne}, 1
    v_mov_b32 v16, 0
    v_lshl_add_u32 v{vA+1}, v{vL}, 2, v{vFl}
    ds_write_b32 v{vA+1}, v16
    v_mov_b32 v32, -1
    v_mov_b32 v33, -1
    v_mov_b32 v34, -1
    v_mov_b32 v35, -1
    v_bfe_u32 v{vA+2}, v{vL}, 2, 2
    v_lshrrev_b32 v{vA+3}, 4, v{vL}
    v_and_b32 v{vA+6}, 3, v{vL}
    v_lshl_add_u32 v{vA+3}, v{vA+3}, 2, v{vA+6}
    v_lshlrev_b32 v{vA+2}, 11, v{vA+2}
    v_lshl_add_u32 v{vA}, v{vA+3}, 3, v{vA+2}
    s_lshl_b32 s40, s36, 9
    s_lshl_b32 s41, s3, 7
    s_add_u32 s40, s40, s41
    v_add_u32 v{vA}, s40, v{vA}
    s_lshl_b32 s40, s3, 11
    v_add_u32 v{vA+1}, s40, v{vRow}
    v_lshl_add_u32 v{vA+5}, v{vA+3}, 2, v{vA+2}
    s_and_b32 s40, s101, 7
    s_lshl_b32 s40, s40, 8
    s_lshl_b32 s41, s3, 6
    s_add_u32 s40, s40, s41
    v_add_u32 v{vA+5}, s40, v{vA+5}
    s_waitcnt lgkmcnt(0)
    ''')
    stamp(e,cfg,0)
    srd(e,SWS,P_WS,WS_END)
    lh=e.label('Lnohead')
    e(f'''
    s_cmp_lt_u32 s99, 255
    s_cbranch_scc1 {lh}
    s_cmp_lg_u32 s3, 3
    s_cbranch_scc1 {lh}_b
    s_mov_b32 s40, {WS_SA}
    buffer_store_dwordx4 v[32:35], v{vRow}, s[{SWS}:{SWS+3}], s40 offen sc1
    v_mov_b32 v{vA+4}, 0
    s_waitcnt vmcnt(0)
    s_mov_b64 exec, 1
    global_store_dword v{vA+4}, v{vOne}, s[{P_DBG}:{P_DBG+1}] sc1
    s_mov_b64 exec, -1
    {lh}_b:
    s_barrier
    {lh}:
    v_mov_b32 v{vHq}, v{vA}
    v_and_b32 v{vA+2}, 15, v{vL}
    v_lshlrev_b32 v{vRo}, 3, v{vA+2}
    v_lshrrev_b32 v{vA+2}, 5, v{vL}
    v_lshl_add_u32 v{vRo}, v{vA+2}, 2, v{vRo}
    s_cmp_eq_u32 s33, 1
    s_cbranch_scc1 L_nox
    global_load_dwordx2 v[16:17], v{vA}, s[{P_C}:{P_C+1}]
    global_load_dword v18, v{vA+5}, s[{P_C}:{P_C+1}]
    s_cmp_lt_u32 s99, 224
    s_cbranch_scc1 L_nox
    s_cmp_ge_u32 s3, 2
    s_cbranch_scc1 L_nox
    s_sub_u32 s98, s99, 224
    s_lshl_b32 s98, s98, 1
    s_add_u32 s98, s98, s3
    s_lshr_b32 s40, s98, 4
    s_lshl_b32 s40, s40, 11
    v_add_u32 v{vA+1}, s40, v{vRow}
    s_lshl_b32 s40, s98, 7
    v_add_u32 v{vA+2}, s40, v{vRo}
    global_load_dwordx4 v[24:27], v{vA+1}, s[{P_X}:{P_X+1}]
    global_load_dwordx4 v[28:31], v{vA+1}, s[{P_X}:{P_X+1}] offset:1024
    global_load_dword v19, v{vA+2}, s[{P_X}:{P_X+1}]
    L_nox:
    s_cmp_ge_u32 s99, 255
    s_cbranch_scc1 L_nobar
    s_barrier
    L_nobar:
    s_mov_b32 s50, 0
    s_mul_i32 s40, s3, 2304
    s_add_u32 s40, s40, {L_RED}
    v_lshrrev_b32 v{vA+2}, 4, v{vL}
    v_mul_u32_u24 v{vRd}, 576, v{vA+2}
    v_and_b32 v{vA+2}, 15, v{vL}
    v_lshl_add_u32 v{vRd}, v{vA+2}, 2, v{vRd}
    v_add_u32 v{vRd}, s40, v{vRd}
    s_mul_i32 s40, s3, 576
    s_add_u32 s40, s40, {L_RED}
    v_lshl_add_u32 v{vRr}, v{vL}, 3, s40
    ''')
    q4=FLATSH//4; nf=q4//1024; rem=q4%1024
    lc=e.label('Lclr'); lc2=e.label('Lclrd')
    e(f'''
    s_mul_i32 s40, s2, {FLATSH}
    s_mul_i32 s41, s3, {q4}
    s_add_u32 s41, s40, s41
    {'s_mov_b32 s46, 0' if 'c' in cfg.kill else ''}
    ''')
    for i in range(nf): e(f'buffer_store_dwordx4 v[32:35], v{vRow}, s[{SWS}:{SWS+3}], s41 offen offset:{1024*i} {cfg.cpol}')
    if rem:
        e(f'''v_cmp_gt_u32 vcc, {rem//16}, v{vL}
        s_and_b64 exec, exec, vcc
        buffer_store_dwordx4 v[32:35], v{vRow}, s[{SWS}:{SWS+3}], s41 offen offset:{1024*nf} {cfg.cpol}
        s_mov_b64 exec, -1''')
    nst=nf+(1 if rem else 0)
    lr0=if_red_early=e.label('Lnrc')
    e(f'''
    s_cmp_lg_u32 s33, 0
    s_cbranch_scc1 {lc}
    s_lshl_b32 s40, s36, 2
    s_add_u32 s40, s40, s3
    s_mul_i32 s40, s40, {MUS}
    s_lshl_b32 s41, s39, 9
    s_add_u32 s40, s40, s41
    s_add_u32 s40, s40, {WS_MU}
    v_lshlrev_b32 v{vA}, 3, v{vL}
    buffer_store_dwordx2 v[32:33], v{vA}, s[{SWS}:{SWS+3}], s40 offen sc1
    s_waitcnt vmcnt({nst+1})
    s_branch {lc2}
    {lc}:
    s_cmp_lt_u32 s99, 224
    s_cbranch_scc1 {lr0}
    s_cmp_ge_u32 s3, 2
    s_cbranch_scc1 {lr0}
    s_lshl_b32 s40, s98, 7
    s_add_u32 s40, s40, {WS_H}
    buffer_store_dword v32, v{vRo}, s[{SWS}:{SWS+3}], s40 offen sc1
    s_waitcnt vmcnt({nst+1})
    s_branch {lc2}
    {lr0}:
    s_waitcnt vmcnt({nst})
    {lc2}:
    ''')
    stamp(e,cfg,14)
    if 'c' in cfg.kill: e(f's_mov_b32 s46, {WS_END}')
    if 'h' in cfg.kill: e('s_mov_b32 s46, 0')
    def auxbar():
        e('s_add_u32 s50, s50, 4\ns_waitcnt lgkmcnt(0)')
        lds_signal(e,F_AUX,vFl,vOne)
        lds_spin(e,cfg,F_AUX,'s50',vFl,vT)
    def go1():
        if 'h' in cfg.kill: return
        l=e.label('Lgo'); d=e.label('Lgod'); la=e.label('Lnogo')
        e(f'''
        s_cmp_lg_u32 s3, 3
        s_cbranch_scc1 {la}
        v_mov_b32 v{vA}, 0
        s_mov_b32 s41, 0
        {l}:
        global_load_dword v{vA+1}, v{vA}, s[{P_DBG}:{P_DBG+1}] sc1
        s_add_u32 s41, s41, 1
        s_waitcnt vmcnt(0)
        v_cmp_ne_u32 vcc, 1, v{vA+1}
        s_cbranch_vccz {d}
        s_sleep {cfg.sleep_head}
        s_cmp_lt_u32 s41, {cfg.gpoll}
        s_cbranch_scc1 {l}
        {d}:
        ''')
        stamp(e,cfg,15)
        e(f'{la}:\ns_waitcnt vmcnt(0)')
    def arrive():
        la=e.label('Lnoarr')
        e(f'''
        s_cmp_lg_u32 s3, 3
        s_cbranch_scc1 {la}
        s_lshl_b32 s40, s99, 2
        s_add_u32 s40, s40, {WS_SA}
        v_mov_b32 v{vA}, 0
        s_mov_b64 exec, 1
        buffer_store_dword v{vOne}, v{vA}, s[{SWS}:{SWS+3}], s40 offen sc1
        s_mov_b64 exec, -1
        {la}:
        ''')
    def gbar1():
        l1=e.label('Lgb1')
        e(f's_cmp_lg_u32 s3, 0\ns_cbranch_scc1 {l1}\ns_mov_b32 s40, {WS_SA}')
        gather(e,cfg,[(24,4,vRow,'s40',0)],vT,cfg.sleep_head)
        e(f'{l1}:')
    def pickup(kind, dsts):
        gi=GROUPS.index(kind)
        e(f'''v_lshrrev_b32 v{vA+7}, 2, v{vL}
        v_lshlrev_b32 v{vA}, 8, v{vA+7}
        v_and_b32 v{vA+7}, 7, v{vA+7}
        v_lshl_add_u32 v{vA}, v{vA+7}, 5, v{vA}
        v_and_b32 v{vA+7}, 3, v{vL}
        v_lshl_add_u32 v{vA}, v{vA+7}, 3, v{vA}
        v_add_u32 v{vA}, s32, v{vA}''')
        for ct in range(1,8): e(f'v_xor_b32 v{vA+ct}, {ct<<5}, v{vA}')
        lds_spin(e,cfg,F_LAND+4*gi,4,vFl,vT)
        for t,W in enumerate(dsts):
            sk=None
            if isinstance(W,tuple):
                W=W[0]; sk=e.label('Lsk'); e(f's_cmp_eq_u32 s0, 0\ns_cbranch_scc1 {sk}')
            for ct in range(8):
                for hf in range(2):
                    r=W+4*ct+2*hf
                    e(f'ds_read_b64_tr_b16 v[{r}:{r+1}], v{vA+ct} offset:{slot(kind,2*t+hf)}')
            if sk: e(f'{sk}:')
        e('s_waitcnt lgkmcnt(0)')
        lds_signal(e,F_CONS+4*gi,vFl,vOne)
    def pickup_cols(kind, W, base=None):
        gi=GROUPS.index(kind)
        e(f'''v_lshrrev_b32 v{vA+7}, 2, v{vL}
        v_lshlrev_b32 v{vA}, 8, v{vA+7}
        v_and_b32 v{vA+7}, 7, v{vA+7}
        s_lshl_b32 s40, s3, 1
        v_xor_b32 v{vA+7}, s40, v{vA+7}
        v_lshl_add_u32 v{vA}, v{vA+7}, 5, v{vA}
        v_and_b32 v{vA+7}, 3, v{vL}
        v_lshl_add_u32 v{vA}, v{vA+7}, 3, v{vA}
        v_xor_b32 v{vA+1}, 32, v{vA}
        v_add_u32 v{vA+2}, 0x10000, v{vA}
        v_add_u32 v{vA+3}, 0x10000, v{vA+1}''')
        if base is None: lds_spin(e,cfg,F_LAND+4*gi,4,vFl,vT)
        for t in range(4):
            for j in range(2):
                for hf in range(2):
                    r=W+8*t+4*j+2*hf
                    e(f'ds_read_b64_tr_b16 v[{r}:{r+1}], v{vA+2*(t>>1)+j} offset:{(t&1)*RING+(slot(kind,hf) if base is None else base+4096*hf)}')
        if base is None:
            e('s_waitcnt lgkmcnt(0)')
            lds_signal(e,F_CONS+4*gi,vFl,vOne)
    def pickup_x(kind, W):
        la=e.label('Lpl'); lb=e.label('Lpld')
        e(f's_cmp_ge_u32 s99, 224\ns_cbranch_scc1 {la}')
        if kind[1] in cfg.defer: lds_signal(e,F_CONS+4*GROUPS.index(kind),vFl,vOne)
        else: pickup_cols(kind,W)
        e(f's_branch {lb}\n{la}:')
        pickup(kind,[W])
        e(f'{lb}:')
    def mmx(Ws, accs, vXr):
        e('s_waitcnt lgkmcnt(0)\ns_barrier')
        for t in range(4): e(f'ds_read_b128 v[{16+4*t}:{19+4*t}], v{vXr} offset:{64*t}')
        for t in range(4):
            e(f's_waitcnt lgkmcnt({3-t})')
            for m,W in enumerate(Ws):
                for j in range(2):
                    ac=accs[2*m+j]
                    e(f'v_mfma_f32_16x16x32_bf16 v[{ac}:{ac+3}], v[{16+4*t}:{19+4*t}], v[{W+8*t+4*j}:{W+8*t+4*j+3}], '+('0' if t==0 else f'v[{ac}:{ac+3}]'))
    def mm(As, Ws, accs, redoff=0):
        for t,(a_,W) in enumerate(zip(As,Ws)):
            for ct in range(8):
                e(f'v_mfma_f32_16x16x32_bf16 v[{accs[ct]}:{accs[ct]+3}], v[{a_}:{a_+3}], v[{W+4*ct}:{W+4*ct+3}], '+('0' if t==0 else f'v[{accs[ct]}:{accs[ct]+3}]'))
        for ct in range(8): e(f'ds_write_b32 v{vRd}, v{accs[ct]} offset:{64*ct}')
    JACC=[24+4*i for i in range(8)]
    def job_pub(base, rs, cgoff, skq='s36', scg='s39'):
        for w in range(4): e(f'ds_read_b64 v[{24+2*w}:{25+2*w}], v{vRr} offset:{2304*w}')
        e(f'''
        s_lshl_b32 s40, {skq}, 2
        s_add_u32 s40, s40, s3
        s_mul_i32 s40, s40, {rs}
        s_lshl_b32 s41, {scg}, 9
        s_add_u32 s40, s40, s41
        s_add_u32 s40, s40, {base+cgoff*512}
        v_lshlrev_b32 v{vA}, 3, v{vL}
        s_waitcnt lgkmcnt(0)
        ''')
        sum4(24,24)
        e(f'''
        v_min_u32 v24, -2, v24
        v_min_u32 v25, -2, v25
        buffer_store_dwordx2 v[24:25], v{vA}, s[{SWS}:{SWS+3}], s40 offen sc1
        ''')
    def spread(r):
        for k in (1,2,3,0): e(f'v_mov_b32_dpp v{r+k}, v{r} quad_perm:[{k},{k},{k},{k}] row_mask:0xf bank_mask:0xf')
    def silu_A():
        unpack(e,16,32,3)
        for i in range(6): e(f'v_mul_f32 v{48+i}, 0xbfb8aa3b, v{32+i}')
        for i in range(6): e(f'v_exp_f32 v{48+i}, v{48+i}')
        for i in range(6): e(f'v_add_f32 v{48+i}, 1.0, v{48+i}')
        for i in range(6): e(f'v_rcp_f32 v{48+i}, v{48+i}')
        for i in range(6): e(f'v_mul_f32 v{32+i}, v{32+i}, v{48+i}')
        e('v_cvt_pk_bf16_f32 v16, v32, v33\nv_cvt_pk_bf16_f32 v20, v34, v35\nv_cvt_pk_bf16_f32 v56, v36, v37')
        spread(16); spread(20); spread(56)
    def sum4(r, dst):
        e(f'''v_pk_add_f32 v[{r}:{r+1}], v[{r}:{r+1}], v[{r+2}:{r+3}]
        v_pk_add_f32 v[{r+4}:{r+5}], v[{r+4}:{r+5}], v[{r+6}:{r+7}]
        v_pk_add_f32 v[{dst}:{dst+1}], v[{r}:{r+1}], v[{r+4}:{r+5}]''')
    def aoff(dst, pstr, bstr, gstr):
        e(f'''v_bfe_u32 v{vA+5}, v{vL}, 2, 2
        v_and_b32 v{vA+6}, 3, v{vL}
        v_lshrrev_b32 v{vA+7}, 4, v{vL}
        v_mul_u32_u24 v{dst}, {pstr}, v{vA+5}
        v_mul_u32_u24 v{vA+6}, {bstr}, v{vA+6}
        v_mul_u32_u24 v{vA+7}, {gstr}, v{vA+7}
        v_add3_u32 v{dst}, v{dst}, v{vA+6}, v{vA+7}''')
    def dppsum(r0, n):
        for r in (4,8):
            for i in range(n): e(f'v_add_f32_dpp v{r0+i}, v{r0+i}, v{r0+i} row_ror:{r} row_mask:0xf bank_mask:0xf')
    def allred_s(op, xs, t, rors=(4,8), swaps=('v_permlane16_swap_b32','v_permlane32_swap_b32')):
        for r in rors:
            for x in xs: e(f'{op}_dpp v{x}, v{x}, v{x} row_ror:{r} row_mask:0xf bank_mask:0xf')
        for sw in swaps:
            for k,x in enumerate(xs): e(f'v_mov_b32 v{t+k}, v{x}')
            for k,x in enumerate(xs): e(f'{sw} v{t+k}, v{x}')
            for k,x in enumerate(xs): e(f'{op} v{x}, v{x}, v{t+k}')
    def gather_q():
        e(f'''
        s_lshr_b32 s40, s37, 2
        s_mul_i32 s40, s40, {QS}
        s_and_b32 s41, s37, 3
        s_lshl_b32 s41, s41, 12
        s_add_u32 s40, s40, s41
        s_lshl_b32 s41, s3, 10
        s_add_u32 s40, s40, s41
        s_add_u32 s52, s40, {WS_Q}
        s_add_u32 s53, s52, {4*QS}
        s_add_u32 s54, s52, {8*QS}
        s_add_u32 s55, s52, {12*QS}
        ''')
        gather(e,cfg,[(24+4*i,4,vRow,f's{52+i}',0) for i in range(4)],vT,cfg.sleep_q)
        e(f'''
        s_mov_b32 s42, s41
        v_pk_add_f32 v[24:25], v[24:25], v[28:29]
        v_pk_add_f32 v[26:27], v[26:27], v[30:31]
        v_pk_add_f32 v[32:33], v[32:33], v[36:37]
        v_pk_add_f32 v[34:35], v[34:35], v[38:39]
        v_pk_add_f32 v[24:25], v[24:25], v[32:33]
        v_pk_add_f32 v[26:27], v[26:27], v[34:35]
        s_mul_i32 s40, s3, {2*QSTR}
        s_add_u32 s40, s40, {L_QOP}
        v_lshrrev_b32 v{vA}, 5, v{vL}
        v_mul_u32_u24 v{vA}, {QSTR}, v{vA}
        v_and_b32 v{vA+1}, 31, v{vL}
        v_lshl_add_u32 v{vA}, v{vA+1}, 3, v{vA}
        v_add_u32 v{vA}, s40, v{vA}
        v_cvt_pk_bf16_f32 v24, v24, v25
        v_cvt_pk_bf16_f32 v25, v26, v27
        ds_write_b64 v{vA}, v[24:25]
        ''')
        if cfg.adapt==1:
            lb=e.label('Lld')
            e(f's_cmp_lg_u32 s42, 1\ns_cbranch_scc1 {lb}')
            lds_signal(e,F_M,vFl,vOne)
            e(f'{lb}:')
        e('s_waitcnt lgkmcnt(0)')
        lds_signal(e,F_Q,vFl,vOne)
    early = True
    def finish_stats(mu,var):
        if cfg.round_ln: rnd1(e,mu); rnd1(e,var)
        e(f'v_add_f32 v{var}, 0x3727c5ac, v{var}')
        if cfg.round_ln: rnd1(e,var)
        e(f'v_sqrt_f32 v{var}, v{var}')
        if cfg.round_ln: rnd1(e,var)
        e(f'v_rcp_f32 v{var}, v{var}')
    def normalise(X,n,mu,rs,t):
        for i in range(n): e(f'v_sub_f32 v{X+i}, v{X+i}, v{mu}')
        if cfg.round_ln: rnd_vec(e,X,n,t)
        for i in range(n): e(f'v_mul_f32 v{X+i}, v{X+i}, v{rs}')
        if cfg.round_ln: rnd_vec(e,X,n,t)
    def modulate(X,n,T1,SB,out,t,prep=True):
        if prep:
            for i in range(n): e(f'v_add_f32 v{T1+i}, 1.0, v{T1+i}')
            if cfg.round_ln: rnd_vec(e,T1,n,t)
        for i in range(n): e(f'v_mul_f32 v{X+i}, v{X+i}, v{T1+i}')
        if cfg.round_ln: rnd_vec(e,X,n,t)
        for i in range(n): e(f'v_add_f32 v{X+i}, v{X+i}, v{SB+i}')
        for i in range(n//2): e(f'v_cvt_pk_bf16_f32 v{out+i}, v{X+2*i}, v{X+2*i+1}')
    def rowsum(r):
        e(f'''
        v_permlane32_swap_b32 v{r}, v{r+2}
        v_permlane32_swap_b32 v{r+1}, v{r+3}
        v_pk_add_f32 v[{r}:{r+1}], v[{r}:{r+1}], v[{r+2}:{r+3}]
        v_mov_b32 v{r+2}, v{r}
        v_mov_b32 v{r+3}, v{r+1}
        v_permlane16_swap_b32 v{r+2}, v{r}
        v_permlane16_swap_b32 v{r+3}, v{r+1}
        v_pk_add_f32 v[{r}:{r+1}], v[{r}:{r+1}], v[{r+2}:{r+3}]
        ''')
    def if_red():
        l=e.label('Lnr')
        e(f's_cmp_lt_u32 s99, 224\ns_cbranch_scc1 {l}\ns_cmp_ge_u32 s3, 2\ns_cbranch_scc1 {l}')
        return l
    def red_addr(base, rs, sreg):
        aoff(vA, 64, 16, 4*rs)
        e(f'''s_lshr_b32 s42, s98, 4
        s_mul_i32 s42, s42, {rs}
        s_and_b32 s43, s98, 15
        s_lshl_b32 s43, s43, 8
        s_add_u32 s42, s42, s43
        s_add_u32 {sreg}, s42, {base}''')
    def red_stats():
        l=if_red()
        unpack(e,24,32,8)
        mu=24; var=25; a_=26; b_=27
        e(f'v_add_f32 v{mu}, v32, v33\nv_add_f32 v{a_}, v34, v35')
        for i in range(4,16,2): e(f'v_add_f32 v{mu}, v{mu}, v{32+i}\nv_add_f32 v{a_}, v{a_}, v{33+i}')
        e(f'v_add_f32 v{mu}, v{mu}, v{a_}')
        allreduce64(e,'v_add_f32',mu,a_)
        e(f'v_mul_f32 v{mu}, 0x3a800000, v{mu}')
        e(f'v_sub_f32 v{a_}, v32, v{mu}\nv_sub_f32 v{b_}, v33, v{mu}\nv_mul_f32 v{var}, v{a_}, v{a_}\nv_mul_f32 v28, v{b_}, v{b_}')
        for i in range(2,16,2):
            e(f'v_sub_f32 v{a_}, v{32+i}, v{mu}\nv_sub_f32 v{b_}, v{33+i}, v{mu}\nv_fmac_f32 v{var}, v{a_}, v{a_}\nv_fmac_f32 v28, v{b_}, v{b_}')
        e(f'v_add_f32 v{var}, v{var}, v28')
        allreduce64(e,'v_add_f32',var,a_)
        e(f'v_mul_f32 v{var}, 0x3a800000, v{var}')
        finish_stats(mu,var)
        unpack(e,19,RX,1); unpack(e,19,RN,1)
        normalise(RN,2,mu,var,26)
        e(f'{l}:')
    def red_sa():
        l=if_red()
        e(f'v_and_b32 v{vA}, 15, v{vL}\nv_lshlrev_b32 v{vA}, 4, v{vA}\ns_mov_b32 s40, {WS_SA}')
        gather(e,cfg,[(24,4,vA,'s40',0)],vT,cfg.sleep_head)
        e(f'{l}:')
    def red_h():
        l=if_red()
        red_addr(WS_MU,MUS,'s52')
        e('s_add_u32 s53, s52, 4096')
        gather(e,cfg,[(24,4,vA,'s52',0),(28,4,vA,'s53',0)],vT,cfg.sleep_head)
        rowsum(24); rowsum(28)
        rnd_vec(e,24,2,26); rnd_vec(e,28,2,26)
        modulate(RN,2,28,24,24,26)
        e(f'''
        v_min_u32 v24, -2, v24
        s_lshl_b32 s40, s98, 7
        s_add_u32 s40, s40, {WS_H}
        s_mov_b32 s42, 0xffff
        s_mov_b32 s43, 0xffff
        s_mov_b64 exec, s[42:43]
        buffer_store_dword v24, v{vRo}, s[{SWS}:{SWS+3}], s40 offen sc1
        s_mov_b64 exec, -1
        {l}:
        ''')
    def red_ts():
        l=if_red()
        red_addr(WS_MN+4096,MNS,'s52')
        e('s_add_u32 s53, s52, 4096')
        gather(e,cfg,[(24,4,vA,'s52',0),(28,4,vA,'s53',0)],vT,cfg.sleep_head)
        rowsum(24); rowsum(28)
        rnd_vec(e,28,2,26)
        e(f'''
        v_add_f32 v28, 1.0, v28
        v_add_f32 v29, 1.0, v29
        v_cvt_pk_bf16_f32 v24, v28, v24
        v_cvt_pk_bf16_f32 v25, v29, v25
        v_min_u32 v24, -2, v24
        v_min_u32 v25, -2, v25
        v_lshlrev_b32 v{vA}, 1, v{vRo}
        s_lshl_b32 s40, s98, 8
        s_add_u32 s40, s40, {WS_TS}
        s_mov_b32 s42, 0xffff
        s_mov_b32 s43, 0xffff
        s_mov_b64 exec, s[42:43]
        buffer_store_dwordx2 v[24:25], v{vA}, s[{SWS}:{SWS+3}], s40 offen sc1
        s_mov_b64 exec, -1
        {l}:
        ''')
    def red_g():
        l=if_red()
        red_addr(WS_MN,MNS,'s52')
        e(f'v_mov_b32 v{vA+1}, v{vA}')
        red_addr(WS_MG,MGS,'s53')
        e(f's_add_u32 s54, s53, {16*MGS}')
        gather(e,cfg,[(24,4,vA+1,'s52',0),(28,4,vA,'s53',0),(32,4,vA,'s54',0)],vT,cfg.sleep_head)
        e('v_pk_add_f32 v[28:29], v[28:29], v[32:33]\nv_pk_add_f32 v[30:31], v[30:31], v[34:35]')
        rowsum(24); rowsum(28)
        e(f'v_mov_b32 v{RX+2}, v24\nv_mov_b32 v{RX+3}, v25\nv_mov_b32 v{RX+4}, v28\nv_mov_b32 v{RX+5}, v29')
        rnd_vec(e,RX+2,4,26)
        e(f'{l}:')
    def wpick(a=0,b=5):
        for g,d in sorted([t for t in [('WO',WO),('X0',X0),('X1',X1),('X2',X2),('X3',WJ)] if (t[0],0) in UNITS], key=lambda t: upos(t[0],0))[a:b]:
            if g=='X2':
                la=e.label('Lpl'); lb=e.label('Lpld')
                e(f's_cmp_ge_u32 s99, 224\ns_cbranch_scc1 {la}')
                pickup_cols(g,d)
                e(f's_branch {lb}\n{la}:')
                lds_signal(e,F_CONS+4*GROUPS.index(g),vFl,vOne)
                e(f'{lb}:')
            elif g=='WO': pickup_cols(g,d)
            elif g=='X3':
                la=e.label('Lpl'); lb=e.label('Lpld')
                e(f's_cmp_eq_u32 s0, 0\ns_cbranch_scc1 {la}')
                pickup(g,[d])
                e(f's_branch {lb}\n{la}:')
                lds_signal(e,F_CONS+4*GROUPS.index(g),vFl,vOne)
                e(f'{lb}:')
            else: pickup_x(g,d)
    def njobs():
        gbar1(); auxbar()
        job_pub(WS_MN,MNS,-16)
        ln=e.label('Lnoj2')
        e(f's_cmp_lt_u32 s99, 224\ns_cbranch_scc1 {ln}')
        auxbar(); mm([16,20],[X0,X1],JACC); auxbar(); job_pub(WS_MN,MNS,-16,scg='s101')
        e(f'{ln}:')
    def gjob():
        lg=e.label('Lnog')
        e(f's_cmp_eq_u32 s0, 0\ns_cbranch_scc1 {lg}')
        mm([56],[WJ],JACC); auxbar()
        e('s_and_b32 s42, s101, 7\ns_lshr_b32 s43, s101, 3')
        job_pub(WS_MG,MGS,0,'s42','s43')
        auxbar()
        e(f'{lg}:')
    e('''
    s_cmp_eq_u32 s33, 1
    s_cbranch_scc1 L_roleQ
    ''')
    red_stats(); silu_A(); go1(); auxbar(); arrive(); pickup('J',[WJ,WJ+32]); mm([16,20],[WJ,WJ+32],JACC); auxbar()
    e('s_cmp_eq_u32 s33, 2\ns_cbranch_scc1 L_roleN')
    job_pub(WS_MU,MUS,0)
    stamp(e,cfg,1)
    wpick(); gbar1(); auxbar()
    stamp(e,cfg,2)
    e('s_branch L_common')
    e('L_roleN:')
    stamp(e,cfg,1)
    wpick(0,cfg.safter); red_sa(); wpick(cfg.safter,cfg.hafter); red_h(); wpick(cfg.hafter,5); njobs()
    stamp(e,cfg,2)
    e('s_branch L_common')
    e('L_roleQ:')
    go1(); auxbar(); arrive()
    pickup('J',[WJ,WJ+32])
    wpick(0,cfg.qafter)
    gbar1(); auxbar()
    stamp(e,cfg,1)
    if cfg.hgate: lds_spin(e,cfg,F_P2,4,vFl,vT)
    e(f's_mov_b32 s40, {WS_H}')
    gather(e,cfg,[(16,2,vHq,'s40',0)],vT,cfg.sleep_head)
    e('v_mov_b32 v20, v17')
    spread(16); spread(20)
    mm([16,20],[WJ,WJ+32],JACC); auxbar()
    job_pub(WS_Q,QS,0)
    stamp(e,cfg,2)
    wpick(cfg.qafter,5)
    e('L_common:')
    if cfg.qgate: lds_spin(e,cfg,F_P,4,vFl,vT)
    gather_q()
    stamp(e,cfg,3)
    auxbar()
    gjob()
    red_ts()
    phase[0]='m'
    if 'h' in cfg.kill: e(f's_mov_b32 s46, {WS_END}')
    if 'm' in cfg.kill: e('s_mov_b32 s46, 0')
    F=192; T1=204; SB=206; AC2=[220+4*i for i in range(8)]
    lds_spin(e,cfg,F_ML,4,vFl,vT)
    lm=e.label('Lnoml')
    e(f'''
    s_cmp_lg_u32 s3, 0
    s_cbranch_scc1 {lm}
    v_and_b32 v{vA}, 7, v{vL}
    v_lshlrev_b32 v{vA+1}, 3, v{vA}
    v_add_u32 v{vA}, {L_ML}, v{vA+1}
    ds_read_b64 v[16:17], v{vA}
    ds_read_b64 v[18:19], v{vA} offset:64
    ds_read_b64 v[20:21], v{vA} offset:128
    ds_read_b64 v[22:23], v{vA} offset:192
    s_lshl_b32 s40, s37, 10
    s_lshl_b32 s41, s38, 6
    s_add_u32 s40, s40, s41
    s_add_u32 s40, s40, {WS_ML}
    s_waitcnt lgkmcnt(0)
    v_max3_f32 v24, v16, v18, v20
    v_max_f32 v24, v24, v22
    v_sub_f32 v16, v16, v24
    v_sub_f32 v18, v18, v24
    v_sub_f32 v20, v20, v24
    v_sub_f32 v22, v22, v24
    v_exp_f32 v16, v16
    v_exp_f32 v18, v18
    v_exp_f32 v20, v20
    v_exp_f32 v22, v22
    v_mul_f32 v25, v16, v17
    v_fmac_f32 v25, v18, v19
    v_fmac_f32 v25, v20, v21
    v_fmac_f32 v25, v22, v23
    v_min_u32 v24, -2, v24
    v_min_u32 v25, -2, v25
    s_mov_b64 exec, 0xff
    buffer_store_dwordx2 v[24:25], v{vA+1}, s[{SWS}:{SWS+3}], s40 offen sc1
    s_mov_b64 exec, -1
    ''')
    if cfg.adapt==2:
        e(f'''
        s_lshl_b32 s40, s37, 10
        s_add_u32 s40, s40, {WS_ML}
        buffer_load_dword v16, v{vRow}, s[{SWS}:{SWS+3}], s40 offen sc1
        s_waitcnt vmcnt(0)
        v_cmp_ne_u32 vcc, -1, v16
        s_bcnt1_i32_b64 s40, vcc
        s_cmp_lt_u32 s40, {4*cfg.rank}
        s_cbranch_scc1 {lm}
        ''')
        lds_signal(e,F_M,vFl,vOne)
    e(f'{lm}:')
    vOc=48; vOs=49; vH1=50; vYs=53; vH3=55; vZs=56; vXs=57; vSt=58; vOc2=59; vGs=51; vXr=52; vXw=60
    red_g()
    aoff(vH1, OS, 16, 64*OS)
    aoff(vH3, 8, 32, GS)
    aoff(vXs, 4, 16, 2048)
    aoff(vYs, 16, 4, 16*YS)
    aoff(vZs, 16, 4, 16*ZS)
    aoff(vGs, 16, 4, GS)
    aoff(vXr, XSTR, 0, 16)
    aoff(vXw, 4, 16, XSTR)
    aoff(vSt, 128, 8, 512)
    e(f'''
    v_add_u32 v{vXr}, {L_AX}, v{vXr}
    s_lshl_b32 s40, s3, 6
    s_add_u32 s40, s40, {L_AX}
    v_add_u32 v{vXw}, s40, v{vXw}
    s_lshl_b32 s40, s3, 1
    v_lshrrev_b32 v{vA}, 5, v{vL}
    v_add_u32 v{vA+2}, s40, v{vA}
    v_mul_u32_u24 v{vOc}, {OSTR}, v{vA+2}
    v_and_b32 v{vA+1}, 31, v{vL}
    v_lshl_add_u32 v{vOc}, v{vA+1}, 4, v{vOc}
    v_add_u32 v{vOc}, {OOFF}, v{vOc}
    v_add_u32 v{vOc2}, 0x10000, v{vOc}
    v_lshlrev_b32 v{vOs}, 3, v{vL}
    s_lshl_b32 s52, s37, 4
    s_add_u32 s52, s52, s38
    s_mul_i32 s52, s52, {OS}
    s_lshl_b32 s40, s3, 9
    s_add_u32 s52, s52, s40
    s_mul_i32 s53, s3, {16*OS}
    s_and_b32 s40, s14, 7
    s_lshl_b32 s40, s40, 8
    s_add_u32 s53, s53, s40
    s_bfe_u32 s40, s14, 0x20003
    s_lshl_b32 s40, s40, 6
    s_add_u32 s53, s53, s40
    s_add_u32 s54, s53, {4*OS}
    s_add_u32 s55, s53, {8*OS}
    s_add_u32 s56, s53, {12*OS}
    s_lshr_b32 s42, s3, 1
    s_and_b32 s43, s3, 1
    s_lshl_b32 s43, s43, 7
    s_lshr_b32 s40, s14, 5
    s_lshl_b32 s40, s40, 1
    s_add_u32 s40, s40, s42
    s_mul_i32 s57, s40, {YS}
    s_and_b32 s40, s14, 31
    s_lshl_b32 s40, s40, 8
    s_add_u32 s57, s57, s40
    s_add_u32 s57, s57, s43
    s_add_u32 s57, s57, {WS_Y}
    s_and_b32 s40, s1, 7
    s_lshl_b32 s40, s40, 1
    s_add_u32 s40, s40, s42
    s_mul_i32 s59, s40, {ZS}
    s_add_u32 s59, s59, s43
    s_lshr_b32 s43, s1, 3
    s_lshl_b32 s42, s43, 8
    s_add_u32 s59, s59, s42
    s_add_u32 s59, s59, {WS_Z}
    s_and_b32 s40, s63, 7
    s_lshl_b32 s58, s40, 8
    s_lshl_b32 s42, s3, 6
    s_add_u32 s58, s58, s42
    s_add_u32 s58, s58, {WS_X1}
    s_mov_b32 s49, {WS_ST}
    s_mul_i32 s60, s40, {4*GS}
    s_lshr_b32 s41, s63, 3
    s_lshl_b32 s41, s41, 9
    s_add_u32 s60, s60, s41
    s_lshl_b32 s40, s3, 7
    s_add_u32 s60, s60, s40
    s_add_u32 s60, s60, {WS_GU}
    s_lshl_b32 s43, s43, 9
    s_add_u32 s48, s43, s40
    s_add_u32 s48, s48, {WS_GU}
    s_mov_b32 s61, 0x3f80
    s_mov_b32 s62, 0x3f800000
    s_mov_b32 s96, 0x000f000f
    s_mov_b32 s97, 0x000f000f
    s_mov_b32 s10, {1024*3584*2}
    s_mov_b32 s11, 0x20000
    v_lshrrev_b32 v{vA}, 4, v{vL}
    v_and_b32 v{vA+1}, 15, v{vL}
    v_lshlrev_b32 v{vA+2}, 1, v{vA}
    v_xor_b32 v{vA+2}, v{vA+2}, v{vA+1}
    v_lshlrev_b32 v{vA+2}, 4, v{vA+2}
    v_lshl_add_u32 v208, v{vA}, 11, v{vA+2}
    v_xor_b32 v209, 128, v208
    v_mul_u32_u24 v210, 7168, v{vA}
    v_add_u32 v210, v210, v{vA+2}
    s_lshr_b32 s40, s1, 3
    s_lshl_b32 s13, s40, 18
    s_lshl_b32 s40, s3, 16
    s_add_u32 s13, s13, s40
    s_and_b32 s40, s1, 7
    s_lshl_b32 s40, s40, 8
    s_add_u32 s13, s13, s40
    s_and_b32 s40, s63, 7
    s_lshl_b32 s40, s40, 2
    s_add_u32 s40, s40, s3
    s_mul_i32 s12, s40, {32*7168}
    s_lshr_b32 s40, s63, 3
    s_lshl_b32 s40, s40, 8
    s_add_u32 s12, s12, s40
    ''')
    lf=e.label('Lnof')
    lds_spin(e,cfg,F_V,1,vFl,vT)
    lsb=e.label('Lnosb')
    e(f's_cmp_ge_u32 s99, 224\ns_cbranch_scc1 {lsb}')
    aoff(vA, 8, 32, 4096)
    e(f'''
    s_and_b32 s40, s63, 7
    s_lshl_b32 s40, s40, 9
    s_lshl_b32 s42, s3, 7
    s_add_u32 s40, s40, s42
    s_add_u32 s40, s40, {WS_TS}
    ''')
    gather(e,cfg,[(16,2,vA,'s40',0)],vT,cfg.sleep_ml)
    e(f'''
    v_lshlrev_b32 v{T1}, 16, v16
    v_lshlrev_b32 v{T1+1}, 16, v17
    v_and_b32 v{SB}, 0xffff0000, v16
    v_and_b32 v{SB+1}, 0xffff0000, v17
    {lsb}:
    ''')
    e(f's_cmp_lg_u32 s3, 0\ns_cbranch_scc1 {lf}')
    e(f's_lshl_b32 s40, s37, 10\ns_add_u32 s40, s40, {WS_ML}')
    gather(e,cfg,[(16,4,vRow,'s40',0)],vT,cfg.sleep_ml)
    e('v_mov_b32 v20, v16\nv_mov_b32 v22, v18')
    allred_s('v_max_f32',[20,22],24)
    e('''
    v_sub_f32 v16, v16, v20
    v_sub_f32 v18, v18, v22
    v_exp_f32 v16, v16
    v_exp_f32 v18, v18
    v_mul_f32 v21, v16, v17
    v_mul_f32 v23, v18, v19
    ''')
    allred_s('v_add_f32',[21,23],24)
    e(f'''
    v_rcp_f32 v21, v21
    v_rcp_f32 v23, v23
    v_add_u32 v{vA}, {L_ST}, v{vRow}
    s_mov_b64 exec, 15
    ds_write_b128 v{vA}, v[20:23]
    s_waitcnt lgkmcnt(0)
    s_mov_b64 exec, -1
    ''')
    lds_signal(e,F_F,vFl,vOne)
    e(f'''
    {lf}:
    s_lshl_b32 s40, s3, 4
    v_lshrrev_b32 v{vA+1}, 5, v{vL}
    v_lshl_add_u32 v{vA}, v{vA+1}, 3, s40
    v_add_u32 v{vA+1}, {L_ST}, v{vA}
    v_add_u32 v{vA}, {L_ML}, v{vA}
    ds_read_b32 v{F}, v{vA}
    ds_read_b32 v{F+1}, v{vA} offset:64
    ds_read_b32 v{F+2}, v{vA} offset:128
    ds_read_b32 v{F+3}, v{vA} offset:192
    ''')
    lds_spin(e,cfg,F_F,1,vFl,vT)
    e(f'ds_read_b64 v[20:21], v{vA+1}\ns_waitcnt lgkmcnt(0)')
    for k in range(4): e(f'v_sub_f32 v{F+k}, v{F+k}, v20')
    for k in range(4): e(f'v_exp_f32 v{F+k}, v{F+k}')
    for k in range(4): e(f'v_mul_f32 v{F+k}, v{F+k}, v21')
    stamp(e,cfg,4)
    e.c('---- tail: combine the four waves of this workgroup')
    e(f's_setprio {cfg.prio2}')
    lds_spin(e,cfg,F_O,4,vFl,vT,sleep=0)
    stamp(e,cfg,5)
    phase[0]='t'
    if 't' in cfg.kill: e('s_branch L_fin')
    e(f'''
    ds_read_b128 v[16:19], v{vOc}
    ds_read_b128 v[20:23], v{vOc} offset:{RING}
    ds_read_b128 v[24:27], v{vOc2}
    ds_read_b128 v[28:31], v{vOc2} offset:{RING}
    s_waitcnt lgkmcnt(3)
    ''')
    for r in range(4): e(f'v_mul_f32 v{16+r}, v{16+r}, v{F}')
    for k in range(1,4):
        e(f's_waitcnt lgkmcnt({3-k})')
        for r in range(4): e(f'v_fmac_f32 v{16+r}, v{16+4*k+r}, v{F+k}')
    e(f'''
    v_cvt_pk_bf16_f32 v16, v16, v17
    v_cvt_pk_bf16_f32 v17, v18, v19
    v_min_u32 v16, -2, v16
    v_min_u32 v17, -2, v17
    buffer_store_dwordx2 v[16:17], v{vOs}, s[{SWS}:{SWS+3}], s52 offen sc1
    ''')
    def look(i, acki=None):
        if acki is not None and cfg.ack[acki]=='1': e('s_waitcnt vmcnt(0)')
        d=int(cfg.dly.split(',')[i])
        if d: e(f's_sleep {d}')
    def tstamp(i):
        if cfg.tstamps: stamp(e,cfg,i)
    look(0,0)
    def fast(loads, compute, check):
        d=e.label('Lfd')
        for dst,n,voff,soff,imm in loads:
            op={1:'dword',2:'dwordx2',4:'dwordx4'}[n]
            e(f'buffer_load_{op} {v(dst,n)}, v{voff}, s[{SWS}:{SWS+3}], {soff} offen offset:{imm} sc1')
        e('s_waitcnt vmcnt(0)')
        compute(); check()
        e(f's_cbranch_vccz {d}')
        gather(e,cfg,loads,vT,cfg.sleep_tail)
        if cfg.fine: e(f's_min_u32 s41, s41, 255\ns_lshl_b32 s41, s41, {8*fast.n}\ns_or_b32 s100, s100, s41')
        compute()
        e(f'{d}:')
        fast.n+=1
    fast.n=0
    if cfg.fine: e('s_mov_b32 s100, 0')
    def store2(accs, voff, soff):
        for j,ac in enumerate(accs):
            e(f'v_min_u32 v{ac}, -2, v{ac}\nbuffer_store_dword v{ac}, v{voff}, s[{SWS}:{SWS+3}], {soff} offen offset:{64*j} sc1')
    e.c('---- H1 + output projection')
    gather(e,cfg,[(16,4,vH1,'s53',0),(20,4,vH1,'s54',0),(24,4,vH1,'s55',0),(28,4,vH1,'s56',0)],vT,cfg.sleep_tail,backoff=(cfg.bo_n,cfg.bo_s) if cfg.bo_s else None)
    tstamp(6)
    for i in range(4):
        e(f'v_lshlrev_b32 v{32+2*i}, 16, v{16+i}\nv_and_b32 v{33+2*i}, 0xffff0000, v{16+i}')
    for j in range(1,4):
        for i in range(4):
            e(f'v_dot2_f32_bf16 v{32+2*i}, v{16+4*j+i}, s61, v{32+2*i}\nv_dot2_f32_bf16 v{33+2*i}, v{16+4*j+i}, s62, v{33+2*i}')
    dppsum(32,8)
    for i in range(4): e(f'v_cvt_pk_bf16_f32 v{16+i}, v{32+2*i}, v{33+2*i}')
    e(f's_mov_b64 exec, s[96:97]\nds_write_b128 v{vXw}, v[16:19]\ns_mov_b64 exec, -1')
    mmx([WO],[32,36],vXr)
    store2([32,36],vYs,'s57')
    tstamp(7)
    e('s_cmp_ge_u32 s99, 224\ns_cbranch_scc1 L_red')
    def red_tail(n):
        lst=list(range(n))
        while len(lst)>1:
            nx=[]
            for i in range(0,len(lst)-1,2):
                a_,b_=16+4*lst[i],16+4*lst[i+1]
                e(f'v_pk_add_f32 v[{a_}:{a_+1}], v[{a_}:{a_+1}], v[{b_}:{b_+1}]\nv_pk_add_f32 v[{a_+2}:{a_+3}], v[{a_+2}:{a_+3}], v[{b_+2}:{b_+3}]')
                nx.append(lst[i])
            if len(lst)%2: nx.append(lst[-1])
            lst=nx
        e('''
        v_permlane32_swap_b32 v16, v18
        v_permlane32_swap_b32 v17, v19
        v_pk_add_f32 v[16:17], v[16:17], v[18:19]
        v_mov_b32 v18, v16
        v_mov_b32 v19, v17
        v_permlane16_swap_b32 v18, v16
        v_permlane16_swap_b32 v19, v17
        v_pk_add_f32 v[16:17], v[16:17], v[18:19]
        ''')
    def gate_res(G,X,dst):
        rnd_vec(e,16,2,18)
        e(f'v_pk_mul_f32 v[16:17], v[16:17], v[{G}:{G+1}]')
        rnd_vec(e,16,2,18)
        e(f'v_pk_add_f32 v[16:17], v[16:17], v[{X}:{X+1}]\nv_cvt_pk_bf16_f32 v{dst}, v16, v17')
    nan2=lambda a_,b_: (lambda: e(f'v_cmp_u_f32 vcc, v{a_}, v{b_}'))
    if '0' in cfg.defer or '1' in cfg.defer: e('v_mov_b32 v14, v210\nv_xor_b32 v15, 128, v210')
    DEF=[(k,{'0':P_W1,'1':P_W3,'2':P_W2}[k]) for k in cfg.defer]
    for n,(k,p) in enumerate(DEF):
        rs = 2048 if k=='2' else 7168
        e(f's_mov_b32 s8, s{p}\ns_mov_b32 s9, s{p+1}')
        for I in range(8):
            if I%4==0: e(f's_add_u32 m0, s32, {n*8192+(I>>2)*4096}')
            e(f's_add_u32 s41, s{100 if k=="2" else 12}, {(8*(I&3)+4*(I>>2))*rs-1024*(I&3)}')
            e(f'buffer_load_dwordx4 v{(208 if k=="2" else 14)+(I&1)}, s[8:11], s41 offen offset:{(I&3)*1024} {cfg.pol} lds')
    look(2)
    if DEF: e('s_waitcnt vmcnt(0)')
    if any(k!='2' for k,p in DEF):
        e('s_barrier')
        for n,(k,p) in enumerate(DEF):
            if k!='2': pickup_cols('X'+k, X0 if k=='0' else X1, n*8192)
    e.c('---- H2b + gate/up')
    def ln2():
        unpack(e,16,32,1)
        allred_s('v_add_f32',[20,21],22,rors=(1,2,4,8),swaps=())
        e(f'''
        v_mul_f32 v20, 0x3a800000, v20
        v_mul_f32 v21, 0x3a800000, v21
        v_fma_f32 v21, -v20, v20, v21
        v_cmp_u_f32 s[42:43], v21, v21
        v_max_f32 v21, 0, v21
        ''')
        if cfg.round_ln2:
            finish_stats(20,21)
            normalise(32,2,20,21,22)
            modulate(32,2,T1,SB,16,22,prep=False)
        else:
            e(f'''
            v_add_f32 v21, 0x3727c5ac, v21
            v_rsq_f32 v21, v21
            v_sub_f32 v32, v32, v20
            v_sub_f32 v33, v33, v20
            v_mul_f32 v32, v32, v21
            v_mul_f32 v33, v33, v21
            v_fma_f32 v32, v32, v{T1}, v{SB}
            v_fma_f32 v33, v33, v{T1+1}, v{SB+1}
            v_cvt_pk_bf16_f32 v16, v32, v33
            ''')
        e(f'ds_write_b32 v{vXw}, v16')
    fast([(16,1,vXs,'s58',0),(20,2,vSt,'s49',0)], ln2, lambda: e('v_cmp_u_f32 vcc, v32, v33\ns_or_b64 vcc, vcc, s[42:43]'))
    tstamp(9)
    mmx([X0,X1],[32,36,40,44],vXr)
    for i in range(1,8): e(f's_add_u32 s{51+i}, s48, {i*4*GS}')
    for j in range(2): e(f'v_cvt_pk_bf16_f32 v{32+4*j}, v{32+4*j}, v{40+4*j}')
    store2([32,36],vGs,'s60')
    tstamp(10)
    for n,(k,p) in enumerate(DEF):
        if k=='2': pickup_cols('X2', X2, n*8192)
    e.c('---- H3a + down projection')
    look(3,2)
    if cfg.fine: stamp(e,cfg,1)
    def gusum():
        e('''v_lshlrev_b32 v32, 16, v16
        v_and_b32 v33, 0xffff0000, v16
        v_lshlrev_b32 v34, 16, v17
        v_and_b32 v35, 0xffff0000, v17''')
        for i in range(1,8):
            e(f'''v_dot2_f32_bf16 v32, v{16+2*i}, s61, v32
            v_dot2_f32_bf16 v33, v{16+2*i}, s62, v33
            v_dot2_f32_bf16 v34, v{17+2*i}, s61, v34
            v_dot2_f32_bf16 v35, v{17+2*i}, s62, v35''')
    fast([(16+2*i,2,vH3,'s48' if i==0 else f's{51+i}',0) for i in range(8)], gusum, nan2(32,34))
    tstamp(11)
    rnd_vec(e,32,4,20)
    e(f'''
    v_mul_f32 v20, 0xbfb8aa3b, v32
    v_mul_f32 v21, 0xbfb8aa3b, v34
    v_exp_f32 v20, v20
    v_exp_f32 v21, v21
    v_add_f32 v20, 1.0, v20
    v_add_f32 v21, 1.0, v21
    v_rcp_f32 v20, v20
    v_rcp_f32 v21, v21
    v_mul_f32 v32, v32, v20
    v_mul_f32 v34, v34, v21
    v_cvt_pk_bf16_f32 v20, v32, v34
    v_lshlrev_b32 v32, 16, v20
    v_and_b32 v34, 0xffff0000, v20
    v_mul_f32 v32, v32, v33
    v_mul_f32 v34, v34, v35
    v_cvt_pk_bf16_f32 v16, v32, v34
    ds_write_b32 v{vXw}, v16
    ''')
    mmx([X2],[32,36],vXr)
    store2([32,36],vZs,'s59')
    if cfg.fine: stamp(e,cfg,2)
    e('s_branch L_fin\nL_red:')
    e.c('---- H2a: reducers')
    l2=e.label('Lnoh2a')
    e(f'''
    s_cmp_ge_u32 s3, 2
    s_cbranch_scc1 L_fin
    s_mul_i32 s40, s98, {YS}
    s_add_u32 s40, s40, {WS_Y}
    s_add_u32 s51, s40, 4096
    s_lshl_b32 s52, s98, 7
    s_add_u32 s52, s52, {WS_X1}
    s_lshr_b32 s53, s98, 2
    s_lshl_b32 s53, s53, 7
    s_and_b32 s54, s98, 3
    s_lshl_b32 s54, s54, 3
    s_add_u32 s53, s53, s54
    s_add_u32 s53, s53, {WS_ST}
    s_mov_b32 s54, 0xffff
    s_mov_b32 s55, 0xffff
    v_mov_b32 v61, 0
    ''')
    look(1,1)
    if cfg.fine: stamp(e,cfg,14)
    fast([(16+4*i,4,vRow,'s40' if i<4 else 's51',(i&3)*1024) for i in range(8)], lambda: red_tail(8), nan2(16,17))
    if cfg.fine: stamp(e,cfg,15)
    gate_res(RX+2,RX,16)
    e(f'''
    v_min_u32 v16, -2, v16
    v_lshlrev_b32 v{RX}, 16, v16
    v_and_b32 v{RX+1}, 0xffff0000, v16
    s_mov_b64 exec, s[54:55]
    buffer_store_dword v16, v{vRo}, s[{SWS}:{SWS+3}], s52 offen sc1
    s_mov_b64 exec, -1
    v_add_f32 v18, v{RX}, v{RX+1}
    v_mul_f32 v19, v{RX}, v{RX}
    v_fmac_f32 v19, v{RX+1}, v{RX+1}
    ''')
    allred_s('v_add_f32',[18,19],20,rors=(8,4,2,1),swaps=('v_permlane32_swap_b32',))
    e(f'''
    v_min_u32 v18, -2, v18
    v_min_u32 v19, -2, v19
    s_mov_b64 exec, 1
    buffer_store_dwordx2 v[18:19], v61, s[{SWS}:{SWS+3}], s53 offen sc1
    s_mov_b64 exec, -1
    ''')
    tstamp(8)
    e(f'''
    s_mul_i32 s40, s98, {ZS}
    s_add_u32 s40, s40, {WS_Z}
    s_add_u32 s51, s40, 4096
    s_lshl_b32 s52, s98, 7
    v_add_u32 v{vA}, s52, v{vRo}
    ''')
    e.c('---- H3b: final reducers')
    look(4)
    if cfg.fine: stamp(e,cfg,3)
    fast([(16+4*i,4,vRow,'s40' if i<4 else 's51',(i&3)*1024) for i in range(7)], lambda: red_tail(7), nan2(16,17))
    tstamp(12)
    gate_res(RX+4,RX,16)
    e(f'''
    s_mov_b64 exec, s[54:55]
    global_store_dword v{vA}, v16, s[{P_OUT}:{P_OUT+1}]
    s_mov_b64 exec, -1
    L_fin:
    ''')
    stamp(e,cfg,13)
    if cfg.stamps: e('s_add_u32 s3, s3, 4')
    if cfg.fine: e('s_waitcnt lgkmcnt(0)\ns_mov_b32 s72, s100\ns_mov_b32 s73, 0')
    stamps_out(e,cfg,16,vA)
    e('s_endpgm')

def gen(cfg):
    set_order(cfg.order, cfg.defer)
    e=A()
    e(f'''
    s_cmp_ge_u32 s2, 256
    s_cbranch_scc1 L_exit
    s_load_dwordx16 s[4:19], s[0:1], 0
    s_getpc_b64 s[48:49]
    L_pc:
    s_sub_u32 s48, s48, L_pc-{KN}
    s_subb_u32 s49, s49, 0
    s_lshl_b32 s40, s2, 4
    s_add_u32 s40, s40, role_table-{KN}
    s_load_dwordx4 s[92:95], s[48:49], s40
    s_load_dwordx8 s[20:27], s[0:1], 64
    s_load_dwordx4 s[28:31], s[0:1], 96
    v_lshrrev_b32 v2, 6, v0
    v_and_b32 v1, 63, v0
    v_readfirstlane_b32 s3, v2
    v_lshlrev_b32 v3, 7, v0
    s_cmp_ge_u32 s3, 5
    s_cbranch_scc1 L_nopf
    global_load_dword v255, v3, s[48:49]
    L_nopf:
    ''')
    roles(e)
    e('s_cmp_ge_u32 s3, 4\ns_cbranch_scc1 L_aux')
    stream(e,cfg)
    aux(e,cfg)
    e('L_exit:\ns_endpgm')
    import rolemap
    tab,rho=rolemap.build(odd=cfg.odd,c3=cfg.c3,qx=cfg.qx,lx=cfg.lx)
    e('.p2align 8\n.type role_table,@object\nrole_table:')
    for t in tab: e('.long '+', '.join(str(x) for x in t))
    e('.size role_table, 4096')
    e('.p2align 8\n.fill (40960+256-(.-'+KN+'))/4, 4, 0xbf800000')
    hdr = f'; fused adaLN + GQA decode attention + SwiGLU block, one launch (generated by gen2.py) {getattr(cfg,"args","")}\n; @launch grid=(256,1,1) block=(512,1,1) lds={LDS_BYTES}\n.amdgcn_target "amdgcn-amd-amdhsa--gfx950"\n'
    return hdr + khead(KN) + e.text() + kd(KN, 256)

if __name__=='__main__':
    cfg=Cfg()
    out=sys.argv[1]
    cfg.args=' '.join(sys.argv[2:])
    for kv in sys.argv[2:]:
        k,val=kv.split('=')
        cur=getattr(cfg,k)
        setattr(cfg,k, (val not in ('0','False')) if isinstance(cur,bool) else type(cur)(val.replace('+',' ')) if not isinstance(cur,int) else int(val,0))
    open(out,'w').write(gen(cfg))
```

```python
def build(odd=0.6, c3=0.0035, unit=0.57, qx=0.15, lx=0.3, verbose=False, n1x=True, bx=1.0, lunits=42):
    W=range(256)
    X=lambda w:w&7; I=lambda w:w>>3
    light=[w for w in W if X(w)&1 and I(w)>=24]
    j5={w:28*X(w)+4*(X(w)&1)+I(w) for w in W if w not in light}
    cost={w:(lunits if w in light else 44)*unit+(odd if X(w)&1 else 0)+(lx if w in light else 0) for w in W}
    for w,j in j5.items():
        if (j>>3)&3==1: cost[w]+=256*c3
    cheap=lambda ws: sorted(ws,key=lambda w:(round(cost[w],6),I(w),X(w)))
    U=[];N1=[];Q=[]
    for x in range(8):
        ws=cheap([w for w in W if X(w)==x and w not in light])
        if x&1 and n1x: N1+=ws[-8:]; Q+=ws[:-8]
        elif x&1: N1+=ws[:8]; Q+=ws[8:]
        else: U+=ws[:16]; Q+=ws[16:]
    for w in Q: cost[w]+=qx
    boot={}
    for n,w in enumerate(cheap(Q)[:32]): boot[w]=32+n; cost[w]+=bx
    job={}; extra={}; hasG={}
    def give(ws, jobs, dst):
        slow=[j for j in jobs if j[1]&3==1]; fast=[j for j in jobs if j[1]&3!=1]
        ws=cheap(ws)
        for w,j in zip(ws,slow+fast):
            dst[w]=j
            if j[1]&3==1: cost[w]+=256*c3
    give(U,[(k,c) for c in range(16) for k in range(4)],job)
    give(Q,[(k,c) for c in range(32) for k in range(4)],job)
    ws=cheap(U+N1)[:64]
    for w in ws: cost[w]+=2*unit
    n1=cheap(N1)
    for k in range(4):
        slow=[c for c in range(16,40) if c&3==1]; fast=[c for c in range(16,40) if c&3!=1]
        cand=cheap(n1[k::4]+light[k::4])
        gets=set(cand[:len(slow)])
        for w in n1[k::4]:
            job[w]=(k,slow.pop() if w in gets else fast.pop())
        for w in light[k::4]:
            job[w]=(k,fast.pop())
            extra[w]=slow.pop() if w in gets else fast.pop()
        for w in gets: cost[w]+=256*c3
    G=[(k,c) for c in range(8) for k in range(8)]
    G=[g for g in G if g[1]&3==1]+[g for g in G if g[1]&3!=1]
    for w,g in zip(cheap(ws),G):
        extra[w]=g[0]|(g[1]<<3); hasG[w]=1
        if g[1]&3==1: cost[w]+=128*c3
    j6={}
    for x in range(8):
        ws=cheap([w for w in j5 if X(w)==x]); base=(28*x+4*(x&1))>>3
        items=[(r,c) for r in range(base,base+len(ws)//8) for c in range(8)]
        items=[t for t in items if t[1]&3==1]+[t for t in items if t[1]&3!=1]
        for w,(r,c) in zip(ws,items):
            j6[w]=r*8+c
            if c&3==1: cost[w]+=128*c3
    w4={}
    for x in range(8):
        ws=cheap([w for w in W if X(w)==x])
        items=[(d,c) for c in range(8) for d in range(4)]
        items=[t for t in items if t[1]&3==1]+[t for t in items if t[1]&3!=1]
        for w,(d,c) in zip(ws,items):
            w4[w]=x+8*d+32*c
            if c&3==1: cost[w]+=128*c3
    rho={}
    for n,w in enumerate(U+Q+N1+light): rho[w]=n
    tab=[]
    for w in W:
        k,c=job[w]; rs=8192 if w in Q else 12288
        tab.append((256*k*rs+256*c, rho[w]|(k<<8)|(c<<10)|(extra.get(w,0)<<16)|(hasG.get(w,0)<<24)|(boot.get(w,0)<<25), j5.get(w,0)|(j6.get(w,0)<<8)|(w4[w]<<16), rs))
    if verbose:
        for r in range(16): print(' '.join('%5.1f'%cost[16*r+i] for i in range(16)))
        print(max(cost.values()), sum(cost.values())/256)
    return tab, rho
if __name__=='__main__':
    t,r=build(verbose=True)
    assert len({(a[1]>>8&3,a[1]>>10&63,a[3]) for a in t})==256
    assert len({a[2]>>16 for a in t})==256
```

```python
import sys
from asmgen import *
KN='adaLN_cond__gqa_block_cached__glu_gated_swiglu__decode_kernel'

import os
PAD = int(os.environ.get('PAD','128'))
OS  = 2048+PAD
YS  = 8192+PAD
GS  = 14336+PAD
ZS  = 7168+PAD
MNS = 12288+PAD
MGS = 4096+PAD
MUS = 8192+PAD
QS  = 16384+PAD
WS_O   = 0
WS_Y   = WS_O+256*OS
WS_GU  = WS_Y+64*YS
WS_Z   = WS_GU+32*GS
WS_MN  = WS_Z+64*ZS
WS_MG  = WS_MN+16*MNS
WS_ML  = WS_MG+32*MGS
WS_X1  = WS_ML+16384
WS_ST  = WS_X1+8192
WS_CP  = WS_ST+2048
WS_TS  = WS_CP+2048
WS_Q   = WS_TS+16384
FLATSH = -(-(WS_Q+16*QS)//(256*128))*128
WS_MU  = 256*FLATSH
WS_H   = WS_MU+16*MUS
WS_SA  = WS_H+8192
WS_END = WS_SA+1024
WS_STAMP = 0x400000
RING = 0x8000
L_RED  = 0x20000
L_AX   = 0x22400; XSTR = 320
L_QOP  = 0x24000; QSTR = 272
L_ML   = 0x24900
L_ST   = 0x24A00
L_FLAG = 0x24B00
LDS_BYTES = 0x24C00
OSTR = 528
F_LAND = 0
F_CONS = 32
F_Q = 64; F_ML = 68; F_O = 72; F_AUX = 76; F_V = 80; F_F = 84; F_P = 88; F_M = 92; F_P2 = 96; F_C = 100; F_P3 = 104; F_L = 108
P_X,P_K,P_V,P_WQ,P_WO,P_BX,P_W1,P_W3,P_W2,P_C,P_WM,P_OUT,P_DBG,P_WS = [4+2*i for i in range(14)]
LOG2E = 0x3fb8aa3b
SCALE = 0x3db504f3

class Cfg:
    D=2; D0=4
    N=4
    NV=4
    deep=16
    vsig=1
    sleep_ml=32
    pol='nt'
    stamps=False
    round_s=True
    round_ln=True
    sleep_head=8
    sleep_tail=1
    order='E'
    qgate=24
    ack='1111'
    dly='0,3,48,2,92'
    tstamps=True
    local=True
    dlyloc=2; dlyz=84
    early=0
    dlyl=0
    h1gap=4
    h1pipe=0
    direct=True
    mgate=0
    tlb=0
    help=0
    helpn=2; helppol='nt'
    obar=True
    h1nan=True
    sa0=True
    sclear=0
    vwall=0
    warm=False
    safter=3
    odd=0.7; c3=0.0035; qx=0.6; lx=0.8; bx=1.0
    hgate=19
    hafter=3
    bo_n=16; bo_s=0
    cpol='sc1'
    kill=''
    lsleep=0
    prio2=2
    sprio=0
    ustamps=True
    defer=''
    round_ln2=False
    fine=False
    pairs=True
    NL=6; NH=8
    adapt=0
    rank=13
    lightdeep=False
    qafter=5
    NK=4; kdeep=16
    sleep_q=12
    hold=False
    prio=2
    gpoll=8192
    lpoll=1<<17

from gen1 import lds_signal, stamp, srd, allreduce64, unpack, rnd_vec, rnd1
import gen1
gen1.WS_STAMP = WS_STAMP
from gen1 import stamps_out, lds_spin, gather
SWS=44

def roles(e):
    e(f'''
    s_and_b32 s37, s2, 15
    s_lshr_b32 s38, s2, 4
    s_waitcnt lgkmcnt(0)
    s_mov_b32 s34, s92
    s_mov_b32 s35, s95
    s_and_b32 s99, s93, 255
    s_cmp_ge_u32 s99, 64
    s_cselect_b32 s33, 1, 0
    s_cmp_ge_u32 s99, 192
    s_cselect_b32 s33, 2, s33
    s_bfe_u32 s36, s93, 0x20008
    s_bfe_u32 s39, s93, 0x6000a
    s_bfe_u32 s101, s93, 0x80010
    s_bfe_u32 s0, s93, 0x10018
    s_lshr_b32 s15, s93, 25
    s_and_b32 s63, s94, 255
    s_bfe_u32 s1, s94, 0x80008
    s_lshr_b32 s14, s94, 16
    ''')

UNITS=[]
GROUPS=['J','WO','X0','X1','X2','X3']
def set_order(order, defer=''):
    U=lambda k,n: [(k,i) for i in range(n)]
    W=U('WO',2)+U('X0',2)+U('X1',2)+([] if '2' in defer else U('X2',2))+U('X3',2)
    K=U('K',16)
    if order=='A': UNITS[:] = U('J',4)+W+K+U('V',16)
    elif order=='E': UNITS[:] = U('J',4)+W[:2]+W[6:]+W[2:6]+K+U('V',16)
    elif order=='F': UNITS[:] = U('J',4)+W[6:]+W[:6]+K+U('V',16)
    elif order=='G': UNITS[:] = U('J',4)+W[:2]+W[6:]+K[:2]+W[2:6]+K[2:]+U('V',16)
    elif order=='C':
        mix=[]
        for i in range(8): mix+=[W[i],K[i]]
        UNITS[:] = U('J',4)+mix+W[8:]+K[8:]+U('V',16)
    elif order=='D':
        mix=[]
        for i in range(8): mix+=[K[i],W[i]]
        UNITS[:] = U('J',4)+mix+W[8:]+K[8:]+U('V',16)
def upos(kind,i): return UNITS.index((kind,i))
def slot(kind,i): return (upos(kind,i)%8)*4096

def stream(e, cfg):
    D=cfg.D; pol=cfg.pol
    vL=1; vK=2; vV=6; vW=8; vSw=10; vR=12; vFl=13; vOne=14; vT=15
    vKR=16; vVR=20; vX=28; vRJ=45
    Q=48; S=64; ST=128; P=128; O=160; VF=192
    SK,SV,SW = 44,48,52
    e.c('================= stream waves =================')
    e('L_stream:')
    if cfg.sprio: e(f's_setprio {cfg.sprio}')
    stamp(e,cfg,0)
    e(f'''
    v_lshrrev_b32 v{vR}, 4, v{vL}
    v_and_b32 v{vX+1}, 15, v{vL}
    v_lshlrev_b32 v{vX+6}, 1, v{vR}
    v_xor_b32 v{vX+6}, v{vX+6}, v{vX+1}
    v_lshlrev_b32 v{vSw}, 4, v{vX+6}
    v_xor_b32 v{vSw+1}, 128, v{vSw}
    v_and_b32 v{vRJ}, 2, v{vR}
    v_lshlrev_b32 v{vRJ}, 1, v{vRJ}
    v_and_or_b32 v{vRJ}, v{vR}, 1, v{vRJ}
    s_lshl_b32 s32, s3, 15
    s_mov_b32 s{SW+3}, 0x20000
    s_cmp_lt_u32 s99, 224
    s_cselect_b32 s96, 0, {1 if cfg.lightdeep else 0}
    s_cmp_eq_u32 s15, 0
    s_cbranch_scc1 L_go
    s_barrier
    L_go:
    s_waitcnt lgkmcnt(0)
    ''')
    st = dict(issued=0, landed=-1, signaled=set())
    def pairwait(n,k):
        if not cfg.pairs or n<cfg.D0: return
        tot=4*n+k
        known=4*(st['landed']+1)
        if tot-known>cfg.NH:
            e(f's_waitcnt vmcnt({cfg.NH})'); note_landed((tot-cfg.NH)//4-1)
        if tot-known>cfg.NL and cfg.NL<cfg.NH:
            lb=e.label('Lw')
            e(f's_cmp_lg_u32 s96, 0\ns_cbranch_scc1 {lb}\ns_waitcnt vmcnt({cfg.NL})\n{lb}:')
    def dma(voff, srdreg, soff, i):
        e(f'buffer_load_dwordx4 v{voff}, s[{srdreg}:{srdreg+3}], {soff} offen offset:{i*1024} {pol} lds')
    def tile_setup(kind, t):
        def ptr(a,b): e(f's_cselect_b32 s{SW}, s{a}, s{b}\ns_cselect_b32 s{SW+1}, s{a+1}, s{b+1}')
        if kind=='J':
            if t==0:
                e('s_cmp_eq_u32 s33, 1'); ptr(P_WQ,P_WM)
                e(f'''s_mov_b32 s{SW+2}, {1024*6144*2}
                s_cselect_b32 s{SW+2}, {1024*4096*2}, s{SW+2}
                s_mov_b32 s56, s35
                s_lshl_b32 s40, s3, 6
                s_mul_i32 s58, s40, s35
                s_add_u32 s58, s58, s34
                s_mov_b32 s57, s58''')
            else: e('s_lshl_b32 s40, s35, 1\ns_add_u32 s57, s58, s40')
        elif kind=='WO':
            e(f'''s_mov_b32 s{SW}, s{P_WO}
            s_mov_b32 s{SW+1}, s{P_WO+1}
            s_mov_b32 s{SW+2}, {4096*1024*2}
            s_mov_b32 s56, 2048
            s_and_b32 s40, s14, 7
            s_lshl_b32 s57, s40, 18
            s_lshl_b32 s40, s3, 21
            s_add_u32 s57, s57, s40
            s_bfe_u32 s40, s14, 0x20003
            s_lshl_b32 s40, s40, 16
            s_add_u32 s57, s57, s40
            s_lshr_b32 s40, s14, 5
            s_lshl_b32 s40, s40, 8
            s_add_u32 s57, s57, s40''')
        elif kind in ('X0','X1'):
            t = int(kind[1])
            if t==0:
                e(f'''s_and_b32 s40, s63, 7
                s_lshl_b32 s40, s40, 2
                s_add_u32 s40, s40, s3
                s_mul_i32 s59, s40, {32*7168}
                s_lshr_b32 s40, s63, 3
                s_lshl_b32 s40, s40, 8
                s_add_u32 s59, s59, s40''')
            e(f'''s_sub_u32 s40, s101, s39
            s_lshl_b32 s40, s40, 8
            s_add_u32 s40, s40, s58
            s_add_u32 s40, s40, {t*2*12288}
            s_cmp_lt_u32 s99, 224''')
            ptr(P_W3 if t else P_W1, P_WM)
            e(f'''s_mov_b32 s{SW+2}, {1024*6144*2}
            s_cselect_b32 s{SW+2}, {0 if str(t) in cfg.defer else 1024*3584*2}, s{SW+2}
            s_mov_b32 s56, 12288
            s_cselect_b32 s56, 7168, s56
            s_cselect_b32 s57, s59, s40''')
        elif kind=='X2':
            e(f'''s_lshr_b32 s40, s1, 3
            s_lshl_b32 s57, s40, 18
            s_lshl_b32 s40, s3, 16
            s_add_u32 s57, s57, s40
            s_and_b32 s40, s1, 7
            s_lshl_b32 s40, s40, 8
            s_add_u32 s57, s57, s40
            s_mov_b32 s{SW}, s{P_W2}
            s_mov_b32 s{SW+1}, s{P_W2+1}
            s_cmp_lt_u32 s99, 224
            s_cselect_b32 s{SW+2}, {1024*3584*2}, 0
            s_mov_b32 s56, 2048''')
        elif kind=='X3':
            e(f'''s_and_b32 s40, s101, 7
            s_lshl_b32 s40, s40, 2
            s_add_u32 s40, s40, s3
            s_mul_i32 s57, s40, {32*12288}
            s_lshr_b32 s40, s101, 3
            s_lshl_b32 s40, s40, 8
            s_add_u32 s57, s57, s40
            s_add_u32 s57, s57, {40*256}
            s_mov_b32 s{SW}, s{P_WM}
            s_mov_b32 s{SW+1}, s{P_WM+1}
            s_cmp_lg_u32 s0, 0
            s_cselect_b32 s{SW+2}, {1024*6144*2}, 0
            s_mov_b32 s56, 12288''')
        if kind=='J': e(f'v_mov_b32 v{vX+8}, v{vRJ}\ns_mov_b32 s41, 1')
        elif kind in ('WO','X2','X3'): e(f'v_mov_b32 v{vX+8}, v{vR}\ns_mov_b32 s41, 0')
        else: e(f's_cselect_b64 vcc, 0, -1\ns_cselect_b32 s41, 0, 1\nv_cndmask_b32 v{vX+8}, v{vR}, v{vRJ}, vcc')
        e(f'''v_mad_u32_u24 v{vW}, v{vX+8}, s56, v{vSw}
        v_mad_u32_u24 v{vW+1}, v{vX+8}, s56, v{vSw+1}
        s_lshl_b32 s61, s56, s41
        s_lshl_b32 s60, s61, 3
        s_sub_u32 s60, s60, 1024
        s_lshl_b32 s61, s61, 2''')
    def emit_unit(n):
        kind,i = UNITS[n]
        if kind in GROUPS:
            if (i&1)==0: tile_setup(kind,i>>1); e('s_mov_b32 s41, s57')
            else: e('s_add_u32 s41, s57, s61')
            e(f's_add_u32 m0, s32, {(n%8)*4096}')
            for k in range(4):
                if k%2==0: pairwait(n,k)
                dma(vW+(k&1), SW, 's41', k)
                if k<3: e('s_add_u32 s41, s41, s60')
        else:
            e(f's_add_u32 s41, s62, {i*16384}\ns_add_u32 m0, s32, {(n%8)*4096}')
            for k in range(4):
                if k%2==0: pairwait(n,k)
                dma((vK+k) if kind=='K' else (vV+(k&1)), SK if kind=='K' else SV, 's41', k)
    def note_landed(n):
        st['landed']=max(st['landed'],n)
        for gi,g in enumerate(GROUPS):
            if (g,0) not in UNITS: continue
            last=max(k for k,u in enumerate(UNITS) if u[0]==g)
            if last<=st['landed'] and g not in st['signaled']:
                st['signaled'].add(g); lds_signal(e, F_LAND+4*gi, vFl, vOne)
                if g=='J': stamp(e,cfg,6)
    consumed=set()
    def issue(n):
        assert n==st['issued']
        if cfg.pairs and n==5: wait_landed(3)
        if n>=cfg.D0 and not cfg.pairs:
            N = cfg.NV if n>=upos('V',0)+cfg.deep else (cfg.NK if upos('K',min(cfg.kdeep,15))+(cfg.kdeep>15)<=n<upos('V',0) else cfg.N)
            full = n-1-(N+3)//4
            if st['landed']<n-1-N//4:
                e(f's_waitcnt vmcnt({N})'); note_landed(full)
        if n>=8 and UNITS[n-8][0]=='K' and UNITS[n-8][1]<8:
            stage(UNITS[n-8][1]); e('s_waitcnt lgkmcnt(0)')
        if n>=8:
            g=UNITS[n-8][0]
            if g in GROUPS and g not in consumed:
                last=max(k for k,u in enumerate(UNITS) if u[0]==g)
                if g not in st['signaled']: wait_landed(last)
                consumed.add(g); lds_spin(e,cfg,F_CONS+4*GROUPS.index(g),4,vFl,vT)
                if g=='J': stamp(e,cfg,7)
        if cfg.vwall and n==upos('V',cfg.vwall): lds_spin(e,cfg,F_F,1,vFl,vT)
        if cfg.stamps and cfg.ustamps: e(f's_memrealtime s[82:83]\ns_waitcnt lgkmcnt(0)\nv_writelane_b32 v47, s82, {n}')
        emit_unit(n); st['issued']=n+1
        if cfg.qgate and n==cfg.qgate: lds_signal(e,F_P,vFl,vOne)
        if cfg.hgate and n==cfg.hgate: lds_signal(e,F_P2,vFl,vOne)
        if cfg.mgate and n==cfg.mgate: lds_signal(e,F_P3,vFl,vOne)
        if cfg.help and n==upos('V',cfg.help): lds_signal(e,F_C,vFl,vOne)
    def stage(u):
        wait_landed(upos('K',u))
        for k in range(4):
            r=ST+(u%8)*16+4*k
            e(f'ds_read_b128 v[{r}:{r+3}], v{vKR+k} offset:{slot("K",u)}')
    def wait_landed(n):
        if st['landed']>=n: return
        e(f's_waitcnt vmcnt({4*(st["issued"]-1-n)})'); note_landed(n)
    if cfg.sclear:
        q4=FLATSH//4; nf=q4//1024; rem=q4%1024
        srd(e,SK,P_WS,WS_END)
        e(f'''
        v_mov_b32 v40, -1
        v_mov_b32 v41, -1
        v_mov_b32 v42, -1
        v_mov_b32 v43, -1
        v_lshlrev_b32 v39, 4, v{vL}
        s_mul_i32 s40, s2, {FLATSH}
        s_mul_i32 s41, s3, {q4}
        s_add_u32 s41, s40, s41
        ''')
        if cfg.sclear==2: issue(0)
        if cfg.sclear==2: e(f's_mul_i32 s40, s2, {FLATSH}\ns_mul_i32 s41, s3, {q4}\ns_add_u32 s41, s40, s41')
        for i in range(nf): e(f'buffer_store_dwordx4 v[40:43], v39, s[{SK}:{SK+3}], s41 offen offset:{1024*i} {cfg.cpol}')
        if rem:
            e(f'''v_cmp_gt_u32 vcc, {rem//16}, v{vL}
            s_and_b64 exec, exec, vcc
            buffer_store_dwordx4 v[40:43], v39, s[{SK}:{SK+3}], s41 offen offset:{1024*nf} {cfg.cpol}
            s_mov_b64 exec, -1''')
    for n in range(st['issued'],cfg.D0): issue(n)
    srd(e,SK,P_K,0x4000000); srd(e,SV,P_V,0x4000000)
    e(f'''
    s_lshl_b32 s62, s37, 22
    s_lshl_b32 s40, s38, 18
    s_add_u32 s62, s62, s40
    s_lshl_b32 s40, s3, 12
    s_add_u32 s62, s62, s40
    v_xor_b32 v{vX+6}, v{vX+1}, v{vR}
    v_lshlrev_b32 v{vX+7}, 8, v{vR}
    v_lshl_add_u32 v{vK}, v{vX+6}, 4, v{vX+7}
    v_xor_b32 v{vK+1}, 64, v{vK}
    v_xor_b32 v{vK+2}, 128, v{vK}
    v_xor_b32 v{vK+3}, 192, v{vK}
    v_add_u32 v{vV}, v{vSw}, v{vX+7}
    v_add_u32 v{vV+1}, v{vSw+1}, v{vX+7}
    v_lshlrev_b32 v{vX+7}, 8, v{vX+1}
    v_lshl_add_u32 v{vKR}, v{vX+6}, 4, v{vX+7}
    v_add_u32 v{vKR}, s32, v{vKR}
    v_xor_b32 v{vKR+1}, 64, v{vKR}
    v_xor_b32 v{vKR+2}, 128, v{vKR}
    v_xor_b32 v{vKR+3}, 192, v{vKR}
    v_lshrrev_b32 v{vX+2}, 2, v{vL}
    v_and_b32 v{vX+5}, 3, v{vL}
    v_lshlrev_b32 v{vX+6}, 8, v{vX+2}
    v_and_b32 v{vX+7}, 7, v{vX+2}
    v_lshl_add_u32 v{vX+6}, v{vX+7}, 5, v{vX+6}
    v_lshl_add_u32 v{vX+6}, v{vX+5}, 3, v{vX+6}
    v_add_u32 v{vVR}, s32, v{vX+6}
    ''')
    for ct in range(1,8): e(f'v_xor_b32 v{vVR+ct}, {ct<<5}, v{vVR}')
    e(f'''
    v_mov_b32 v{vFl}, {L_FLAG}
    v_mov_b32 v{vOne}, 1
    s_cmp_lg_u32 s15, 0
    s_cbranch_scc1 L_go2
    s_barrier
    L_go2:
    ''')
    V0=upos('V',0); NX=upos('K',15)+1
    for n in range(cfg.D0, NX): issue(n)
    def qk(u):
        for k in range(4):
            r=ST+(u%8)*16+4*k
            e(f'v_mfma_f32_16x16x32_bf16 v[{S+4*u}:{S+4*u+3}], v[{r}:{r+3}], v[{Q+4*k}:{Q+4*k+3}], '+('0' if k==0 else f'v[{S+4*u}:{S+4*u+3}]'))
    vM=vX; vLs=vX+1; t0=vX+2
    def rnd(u):
        for h in range(2):
            a0=S+4*u+2*h; a1=a0+1; t=t0+h
            if cfg.round_s:
                e(f'''v_cvt_pk_bf16_f32 v{t}, v{a0}, v{a1}
                v_lshlrev_b32 v{a0}, 16, v{t}
                v_and_b32 v{a1}, 0xffff0000, v{t}''')
            e(f'v_mul_f32 v{a0}, s42, v{a0}\nv_mul_f32 v{a1}, s42, v{a1}')
            if cfg.round_s:
                e(f'''v_cvt_pk_bf16_f32 v{t}, v{a0}, v{a1}
                v_lshlrev_b32 v{a0}, 16, v{t}
                v_and_b32 v{a1}, 0xffff0000, v{t}''')
            if u==0 and h==0: e(f'v_max_f32 v{vM}, v{a0}, v{a1}')
            else: e(f'v_max3_f32 v{vM}, v{vM}, v{a0}, v{a1}')
    stamp(e,cfg,1)
    lds_spin(e,cfg,F_Q,4,vFl,vT)
    stamp(e,cfg,2)
    e(f'''
    v_and_b32 v{vX+6}, 7, v{vL}
    v_mul_u32_u24 v{vX+6}, {QSTR}, v{vX+6}
    v_lshl_add_u32 v{vX+6}, v{vR}, 4, v{vX+6}
    v_add_u32 v{vX+6}, {L_QOP}, v{vX+6}
    s_mov_b32 s42, {SCALE:#x}
    s_mov_b32 s43, {LOG2E:#x}
    ''')
    for k in range(4): e(f'ds_read_b128 v[{Q+4*k}:{Q+4*k+3}], v{vX+6} offset:{64*k}')
    if cfg.adapt==1: e(f'ds_read_b32 v{vT}, v{vFl} offset:{F_M}')
    e('s_waitcnt lgkmcnt(0)')
    if cfg.adapt==1: e(f'v_readfirstlane_b32 s96, v{vT}')
    if cfg.adapt!=1: e('s_mov_b32 s96, 0')
    for u in range(D):
        qk(u); stage(8+u); e('s_waitcnt lgkmcnt(0)'); issue(NX+u)
    for u in range(D,8):
        qk(u); stage(8+u)
    e('s_waitcnt lgkmcnt(0)')
    for u in range(8,16): qk(u)
    nxt=[NX+D]
    def more():
        if nxt[0]<V0+8:
            if cfg.adapt==2 and nxt[0]>=V0+7:
                e(f'ds_read_b32 v{vT}, v{vFl} offset:{F_M}\ns_waitcnt lgkmcnt(0)\nv_readfirstlane_b32 s96, v{vT}')
            issue(nxt[0]); nxt[0]+=1
    more()
    for u in range(16):
        rnd(u)
        if u in (5,10,15): more()
    e(f'''
    v_mov_b32 v{t0}, v{vM}
    v_permlane32_swap_b32 v{t0}, v{vM}
    v_max_f32 v{vM}, v{vM}, v{t0}
    v_mov_b32 v{t0}, v{vM}
    v_permlane16_swap_b32 v{t0}, v{vM}
    v_max_f32 v{vM}, v{vM}, v{t0}
    v_mul_f32 v{vM}, s43, v{vM}
    ''')
    for u in range(16):
        for r in range(4): e(f'v_fma_f32 v{S+4*u+r}, v{S+4*u+r}, s43, -v{vM}')
        for r in range(4): e(f'v_exp_f32 v{S+4*u+r}, v{S+4*u+r}')
        if u==0: e(f'v_add_f32 v{vLs}, v{S}, v{S+1}')
        else: e(f'v_add_f32 v{vLs}, v{vLs}, v{S+4*u}\nv_add_f32 v{vLs}, v{vLs}, v{S+4*u+1}')
        e(f'''v_cvt_pk_bf16_f32 v{P+2*u}, v{S+4*u}, v{S+4*u+1}
        v_add_f32 v{vLs}, v{vLs}, v{S+4*u+2}
        v_add_f32 v{vLs}, v{vLs}, v{S+4*u+3}
        v_cvt_pk_bf16_f32 v{P+2*u+1}, v{S+4*u+2}, v{S+4*u+3}''')
        if u in (7,): more()
    e(f'''
    v_mov_b32 v{t0}, v{vLs}
    v_permlane32_swap_b32 v{t0}, v{vLs}
    v_add_f32 v{vLs}, v{vLs}, v{t0}
    v_mov_b32 v{t0}, v{vLs}
    v_permlane16_swap_b32 v{t0}, v{vLs}
    v_add_f32 v{vLs}, v{vLs}, v{t0}
    s_lshl_b32 s40, s3, 6
    s_add_u32 s40, s40, {L_ML}
    v_lshl_add_u32 v{t0}, v{vL}, 3, s40
    s_mov_b64 exec, 0xff
    ds_write_b64 v{t0}, v[{vM}:{vM+1}]
    s_waitcnt lgkmcnt(0)
    s_mov_b64 exec, -1
    ''')
    lds_signal(e,F_ML,vFl,vOne)
    stamp(e,cfg,3)
    while nxt[0]<V0+8: more()
    for j in range(8):
        wait_landed(V0+2*j+1)
        if j==7: stamp(e,cfg,4)
        for ct in range(8):
            for hf in range(2):
                r=VF+4*ct+2*hf
                e(f'ds_read_b64_tr_b16 v[{r}:{r+1}], v{vVR+ct} offset:{slot("V",2*j+hf)}')
        for ct in range(8):
            e(f's_waitcnt lgkmcnt({14-2*ct})')
            e(f'v_mfma_f32_16x16x32_bf16 v[{O+4*ct}:{O+4*ct+3}], v[{VF+4*ct}:{VF+4*ct+3}], v[{P+4*j}:{P+4*j+3}], '+('0' if j==0 else f'v[{O+4*ct}:{O+4*ct+3}]'))
        if cfg.adapt==2 and j<3:
            e(f'ds_read_b32 v{vT}, v{vFl} offset:{F_M}\ns_waitcnt lgkmcnt(0)\nv_readfirstlane_b32 s96, v{vT}')
        for k in range(2):
            if V0+2*j+8+k < len(UNITS): issue(V0+2*j+8+k)
        if j==cfg.vsig: lds_signal(e,F_V,vFl,vOne)
        if j==6:
            e(f'''
            v_and_b32 v{t0}, 15, v{vL}
            v_mul_u32_u24 v{t0}, {OSTR}, v{t0}
            v_lshl_add_u32 v{t0}, v{vR}, 4, v{t0}
            v_add_u32 v{t0}, s32, v{t0}
            v_add_u32 v{t0}, {(slot('V',15)+4096)%RING}, v{t0}
            s_mov_b32 s40, 0x00ff00ff
            s_mov_b32 s41, 0x00ff00ff
            ''')
    e('s_mov_b64 exec, s[40:41]')
    for ct in range(8): e(f'ds_write_b128 v{t0}, v[{O+4*ct}:{O+4*ct+3}] offset:{64*ct}')
    e('s_waitcnt lgkmcnt(0)\ns_mov_b64 exec, -1')
    if cfg.obar: e('s_barrier')
    else: lds_signal(e,F_O,vFl,vOne)
    stamp(e,cfg,5)
    if cfg.help:
        lh=e.label('Lnohelp')
        srd(e,SW,P_WS,WS_END)
        e(f'''
        s_lshl_b32 s40, s37, 7
        s_add_u32 s40, s40, {WS_CP}
        v_and_b32 v{vX}, 15, v{vL}
        v_lshlrev_b32 v{vX}, 2, v{vX}
        buffer_load_dword v{vX+1}, v{vX}, s[{SW}:{SW+3}], s40 offen sc1
        v_lshlrev_b32 v{vX}, 4, v{vL}
        s_waitcnt vmcnt(0)
        v_cmp_eq_u32 vcc, -1, v{vX+1}
        s_lshr_b32 s40, vcc_lo, s38
        s_and_b32 s40, s40, 0xfffe
        s_cbranch_scc0 {lh}
        s_ff1_i32_b32 s40, s40
        s_add_u32 s40, s40, s38
        s_and_b32 s40, s40, 15
        s_sub_u32 s40, s40, s38
        s_lshl_b32 s40, s40, 18
        s_add_u32 s41, s62, s40
        ''')
        for u in range(15,15-cfg.helpn,-1):
            e(f's_add_u32 s40, s41, {u*16384}')
            for k in range(4): e(f'buffer_load_dwordx4 v[{64+16*(15-u)+4*k}:{67+16*(15-u)+4*k}], v{vX}, s[{SV}:{SV+3}], s40 offen offset:{1024*k} {cfg.helppol}')
        e(f's_waitcnt vmcnt(0)\n{lh}:')
    stamps_out(e,cfg,8,vX+4)
    if cfg.stamps:
        e(f'''s_lshl_b32 s40, s2, 2
        s_add_u32 s40, s40, s3
        s_lshl_b32 s40, s40, 8
        s_add_u32 s40, s40, {WS_STAMP+0x40000}
        v_lshl_add_u32 v46, v{vL}, 2, s40
        global_store_dword v46, v47, s[{P_WS}:{P_WS+1}]''')
    e('s_waitcnt lgkmcnt(0)\ns_endpgm')

def aux(e, cfg):
    global gather
    real_gather = gen1.gather
    phase = ['h']
    def gather(e, cfg, loads, vchk, sleep, **kw):
        if phase[0] in cfg.kill: e('s_mov_b32 s41, 1'); return
        real_gather(e, cfg, loads, vchk, sleep, **kw)
    vL=1; vFl=2; vOne=3; vT=4; vRow=5; vRd=6; vRr=7; vA=8
    X2=64; X0=96; X1=128; WO=160; WJ=192
    vHq=62; vRo=63; RN=64; RX=66
    OOFF=(slot('V',15)+4096)%RING
    e.c('================= aux waves =================')
    e('L_aux:')
    e(f'''
    s_setprio {cfg.prio}
    s_sub_u32 s3, s3, 4
    s_lshl_b32 s32, s3, 15
    v_lshlrev_b32 v{vRow}, 4, v{vL}
    v_mov_b32 v{vFl}, {L_FLAG}
    v_mov_b32 v{vOne}, 1
    v_mov_b32 v16, 0
    v_lshl_add_u32 v{vA+1}, v{vL}, 2, v{vFl}
    ds_write_b32 v{vA+1}, v16
    v_mov_b32 v32, -1
    v_mov_b32 v33, -1
    v_mov_b32 v34, -1
    v_mov_b32 v35, -1
    v_bfe_u32 v{vA+2}, v{vL}, 2, 2
    v_lshrrev_b32 v{vA+3}, 4, v{vL}
    v_and_b32 v{vA+6}, 3, v{vL}
    v_lshl_add_u32 v{vA+3}, v{vA+3}, 2, v{vA+6}
    v_lshlrev_b32 v{vA+2}, 11, v{vA+2}
    v_lshl_add_u32 v{vA}, v{vA+3}, 3, v{vA+2}
    s_lshl_b32 s40, s36, 9
    s_lshl_b32 s41, s3, 7
    s_add_u32 s40, s40, s41
    v_add_u32 v{vA}, s40, v{vA}
    s_lshl_b32 s40, s3, 11
    v_add_u32 v{vA+1}, s40, v{vRow}
    v_lshl_add_u32 v{vA+5}, v{vA+3}, 2, v{vA+2}
    s_and_b32 s40, s101, 7
    s_lshl_b32 s40, s40, 8
    s_lshl_b32 s41, s3, 6
    s_add_u32 s40, s40, s41
    v_add_u32 v{vA+5}, s40, v{vA+5}
    s_waitcnt lgkmcnt(0)
    ''')
    stamp(e,cfg,0)
    if cfg.tlb:
        e(f'''
        s_lshl_b32 s40, s37, 22
        s_lshl_b32 s41, s38, 18
        s_add_u32 s40, s40, s41
        s_load_dword s51, s[{P_K}:{P_K+1}], s40
        s_load_dword s52, s[{P_V}:{P_V+1}], s40
        s_and_b32 s40, s14, 7
        s_lshl_b32 s40, s40, 18
        s_lshl_b32 s41, s3, 21
        s_add_u32 s40, s40, s41
        s_load_dword s53, s[{P_WO}:{P_WO+1}], s40
        s_and_b32 s40, s63, 7
        s_lshl_b32 s40, s40, 2
        s_add_u32 s40, s40, s3
        s_mul_i32 s40, s40, {32*7168}
        s_load_dword s54, s[{P_W1}:{P_W1+1}], s40
        s_load_dword s55, s[{P_W3}:{P_W3+1}], s40
        s_lshr_b32 s40, s1, 3
        s_lshl_b32 s40, s40, 18
        s_load_dword s56, s[{P_W2}:{P_W2+1}], s40
        s_load_dword s57, s[{P_OUT}:{P_OUT+1}], 0
        s_lshl_b32 s40, s3, 19
        s_load_dword s58, s[{P_WS}:{P_WS+1}], s40
        ''')
    srd(e,SWS,P_WS,WS_END)
    lh=e.label('Lnohead')
    e(f'''
    s_cmp_eq_u32 s15, 0
    s_cbranch_scc1 {lh}
    s_cmp_lg_u32 s3, 3
    s_cbranch_scc1 {lh}_b
    s_sub_u32 s41, s15, 32
    s_lshr_b32 s40, s41, 3
    s_mul_i32 s40, s40, {MUS}
    s_and_b32 s42, s41, 7
    s_lshl_b32 s42, s42, 9
    s_add_u32 s40, s40, s42
    s_add_u32 s40, s40, {WS_MU}
    s_add_u32 s42, s40, {8*MUS}
    s_add_u32 s43, s40, 4096
    s_add_u32 s48, s42, 4096
    v_lshrrev_b32 v{vA+4}, 5, v{vL}
    v_mul_u32_u24 v{vA+4}, {4*MUS}, v{vA+4}
    v_and_b32 v{vA+6}, 31, v{vL}
    v_lshl_add_u32 v{vA+4}, v{vA+6}, 4, v{vA+4}
    buffer_store_dwordx4 v[32:35], v{vA+4}, s[{SWS}:{SWS+3}], s40 offen sc1
    buffer_store_dwordx4 v[32:35], v{vA+4}, s[{SWS}:{SWS+3}], s42 offen sc1
    buffer_store_dwordx4 v[32:35], v{vA+4}, s[{SWS}:{SWS+3}], s43 offen sc1
    buffer_store_dwordx4 v[32:35], v{vA+4}, s[{SWS}:{SWS+3}], s48 offen sc1
    s_cmp_lt_u32 s15, 63
    s_cbranch_scc1 {lh}_c
    s_mov_b32 s40, {WS_SA}
    buffer_store_dwordx4 v[32:35], v{vRow}, s[{SWS}:{SWS+3}], s40 offen sc1
    {lh}_c:
    s_lshl_b32 s41, s41, 2
    v_mov_b32 v{vA+4}, s41
    {'s_waitcnt vmcnt(0)' if cfg.hold else 's_barrier'}
    {'' if cfg.hold else 's_waitcnt vmcnt(0)'}
    s_mov_b64 exec, 1
    global_store_dword v{vA+4}, v{vOne}, s[{P_DBG}:{P_DBG+1}] sc1
    s_mov_b64 exec, -1
    {'' if cfg.hold else 's_branch '+lh}
    {lh}_b:
    s_barrier
    {lh}:
    v_mov_b32 v{vHq}, v{vA}
    v_and_b32 v{vA+2}, 15, v{vL}
    v_lshlrev_b32 v{vRo}, 3, v{vA+2}
    v_lshrrev_b32 v{vA+2}, 5, v{vL}
    v_lshl_add_u32 v{vRo}, v{vA+2}, 2, v{vRo}
    s_cmp_eq_u32 s33, 1
    s_cbranch_scc1 {'L_qx' if cfg.direct else 'L_nox'}
    global_load_dwordx2 v[16:17], v{vA}, s[{P_C}:{P_C+1}]
    global_load_dword v18, v{vA+5}, s[{P_C}:{P_C+1}]
    s_cmp_lt_u32 s99, 224
    s_cbranch_scc1 L_nox
    s_cmp_ge_u32 s3, 2
    s_cbranch_scc1 L_nox
    s_sub_u32 s98, s99, 224
    s_lshl_b32 s98, s98, 1
    s_add_u32 s98, s98, s3
    s_lshr_b32 s40, s98, 4
    s_lshl_b32 s40, s40, 11
    v_add_u32 v{vA+1}, s40, v{vRow}
    s_lshl_b32 s40, s98, 7
    v_add_u32 v{vA+2}, s40, v{vRo}
    global_load_dwordx4 v[24:27], v{vA+1}, s[{P_X}:{P_X+1}]
    global_load_dwordx4 v[28:31], v{vA+1}, s[{P_X}:{P_X+1}] offset:1024
    global_load_dword v19, v{vA+2}, s[{P_X}:{P_X+1}]
    ''')
    if cfg.direct:
        e(f'''
        s_branch L_nox
        L_qx:
        s_lshl_b32 s40, s3, 11
        v_add_u32 v{vA+1}, s40, v{vRow}
        global_load_dwordx2 v[16:17], v{vA}, s[{P_X}:{P_X+1}]
        global_load_dwordx4 v[24:27], v{vA+1}, s[{P_X}:{P_X+1}]
        global_load_dwordx4 v[28:31], v{vA+1}, s[{P_X}:{P_X+1}] offset:1024
        ''')
    e(f'''
    L_nox:
    s_cmp_lg_u32 s15, 0
    s_cbranch_scc1 L_nobar
    s_barrier
    L_nobar:
    s_mov_b32 s50, 0
    s_mul_i32 s40, s3, 2304
    s_add_u32 s40, s40, {L_RED}
    v_lshrrev_b32 v{vA+2}, 4, v{vL}
    v_mul_u32_u24 v{vRd}, 576, v{vA+2}
    v_and_b32 v{vA+2}, 15, v{vL}
    v_lshl_add_u32 v{vRd}, v{vA+2}, 2, v{vRd}
    v_add_u32 v{vRd}, s40, v{vRd}
    s_mul_i32 s40, s3, 1152
    s_add_u32 s40, s40, {L_RED}
    v_lshrrev_b32 v{vA+2}, 5, v{vL}
    v_mul_u32_u24 v{vRr}, 576, v{vA+2}
    v_and_b32 v{vA+2}, 31, v{vL}
    v_lshl_add_u32 v{vRr}, v{vA+2}, 4, v{vRr}
    v_add_u32 v{vRr}, s40, v{vRr}
    ''')
    q4=FLATSH//4; nf=q4//1024; rem=q4%1024
    lc=e.label('Lclr'); lc2=e.label('Lclrd')
    e(f'''
    s_mul_i32 s40, s2, {FLATSH}
    s_mul_i32 s41, s3, {q4}
    s_add_u32 s41, s40, s41
    {'s_mov_b32 s46, 0' if 'c' in cfg.kill else ''}
    ''')
    if cfg.sclear: nf=0; rem=0
    for i in range(nf): e(f'buffer_store_dwordx4 v[32:35], v{vRow}, s[{SWS}:{SWS+3}], s41 offen offset:{1024*i} {cfg.cpol}')
    if rem:
        e(f'''v_cmp_gt_u32 vcc, {rem//16}, v{vL}
        s_and_b64 exec, exec, vcc
        buffer_store_dwordx4 v[32:35], v{vRow}, s[{SWS}:{SWS+3}], s41 offen offset:{1024*nf} {cfg.cpol}
        s_mov_b64 exec, -1''')
    nst=nf+(1 if rem else 0)
    lr0=if_red_early=e.label('Lnrc')
    e(f'''
    s_cmp_lt_u32 s99, 224
    s_cbranch_scc1 {lr0}
    s_cmp_ge_u32 s3, 2
    s_cbranch_scc1 {lr0}
    s_lshl_b32 s40, s98, 7
    s_add_u32 s40, s40, {WS_H}
    buffer_store_dword v32, v{vRo}, s[{SWS}:{SWS+3}], s40 offen sc1
    s_waitcnt vmcnt({nst+1})
    s_branch {lc2}
    {lr0}:
    s_waitcnt vmcnt({nst})
    {lc2}:
    ''')
    stamp(e,cfg,14)
    if 'c' in cfg.kill: e(f's_mov_b32 s46, {WS_END}')
    if 'h' in cfg.kill: e('s_mov_b32 s46, 0')
    def pub_addr(base, rs, skq, scg):
        e(f'''
        s_lshl_b32 s40, {skq}, 1
        s_add_u32 s40, s40, s3
        s_mul_i32 s40, s40, {2*rs}
        s_lshl_b32 s41, {scg}, 9
        s_add_u32 s40, s40, s41
        s_add_u32 s40, s40, {base}
        v_lshrrev_b32 v{vA}, 5, v{vL}
        v_mul_u32_u24 v{vA}, {rs}, v{vA}
        v_and_b32 v{vA+1}, 31, v{vL}
        v_lshl_add_u32 v{vA}, v{vA+1}, 4, v{vA}
        ''')
    def auxbar():
        e('s_add_u32 s50, s50, 4\ns_waitcnt lgkmcnt(0)')
        lds_signal(e,F_AUX,vFl,vOne)
        lds_spin(e,cfg,F_AUX,'s50',vFl,vT)
    def go1a():
        if 'h' in cfg.kill: return
        la=e.label('Lnogo')
        e(f'''
        v_and_b32 v61, 31, v{vL}
        v_lshlrev_b32 v61, 2, v61
        s_cmp_lg_u32 s3, 3
        s_cbranch_scc1 {la}
        global_load_dword v60, v61, s[{P_DBG}:{P_DBG+1}] sc1
        {la}:
        ''')
    def go1():
        if 'h' in cfg.kill: return
        l=e.label('Lgo'); d=e.label('Lgod'); la=e.label('Lnogo')
        e(f'''
        s_cmp_lg_u32 s3, 3
        s_cbranch_scc1 {la}
        s_mov_b32 s41, 0
        {l}:
        s_add_u32 s41, s41, 1
        s_waitcnt vmcnt(0)
        v_cmp_ne_u32 vcc, 1, v60
        s_cbranch_vccz {d}
        s_sleep {cfg.sleep_head}
        global_load_dword v60, v61, s[{P_DBG}:{P_DBG+1}] sc1
        s_cmp_lt_u32 s41, {cfg.gpoll}
        s_cbranch_scc1 {l}
        {d}:
        ''')
        stamp(e,cfg,15)
        e(f'{la}:\ns_waitcnt vmcnt(0)')
    def arrive():
        la=e.label('Lnoarr')
        e(f'''
        s_cmp_lg_u32 s3, 3
        s_cbranch_scc1 {la}
        s_and_b32 s40, s2, 7
        s_lshl_b32 s40, s40, 5
        s_lshr_b32 s41, s2, 3
        s_add_u32 s40, s40, s41
        s_lshl_b32 s40, s40, 2
        s_add_u32 s40, s40, {WS_SA}
        s_getreg_b32 s41, hwreg(HW_REG_XCC_ID, 0, 4)
        s_add_u32 s41, s41, 1
        v_mov_b32 v{vA}, 0
        v_mov_b32 v{vA+1}, s41
        s_mov_b64 exec, 1
        buffer_store_dword v{vA+1}, v{vA}, s[{SWS}:{SWS+3}], s40 offen sc1
        s_mov_b64 exec, -1
        {la}:
        ''')
    def gbar1():
        l1=e.label('Lgb1')
        e(f's_cmp_lg_u32 s3, 0\ns_cbranch_scc1 {l1}\ns_mov_b32 s40, {WS_SA}')
        gather(e,cfg,[(24,4,vRow,'s40',0)],vT,cfg.sleep_head)
        if cfg.local:
            e(f'''
            v_xor_b32 v25, v25, v24
            v_xor_b32 v26, v26, v24
            v_xor_b32 v27, v27, v24
            v_or3_b32 v25, v25, v26, v27
            v_mov_b32_dpp v26, v24 row_ror:1 row_mask:0xf bank_mask:0xf
            v_xor_b32 v26, v26, v24
            v_and_b32 v27, 7, v{vL}
            v_cmp_eq_u32 vcc, 0, v27
            v_cndmask_b32 v26, v26, 0, vcc
            v_or_b32 v25, v25, v26
            v_cmp_ne_u32 vcc, 0, v25
            s_cbranch_vccnz {l1}
            ''')
            lds_signal(e,F_L,vFl,vOne)
        e(f'{l1}:')
    def pickup(kind, dsts):
        gi=GROUPS.index(kind)
        e(f'''v_lshrrev_b32 v{vA+7}, 2, v{vL}
        v_lshlrev_b32 v{vA}, 8, v{vA+7}
        v_and_b32 v{vA+7}, 7, v{vA+7}
        v_lshl_add_u32 v{vA}, v{vA+7}, 5, v{vA}
        v_and_b32 v{vA+7}, 3, v{vL}
        v_lshl_add_u32 v{vA}, v{vA+7}, 3, v{vA}
        v_add_u32 v{vA}, s32, v{vA}''')
        for ct in range(1,8): e(f'v_xor_b32 v{vA+ct}, {ct<<5}, v{vA}')
        lds_spin(e,cfg,F_LAND+4*gi,4,vFl,vT)
        for t,W in enumerate(dsts):
            sk=None
            if isinstance(W,tuple):
                W=W[0]; sk=e.label('Lsk'); e(f's_cmp_eq_u32 s0, 0\ns_cbranch_scc1 {sk}')
            for ct in range(8):
                for hf in range(2):
                    r=W+4*ct+2*hf
                    e(f'ds_read_b64_tr_b16 v[{r}:{r+1}], v{vA+ct} offset:{slot(kind,2*t+hf)}')
            if sk: e(f'{sk}:')
        e('s_waitcnt lgkmcnt(0)')
        lds_signal(e,F_CONS+4*gi,vFl,vOne)
    def pickup_cols(kind, W, base=None):
        gi=GROUPS.index(kind)
        e(f'''v_lshrrev_b32 v{vA+7}, 2, v{vL}
        v_lshlrev_b32 v{vA}, 8, v{vA+7}
        v_and_b32 v{vA+7}, 7, v{vA+7}
        s_lshl_b32 s40, s3, 1
        v_xor_b32 v{vA+7}, s40, v{vA+7}
        v_lshl_add_u32 v{vA}, v{vA+7}, 5, v{vA}
        v_and_b32 v{vA+7}, 3, v{vL}
        v_lshl_add_u32 v{vA}, v{vA+7}, 3, v{vA}
        v_xor_b32 v{vA+1}, 32, v{vA}
        v_add_u32 v{vA+2}, 0x10000, v{vA}
        v_add_u32 v{vA+3}, 0x10000, v{vA+1}''')
        if base is None: lds_spin(e,cfg,F_LAND+4*gi,4,vFl,vT)
        for t in range(4):
            for j in range(2):
                for hf in range(2):
                    r=W+8*t+4*j+2*hf
                    e(f'ds_read_b64_tr_b16 v[{r}:{r+1}], v{vA+2*(t>>1)+j} offset:{(t&1)*RING+(slot(kind,hf) if base is None else base+4096*hf)}')
        if base is None:
            e('s_waitcnt lgkmcnt(0)')
            lds_signal(e,F_CONS+4*gi,vFl,vOne)
    def pickup_x(kind, W):
        la=e.label('Lpl'); lb=e.label('Lpld')
        e(f's_cmp_ge_u32 s99, 224\ns_cbranch_scc1 {la}')
        if kind[1] in cfg.defer: lds_signal(e,F_CONS+4*GROUPS.index(kind),vFl,vOne)
        else: pickup_cols(kind,W)
        e(f's_branch {lb}\n{la}:')
        pickup(kind,[W])
        e(f'{lb}:')
    def mmx(Ws, accs, vXr):
        e('s_waitcnt lgkmcnt(0)\ns_barrier')
        for t in range(4): e(f'ds_read_b128 v[{16+4*t}:{19+4*t}], v{vXr} offset:{64*t}')
        for t in range(4):
            e(f's_waitcnt lgkmcnt({3-t})')
            for m,W in enumerate(Ws):
                for j in range(2):
                    ac=accs[2*m+j]
                    e(f'v_mfma_f32_16x16x32_bf16 v[{ac}:{ac+3}], v[{16+4*t}:{19+4*t}], v[{W+8*t+4*j}:{W+8*t+4*j+3}], '+('0' if t==0 else f'v[{ac}:{ac+3}]'))
    def mm(As, Ws, accs, redoff=0):
        for t,(a_,W) in enumerate(zip(As,Ws)):
            for ct in range(8):
                e(f'v_mfma_f32_16x16x32_bf16 v[{accs[ct]}:{accs[ct]+3}], v[{a_}:{a_+3}], v[{W+4*ct}:{W+4*ct+3}], '+('0' if t==0 else f'v[{accs[ct]}:{accs[ct]+3}]'))
        for ct in range(8): e(f'ds_write_b32 v{vRd}, v{accs[ct]} offset:{64*ct}')
    JACC=[24+4*i for i in range(8)]
    def job_pub(base, rs, cgoff, skq='s36', scg='s39'):
        lp=e.label('Lnopub')
        e(f's_cmp_ge_u32 s3, 2\ns_cbranch_scc1 {lp}')
        for w in range(4): e(f'ds_read_b128 v[{24+4*w}:{27+4*w}], v{vRr} offset:{2304*w}')
        pub_addr(base+cgoff*512, rs, skq, scg)
        e('s_waitcnt lgkmcnt(0)')
        for a_,b_ in ((24,28),(32,36),(24,32)):
            e(f'v_pk_add_f32 v[{a_}:{a_+1}], v[{a_}:{a_+1}], v[{b_}:{b_+1}]\nv_pk_add_f32 v[{a_+2}:{a_+3}], v[{a_+2}:{a_+3}], v[{b_+2}:{b_+3}]')
        for r in range(4): e(f'v_min_u32 v{24+r}, -2, v{24+r}')
        e(f'buffer_store_dwordx4 v[24:27], v{vA}, s[{SWS}:{SWS+3}], s40 offen sc1\n{lp}:')
    def spread(r):
        for k in (1,2,3,0): e(f'v_mov_b32_dpp v{r+k}, v{r} quad_perm:[{k},{k},{k},{k}] row_mask:0xf bank_mask:0xf')
    def silu_A():
        unpack(e,16,32,3)
        for i in range(6): e(f'v_mul_f32 v{48+i}, 0xbfb8aa3b, v{32+i}')
        for i in range(6): e(f'v_exp_f32 v{48+i}, v{48+i}')
        for i in range(6): e(f'v_add_f32 v{48+i}, 1.0, v{48+i}')
        for i in range(6): e(f'v_rcp_f32 v{48+i}, v{48+i}')
        for i in range(6): e(f'v_mul_f32 v{32+i}, v{32+i}, v{48+i}')
        e('v_cvt_pk_bf16_f32 v16, v32, v33\nv_cvt_pk_bf16_f32 v20, v34, v35\nv_cvt_pk_bf16_f32 v56, v36, v37')
        spread(16); spread(20); spread(56)
    def sum4(r, dst):
        e(f'''v_pk_add_f32 v[{r}:{r+1}], v[{r}:{r+1}], v[{r+2}:{r+3}]
        v_pk_add_f32 v[{r+4}:{r+5}], v[{r+4}:{r+5}], v[{r+6}:{r+7}]
        v_pk_add_f32 v[{dst}:{dst+1}], v[{r}:{r+1}], v[{r+4}:{r+5}]''')
    def aoff(dst, pstr, bstr, gstr):
        e(f'''v_bfe_u32 v{vA+5}, v{vL}, 2, 2
        v_and_b32 v{vA+6}, 3, v{vL}
        v_lshrrev_b32 v{vA+7}, 4, v{vL}
        v_mul_u32_u24 v{dst}, {pstr}, v{vA+5}
        v_mul_u32_u24 v{vA+6}, {bstr}, v{vA+6}
        v_mul_u32_u24 v{vA+7}, {gstr}, v{vA+7}
        v_add3_u32 v{dst}, v{dst}, v{vA+6}, v{vA+7}''')
    def dppsum(r0, n):
        for r in (4,8):
            for i in range(n): e(f'v_add_f32_dpp v{r0+i}, v{r0+i}, v{r0+i} row_ror:{r} row_mask:0xf bank_mask:0xf')
    def allred_s(op, xs, t, rors=(4,8), swaps=('v_permlane16_swap_b32','v_permlane32_swap_b32')):
        for r in rors:
            for x in xs: e(f'{op}_dpp v{x}, v{x}, v{x} row_ror:{r} row_mask:0xf bank_mask:0xf')
        for sw in swaps:
            for k,x in enumerate(xs): e(f'v_mov_b32 v{t+k}, v{x}')
            for k,x in enumerate(xs): e(f'{sw} v{t+k}, v{x}')
            for k,x in enumerate(xs): e(f'{op} v{x}, v{x}, v{t+k}')
    def gather_q():
        e(f'''
        s_lshr_b32 s40, s37, 2
        s_mul_i32 s40, s40, {QS}
        s_and_b32 s41, s37, 3
        s_lshl_b32 s41, s41, 12
        s_add_u32 s40, s40, s41
        s_lshl_b32 s41, s3, 10
        s_add_u32 s40, s40, s41
        s_add_u32 s52, s40, {WS_Q}
        s_add_u32 s53, s52, {4*QS}
        s_add_u32 s54, s52, {8*QS}
        s_add_u32 s55, s52, {12*QS}
        ''')
        gather(e,cfg,[(24+4*i,4,vRow,f's{52+i}',0) for i in range(4)],vT,cfg.sleep_q)
        e(f'''
        s_mov_b32 s42, s41
        v_pk_add_f32 v[24:25], v[24:25], v[28:29]
        v_pk_add_f32 v[26:27], v[26:27], v[30:31]
        v_pk_add_f32 v[32:33], v[32:33], v[36:37]
        v_pk_add_f32 v[34:35], v[34:35], v[38:39]
        v_pk_add_f32 v[24:25], v[24:25], v[32:33]
        v_pk_add_f32 v[26:27], v[26:27], v[34:35]
        s_mul_i32 s40, s3, {2*QSTR}
        s_add_u32 s40, s40, {L_QOP}
        v_lshrrev_b32 v{vA}, 5, v{vL}
        v_mul_u32_u24 v{vA}, {QSTR}, v{vA}
        v_and_b32 v{vA+1}, 31, v{vL}
        v_lshl_add_u32 v{vA}, v{vA+1}, 3, v{vA}
        v_add_u32 v{vA}, s40, v{vA}
        v_cvt_pk_bf16_f32 v24, v24, v25
        v_cvt_pk_bf16_f32 v25, v26, v27
        ds_write_b64 v{vA}, v[24:25]
        ''')
        if cfg.adapt==1:
            lb=e.label('Lld')
            e(f's_cmp_lg_u32 s42, 1\ns_cbranch_scc1 {lb}')
            lds_signal(e,F_M,vFl,vOne)
            e(f'{lb}:')
        e('s_waitcnt lgkmcnt(0)')
        lds_signal(e,F_Q,vFl,vOne)
    early = True
    def finish_stats(mu,var):
        if cfg.round_ln: rnd1(e,mu); rnd1(e,var)
        e(f'v_add_f32 v{var}, 0x3727c5ac, v{var}')
        if cfg.round_ln: rnd1(e,var)
        e(f'v_sqrt_f32 v{var}, v{var}')
        if cfg.round_ln: rnd1(e,var)
        e(f'v_rcp_f32 v{var}, v{var}')
    def normalise(X,n,mu,rs,t):
        for i in range(n): e(f'v_sub_f32 v{X+i}, v{X+i}, v{mu}')
        if cfg.round_ln: rnd_vec(e,X,n,t)
        for i in range(n): e(f'v_mul_f32 v{X+i}, v{X+i}, v{rs}')
        if cfg.round_ln: rnd_vec(e,X,n,t)
    def modulate(X,n,T1,SB,out,t,prep=True):
        if prep:
            for i in range(n): e(f'v_add_f32 v{T1+i}, 1.0, v{T1+i}')
            if cfg.round_ln: rnd_vec(e,T1,n,t)
        for i in range(n): e(f'v_mul_f32 v{X+i}, v{X+i}, v{T1+i}')
        if cfg.round_ln: rnd_vec(e,X,n,t)
        for i in range(n): e(f'v_add_f32 v{X+i}, v{X+i}, v{SB+i}')
        for i in range(n//2): e(f'v_cvt_pk_bf16_f32 v{out+i}, v{X+2*i}, v{X+2*i+1}')
    def rowsum(r):
        e(f'''
        v_permlane32_swap_b32 v{r}, v{r+2}
        v_permlane32_swap_b32 v{r+1}, v{r+3}
        v_pk_add_f32 v[{r}:{r+1}], v[{r}:{r+1}], v[{r+2}:{r+3}]
        v_mov_b32 v{r+2}, v{r}
        v_mov_b32 v{r+3}, v{r+1}
        v_permlane16_swap_b32 v{r+2}, v{r}
        v_permlane16_swap_b32 v{r+3}, v{r+1}
        v_pk_add_f32 v[{r}:{r+1}], v[{r}:{r+1}], v[{r+2}:{r+3}]
        ''')
    def if_red():
        l=e.label('Lnr')
        e(f's_cmp_lt_u32 s99, 224\ns_cbranch_scc1 {l}\ns_cmp_ge_u32 s3, 2\ns_cbranch_scc1 {l}')
        return l
    def red_addr(base, rs, sreg):
        aoff(vA, 64, 16, 4*rs)
        e(f'''s_lshr_b32 s42, s98, 4
        s_mul_i32 s42, s42, {rs}
        s_and_b32 s43, s98, 15
        s_lshl_b32 s43, s43, 8
        s_add_u32 s42, s42, s43
        s_add_u32 {sreg}, s42, {base}''')
    def red_stats():
        l=if_red()
        if not cfg.direct: row_stats()
        unpack(e,19,RX,1)
        if not cfg.direct:
            unpack(e,19,RN,1)
            normalise(RN,2,24,25,26)
        e(f'{l}:')
    def row_stats():
        unpack(e,24,32,8)
        mu=24; var=25; a_=26; b_=27
        e(f'v_add_f32 v{mu}, v32, v33\nv_add_f32 v{a_}, v34, v35')
        for i in range(4,16,2): e(f'v_add_f32 v{mu}, v{mu}, v{32+i}\nv_add_f32 v{a_}, v{a_}, v{33+i}')
        e(f'v_add_f32 v{mu}, v{mu}, v{a_}')
        allreduce64(e,'v_add_f32',mu,a_)
        e(f'v_mul_f32 v{mu}, 0x3a800000, v{mu}')
        e(f'v_sub_f32 v{a_}, v32, v{mu}\nv_sub_f32 v{b_}, v33, v{mu}\nv_mul_f32 v{var}, v{a_}, v{a_}\nv_mul_f32 v28, v{b_}, v{b_}')
        for i in range(2,16,2):
            e(f'v_sub_f32 v{a_}, v{32+i}, v{mu}\nv_sub_f32 v{b_}, v{33+i}, v{mu}\nv_fmac_f32 v{var}, v{a_}, v{a_}\nv_fmac_f32 v28, v{b_}, v{b_}')
        e(f'v_add_f32 v{var}, v{var}, v28')
        allreduce64(e,'v_add_f32',var,a_)
        e(f'v_mul_f32 v{var}, 0x3a800000, v{var}')
        finish_stats(mu,var)
    def red_sa0():
        l=if_red()
        e(f'''v_and_b32 v28, 15, v{vL}
        v_lshlrev_b32 v28, 4, v28
        s_mov_b32 s40, {WS_SA}
        buffer_load_dwordx4 v[24:27], v28, s[{SWS}:{SWS+3}], s40 offen sc1
        {l}:''')
    def red_sa():
        l=if_red()
        if cfg.sa0:
            e(f'''s_waitcnt vmcnt(0)
            v_max3_u32 v24, v24, v25, v26
            v_max_u32 v24, v24, v27
            v_cmp_eq_u32 vcc, -1, v24
            s_cbranch_vccz {l}''')
        e(f'v_and_b32 v{vA}, 15, v{vL}\nv_lshlrev_b32 v{vA}, 4, v{vA}\ns_mov_b32 s40, {WS_SA}')
        gather(e,cfg,[(24,4,vA,'s40',0)],vT,cfg.sleep_head)
        e(f'{l}:')
    def red_h():
        l=if_red()
        red_addr(WS_MU,MUS,'s52')
        e('s_add_u32 s53, s52, 4096')
        gather(e,cfg,[(24,4,vA,'s52',0),(28,4,vA,'s53',0)],vT,cfg.sleep_head)
        rowsum(24); rowsum(28)
        rnd_vec(e,24,2,26); rnd_vec(e,28,2,26)
        modulate(RN,2,28,24,24,26)
        e(f'''
        v_min_u32 v24, -2, v24
        s_lshl_b32 s40, s98, 7
        s_add_u32 s40, s40, {WS_H}
        s_mov_b32 s42, 0xffff
        s_mov_b32 s43, 0xffff
        s_mov_b64 exec, s[42:43]
        buffer_store_dword v24, v{vRo}, s[{SWS}:{SWS+3}], s40 offen sc1
        s_mov_b64 exec, -1
        {l}:
        ''')
    def red_ts():
        l=if_red()
        red_addr(WS_MN+4096,MNS,'s52')
        e('s_add_u32 s53, s52, 4096')
        gather(e,cfg,[(24,4,vA,'s52',0),(28,4,vA,'s53',0)],vT,cfg.sleep_head)
        rowsum(24); rowsum(28)
        rnd_vec(e,28,2,26)
        e(f'''
        v_add_f32 v28, 1.0, v28
        v_add_f32 v29, 1.0, v29
        v_cvt_pk_bf16_f32 v24, v28, v24
        v_cvt_pk_bf16_f32 v25, v29, v25
        v_min_u32 v24, -2, v24
        v_min_u32 v25, -2, v25
        v_lshlrev_b32 v{vA}, 1, v{vRo}
        s_lshl_b32 s40, s98, 8
        s_add_u32 s40, s40, {WS_TS}
        s_mov_b32 s42, 0xffff
        s_mov_b32 s43, 0xffff
        s_mov_b64 exec, s[42:43]
        buffer_store_dwordx2 v[24:25], v{vA}, s[{SWS}:{SWS+3}], s40 offen sc1
        s_mov_b64 exec, -1
        {l}:
        ''')
    def red_g():
        l=if_red()
        red_addr(WS_MN,MNS,'s52')
        e(f'v_mov_b32 v{vA+1}, v{vA}')
        red_addr(WS_MG,MGS,'s53')
        e(f's_add_u32 s54, s53, {16*MGS}')
        gather(e,cfg,[(24,4,vA+1,'s52',0),(28,4,vA,'s53',0),(32,4,vA,'s54',0)],vT,cfg.sleep_head)
        e('v_pk_add_f32 v[28:29], v[28:29], v[32:33]\nv_pk_add_f32 v[30:31], v[30:31], v[34:35]')
        rowsum(24); rowsum(28)
        e(f'v_mov_b32 v{RX+2}, v24\nv_mov_b32 v{RX+3}, v25\nv_mov_b32 v{RX+4}, v28\nv_mov_b32 v{RX+5}, v29')
        rnd_vec(e,RX+2,4,26)
        if cfg.warm: e(f'global_load_dword v24, v{vRo}, s[{P_OUT}:{P_OUT+1}]\ns_waitcnt vmcnt(0)')
        e(f'{l}:')
    def wpick(a=0,b=5):
        for g,d in sorted([t for t in [('WO',WO),('X0',X0),('X1',X1),('X2',X2),('X3',WJ)] if (t[0],0) in UNITS], key=lambda t: upos(t[0],0))[a:b]:
            if g=='X2':
                la=e.label('Lpl'); lb=e.label('Lpld')
                e(f's_cmp_ge_u32 s99, 224\ns_cbranch_scc1 {la}')
                pickup_cols(g,d)
                e(f's_branch {lb}\n{la}:')
                lds_signal(e,F_CONS+4*GROUPS.index(g),vFl,vOne)
                e(f'{lb}:')
            elif g=='WO': pickup_cols(g,d)
            elif g=='X3':
                la=e.label('Lpl'); lb=e.label('Lpld')
                e(f's_cmp_eq_u32 s0, 0\ns_cbranch_scc1 {la}')
                pickup(g,[d])
                e(f's_branch {lb}\n{la}:')
                lds_signal(e,F_CONS+4*GROUPS.index(g),vFl,vOne)
                e(f'{lb}:')
            else: pickup_x(g,d)
    def njobs():
        gbar1(); auxbar()
        job_pub(WS_MN,MNS,-16)
        ln=e.label('Lnoj2')
        e(f's_cmp_lt_u32 s99, 224\ns_cbranch_scc1 {ln}')
        auxbar(); mm([16,20],[X0,X1],JACC); auxbar(); job_pub(WS_MN,MNS,-16,scg='s101')
        e(f'{ln}:')
    def gjob():
        lg=e.label('Lnog')
        e(f's_cmp_eq_u32 s0, 0\ns_cbranch_scc1 {lg}')
        mm([56],[WJ],JACC); auxbar()
        e('s_and_b32 s42, s101, 7\ns_lshr_b32 s43, s101, 3')
        job_pub(WS_MG,MGS,0,'s42','s43')
        auxbar()
        e(f'{lg}:')
    e('''
    s_cmp_eq_u32 s33, 1
    s_cbranch_scc1 L_roleQ
    ''')
    red_stats(); silu_A(); go1a(); pickup('J',[WJ,WJ+32])
    mm([16,20],[WJ,WJ+32],JACC); go1(); auxbar(); arrive()
    e('s_cmp_eq_u32 s33, 2\ns_cbranch_scc1 L_roleN')
    job_pub(WS_MU,MUS,0)
    stamp(e,cfg,1)
    wpick(); gbar1(); auxbar()
    stamp(e,cfg,2)
    e('s_branch L_common')
    e('L_roleN:')
    stamp(e,cfg,1)
    wpick(0,cfg.hafter); stamp(e,cfg,12); (lds_spin(e,cfg,F_P3,4,vFl,vT) if cfg.mgate else None); stamp(e,cfg,14); (None if cfg.direct else red_h()); stamp(e,cfg,15); wpick(cfg.hafter,5); njobs()
    stamp(e,cfg,2)
    e('s_branch L_common')
    e('L_roleQ:')
    if cfg.direct:
        row_stats()
        e(f'''
        s_lshl_b32 s40, s3, 3
        s_add_u32 s40, s40, {L_ST}
        v_mov_b32 v{vA}, s40
        ds_write_b64 v{vA}, v[24:25]
        ''')
    go1a(); pickup('J',[WJ,WJ+32]); go1(); auxbar(); arrive()
    if cfg.direct:
        e(f'''
        v_bfe_u32 v{vA}, v{vL}, 2, 2
        v_lshlrev_b32 v{vA}, 3, v{vA}
        v_add_u32 v{vA}, {L_ST}, v{vA}
        ds_read_b64 v[24:25], v{vA}
        ''')
        unpack(e,16,56,2)
        e('s_waitcnt lgkmcnt(0)')
        normalise(56,4,24,25,26)
    wpick(0,cfg.qafter)
    gbar1(); auxbar()
    stamp(e,cfg,1)
    if cfg.hgate: lds_spin(e,cfg,F_P2,4,vFl,vT)
    if cfg.direct:
        aoff(vA, MUS, 16, 64)
        e(f'''
        s_lshl_b32 s40, s36, 10
        s_lshl_b32 s41, s3, 8
        s_add_u32 s40, s40, s41
        s_add_u32 s52, s40, {WS_MU}
        ''')
        for i in range(1,8): e(f's_add_u32 s{52+i}, s52, {(i&3)*4*MUS+(i>>2)*4096}')
        gather(e,cfg,[(16+4*i,4,vA,f's{52+i}',0) for i in range(8)],vT,cfg.sleep_head)
        stamp(e,cfg,14)
        if cfg.stamps: e('s_mov_b32 s94, s41\ns_mov_b32 s95, 0')
        for m in range(2):
            for h in range(2):
                r=16+16*m+2*h
                e(f'''v_pk_add_f32 v[{r}:{r+1}], v[{r}:{r+1}], v[{r+4}:{r+5}]
                v_pk_add_f32 v[{r+8}:{r+9}], v[{r+8}:{r+9}], v[{r+12}:{r+13}]
                v_pk_add_f32 v[{48+4*m+2*h}:{49+4*m+2*h}], v[{r}:{r+1}], v[{r+8}:{r+9}]''')
        rnd_vec(e,48,8,vA)
        modulate(56,4,52,48,24,vA)
        e('v_mov_b32 v16, v24\nv_mov_b32 v20, v25')
    else:
        e(f's_mov_b32 s40, {WS_H}')
        gather(e,cfg,[(16,2,vHq,'s40',0)],vT,cfg.sleep_head)
        stamp(e,cfg,14)
        if cfg.stamps: e('s_mov_b32 s94, s41\ns_mov_b32 s95, 0')
        e('v_mov_b32 v20, v17')
    spread(16); spread(20)
    mm([16,20],[WJ,WJ+32],JACC); auxbar()
    job_pub(WS_Q,QS,0)
    stamp(e,cfg,2)
    wpick(cfg.qafter,5)
    e('L_common:')
    if cfg.qgate: lds_spin(e,cfg,F_P,4,vFl,vT)
    gather_q()
    stamp(e,cfg,3)
    auxbar()
    gjob()
    red_ts()
    phase[0]='m'
    if 'h' in cfg.kill: e(f's_mov_b32 s46, {WS_END}')
    if 'm' in cfg.kill: e('s_mov_b32 s46, 0')
    F=192; T1=204; SB=206; AC2=[220+4*i for i in range(8)]
    lds_spin(e,cfg,F_ML,4,vFl,vT)
    lm=e.label('Lnoml')
    e(f'''
    s_cmp_lg_u32 s3, 0
    s_cbranch_scc1 {lm}
    v_and_b32 v{vA}, 7, v{vL}
    v_lshlrev_b32 v{vA+1}, 3, v{vA}
    v_add_u32 v{vA}, {L_ML}, v{vA+1}
    ds_read_b64 v[16:17], v{vA}
    ds_read_b64 v[18:19], v{vA} offset:64
    ds_read_b64 v[20:21], v{vA} offset:128
    ds_read_b64 v[22:23], v{vA} offset:192
    s_lshl_b32 s40, s37, 10
    s_lshl_b32 s41, s38, 6
    s_add_u32 s40, s40, s41
    s_add_u32 s40, s40, {WS_ML}
    s_waitcnt lgkmcnt(0)
    v_max3_f32 v24, v16, v18, v20
    v_max_f32 v24, v24, v22
    v_sub_f32 v16, v16, v24
    v_sub_f32 v18, v18, v24
    v_sub_f32 v20, v20, v24
    v_sub_f32 v22, v22, v24
    v_exp_f32 v16, v16
    v_exp_f32 v18, v18
    v_exp_f32 v20, v20
    v_exp_f32 v22, v22
    v_mul_f32 v25, v16, v17
    v_fmac_f32 v25, v18, v19
    v_fmac_f32 v25, v20, v21
    v_fmac_f32 v25, v22, v23
    v_min_u32 v24, -2, v24
    v_min_u32 v25, -2, v25
    s_mov_b64 exec, 0xff
    buffer_store_dwordx2 v[24:25], v{vA+1}, s[{SWS}:{SWS+3}], s40 offen sc1
    s_mov_b64 exec, -1
    ''')
    if cfg.adapt==2:
        e(f'''
        s_lshl_b32 s40, s37, 10
        s_add_u32 s40, s40, {WS_ML}
        buffer_load_dword v16, v{vRow}, s[{SWS}:{SWS+3}], s40 offen sc1
        s_waitcnt vmcnt(0)
        v_cmp_ne_u32 vcc, -1, v16
        s_bcnt1_i32_b64 s40, vcc
        s_cmp_lt_u32 s40, {4*cfg.rank}
        s_cbranch_scc1 {lm}
        ''')
        lds_signal(e,F_M,vFl,vOne)
    e(f'{lm}:')
    vOc=48; vOs=49; vH1=50; vYs=53; vH3=55; vZs=56; vXs=57; vSt=58; vOc2=59; vGs=51; vXr=52; vXw=60
    red_g()
    aoff(vH1, OS, 16, 64*OS)
    aoff(vH3, 8, 32, GS)
    aoff(vXs, 4, 16, 2048)
    aoff(vYs, 16, 4, 16*YS)
    aoff(vZs, 16, 4, 16*ZS)
    aoff(vGs, 16, 4, GS)
    aoff(vXr, XSTR, 0, 16)
    aoff(vXw, 4, 16, XSTR)
    aoff(vSt, 128, 8, 512)
    e(f'''
    v_add_u32 v{vXr}, {L_AX}, v{vXr}
    s_lshl_b32 s40, s3, 6
    s_add_u32 s40, s40, {L_AX}
    v_add_u32 v{vXw}, s40, v{vXw}
    s_lshl_b32 s40, s3, 1
    v_lshrrev_b32 v{vA}, 5, v{vL}
    v_add_u32 v{vA+2}, s40, v{vA}
    v_mul_u32_u24 v{vOc}, {OSTR}, v{vA+2}
    v_and_b32 v{vA+1}, 31, v{vL}
    v_lshl_add_u32 v{vOc}, v{vA+1}, 4, v{vOc}
    v_add_u32 v{vOc}, {OOFF}, v{vOc}
    v_add_u32 v{vOc2}, 0x10000, v{vOc}
    v_lshlrev_b32 v{vOs}, 3, v{vL}
    s_lshl_b32 s52, s37, 4
    s_add_u32 s52, s52, s38
    s_mul_i32 s52, s52, {OS}
    s_lshl_b32 s40, s3, 9
    s_add_u32 s52, s52, s40
    s_mul_i32 s53, s3, {16*OS}
    s_and_b32 s40, s14, 7
    s_lshl_b32 s40, s40, 8
    s_add_u32 s53, s53, s40
    s_bfe_u32 s40, s14, 0x20003
    s_lshl_b32 s40, s40, 6
    s_add_u32 s53, s53, s40
    s_add_u32 s54, s53, {4*OS}
    s_add_u32 s55, s53, {8*OS}
    s_add_u32 s56, s53, {12*OS}
    s_lshr_b32 s42, s3, 1
    s_and_b32 s43, s3, 1
    s_lshl_b32 s43, s43, 7
    s_lshr_b32 s40, s14, 5
    s_lshl_b32 s40, s40, 1
    s_add_u32 s40, s40, s42
    s_mul_i32 s57, s40, {YS}
    s_and_b32 s40, s14, 31
    s_lshl_b32 s40, s40, 8
    s_add_u32 s57, s57, s40
    s_add_u32 s57, s57, s43
    s_add_u32 s57, s57, {WS_Y}
    s_and_b32 s40, s1, 7
    s_lshl_b32 s40, s40, 1
    s_add_u32 s40, s40, s42
    s_mul_i32 s59, s40, {ZS}
    s_add_u32 s59, s59, s43
    s_lshr_b32 s43, s1, 3
    s_lshl_b32 s42, s43, 8
    s_add_u32 s59, s59, s42
    s_add_u32 s59, s59, {WS_Z}
    s_and_b32 s40, s63, 7
    s_lshl_b32 s58, s40, 8
    s_lshl_b32 s42, s3, 6
    s_add_u32 s58, s58, s42
    s_add_u32 s58, s58, {WS_X1}
    s_mov_b32 s49, {WS_ST}
    s_mul_i32 s60, s40, {4*GS}
    s_lshr_b32 s41, s63, 3
    s_lshl_b32 s41, s41, 9
    s_add_u32 s60, s60, s41
    s_lshl_b32 s40, s3, 7
    s_add_u32 s60, s60, s40
    s_add_u32 s60, s60, {WS_GU}
    s_lshl_b32 s43, s43, 9
    s_add_u32 s48, s43, s40
    s_add_u32 s48, s48, {WS_GU}
    s_mov_b32 s61, 0x3f80
    s_mov_b32 s62, 0x3f800000
    s_mov_b32 s96, 0x000f000f
    s_mov_b32 s97, 0x000f000f
    s_mov_b32 s10, {1024*3584*2}
    s_mov_b32 s11, 0x20000
    v_lshrrev_b32 v{vA}, 4, v{vL}
    v_and_b32 v{vA+1}, 15, v{vL}
    v_lshlrev_b32 v{vA+2}, 1, v{vA}
    v_xor_b32 v{vA+2}, v{vA+2}, v{vA+1}
    v_lshlrev_b32 v{vA+2}, 4, v{vA+2}
    v_lshl_add_u32 v208, v{vA}, 11, v{vA+2}
    v_xor_b32 v209, 128, v208
    v_mul_u32_u24 v210, 7168, v{vA}
    v_add_u32 v210, v210, v{vA+2}
    s_lshr_b32 s40, s1, 3
    s_lshl_b32 s13, s40, 18
    s_lshl_b32 s40, s3, 16
    s_add_u32 s13, s13, s40
    s_and_b32 s40, s1, 7
    s_lshl_b32 s40, s40, 8
    s_add_u32 s13, s13, s40
    s_and_b32 s40, s63, 7
    s_lshl_b32 s40, s40, 2
    s_add_u32 s40, s40, s3
    s_mul_i32 s12, s40, {32*7168}
    s_lshr_b32 s40, s63, 3
    s_lshl_b32 s40, s40, 8
    s_add_u32 s12, s12, s40
    ''')
    lf=e.label('Lnof')
    lds_spin(e,cfg,F_V,1,vFl,vT)
    e(f's_cmp_lg_u32 s3, 0\ns_cbranch_scc1 {lf}')
    e(f's_lshl_b32 s40, s37, 10\ns_add_u32 s40, s40, {WS_ML}')
    gather(e,cfg,[(16,4,vRow,'s40',0)],vT,cfg.sleep_ml)
    e('v_mov_b32 v20, v16\nv_mov_b32 v22, v18')
    allred_s('v_max_f32',[20,22],24)
    e('''
    v_sub_f32 v16, v16, v20
    v_sub_f32 v18, v18, v22
    v_exp_f32 v16, v16
    v_exp_f32 v18, v18
    v_mul_f32 v21, v16, v17
    v_mul_f32 v23, v18, v19
    ''')
    allred_s('v_add_f32',[21,23],24)
    e(f'''
    v_rcp_f32 v21, v21
    v_rcp_f32 v23, v23
    v_add_u32 v{vA}, {L_ST}, v{vRow}
    s_mov_b64 exec, 15
    ds_write_b128 v{vA}, v[20:23]
    s_waitcnt lgkmcnt(0)
    s_mov_b64 exec, -1
    ''')
    lds_signal(e,F_F,vFl,vOne)
    e(f'''
    {lf}:
    ''')
    lsb=e.label('Lnosb')
    e(f's_cmp_ge_u32 s99, 224\ns_cbranch_scc1 {lsb}')
    aoff(vA, 8, 32, 4096)
    e(f'''
    s_and_b32 s40, s63, 7
    s_lshl_b32 s40, s40, 9
    s_lshl_b32 s42, s3, 7
    s_add_u32 s40, s40, s42
    s_add_u32 s40, s40, {WS_TS}
    ''')
    gather(e,cfg,[(16,2,vA,'s40',0)],vT,cfg.sleep_ml)
    e(f'''
    v_lshlrev_b32 v{T1}, 16, v16
    v_lshlrev_b32 v{T1+1}, 16, v17
    v_and_b32 v{SB}, 0xffff0000, v16
    v_and_b32 v{SB+1}, 0xffff0000, v17
    {lsb}:
    ''')
    e(f'''
    s_lshl_b32 s40, s3, 4
    v_lshrrev_b32 v{vA+1}, 5, v{vL}
    v_lshl_add_u32 v{vA}, v{vA+1}, 3, s40
    v_add_u32 v{vA+1}, {L_ST}, v{vA}
    v_add_u32 v{vA}, {L_ML}, v{vA}
    ds_read_b32 v{F}, v{vA}
    ds_read_b32 v{F+1}, v{vA} offset:64
    ds_read_b32 v{F+2}, v{vA} offset:128
    ds_read_b32 v{F+3}, v{vA} offset:192
    ''')
    lds_spin(e,cfg,F_F,1,vFl,vT)
    e(f'ds_read_b64 v[20:21], v{vA+1}\ns_waitcnt lgkmcnt(0)')
    for k in range(4): e(f'v_sub_f32 v{F+k}, v{F+k}, v20')
    for k in range(4): e(f'v_exp_f32 v{F+k}, v{F+k}')
    for k in range(4): e(f'v_mul_f32 v{F+k}, v{F+k}, v21')
    stamp(e,cfg,4)
    e.c('---- tail: combine the four waves of this workgroup')
    if cfg.help:
        lcp=e.label('Lnocp')
        e(f's_cmp_lg_u32 s3, 1\ns_cbranch_scc1 {lcp}')
        lds_spin(e,cfg,F_C,4,vFl,vT)
        e(f'''
        s_lshl_b32 s40, s37, 7
        s_lshl_b32 s41, s38, 2
        s_add_u32 s40, s40, s41
        s_add_u32 s40, s40, {WS_CP}
        v_mov_b32 v{vA}, 0
        s_mov_b64 exec, 1
        buffer_store_dword v{vOne}, v{vA}, s[{SWS}:{SWS+3}], s40 offen sc1
        s_mov_b64 exec, -1
        {lcp}:
        ''')
    if cfg.local: e(f'ds_read_b32 v{vT}, v{vFl} offset:{F_L}\ns_waitcnt lgkmcnt(0)\nv_readfirstlane_b32 s14, v{vT}')
    e(f's_setprio {cfg.prio2}')
    if cfg.obar: e('s_barrier')
    else: lds_spin(e,cfg,F_O,4,vFl,vT,sleep=0)
    stamp(e,cfg,5)
    phase[0]='t'
    if 't' in cfg.kill: e('s_branch L_fin')
    e(f'''
    ds_read_b128 v[16:19], v{vOc}
    ds_read_b128 v[20:23], v{vOc} offset:{RING}
    ds_read_b128 v[24:27], v{vOc2}
    ds_read_b128 v[28:31], v{vOc2} offset:{RING}
    s_waitcnt lgkmcnt(3)
    ''')
    for r in range(4): e(f'v_mul_f32 v{16+r}, v{16+r}, v{F}')
    for k in range(1,4):
        e(f's_waitcnt lgkmcnt({3-k})')
        for r in range(4): e(f'v_fmac_f32 v{16+r}, v{16+4*k+r}, v{F+k}')
    e(f'''
    v_cvt_pk_bf16_f32 v16, v16, v17
    v_cvt_pk_bf16_f32 v17, v18, v19
    v_min_u32 v16, -2, v16
    v_min_u32 v17, -2, v17
    buffer_store_dwordx2 v[16:17], v{vOs}, s[{SWS}:{SWS+3}], s52 offen sc1
    ''')
    def look(i, acki=None):
        if acki is not None and cfg.ack[acki]=='1': e('s_waitcnt vmcnt(0)')
        d=int(cfg.dly.split(',')[i])
        if d: e(f's_sleep {d}')
    def tstamp(i):
        if cfg.tstamps: stamp(e,cfg,i)
    look(0,0)
    def fast(loads, compute, check):
        d=e.label('Lfd')
        for dst,n,voff,soff,imm in loads:
            op={1:'dword',2:'dwordx2',4:'dwordx4'}[n]
            e(f'buffer_load_{op} {v(dst,n)}, v{voff}, s[{SWS}:{SWS+3}], {soff} offen offset:{imm} sc1')
        e('s_waitcnt vmcnt(0)')
        compute(); check()
        e(f's_cbranch_vccz {d}')
        gather(e,cfg,loads,vT,cfg.sleep_tail)
        if cfg.fine: e(f's_min_u32 s41, s41, 255\ns_lshl_b32 s41, s41, {8*fast.n}\ns_or_b32 s100, s100, s41')
        compute()
        e(f'{d}:')
        fast.n+=1
    fast.n=0
    if cfg.fine: e('s_mov_b32 s100, 0')
    def store2(accs, voff, soff):
        for j,ac in enumerate(accs):
            e(f'v_min_u32 v{ac}, -2, v{ac}\nbuffer_store_dword v{ac}, v{voff}, s[{SWS}:{SWS+3}], {soff} offen offset:{64*j} sc1')
    DEF=[(k,{'0':P_W1,'1':P_W3,'2':P_W2}[k]) for k in cfg.defer]
    DOFF=[o for o in (0,8192,16384,24576) if not (o < OOFF+4224 and OOFF < o+8192)]
    def defer_loads():
        if '0' in cfg.defer or '1' in cfg.defer: e('v_mov_b32 v14, v210\nv_xor_b32 v15, 128, v210')
        for n,(k,p) in enumerate(DEF):
            rs = 2048 if k=='2' else 7168
            e(f's_mov_b32 s8, s{p}\ns_mov_b32 s9, s{p+1}')
            for I in range(8):
                if I%4==0: e(f's_add_u32 m0, s32, {DOFF[n]+(I>>2)*4096}')
                e(f's_add_u32 s40, s{13 if k=="2" else 12}, {(8*(I&3)+4*(I>>2))*rs-1024*(I&3)}')
                e(f'buffer_load_dwordx4 v{(208 if k=="2" else 14)+(I&1)}, s[8:11], s40 offen offset:{(I&3)*1024} {cfg.pol} lds')
    e.c('---- H1 + output projection')
    def osum():
        for i in range(4):
            e(f'v_lshlrev_b32 v{32+2*i}, 16, v{16+i}\nv_and_b32 v{33+2*i}, 0xffff0000, v{16+i}')
        for j in range(1,4):
            if cfg.h1nan: e(f's_waitcnt vmcnt({3-j})')
            for i in range(4):
                e(f'v_dot2_f32_bf16 v{32+2*i}, v{16+4*j+i}, s61, v{32+2*i}\nv_dot2_f32_bf16 v{33+2*i}, v{16+4*j+i}, s62, v{33+2*i}')
    if cfg.h1pipe and 't' not in cfg.kill:
        l=e.label('Lh1'); d=e.label('Lh1d')
        def look4():
            for j in range(4): e(f'buffer_load_dwordx4 v[{16+4*j}:{19+4*j}], v{vH1}, s[{SWS}:{SWS+3}], s{53+j} offen sc1')
        e('s_mov_b32 s41, 0')
        for k in range(cfg.h1pipe-1):
            look4()
            if k<cfg.h1pipe-2 or True: e(f's_sleep {cfg.h1gap}')
        e(f'{l}:')
        look4()
        e(f's_add_u32 s41, s41, 1\ns_waitcnt vmcnt({4*(cfg.h1pipe-1)})\nv_max3_u32 v{vT}, v16, v17, v18')
        for i in range(19,31,2): e(f'v_max3_u32 v{vT}, v{vT}, v{i}, v{i+1}')
        e(f'''
        v_max_u32 v{vT}, v{vT}, v31
        v_cmp_eq_u32 vcc, -1, v{vT}
        s_cbranch_vccz {d}
        s_mov_b64 exec, vcc
        s_cmp_lt_u32 s41, {cfg.gpoll*4}
        s_cbranch_scc1 {l}
        {d}:
        s_mov_b64 exec, -1
        ''')
        tstamp(6)
        h=cfg.h1nan; cfg.h1nan=False; osum(); cfg.h1nan=h
    elif not cfg.h1nan or 't' in cfg.kill:
        gather(e,cfg,[(16,4,vH1,'s53',0),(20,4,vH1,'s54',0),(24,4,vH1,'s55',0),(28,4,vH1,'s56',0)],vT,cfg.sleep_tail,backoff=(cfg.bo_n,cfg.bo_s) if cfg.bo_s else None)
        tstamp(6)
        osum()
    else:
        l=e.label('Lh1'); d=e.label('Lh1d')
        e('s_cmp_ge_u32 s99, 224\ns_cselect_b32 s15, 1, 0')
        e(f's_mov_b32 s41, 0\n{l}:')
        for j in range(4): e(f'buffer_load_dwordx4 v[{16+4*j}:{19+4*j}], v{vH1}, s[{SWS}:{SWS+3}], s{53+j} offen sc1')
        e('s_add_u32 s41, s41, 1\ns_waitcnt vmcnt(3)')
        osum()
        e(f'''
        v_add_f32 v40, v32, v34
        v_add_f32 v41, v36, v38
        v_cmp_u_f32 vcc, v40, v41
        s_cbranch_vccz {d}
        v_max3_u32 v{vT}, v16, v17, v18
        ''')
        for i in range(19,31,2): e(f'v_max3_u32 v{vT}, v{vT}, v{i}, v{i+1}')
        e(f'''
        v_max_u32 v{vT}, v{vT}, v31
        v_cmp_eq_u32 vcc, -1, v{vT}
        s_cbranch_vccz {d}
        ''')
        if DEF and cfg.early:
            le=e.label('Lne')
            e(f'''
            s_cmp_lg_u32 s15, 0
            s_cbranch_scc1 {le}
            s_bcnt1_i32_b64 s40, vcc
            s_cmp_lt_u32 s40, {cfg.early}
            s_cbranch_scc1 {le}
            s_mov_b32 s15, 1
            s_mov_b64 exec, -1
            ''')
            defer_loads()
            e(f'{le}:')
        e(f'''
        s_mov_b64 exec, vcc
        s_sleep {cfg.sleep_tail}
        s_cmp_lt_u32 s41, {cfg.gpoll}
        s_cbranch_scc1 {l}
        {d}:
        s_mov_b64 exec, -1
        ''')
        tstamp(6)
    dppsum(32,8)
    for i in range(4): e(f'v_cvt_pk_bf16_f32 v{40+i}, v{32+2*i}, v{33+2*i}')
    e(f's_mov_b64 exec, s[96:97]\nds_write_b128 v{vXw}, v[40:43]\ns_mov_b64 exec, -1')
    if cfg.h1pipe: e('s_waitcnt vmcnt(0)')
    mmx([WO],[32,36],vXr)
    store2([32,36],vYs,'s57')
    tstamp(7)
    e('s_cmp_ge_u32 s99, 224\ns_cbranch_scc1 L_red')
    def red_tail(n):
        lst=list(range(n))
        while len(lst)>1:
            nx=[]
            for i in range(0,len(lst)-1,2):
                a_,b_=16+4*lst[i],16+4*lst[i+1]
                e(f'v_pk_add_f32 v[{a_}:{a_+1}], v[{a_}:{a_+1}], v[{b_}:{b_+1}]\nv_pk_add_f32 v[{a_+2}:{a_+3}], v[{a_+2}:{a_+3}], v[{b_+2}:{b_+3}]')
                nx.append(lst[i])
            if len(lst)%2: nx.append(lst[-1])
            lst=nx
        e('''
        v_permlane32_swap_b32 v16, v18
        v_permlane32_swap_b32 v17, v19
        v_pk_add_f32 v[16:17], v[16:17], v[18:19]
        v_mov_b32 v18, v16
        v_mov_b32 v19, v17
        v_permlane16_swap_b32 v18, v16
        v_permlane16_swap_b32 v19, v17
        v_pk_add_f32 v[16:17], v[16:17], v[18:19]
        ''')
    def gate_res(G,X,dst):
        rnd_vec(e,16,2,18)
        e(f'v_pk_mul_f32 v[16:17], v[16:17], v[{G}:{G+1}]')
        rnd_vec(e,16,2,18)
        e(f'v_pk_add_f32 v[16:17], v[16:17], v[{X}:{X+1}]\nv_cvt_pk_bf16_f32 v{dst}, v16, v17')
    nan2=lambda a_,b_: (lambda: e(f'v_cmp_u_f32 vcc, v{a_}, v{b_}'))
    if DEF:
        ld=e.label('Ldef')
        if cfg.early: e(f's_cmp_lg_u32 s15, 0\ns_cbranch_scc1 {ld}')
        defer_loads()
        e(f'{ld}:')
    look(2)
    if DEF: e('s_waitcnt vmcnt(0)')
    if any(k!='2' for k,p in DEF):
        e('s_barrier')
        for n,(k,p) in enumerate(DEF):
            if k!='2': pickup_cols('X'+k, X0 if k=='0' else X1, DOFF[n])
    e.c('---- H2b + gate/up')
    def ln2():
        unpack(e,16,32,1)
        allred_s('v_add_f32',[20,21],22,rors=(1,2,4,8),swaps=())
        e(f'''
        v_mul_f32 v20, 0x3a800000, v20
        v_mul_f32 v21, 0x3a800000, v21
        v_fma_f32 v21, -v20, v20, v21
        v_cmp_u_f32 s[42:43], v21, v21
        v_max_f32 v21, 0, v21
        ''')
        if cfg.round_ln2:
            finish_stats(20,21)
            normalise(32,2,20,21,22)
            modulate(32,2,T1,SB,16,22,prep=False)
        else:
            e(f'''
            v_add_f32 v21, 0x3727c5ac, v21
            v_rsq_f32 v21, v21
            v_sub_f32 v32, v32, v20
            v_sub_f32 v33, v33, v20
            v_mul_f32 v32, v32, v21
            v_mul_f32 v33, v33, v21
            v_fma_f32 v32, v32, v{T1}, v{SB}
            v_fma_f32 v33, v33, v{T1+1}, v{SB+1}
            v_cvt_pk_bf16_f32 v16, v32, v33
            ''')
        e(f'ds_write_b32 v{vXw}, v16')
    fast([(16,1,vXs,'s58',0),(20,2,vSt,'s49',0)], ln2, lambda: e('v_cmp_u_f32 vcc, v32, v33\ns_or_b64 vcc, vcc, s[42:43]'))
    tstamp(9)
    mmx([X0,X1],[32,36,40,44],vXr)
    for i in range(1,8): e(f's_add_u32 s{51+i}, s48, {i*4*GS}')
    for j in range(2): e(f'v_cvt_pk_bf16_f32 v{32+4*j}, v{32+4*j}, v{40+4*j}')
    if cfg.local:
        lg=e.label('Lgl'); lgd=e.label('Lgld')
        e(f'''
        v_min_u32 v32, -2, v32
        v_min_u32 v36, -2, v36
        s_cmp_lg_u32 s14, 0
        s_cbranch_scc1 {lg}
        buffer_store_dword v32, v{vGs}, s[{SWS}:{SWS+3}], s60 offen sc1
        buffer_store_dword v36, v{vGs}, s[{SWS}:{SWS+3}], s60 offen offset:64 sc1
        s_branch {lgd}
        {lg}:
        buffer_store_dword v32, v{vGs}, s[{SWS}:{SWS+3}], s60 offen
        buffer_store_dword v36, v{vGs}, s[{SWS}:{SWS+3}], s60 offen offset:64
        {lgd}:
        ''')
    else: store2([32,36],vGs,'s60')
    tstamp(10)
    for n,(k,p) in enumerate(DEF):
        if k=='2': pickup_cols('X2', X2, DOFF[n])
    e.c('---- H3a + down projection')
    look(3,2)
    if cfg.fine: stamp(e,cfg,1)
    def gusum():
        e('''v_lshlrev_b32 v32, 16, v16
        v_and_b32 v33, 0xffff0000, v16
        v_lshlrev_b32 v34, 16, v17
        v_and_b32 v35, 0xffff0000, v17''')
        for i in range(1,8):
            e(f'''v_dot2_f32_bf16 v32, v{16+2*i}, s61, v32
            v_dot2_f32_bf16 v33, v{16+2*i}, s62, v33
            v_dot2_f32_bf16 v34, v{17+2*i}, s61, v34
            v_dot2_f32_bf16 v35, v{17+2*i}, s62, v35''')
    fast([(16+2*i,2,vH3,'s48' if i==0 else f's{51+i}',0) for i in range(8)], gusum, nan2(32,34))
    tstamp(11)
    rnd_vec(e,32,4,20)
    e(f'''
    v_mul_f32 v20, 0xbfb8aa3b, v32
    v_mul_f32 v21, 0xbfb8aa3b, v34
    v_exp_f32 v20, v20
    v_exp_f32 v21, v21
    v_add_f32 v20, 1.0, v20
    v_add_f32 v21, 1.0, v21
    v_rcp_f32 v20, v20
    v_rcp_f32 v21, v21
    v_mul_f32 v32, v32, v20
    v_mul_f32 v34, v34, v21
    v_cvt_pk_bf16_f32 v20, v32, v34
    v_lshlrev_b32 v32, 16, v20
    v_and_b32 v34, 0xffff0000, v20
    v_mul_f32 v32, v32, v33
    v_mul_f32 v34, v34, v35
    v_cvt_pk_bf16_f32 v16, v32, v34
    ds_write_b32 v{vXw}, v16
    ''')
    mmx([X2],[32,36],vXr)
    store2([32,36],vZs,'s59')
    if cfg.fine: stamp(e,cfg,2)
    e('s_branch L_fin\nL_red:')
    e.c('---- H2a: reducers')
    l2=e.label('Lnoh2a')
    e(f'''
    s_cmp_ge_u32 s3, 2
    s_cbranch_scc1 L_fin
    s_mul_i32 s40, s98, {YS}
    s_add_u32 s40, s40, {WS_Y}
    s_add_u32 s51, s40, 4096
    s_lshl_b32 s52, s98, 7
    s_add_u32 s52, s52, {WS_X1}
    s_lshr_b32 s53, s98, 2
    s_lshl_b32 s53, s53, 7
    s_and_b32 s54, s98, 3
    s_lshl_b32 s54, s54, 3
    s_add_u32 s53, s53, s54
    s_add_u32 s53, s53, {WS_ST}
    s_mov_b32 s54, 0xffff
    s_mov_b32 s55, 0xffff
    v_mov_b32 v61, 0
    ''')
    look(1,1)
    if cfg.fine: stamp(e,cfg,14)
    fast([(16+4*i,4,vRow,'s40' if i<4 else 's51',(i&3)*1024) for i in range(8)], lambda: red_tail(8), nan2(16,17))
    if cfg.fine: stamp(e,cfg,15)
    gate_res(RX+2,RX,16)
    e(f'''
    v_min_u32 v16, -2, v16
    v_lshlrev_b32 v{RX}, 16, v16
    v_and_b32 v{RX+1}, 0xffff0000, v16
    s_mov_b64 exec, s[54:55]
    buffer_store_dword v16, v{vRo}, s[{SWS}:{SWS+3}], s52 offen sc1
    s_mov_b64 exec, -1
    v_add_f32 v18, v{RX}, v{RX+1}
    v_mul_f32 v19, v{RX}, v{RX}
    v_fmac_f32 v19, v{RX+1}, v{RX+1}
    ''')
    allred_s('v_add_f32',[18,19],20,rors=(8,4,2,1),swaps=('v_permlane32_swap_b32',))
    e(f'''
    v_min_u32 v18, -2, v18
    v_min_u32 v19, -2, v19
    s_mov_b64 exec, 1
    buffer_store_dwordx2 v[18:19], v61, s[{SWS}:{SWS+3}], s53 offen sc1
    s_mov_b64 exec, -1
    ''')
    tstamp(8)
    e(f'''
    s_mul_i32 s40, s98, {ZS}
    s_add_u32 s40, s40, {WS_Z}
    s_add_u32 s51, s40, 4096
    s_lshl_b32 s52, s98, 7
    v_add_u32 v{vA}, s52, v{vRo}
    ''')
    e.c('---- H3b: final reducers')
    if cfg.local:
        lz=e.label('Lz');
        e(f's_sleep {cfg.dlyz}\ns_cmp_lg_u32 s14, 0\ns_cbranch_scc1 {lz}\ns_sleep {int(cfg.dly.split(",")[4])-cfg.dlyz}\n{lz}:')
    else: look(4)
    if cfg.fine: stamp(e,cfg,3)
    fast([(16+4*i,4,vRow,'s40' if i<4 else 's51',(i&3)*1024) for i in range(7)], lambda: red_tail(7), nan2(16,17))
    tstamp(12)
    gate_res(RX+4,RX,16)
    e(f'''
    s_mov_b64 exec, s[54:55]
    global_store_dword v{vA}, v16, s[{P_OUT}:{P_OUT+1}]
    s_mov_b64 exec, -1
    L_fin:
    ''')
    stamp(e,cfg,13)
    if cfg.stamps: e('s_add_u32 s3, s3, 4')
    if cfg.fine: e('s_waitcnt lgkmcnt(0)\ns_mov_b32 s72, s100\ns_mov_b32 s73, 0')
    stamps_out(e,cfg,16,vA)
    e('s_endpgm')

def gen(cfg):
    set_order(cfg.order, cfg.defer)
    e=A()
    e(f'''
    s_cmp_ge_u32 s2, 256
    s_cbranch_scc1 L_exit
    s_load_dwordx16 s[4:19], s[0:1], 0
    s_getpc_b64 s[48:49]
    L_pc:
    s_sub_u32 s48, s48, L_pc-{KN}
    s_subb_u32 s49, s49, 0
    s_lshl_b32 s40, s2, 4
    s_add_u32 s40, s40, role_table-{KN}
    s_load_dwordx4 s[92:95], s[48:49], s40
    s_load_dwordx8 s[20:27], s[0:1], 64
    s_load_dwordx4 s[28:31], s[0:1], 96
    v_lshrrev_b32 v2, 6, v0
    v_and_b32 v1, 63, v0
    v_readfirstlane_b32 s3, v2
    v_lshlrev_b32 v3, 7, v0
    s_cmp_ge_u32 s3, 5
    s_cbranch_scc1 L_nopf
    global_load_dword v255, v3, s[48:49]
    L_nopf:
    ''')
    roles(e)
    e('s_cmp_ge_u32 s3, 4\ns_cbranch_scc1 L_aux')
    stream(e,cfg)
    aux(e,cfg)
    e('L_exit:\ns_endpgm')
    import rolemap
    tab,rho=rolemap.build(odd=cfg.odd,c3=cfg.c3,qx=cfg.qx,lx=cfg.lx,bx=cfg.bx,lunits=44 if '2' in cfg.defer else 42)
    e('.p2align 8\n.type role_table,@object\nrole_table:')
    for t in tab: e('.long '+', '.join(str(x) for x in t))
    e('.size role_table, 4096')
    e('.p2align 8\n.fill (40960+256-(.-'+KN+'))/4, 4, 0xbf800000')
    hdr = f'; fused adaLN + GQA decode attention + SwiGLU block, one launch (generated by gen2.py) {getattr(cfg,"args","")}\n; @launch grid=(256,1,1) block=(512,1,1) lds={LDS_BYTES}\n.amdgcn_target "amdgcn-amd-amdhsa--gfx950"\n'
    return hdr + khead(KN) + e.text() + kd(KN, 256)

if __name__=='__main__':
    cfg=Cfg()
    out=sys.argv[1]
    cfg.args=' '.join(sys.argv[2:])
    for kv in sys.argv[2:]:
        k,val=kv.split('=')
        cur=getattr(cfg,k)
        setattr(cfg,k, (val not in ('0','False')) if isinstance(cur,bool) else type(cur)(val.replace('+',' ')) if not isinstance(cur,int) else int(val,0))
    open(out,'w').write(gen(cfg))
```

```python
import sys
from asmgen import *
KN='adaLN_cond__gqa_block_cached__glu_gated_swiglu__decode_kernel'

import os
PAD = int(os.environ.get('PAD','128'))
OS  = 2048+PAD
YS  = 8192+PAD
GS  = 14336+PAD
ZS  = 7168+PAD
MNS = 12288+PAD
MGS = 4096+PAD
MUS = 8192+PAD
QS  = 16384+PAD
WS_O   = 0
WS_Y   = WS_O+256*OS
WS_GU  = WS_Y+64*YS
WS_Z   = WS_GU+32*GS
WS_MN  = WS_Z+64*ZS
WS_MG  = WS_MN+16*MNS
WS_ML  = WS_MG+32*MGS
WS_X1  = WS_ML+16384
WS_ST  = WS_X1+8192
WS_CP  = WS_ST+2048
WS_TS  = WS_CP+2048
WS_Q   = WS_TS+16384
FLATSH = -(-(WS_Q+16*QS)//(256*128))*128
WS_MU  = 256*FLATSH
WS_H   = WS_MU+16*MUS
WS_SA  = WS_H+8192
WS_END = WS_SA+1024
WS_STAMP = 0x400000
RING = 0x8000
L_RED  = 0x20000
L_AX   = 0x22400; XSTR = 320
L_QOP  = 0x24000; QSTR = 272
L_ML   = 0x24900
L_ST   = 0x24A00
L_FLAG = 0x24B00
LDS_BYTES = 0x24C00
OSTR = 528
F_LAND = 0
F_CONS = 32
F_Q = 64; F_ML = 68; F_O = 72; F_AUX = 76; F_V = 80; F_F = 84; F_P = 88; F_M = 92; F_P2 = 96; F_C = 100; F_P3 = 104; F_L = 108
P_X,P_K,P_V,P_WQ,P_WO,P_BX,P_W1,P_W3,P_W2,P_C,P_WM,P_OUT,P_DBG,P_WS = [4+2*i for i in range(14)]
LOG2E = 0x3fb8aa3b
SCALE = 0x3db504f3

class Cfg:
    D=2; D0=4
    N=4
    NV=4
    deep=16
    vsig=1
    sleep_ml=32
    pol='nt'
    stamps=False
    round_s=True
    round_ln=True
    sleep_head=8
    sleep_tail=1
    order='E'
    qgate=24
    ack='1111'
    dly='0,8,52,3,93'
    tstamps=True
    NL2=0
    cnt=True
    ool=True
    repf=0
    post=False
    local=True
    dlyloc=2; dlyz=85
    early=0
    dlyl=0
    h1gap=4
    h1pipe=0
    direct=True
    mgate=0
    tlb=0
    help=0
    helpn=2; helppol='nt'
    obar=True
    h1nan=True
    sa0=True
    sclear=0
    vwall=0
    warm=False
    safter=3
    odd=0.7; c3=0.0035; qx=0.6; lx=0.8; bx=1.0
    hgate=19
    hafter=3
    bo_n=16; bo_s=0
    cpol='sc1'
    kill=''
    lsleep=0
    prio2=2
    sprio=0
    ustamps=True
    defer=''
    round_ln2=False
    fine=False
    pairs=True
    NL=6; NH=8
    adapt=0
    rank=13
    lightdeep=False
    qafter=5
    NK=4; kdeep=16
    sleep_q=12
    hold=False
    prio=2
    gpoll=8192
    lpoll=1<<17

from gen1 import lds_signal, stamp, srd, allreduce64, unpack, rnd_vec, rnd1
import gen1
gen1.WS_STAMP = WS_STAMP
from gen1 import stamps_out, lds_spin, gather
SWS=44

def roles(e):
    e(f'''
    s_and_b32 s37, s2, 15
    s_lshr_b32 s38, s2, 4
    s_waitcnt lgkmcnt(0)
    s_mov_b32 s34, s92
    s_mov_b32 s35, s95
    s_and_b32 s99, s93, 255
    s_cmp_ge_u32 s99, 64
    s_cselect_b32 s33, 1, 0
    s_cmp_ge_u32 s99, 192
    s_cselect_b32 s33, 2, s33
    s_bfe_u32 s36, s93, 0x20008
    s_bfe_u32 s39, s93, 0x6000a
    s_bfe_u32 s101, s93, 0x80010
    s_bfe_u32 s0, s93, 0x10018
    s_lshr_b32 s15, s93, 25
    s_and_b32 s63, s94, 255
    s_bfe_u32 s1, s94, 0x80008
    s_lshr_b32 s14, s94, 16
    ''')

UNITS=[]
GROUPS=['J','WO','X0','X1','X2','X3']
def set_order(order, defer=''):
    U=lambda k,n: [(k,i) for i in range(n)]
    W=U('WO',2)+U('X0',2)+U('X1',2)+([] if '2' in defer else U('X2',2))+U('X3',2)
    K=U('K',16)
    if order=='A': UNITS[:] = U('J',4)+W+K+U('V',16)
    elif order=='E': UNITS[:] = U('J',4)+W[:2]+W[6:]+W[2:6]+K+U('V',16)
    elif order=='H': UNITS[:] = U('J',4)+W[:2]+W[8:]+W[2:6]+K+W[6:8]+U('V',16)
    elif order=='F': UNITS[:] = U('J',4)+W[6:]+W[:6]+K+U('V',16)
    elif order=='G': UNITS[:] = U('J',4)+W[:2]+W[6:]+K[:2]+W[2:6]+K[2:]+U('V',16)
    elif order=='C':
        mix=[]
        for i in range(8): mix+=[W[i],K[i]]
        UNITS[:] = U('J',4)+mix+W[8:]+K[8:]+U('V',16)
    elif order=='D':
        mix=[]
        for i in range(8): mix+=[K[i],W[i]]
        UNITS[:] = U('J',4)+mix+W[8:]+K[8:]+U('V',16)
def upos(kind,i): return UNITS.index((kind,i))
def slot(kind,i): return (upos(kind,i)%8)*4096

def stream(e, cfg):
    D=cfg.D; pol=cfg.pol
    vL=1; vK=2; vV=6; vW=8; vSw=10; vR=12; vFl=13; vOne=14; vT=15
    vKR=16; vVR=20; vX=28; vRJ=45
    Q=48; S=64; ST=128; P=128; O=160; VF=192
    SK,SV,SW = 44,48,52
    e.c('================= stream waves =================')
    e('L_stream:')
    if cfg.sprio: e(f's_setprio {cfg.sprio}')
    stamp(e,cfg,0)
    e(f'''
    v_lshrrev_b32 v{vR}, 4, v{vL}
    v_and_b32 v{vX+1}, 15, v{vL}
    v_lshlrev_b32 v{vX+6}, 1, v{vR}
    v_xor_b32 v{vX+6}, v{vX+6}, v{vX+1}
    v_lshlrev_b32 v{vSw}, 4, v{vX+6}
    v_xor_b32 v{vSw+1}, 128, v{vSw}
    v_and_b32 v{vRJ}, 2, v{vR}
    v_lshlrev_b32 v{vRJ}, 1, v{vRJ}
    v_and_or_b32 v{vRJ}, v{vR}, 1, v{vRJ}
    s_lshl_b32 s32, s3, 15
    s_mov_b32 s{SW+3}, 0x20000
    s_cmp_lt_u32 s99, 224
    s_cselect_b32 s96, 0, {1 if cfg.lightdeep else 0}
    s_cmp_eq_u32 s15, 0
    s_cbranch_scc1 L_go
    s_barrier
    L_go:
    s_waitcnt lgkmcnt(0)
    ''')
    st = dict(issued=0, landed=-1, signaled=set())
    def pairwait(n,k):
        if not cfg.pairs or n<cfg.D0: return
        tot=4*n+k
        known=4*(st['landed']+1)
        if tot-known>cfg.NH:
            e(f's_waitcnt vmcnt({cfg.NH})'); note_landed((tot-cfg.NH)//4-1)
        NL = cfg.NL2 if (cfg.adapt==3 and n>upos('K',15)) else cfg.NL
        if tot-known>NL and NL<cfg.NH:
            lb=e.label('Lw')
            e(f's_cmp_lg_u32 s96, 0\ns_cbranch_scc1 {lb}\ns_waitcnt vmcnt({NL})\n{lb}:')
    def dma(voff, srdreg, soff, i):
        e(f'buffer_load_dwordx4 v{voff}, s[{srdreg}:{srdreg+3}], {soff} offen offset:{i*1024} {pol} lds')
    def tile_setup(kind, t):
        def ptr(a,b): e(f's_cselect_b32 s{SW}, s{a}, s{b}\ns_cselect_b32 s{SW+1}, s{a+1}, s{b+1}')
        if kind=='J':
            if t==0:
                e('s_cmp_eq_u32 s33, 1'); ptr(P_WQ,P_WM)
                e(f'''s_mov_b32 s{SW+2}, {1024*6144*2}
                s_cselect_b32 s{SW+2}, {1024*4096*2}, s{SW+2}
                s_mov_b32 s56, s35
                s_lshl_b32 s40, s3, 6
                s_mul_i32 s58, s40, s35
                s_add_u32 s58, s58, s34
                s_mov_b32 s57, s58''')
            else: e('s_lshl_b32 s40, s35, 1\ns_add_u32 s57, s58, s40')
        elif kind=='WO':
            e(f'''s_mov_b32 s{SW}, s{P_WO}
            s_mov_b32 s{SW+1}, s{P_WO+1}
            s_mov_b32 s{SW+2}, {4096*1024*2}
            s_mov_b32 s56, 2048
            s_and_b32 s40, s14, 7
            s_lshl_b32 s57, s40, 18
            s_lshl_b32 s40, s3, 21
            s_add_u32 s57, s57, s40
            s_bfe_u32 s40, s14, 0x20003
            s_lshl_b32 s40, s40, 16
            s_add_u32 s57, s57, s40
            s_lshr_b32 s40, s14, 5
            s_lshl_b32 s40, s40, 8
            s_add_u32 s57, s57, s40''')
        elif kind in ('X0','X1'):
            t = int(kind[1])
            if t==0:
                e(f'''s_and_b32 s40, s63, 7
                s_lshl_b32 s40, s40, 2
                s_add_u32 s40, s40, s3
                s_mul_i32 s59, s40, {32*7168}
                s_lshr_b32 s40, s63, 3
                s_lshl_b32 s40, s40, 8
                s_add_u32 s59, s59, s40''')
            e(f'''s_sub_u32 s40, s101, s39
            s_lshl_b32 s40, s40, 8
            s_add_u32 s40, s40, s58
            s_add_u32 s40, s40, {t*2*12288}
            s_cmp_lt_u32 s99, 224''')
            ptr(P_W3 if t else P_W1, P_WM)
            e(f'''s_mov_b32 s{SW+2}, {1024*6144*2}
            s_cselect_b32 s{SW+2}, {0 if str(t) in cfg.defer else 1024*3584*2}, s{SW+2}
            s_mov_b32 s56, 12288
            s_cselect_b32 s56, 7168, s56
            s_cselect_b32 s57, s59, s40''')
        elif kind=='X2':
            e(f'''s_lshr_b32 s40, s1, 3
            s_lshl_b32 s57, s40, 18
            s_lshl_b32 s40, s3, 16
            s_add_u32 s57, s57, s40
            s_and_b32 s40, s1, 7
            s_lshl_b32 s40, s40, 8
            s_add_u32 s57, s57, s40
            s_mov_b32 s{SW}, s{P_W2}
            s_mov_b32 s{SW+1}, s{P_W2+1}
            s_cmp_lt_u32 s99, 224
            s_cselect_b32 s{SW+2}, {1024*3584*2}, 0
            s_mov_b32 s56, 2048''')
            if cfg.post: e(f's_cmp_eq_u32 s97, 0\ns_cselect_b32 s{SW+2}, s{SW+2}, 0')
        elif kind=='X3':
            e(f'''s_and_b32 s40, s101, 7
            s_lshl_b32 s40, s40, 2
            s_add_u32 s40, s40, s3
            s_mul_i32 s57, s40, {32*12288}
            s_lshr_b32 s40, s101, 3
            s_lshl_b32 s40, s40, 8
            s_add_u32 s57, s57, s40
            s_add_u32 s57, s57, {40*256}
            s_mov_b32 s{SW}, s{P_WM}
            s_mov_b32 s{SW+1}, s{P_WM+1}
            s_cmp_lg_u32 s0, 0
            s_cselect_b32 s{SW+2}, {1024*6144*2}, 0
            s_mov_b32 s56, 12288''')
        if kind=='J': e(f'v_mov_b32 v{vX+8}, v{vRJ}\ns_mov_b32 s41, 1')
        elif kind in ('WO','X2','X3'): e(f'v_mov_b32 v{vX+8}, v{vR}\ns_mov_b32 s41, 0')
        else: e(f's_cselect_b64 vcc, 0, -1\ns_cselect_b32 s41, 0, 1\nv_cndmask_b32 v{vX+8}, v{vR}, v{vRJ}, vcc')
        e(f'''v_mad_u32_u24 v{vW}, v{vX+8}, s56, v{vSw}
        v_mad_u32_u24 v{vW+1}, v{vX+8}, s56, v{vSw+1}
        s_lshl_b32 s61, s56, s41
        s_lshl_b32 s60, s61, 3
        s_sub_u32 s60, s60, 1024
        s_lshl_b32 s61, s61, 2''')
    def emit_unit(n):
        kind,i = UNITS[n]
        if kind in GROUPS:
            if (i&1)==0: tile_setup(kind,i>>1); e('s_mov_b32 s41, s57')
            else: e('s_add_u32 s41, s57, s61')
            e(f's_add_u32 m0, s32, {(n%8)*4096}')
            for k in range(4):
                if k%2==0: pairwait(n,k)
                dma(vW+(k&1), SW, 's41', k)
                if k<3: e('s_add_u32 s41, s41, s60')
        else:
            e(f's_add_u32 s41, s62, {i*16384}\ns_add_u32 m0, s32, {(n%8)*4096}')
            for k in range(4):
                if k%2==0: pairwait(n,k)
                dma((vK+k) if kind=='K' else (vV+(k&1)), SK if kind=='K' else SV, 's41', k)
    def note_landed(n):
        st['landed']=max(st['landed'],n)
        for gi,g in enumerate(GROUPS):
            if (g,0) not in UNITS: continue
            last=max(k for k,u in enumerate(UNITS) if u[0]==g)
            if last<=st['landed'] and g not in st['signaled']:
                st['signaled'].add(g); lds_signal(e, F_LAND+4*gi, vFl, vOne)
                if g=='J': stamp(e,cfg,6)
    consumed=set()
    def issue(n):
        assert n==st['issued']
        if cfg.pairs and n==5: wait_landed(3)
        if n>=cfg.D0 and not cfg.pairs:
            N = cfg.NV if n>=upos('V',0)+cfg.deep else (cfg.NK if upos('K',min(cfg.kdeep,15))+(cfg.kdeep>15)<=n<upos('V',0) else cfg.N)
            full = n-1-(N+3)//4
            if st['landed']<n-1-N//4:
                e(f's_waitcnt vmcnt({N})'); note_landed(full)
        if n>=8 and UNITS[n-8][0]=='K' and UNITS[n-8][1]<8:
            stage(UNITS[n-8][1]); e('s_waitcnt lgkmcnt(0)')
        if n>=8:
            g=UNITS[n-8][0]
            if g in GROUPS and g not in consumed:
                last=max(k for k,u in enumerate(UNITS) if u[0]==g)
                if g not in st['signaled']: wait_landed(last)
                consumed.add(g); lds_spin(e,cfg,F_CONS+4*GROUPS.index(g),4,vFl,vT)
                if g=='J': stamp(e,cfg,7)
        if cfg.vwall and n==upos('V',cfg.vwall): lds_spin(e,cfg,F_F,1,vFl,vT)
        if cfg.stamps and cfg.ustamps: e(f's_memrealtime s[82:83]\ns_waitcnt lgkmcnt(0)\nv_writelane_b32 v47, s82, {n}')
        emit_unit(n); st['issued']=n+1
        if cfg.qgate and n==cfg.qgate: lds_signal(e,F_P,vFl,vOne)
        if cfg.hgate and n==cfg.hgate: lds_signal(e,F_P2,vFl,vOne)
        if cfg.mgate and n==cfg.mgate: lds_signal(e,F_P3,vFl,vOne)
        if cfg.help and n==upos('V',cfg.help): lds_signal(e,F_C,vFl,vOne)
    def stage(u):
        wait_landed(upos('K',u))
        for k in range(4):
            r=ST+(u%8)*16+4*k
            e(f'ds_read_b128 v[{r}:{r+3}], v{vKR+k} offset:{slot("K",u)}')
    def wait_landed(n):
        if st['landed']>=n: return
        e(f's_waitcnt vmcnt({4*(st["issued"]-1-n)})'); note_landed(n)
    if cfg.sclear:
        q4=FLATSH//4; nf=q4//1024; rem=q4%1024
        srd(e,SK,P_WS,WS_END)
        e(f'''
        v_mov_b32 v40, -1
        v_mov_b32 v41, -1
        v_mov_b32 v42, -1
        v_mov_b32 v43, -1
        v_lshlrev_b32 v39, 4, v{vL}
        s_mul_i32 s40, s2, {FLATSH}
        s_mul_i32 s41, s3, {q4}
        s_add_u32 s41, s40, s41
        ''')
        if cfg.sclear==2: issue(0)
        if cfg.sclear==2: e(f's_mul_i32 s40, s2, {FLATSH}\ns_mul_i32 s41, s3, {q4}\ns_add_u32 s41, s40, s41')
        for i in range(nf): e(f'buffer_store_dwordx4 v[40:43], v39, s[{SK}:{SK+3}], s41 offen offset:{1024*i} {cfg.cpol}')
        if rem:
            e(f'''v_cmp_gt_u32 vcc, {rem//16}, v{vL}
            s_and_b64 exec, exec, vcc
            buffer_store_dwordx4 v[40:43], v39, s[{SK}:{SK+3}], s41 offen offset:{1024*nf} {cfg.cpol}
            s_mov_b64 exec, -1''')
    for n in range(st['issued'],cfg.D0): issue(n)
    srd(e,SK,P_K,0x4000000); srd(e,SV,P_V,0x4000000)
    e(f'''
    s_lshl_b32 s62, s37, 22
    s_lshl_b32 s40, s38, 18
    s_add_u32 s62, s62, s40
    s_lshl_b32 s40, s3, 12
    s_add_u32 s62, s62, s40
    v_xor_b32 v{vX+6}, v{vX+1}, v{vR}
    v_lshlrev_b32 v{vX+7}, 8, v{vR}
    v_lshl_add_u32 v{vK}, v{vX+6}, 4, v{vX+7}
    v_xor_b32 v{vK+1}, 64, v{vK}
    v_xor_b32 v{vK+2}, 128, v{vK}
    v_xor_b32 v{vK+3}, 192, v{vK}
    v_add_u32 v{vV}, v{vSw}, v{vX+7}
    v_add_u32 v{vV+1}, v{vSw+1}, v{vX+7}
    v_lshlrev_b32 v{vX+7}, 8, v{vX+1}
    v_lshl_add_u32 v{vKR}, v{vX+6}, 4, v{vX+7}
    v_add_u32 v{vKR}, s32, v{vKR}
    v_xor_b32 v{vKR+1}, 64, v{vKR}
    v_xor_b32 v{vKR+2}, 128, v{vKR}
    v_xor_b32 v{vKR+3}, 192, v{vKR}
    v_lshrrev_b32 v{vX+2}, 2, v{vL}
    v_and_b32 v{vX+5}, 3, v{vL}
    v_lshlrev_b32 v{vX+6}, 8, v{vX+2}
    v_and_b32 v{vX+7}, 7, v{vX+2}
    v_lshl_add_u32 v{vX+6}, v{vX+7}, 5, v{vX+6}
    v_lshl_add_u32 v{vX+6}, v{vX+5}, 3, v{vX+6}
    v_add_u32 v{vVR}, s32, v{vX+6}
    ''')
    for ct in range(1,8): e(f'v_xor_b32 v{vVR+ct}, {ct<<5}, v{vVR}')
    e(f'''
    v_mov_b32 v{vFl}, {L_FLAG}
    v_mov_b32 v{vOne}, 1
    s_cmp_lg_u32 s15, 0
    s_cbranch_scc1 L_go2
    s_barrier
    L_go2:
    ''')
    V0=upos('V',0); NX=upos('K',15)+1
    for n in range(cfg.D0, NX): issue(n)
    def qk(u):
        for k in range(4):
            r=ST+(u%8)*16+4*k
            e(f'v_mfma_f32_16x16x32_bf16 v[{S+4*u}:{S+4*u+3}], v[{r}:{r+3}], v[{Q+4*k}:{Q+4*k+3}], '+('0' if k==0 else f'v[{S+4*u}:{S+4*u+3}]'))
    vM=vX; vLs=vX+1; t0=vX+2
    def rnd(u):
        for h in range(2):
            a0=S+4*u+2*h; a1=a0+1; t=t0+h
            if cfg.round_s:
                e(f'''v_cvt_pk_bf16_f32 v{t}, v{a0}, v{a1}
                v_lshlrev_b32 v{a0}, 16, v{t}
                v_and_b32 v{a1}, 0xffff0000, v{t}''')
            e(f'v_mul_f32 v{a0}, s42, v{a0}\nv_mul_f32 v{a1}, s42, v{a1}')
            if cfg.round_s:
                e(f'''v_cvt_pk_bf16_f32 v{t}, v{a0}, v{a1}
                v_lshlrev_b32 v{a0}, 16, v{t}
                v_and_b32 v{a1}, 0xffff0000, v{t}''')
            if u==0 and h==0: e(f'v_max_f32 v{vM}, v{a0}, v{a1}')
            else: e(f'v_max3_f32 v{vM}, v{vM}, v{a0}, v{a1}')
    stamp(e,cfg,1)
    e.c('---- all of K is on chip: wait for q, then scores and softmax')
    lds_spin(e,cfg,F_Q,4,vFl,vT)
    if cfg.adapt==3: e(f's_cmp_le_u32 s41, {cfg.rank}\ns_cselect_b32 s96, 1, 0')
    stamp(e,cfg,2)
    e(f'''
    v_and_b32 v{vX+6}, 7, v{vL}
    v_mul_u32_u24 v{vX+6}, {QSTR}, v{vX+6}
    v_lshl_add_u32 v{vX+6}, v{vR}, 4, v{vX+6}
    v_add_u32 v{vX+6}, {L_QOP}, v{vX+6}
    s_mov_b32 s42, {SCALE:#x}
    s_mov_b32 s43, {LOG2E:#x}
    ''')
    for k in range(4): e(f'ds_read_b128 v[{Q+4*k}:{Q+4*k+3}], v{vX+6} offset:{64*k}')
    if cfg.adapt==1: e(f'ds_read_b32 v{vT}, v{vFl} offset:{F_M}')
    e('s_waitcnt lgkmcnt(0)')
    if cfg.adapt==1: e(f'v_readfirstlane_b32 s96, v{vT}')
    if cfg.adapt not in (1,3): e('s_mov_b32 s96, 0')
    if cfg.post: e(f'ds_read_b32 v{vT}, v{vFl} offset:{F_M}\ns_waitcnt lgkmcnt(0)\nv_readfirstlane_b32 s97, v{vT}')
    for u in range(D):
        qk(u); stage(8+u); e('s_waitcnt lgkmcnt(0)'); issue(NX+u)
    for u in range(D,8):
        qk(u); stage(8+u)
    e('s_waitcnt lgkmcnt(0)')
    for u in range(8,16): qk(u)
    nxt=[NX+D]
    def more():
        if nxt[0]<V0+8:
            if cfg.adapt==2 and nxt[0]>=V0+7:
                e(f'ds_read_b32 v{vT}, v{vFl} offset:{F_M}\ns_waitcnt lgkmcnt(0)\nv_readfirstlane_b32 s96, v{vT}')
            issue(nxt[0]); nxt[0]+=1
    more()
    for u in range(16):
        rnd(u)
        if u in (5,10,15): more()
    e(f'''
    v_mov_b32 v{t0}, v{vM}
    v_permlane32_swap_b32 v{t0}, v{vM}
    v_max_f32 v{vM}, v{vM}, v{t0}
    v_mov_b32 v{t0}, v{vM}
    v_permlane16_swap_b32 v{t0}, v{vM}
    v_max_f32 v{vM}, v{vM}, v{t0}
    v_mul_f32 v{vM}, s43, v{vM}
    ''')
    for u in range(16):
        for r in range(4): e(f'v_fma_f32 v{S+4*u+r}, v{S+4*u+r}, s43, -v{vM}')
        for r in range(4): e(f'v_exp_f32 v{S+4*u+r}, v{S+4*u+r}')
        if u==0: e(f'v_add_f32 v{vLs}, v{S}, v{S+1}')
        else: e(f'v_add_f32 v{vLs}, v{vLs}, v{S+4*u}\nv_add_f32 v{vLs}, v{vLs}, v{S+4*u+1}')
        e(f'''v_cvt_pk_bf16_f32 v{P+2*u}, v{S+4*u}, v{S+4*u+1}
        v_add_f32 v{vLs}, v{vLs}, v{S+4*u+2}
        v_add_f32 v{vLs}, v{vLs}, v{S+4*u+3}
        v_cvt_pk_bf16_f32 v{P+2*u+1}, v{S+4*u+2}, v{S+4*u+3}''')
        if u in (7,): more()
    e(f'''
    v_mov_b32 v{t0}, v{vLs}
    v_permlane32_swap_b32 v{t0}, v{vLs}
    v_add_f32 v{vLs}, v{vLs}, v{t0}
    v_mov_b32 v{t0}, v{vLs}
    v_permlane16_swap_b32 v{t0}, v{vLs}
    v_add_f32 v{vLs}, v{vLs}, v{t0}
    s_lshl_b32 s40, s3, 6
    s_add_u32 s40, s40, {L_ML}
    v_lshl_add_u32 v{t0}, v{vL}, 3, s40
    s_mov_b64 exec, 0xff
    ds_write_b64 v{t0}, v[{vM}:{vM+1}]
    s_waitcnt lgkmcnt(0)
    s_mov_b64 exec, -1
    ''')
    lds_signal(e,F_ML,vFl,vOne)
    stamp(e,cfg,3)
    while nxt[0]<V0+8: more()
    e.c('---- P.V')
    for j in range(8):
        wait_landed(V0+2*j+1)
        if j==7: stamp(e,cfg,4)
        for ct in range(8):
            for hf in range(2):
                r=VF+4*ct+2*hf
                e(f'ds_read_b64_tr_b16 v[{r}:{r+1}], v{vVR+ct} offset:{slot("V",2*j+hf)}')
        for ct in range(8):
            e(f's_waitcnt lgkmcnt({14-2*ct})')
            e(f'v_mfma_f32_16x16x32_bf16 v[{O+4*ct}:{O+4*ct+3}], v[{VF+4*ct}:{VF+4*ct+3}], v[{P+4*j}:{P+4*j+3}], '+('0' if j==0 else f'v[{O+4*ct}:{O+4*ct+3}]'))
        if cfg.adapt==2 and j<3:
            e(f'ds_read_b32 v{vT}, v{vFl} offset:{F_M}\ns_waitcnt lgkmcnt(0)\nv_readfirstlane_b32 s96, v{vT}')
        for k in range(2):
            if V0+2*j+8+k < len(UNITS): issue(V0+2*j+8+k)
        if j==cfg.vsig: lds_signal(e,F_V,vFl,vOne)
        if j==6:
            e(f'''
            v_and_b32 v{t0}, 15, v{vL}
            v_mul_u32_u24 v{t0}, {OSTR}, v{t0}
            v_lshl_add_u32 v{t0}, v{vR}, 4, v{t0}
            v_add_u32 v{t0}, s32, v{t0}
            v_add_u32 v{t0}, {(slot('V',15)+4096)%RING}, v{t0}
            s_mov_b32 s40, 0x00ff00ff
            s_mov_b32 s41, 0x00ff00ff
            ''')
    e('s_mov_b64 exec, s[40:41]')
    for ct in range(8): e(f'ds_write_b128 v{t0}, v[{O+4*ct}:{O+4*ct+3}] offset:{64*ct}')
    e('s_waitcnt lgkmcnt(0)\ns_mov_b64 exec, -1')
    if cfg.obar: e('s_barrier')
    else: lds_signal(e,F_O,vFl,vOne)
    stamp(e,cfg,5)
    if cfg.help:
        lh=e.label('Lnohelp')
        srd(e,SW,P_WS,WS_END)
        e(f'''
        s_lshl_b32 s40, s37, 7
        s_add_u32 s40, s40, {WS_CP}
        v_and_b32 v{vX}, 15, v{vL}
        v_lshlrev_b32 v{vX}, 2, v{vX}
        buffer_load_dword v{vX+1}, v{vX}, s[{SW}:{SW+3}], s40 offen sc1
        v_lshlrev_b32 v{vX}, 4, v{vL}
        s_waitcnt vmcnt(0)
        v_cmp_eq_u32 vcc, -1, v{vX+1}
        s_lshr_b32 s40, vcc_lo, s38
        s_and_b32 s40, s40, 0xfffe
        s_cbranch_scc0 {lh}
        s_ff1_i32_b32 s40, s40
        s_add_u32 s40, s40, s38
        s_and_b32 s40, s40, 15
        s_sub_u32 s40, s40, s38
        s_lshl_b32 s40, s40, 18
        s_add_u32 s41, s62, s40
        ''')
        for u in range(15,15-cfg.helpn,-1):
            e(f's_add_u32 s40, s41, {u*16384}')
            for k in range(4): e(f'buffer_load_dwordx4 v[{64+16*(15-u)+4*k}:{67+16*(15-u)+4*k}], v{vX}, s[{SV}:{SV+3}], s40 offen offset:{1024*k} {cfg.helppol}')
        e(f's_waitcnt vmcnt(0)\n{lh}:')
    stamps_out(e,cfg,8,vX+4)
    if cfg.stamps:
        e(f'''s_lshl_b32 s40, s2, 2
        s_add_u32 s40, s40, s3
        s_lshl_b32 s40, s40, 8
        s_add_u32 s40, s40, {WS_STAMP+0x40000}
        v_lshl_add_u32 v46, v{vL}, 2, s40
        global_store_dword v46, v47, s[{P_WS}:{P_WS+1}]''')
    e('s_waitcnt lgkmcnt(0)\ns_endpgm')

def aux(e, cfg):
    global gather
    real_gather = gen1.gather
    phase = ['h']
    def gather(e, cfg, loads, vchk, sleep, **kw):
        if phase[0] in cfg.kill: e('s_mov_b32 s41, 1'); return
        real_gather(e, cfg, loads, vchk, sleep, **kw)
    vL=1; vFl=2; vOne=3; vT=4; vRow=5; vRd=6; vRr=7; vA=8
    X2=64; X0=96; X1=128; WO=160; WJ=192
    vHq=62; vRo=63; RN=64; RX=66
    OOFF=(slot('V',15)+4096)%RING
    e.c('================= aux waves =================')
    e('L_aux:')
    e(f'''
    s_setprio {cfg.prio}
    s_sub_u32 s3, s3, 4
    s_lshl_b32 s32, s3, 15
    v_lshlrev_b32 v{vRow}, 4, v{vL}
    v_mov_b32 v{vFl}, {L_FLAG}
    v_mov_b32 v{vOne}, 1
    v_mov_b32 v16, 0
    v_lshl_add_u32 v{vA+1}, v{vL}, 2, v{vFl}
    ds_write_b32 v{vA+1}, v16
    v_mov_b32 v32, -1
    v_mov_b32 v33, -1
    v_mov_b32 v34, -1
    v_mov_b32 v35, -1
    v_bfe_u32 v{vA+2}, v{vL}, 2, 2
    v_lshrrev_b32 v{vA+3}, 4, v{vL}
    v_and_b32 v{vA+6}, 3, v{vL}
    v_lshl_add_u32 v{vA+3}, v{vA+3}, 2, v{vA+6}
    v_lshlrev_b32 v{vA+2}, 11, v{vA+2}
    v_lshl_add_u32 v{vA}, v{vA+3}, 3, v{vA+2}
    s_lshl_b32 s40, s36, 9
    s_lshl_b32 s41, s3, 7
    s_add_u32 s40, s40, s41
    v_add_u32 v{vA}, s40, v{vA}
    s_lshl_b32 s40, s3, 11
    v_add_u32 v{vA+1}, s40, v{vRow}
    v_lshl_add_u32 v{vA+5}, v{vA+3}, 2, v{vA+2}
    s_and_b32 s40, s101, 7
    s_lshl_b32 s40, s40, 8
    s_lshl_b32 s41, s3, 6
    s_add_u32 s40, s40, s41
    v_add_u32 v{vA+5}, s40, v{vA+5}
    s_waitcnt lgkmcnt(0)
    ''')
    stamp(e,cfg,0)
    if cfg.tlb:
        e(f'''
        s_lshl_b32 s40, s37, 22
        s_lshl_b32 s41, s38, 18
        s_add_u32 s40, s40, s41
        s_load_dword s51, s[{P_K}:{P_K+1}], s40
        s_load_dword s52, s[{P_V}:{P_V+1}], s40
        s_and_b32 s40, s14, 7
        s_lshl_b32 s40, s40, 18
        s_lshl_b32 s41, s3, 21
        s_add_u32 s40, s40, s41
        s_load_dword s53, s[{P_WO}:{P_WO+1}], s40
        s_and_b32 s40, s63, 7
        s_lshl_b32 s40, s40, 2
        s_add_u32 s40, s40, s3
        s_mul_i32 s40, s40, {32*7168}
        s_load_dword s54, s[{P_W1}:{P_W1+1}], s40
        s_load_dword s55, s[{P_W3}:{P_W3+1}], s40
        s_lshr_b32 s40, s1, 3
        s_lshl_b32 s40, s40, 18
        s_load_dword s56, s[{P_W2}:{P_W2+1}], s40
        s_load_dword s57, s[{P_OUT}:{P_OUT+1}], 0
        s_lshl_b32 s40, s3, 19
        s_load_dword s58, s[{P_WS}:{P_WS+1}], s40
        ''')
    srd(e,SWS,P_WS,WS_END)
    lh=e.label('Lnohead')
    e(f'''
    s_cmp_eq_u32 s15, 0
    s_cbranch_scc1 {lh}
    s_cmp_lg_u32 s3, 3
    s_cbranch_scc1 {lh}_b
    s_sub_u32 s41, s15, 32
    s_lshr_b32 s40, s41, 3
    s_mul_i32 s40, s40, {MUS}
    s_and_b32 s42, s41, 7
    s_lshl_b32 s42, s42, 9
    s_add_u32 s40, s40, s42
    s_add_u32 s40, s40, {WS_MU}
    s_add_u32 s42, s40, {8*MUS}
    s_add_u32 s43, s40, 4096
    s_add_u32 s48, s42, 4096
    v_lshrrev_b32 v{vA+4}, 5, v{vL}
    v_mul_u32_u24 v{vA+4}, {4*MUS}, v{vA+4}
    v_and_b32 v{vA+6}, 31, v{vL}
    v_lshl_add_u32 v{vA+4}, v{vA+6}, 4, v{vA+4}
    buffer_store_dwordx4 v[32:35], v{vA+4}, s[{SWS}:{SWS+3}], s40 offen sc1
    buffer_store_dwordx4 v[32:35], v{vA+4}, s[{SWS}:{SWS+3}], s42 offen sc1
    buffer_store_dwordx4 v[32:35], v{vA+4}, s[{SWS}:{SWS+3}], s43 offen sc1
    buffer_store_dwordx4 v[32:35], v{vA+4}, s[{SWS}:{SWS+3}], s48 offen sc1
    s_cmp_lt_u32 s15, 63
    s_cbranch_scc1 {lh}_c
    s_mov_b32 s40, {WS_SA}
    buffer_store_dwordx4 v[32:35], v{vRow}, s[{SWS}:{SWS+3}], s40 offen sc1
    {lh}_c:
    s_lshl_b32 s41, s41, 2
    v_mov_b32 v{vA+4}, s41
    {'s_waitcnt vmcnt(0)' if cfg.hold else 's_barrier'}
    {'' if cfg.hold else 's_waitcnt vmcnt(0)'}
    s_mov_b64 exec, 1
    global_store_dword v{vA+4}, v{vOne}, s[{P_DBG}:{P_DBG+1}] sc1
    s_mov_b64 exec, -1
    {'' if cfg.hold else 's_branch '+lh}
    {lh}_b:
    s_barrier
    {lh}:
    v_mov_b32 v{vHq}, v{vA}
    v_and_b32 v{vA+2}, 15, v{vL}
    v_lshlrev_b32 v{vRo}, 3, v{vA+2}
    v_lshrrev_b32 v{vA+2}, 5, v{vL}
    v_lshl_add_u32 v{vRo}, v{vA+2}, 2, v{vRo}
    s_cmp_eq_u32 s33, 1
    s_cbranch_scc1 {'L_qx' if cfg.direct else 'L_nox'}
    global_load_dwordx2 v[16:17], v{vA}, s[{P_C}:{P_C+1}]
    global_load_dword v18, v{vA+5}, s[{P_C}:{P_C+1}]
    s_cmp_lt_u32 s99, 224
    s_cbranch_scc1 L_nox
    s_cmp_ge_u32 s3, 2
    s_cbranch_scc1 L_nox
    s_sub_u32 s98, s99, 224
    s_lshl_b32 s98, s98, 1
    s_add_u32 s98, s98, s3
    s_lshr_b32 s40, s98, 4
    s_lshl_b32 s40, s40, 11
    v_add_u32 v{vA+1}, s40, v{vRow}
    s_lshl_b32 s40, s98, 7
    v_add_u32 v{vA+2}, s40, v{vRo}
    global_load_dwordx4 v[24:27], v{vA+1}, s[{P_X}:{P_X+1}]
    global_load_dwordx4 v[28:31], v{vA+1}, s[{P_X}:{P_X+1}] offset:1024
    global_load_dword v19, v{vA+2}, s[{P_X}:{P_X+1}]
    ''')
    if cfg.direct:
        e(f'''
        s_branch L_nox
        L_qx:
        s_lshl_b32 s40, s3, 11
        v_add_u32 v{vA+1}, s40, v{vRow}
        global_load_dwordx2 v[16:17], v{vA}, s[{P_X}:{P_X+1}]
        global_load_dwordx4 v[24:27], v{vA+1}, s[{P_X}:{P_X+1}]
        global_load_dwordx4 v[28:31], v{vA+1}, s[{P_X}:{P_X+1}] offset:1024
        ''')
    e(f'''
    L_nox:
    s_cmp_lg_u32 s15, 0
    s_cbranch_scc1 L_nobar
    s_barrier
    L_nobar:
    s_mov_b32 s50, 0
    s_mul_i32 s40, s3, 2304
    s_add_u32 s40, s40, {L_RED}
    v_lshrrev_b32 v{vA+2}, 4, v{vL}
    v_mul_u32_u24 v{vRd}, 576, v{vA+2}
    v_and_b32 v{vA+2}, 15, v{vL}
    v_lshl_add_u32 v{vRd}, v{vA+2}, 2, v{vRd}
    v_add_u32 v{vRd}, s40, v{vRd}
    s_mul_i32 s40, s3, 1152
    s_add_u32 s40, s40, {L_RED}
    v_lshrrev_b32 v{vA+2}, 5, v{vL}
    v_mul_u32_u24 v{vRr}, 576, v{vA+2}
    v_and_b32 v{vA+2}, 31, v{vL}
    v_lshl_add_u32 v{vRr}, v{vA+2}, 4, v{vRr}
    v_add_u32 v{vRr}, s40, v{vRr}
    ''')
    q4=FLATSH//4; nf=q4//1024; rem=q4%1024
    lc=e.label('Lclr'); lc2=e.label('Lclrd')
    e(f'''
    s_mul_i32 s40, s2, {FLATSH}
    s_mul_i32 s41, s3, {q4}
    s_add_u32 s41, s40, s41
    {'s_mov_b32 s46, 0' if 'c' in cfg.kill else ''}
    ''')
    if cfg.sclear: nf=0; rem=0
    for i in range(nf): e(f'buffer_store_dwordx4 v[32:35], v{vRow}, s[{SWS}:{SWS+3}], s41 offen offset:{1024*i} {cfg.cpol}')
    if rem:
        e(f'''v_cmp_gt_u32 vcc, {rem//16}, v{vL}
        s_and_b64 exec, exec, vcc
        buffer_store_dwordx4 v[32:35], v{vRow}, s[{SWS}:{SWS+3}], s41 offen offset:{1024*nf} {cfg.cpol}
        s_mov_b64 exec, -1''')
    nst=nf+(1 if rem else 0)
    lr0=if_red_early=e.label('Lnrc')
    e(f'''
    s_cmp_lt_u32 s99, 224
    s_cbranch_scc1 {lr0}
    s_cmp_ge_u32 s3, 2
    s_cbranch_scc1 {lr0}
    s_lshl_b32 s40, s98, 7
    s_add_u32 s40, s40, {WS_H}
    buffer_store_dword v32, v{vRo}, s[{SWS}:{SWS+3}], s40 offen sc1
    s_waitcnt vmcnt({nst+1})
    s_branch {lc2}
    {lr0}:
    s_waitcnt vmcnt({nst})
    {lc2}:
    ''')
    stamp(e,cfg,14)
    if 'c' in cfg.kill: e(f's_mov_b32 s46, {WS_END}')
    if 'h' in cfg.kill: e('s_mov_b32 s46, 0')
    def pub_addr(base, rs, skq, scg):
        e(f'''
        s_lshl_b32 s40, {skq}, 1
        s_add_u32 s40, s40, s3
        s_mul_i32 s40, s40, {2*rs}
        s_lshl_b32 s41, {scg}, 9
        s_add_u32 s40, s40, s41
        s_add_u32 s40, s40, {base}
        v_lshrrev_b32 v{vA}, 5, v{vL}
        v_mul_u32_u24 v{vA}, {rs}, v{vA}
        v_and_b32 v{vA+1}, 31, v{vL}
        v_lshl_add_u32 v{vA}, v{vA+1}, 4, v{vA}
        ''')
    def auxbar():
        e('s_add_u32 s50, s50, 4\ns_waitcnt lgkmcnt(0)')
        lds_signal(e,F_AUX,vFl,vOne)
        lds_spin(e,cfg,F_AUX,'s50',vFl,vT)
    def go1a():
        if 'h' in cfg.kill: return
        la=e.label('Lnogo')
        e(f'''
        v_and_b32 v61, 31, v{vL}
        v_lshlrev_b32 v61, 2, v61
        s_cmp_lg_u32 s3, 3
        s_cbranch_scc1 {la}
        global_load_dword v60, v61, s[{P_DBG}:{P_DBG+1}] sc1
        {la}:
        ''')
    def go1():
        if 'h' in cfg.kill: return
        l=e.label('Lgo'); d=e.label('Lgod'); la=e.label('Lnogo')
        e(f'''
        s_cmp_lg_u32 s3, 3
        s_cbranch_scc1 {la}
        s_mov_b32 s41, 0
        {l}:
        s_add_u32 s41, s41, 1
        s_waitcnt vmcnt(0)
        v_cmp_ne_u32 vcc, 1, v60
        s_cbranch_vccz {d}
        s_sleep {cfg.sleep_head}
        global_load_dword v60, v61, s[{P_DBG}:{P_DBG+1}] sc1
        s_cmp_lt_u32 s41, {cfg.gpoll}
        s_cbranch_scc1 {l}
        {d}:
        ''')
        stamp(e,cfg,15)
        e(f'{la}:\ns_waitcnt vmcnt(0)')
    def arrive():
        la=e.label('Lnoarr')
        e(f'''
        s_cmp_lg_u32 s3, 3
        s_cbranch_scc1 {la}
        s_and_b32 s40, s2, 7
        s_lshl_b32 s40, s40, 5
        s_lshr_b32 s41, s2, 3
        s_add_u32 s40, s40, s41
        s_lshl_b32 s40, s40, 2
        s_add_u32 s40, s40, {WS_SA}
        s_getreg_b32 s41, hwreg(HW_REG_XCC_ID, 0, 4)
        s_add_u32 s41, s41, 1
        v_mov_b32 v{vA}, 0
        v_mov_b32 v{vA+1}, s41
        s_mov_b64 exec, 1
        buffer_store_dword v{vA+1}, v{vA}, s[{SWS}:{SWS+3}], s40 offen sc1
        s_mov_b64 exec, -1
        {la}:
        ''')
    def gbar1():
        l1=e.label('Lgb1')
        e(f's_cmp_lg_u32 s3, 0\ns_cbranch_scc1 {l1}\ns_mov_b32 s40, {WS_SA}')
        gather(e,cfg,[(24,4,vRow,'s40',0)],vT,cfg.sleep_head)
        if cfg.local:
            e(f'''
            v_xor_b32 v25, v25, v24
            v_xor_b32 v26, v26, v24
            v_xor_b32 v27, v27, v24
            v_or3_b32 v25, v25, v26, v27
            v_mov_b32_dpp v26, v24 row_ror:1 row_mask:0xf bank_mask:0xf
            v_xor_b32 v26, v26, v24
            v_and_b32 v27, 7, v{vL}
            v_cmp_eq_u32 vcc, 0, v27
            v_cndmask_b32 v26, v26, 0, vcc
            v_or_b32 v25, v25, v26
            v_cmp_ne_u32 vcc, 0, v25
            s_cbranch_vccnz {l1}
            ''')
            lds_signal(e,F_L,vFl,vOne)
        e(f'{l1}:')
    def pickup(kind, dsts):
        gi=GROUPS.index(kind)
        e(f'''v_lshrrev_b32 v{vA+7}, 2, v{vL}
        v_lshlrev_b32 v{vA}, 8, v{vA+7}
        v_and_b32 v{vA+7}, 7, v{vA+7}
        v_lshl_add_u32 v{vA}, v{vA+7}, 5, v{vA}
        v_and_b32 v{vA+7}, 3, v{vL}
        v_lshl_add_u32 v{vA}, v{vA+7}, 3, v{vA}
        v_add_u32 v{vA}, s32, v{vA}''')
        for ct in range(1,8): e(f'v_xor_b32 v{vA+ct}, {ct<<5}, v{vA}')
        lds_spin(e,cfg,F_LAND+4*gi,4,vFl,vT)
        for t,W in enumerate(dsts):
            sk=None
            if isinstance(W,tuple):
                W=W[0]; sk=e.label('Lsk'); e(f's_cmp_eq_u32 s0, 0\ns_cbranch_scc1 {sk}')
            for ct in range(8):
                for hf in range(2):
                    r=W+4*ct+2*hf
                    e(f'ds_read_b64_tr_b16 v[{r}:{r+1}], v{vA+ct} offset:{slot(kind,2*t+hf)}')
            if sk: e(f'{sk}:')
        e('s_waitcnt lgkmcnt(0)')
        lds_signal(e,F_CONS+4*gi,vFl,vOne)
    def pickup_cols(kind, W, base=None):
        gi=GROUPS.index(kind)
        e(f'''v_lshrrev_b32 v{vA+7}, 2, v{vL}
        v_lshlrev_b32 v{vA}, 8, v{vA+7}
        v_and_b32 v{vA+7}, 7, v{vA+7}
        s_lshl_b32 s40, s3, 1
        v_xor_b32 v{vA+7}, s40, v{vA+7}
        v_lshl_add_u32 v{vA}, v{vA+7}, 5, v{vA}
        v_and_b32 v{vA+7}, 3, v{vL}
        v_lshl_add_u32 v{vA}, v{vA+7}, 3, v{vA}
        v_xor_b32 v{vA+1}, 32, v{vA}
        v_add_u32 v{vA+2}, 0x10000, v{vA}
        v_add_u32 v{vA+3}, 0x10000, v{vA+1}''')
        if base is None: lds_spin(e,cfg,F_LAND+4*gi,4,vFl,vT)
        for t in range(4):
            for j in range(2):
                for hf in range(2):
                    r=W+8*t+4*j+2*hf
                    e(f'ds_read_b64_tr_b16 v[{r}:{r+1}], v{vA+2*(t>>1)+j} offset:{(t&1)*RING+(slot(kind,hf) if base is None else base+4096*hf)}')
        if base is None:
            e('s_waitcnt lgkmcnt(0)')
            lds_signal(e,F_CONS+4*gi,vFl,vOne)
    def pickup_x(kind, W):
        la=e.label('Lpl'); lb=e.label('Lpld')
        e(f's_cmp_ge_u32 s99, 224\ns_cbranch_scc1 {la}')
        if kind[1] in cfg.defer: lds_signal(e,F_CONS+4*GROUPS.index(kind),vFl,vOne)
        else: pickup_cols(kind,W)
        e(f's_branch {lb}\n{la}:')
        pickup(kind,[W])
        e(f'{lb}:')
    def mmx(Ws, accs, vXr):
        e('s_waitcnt lgkmcnt(0)\ns_barrier')
        for t in range(4): e(f'ds_read_b128 v[{16+4*t}:{19+4*t}], v{vXr} offset:{64*t}')
        for t in range(4):
            e(f's_waitcnt lgkmcnt({3-t})')
            for m,W in enumerate(Ws):
                for j in range(2):
                    ac=accs[2*m+j]
                    e(f'v_mfma_f32_16x16x32_bf16 v[{ac}:{ac+3}], v[{16+4*t}:{19+4*t}], v[{W+8*t+4*j}:{W+8*t+4*j+3}], '+('0' if t==0 else f'v[{ac}:{ac+3}]'))
    def mm(As, Ws, accs, redoff=0):
        for t,(a_,W) in enumerate(zip(As,Ws)):
            for ct in range(8):
                e(f'v_mfma_f32_16x16x32_bf16 v[{accs[ct]}:{accs[ct]+3}], v[{a_}:{a_+3}], v[{W+4*ct}:{W+4*ct+3}], '+('0' if t==0 else f'v[{accs[ct]}:{accs[ct]+3}]'))
        for ct in range(8): e(f'ds_write_b32 v{vRd}, v{accs[ct]} offset:{64*ct}')
    JACC=[24+4*i for i in range(8)]
    def job_pub(base, rs, cgoff, skq='s36', scg='s39'):
        lp=e.label('Lnopub')
        e(f's_cmp_ge_u32 s3, 2\ns_cbranch_scc1 {lp}')
        for w in range(4): e(f'ds_read_b128 v[{24+4*w}:{27+4*w}], v{vRr} offset:{2304*w}')
        pub_addr(base+cgoff*512, rs, skq, scg)
        e('s_waitcnt lgkmcnt(0)')
        for a_,b_ in ((24,28),(32,36),(24,32)):
            e(f'v_pk_add_f32 v[{a_}:{a_+1}], v[{a_}:{a_+1}], v[{b_}:{b_+1}]\nv_pk_add_f32 v[{a_+2}:{a_+3}], v[{a_+2}:{a_+3}], v[{b_+2}:{b_+3}]')
        for r in range(4): e(f'v_min_u32 v{24+r}, -2, v{24+r}')
        e(f'buffer_store_dwordx4 v[24:27], v{vA}, s[{SWS}:{SWS+3}], s40 offen sc1\n{lp}:')
    def spread(r):
        for k in (1,2,3,0): e(f'v_mov_b32_dpp v{r+k}, v{r} quad_perm:[{k},{k},{k},{k}] row_mask:0xf bank_mask:0xf')
    def silu_A():
        unpack(e,16,32,3)
        for i in range(6): e(f'v_mul_f32 v{48+i}, 0xbfb8aa3b, v{32+i}')
        for i in range(6): e(f'v_exp_f32 v{48+i}, v{48+i}')
        for i in range(6): e(f'v_add_f32 v{48+i}, 1.0, v{48+i}')
        for i in range(6): e(f'v_rcp_f32 v{48+i}, v{48+i}')
        for i in range(6): e(f'v_mul_f32 v{32+i}, v{32+i}, v{48+i}')
        e('v_cvt_pk_bf16_f32 v16, v32, v33\nv_cvt_pk_bf16_f32 v20, v34, v35\nv_cvt_pk_bf16_f32 v56, v36, v37')
        spread(16); spread(20); spread(56)
    def sum4(r, dst):
        e(f'''v_pk_add_f32 v[{r}:{r+1}], v[{r}:{r+1}], v[{r+2}:{r+3}]
        v_pk_add_f32 v[{r+4}:{r+5}], v[{r+4}:{r+5}], v[{r+6}:{r+7}]
        v_pk_add_f32 v[{dst}:{dst+1}], v[{r}:{r+1}], v[{r+4}:{r+5}]''')
    def aoff(dst, pstr, bstr, gstr):
        e(f'''v_bfe_u32 v{vA+5}, v{vL}, 2, 2
        v_and_b32 v{vA+6}, 3, v{vL}
        v_lshrrev_b32 v{vA+7}, 4, v{vL}
        v_mul_u32_u24 v{dst}, {pstr}, v{vA+5}
        v_mul_u32_u24 v{vA+6}, {bstr}, v{vA+6}
        v_mul_u32_u24 v{vA+7}, {gstr}, v{vA+7}
        v_add3_u32 v{dst}, v{dst}, v{vA+6}, v{vA+7}''')
    def dppsum(r0, n):
        for r in (4,8):
            for i in range(n): e(f'v_add_f32_dpp v{r0+i}, v{r0+i}, v{r0+i} row_ror:{r} row_mask:0xf bank_mask:0xf')
    def allred_s(op, xs, t, rors=(4,8), swaps=('v_permlane16_swap_b32','v_permlane32_swap_b32')):
        for r in rors:
            for x in xs: e(f'{op}_dpp v{x}, v{x}, v{x} row_ror:{r} row_mask:0xf bank_mask:0xf')
        for sw in swaps:
            for k,x in enumerate(xs): e(f'v_mov_b32 v{t+k}, v{x}')
            for k,x in enumerate(xs): e(f'{sw} v{t+k}, v{x}')
            for k,x in enumerate(xs): e(f'{op} v{x}, v{x}, v{t+k}')
    def gather_q():
        e(f'''
        s_lshr_b32 s40, s37, 2
        s_mul_i32 s40, s40, {QS}
        s_and_b32 s41, s37, 3
        s_lshl_b32 s41, s41, 12
        s_add_u32 s40, s40, s41
        s_lshl_b32 s41, s3, 10
        s_add_u32 s40, s40, s41
        s_add_u32 s52, s40, {WS_Q}
        s_add_u32 s53, s52, {4*QS}
        s_add_u32 s54, s52, {8*QS}
        s_add_u32 s55, s52, {12*QS}
        ''')
        gather(e,cfg,[(24+4*i,4,vRow,f's{52+i}',0) for i in range(4)],vT,cfg.sleep_q)
        e(f'''
        s_mov_b32 s42, s41
        v_pk_add_f32 v[24:25], v[24:25], v[28:29]
        v_pk_add_f32 v[26:27], v[26:27], v[30:31]
        v_pk_add_f32 v[32:33], v[32:33], v[36:37]
        v_pk_add_f32 v[34:35], v[34:35], v[38:39]
        v_pk_add_f32 v[24:25], v[24:25], v[32:33]
        v_pk_add_f32 v[26:27], v[26:27], v[34:35]
        s_mul_i32 s40, s3, {2*QSTR}
        s_add_u32 s40, s40, {L_QOP}
        v_lshrrev_b32 v{vA}, 5, v{vL}
        v_mul_u32_u24 v{vA}, {QSTR}, v{vA}
        v_and_b32 v{vA+1}, 31, v{vL}
        v_lshl_add_u32 v{vA}, v{vA+1}, 3, v{vA}
        v_add_u32 v{vA}, s40, v{vA}
        v_cvt_pk_bf16_f32 v24, v24, v25
        v_cvt_pk_bf16_f32 v25, v26, v27
        ds_write_b64 v{vA}, v[24:25]
        ''')
        if cfg.adapt==1 or cfg.post:
            lb=e.label('Lld')
            e(f's_cmp_lg_u32 s42, 1\ns_cbranch_scc1 {lb}')
            if cfg.post: e(f's_cmp_lg_u32 s3, 0\ns_cbranch_scc1 {lb}')
            lds_signal(e,F_M,vFl,vOne)
            e(f'{lb}:')
        e('s_waitcnt lgkmcnt(0)')
        lds_signal(e,F_Q,vFl,vOne)
    early = True
    def finish_stats(mu,var):
        if cfg.round_ln: rnd1(e,mu); rnd1(e,var)
        e(f'v_add_f32 v{var}, 0x3727c5ac, v{var}')
        if cfg.round_ln: rnd1(e,var)
        e(f'v_sqrt_f32 v{var}, v{var}')
        if cfg.round_ln: rnd1(e,var)
        e(f'v_rcp_f32 v{var}, v{var}')
    def normalise(X,n,mu,rs,t):
        for i in range(n): e(f'v_sub_f32 v{X+i}, v{X+i}, v{mu}')
        if cfg.round_ln: rnd_vec(e,X,n,t)
        for i in range(n): e(f'v_mul_f32 v{X+i}, v{X+i}, v{rs}')
        if cfg.round_ln: rnd_vec(e,X,n,t)
    def modulate(X,n,T1,SB,out,t,prep=True):
        if prep:
            for i in range(n): e(f'v_add_f32 v{T1+i}, 1.0, v{T1+i}')
            if cfg.round_ln: rnd_vec(e,T1,n,t)
        for i in range(n): e(f'v_mul_f32 v{X+i}, v{X+i}, v{T1+i}')
        if cfg.round_ln: rnd_vec(e,X,n,t)
        for i in range(n): e(f'v_add_f32 v{X+i}, v{X+i}, v{SB+i}')
        for i in range(n//2): e(f'v_cvt_pk_bf16_f32 v{out+i}, v{X+2*i}, v{X+2*i+1}')
    def rowsum(r):
        e(f'''
        v_permlane32_swap_b32 v{r}, v{r+2}
        v_permlane32_swap_b32 v{r+1}, v{r+3}
        v_pk_add_f32 v[{r}:{r+1}], v[{r}:{r+1}], v[{r+2}:{r+3}]
        v_mov_b32 v{r+2}, v{r}
        v_mov_b32 v{r+3}, v{r+1}
        v_permlane16_swap_b32 v{r+2}, v{r}
        v_permlane16_swap_b32 v{r+3}, v{r+1}
        v_pk_add_f32 v[{r}:{r+1}], v[{r}:{r+1}], v[{r+2}:{r+3}]
        ''')
    def if_red():
        l=e.label('Lnr')
        e(f's_cmp_lt_u32 s99, 224\ns_cbranch_scc1 {l}\ns_cmp_ge_u32 s3, 2\ns_cbranch_scc1 {l}')
        return l
    def red_addr(base, rs, sreg):
        aoff(vA, 64, 16, 4*rs)
        e(f'''s_lshr_b32 s42, s98, 4
        s_mul_i32 s42, s42, {rs}
        s_and_b32 s43, s98, 15
        s_lshl_b32 s43, s43, 8
        s_add_u32 s42, s42, s43
        s_add_u32 {sreg}, s42, {base}''')
    def red_stats():
        l=if_red()
        if not cfg.direct: row_stats()
        unpack(e,19,RX,1)
        if not cfg.direct:
            unpack(e,19,RN,1)
            normalise(RN,2,24,25,26)
        e(f'{l}:')
    def row_stats():
        unpack(e,24,32,8)
        mu=24; var=25; a_=26; b_=27
        e(f'v_add_f32 v{mu}, v32, v33\nv_add_f32 v{a_}, v34, v35')
        for i in range(4,16,2): e(f'v_add_f32 v{mu}, v{mu}, v{32+i}\nv_add_f32 v{a_}, v{a_}, v{33+i}')
        e(f'v_add_f32 v{mu}, v{mu}, v{a_}')
        allreduce64(e,'v_add_f32',mu,a_)
        e(f'v_mul_f32 v{mu}, 0x3a800000, v{mu}')
        e(f'v_sub_f32 v{a_}, v32, v{mu}\nv_sub_f32 v{b_}, v33, v{mu}\nv_mul_f32 v{var}, v{a_}, v{a_}\nv_mul_f32 v28, v{b_}, v{b_}')
        for i in range(2,16,2):
            e(f'v_sub_f32 v{a_}, v{32+i}, v{mu}\nv_sub_f32 v{b_}, v{33+i}, v{mu}\nv_fmac_f32 v{var}, v{a_}, v{a_}\nv_fmac_f32 v28, v{b_}, v{b_}')
        e(f'v_add_f32 v{var}, v{var}, v28')
        allreduce64(e,'v_add_f32',var,a_)
        e(f'v_mul_f32 v{var}, 0x3a800000, v{var}')
        finish_stats(mu,var)
    def red_sa0():
        l=if_red()
        e(f'''v_and_b32 v28, 15, v{vL}
        v_lshlrev_b32 v28, 4, v28
        s_mov_b32 s40, {WS_SA}
        buffer_load_dwordx4 v[24:27], v28, s[{SWS}:{SWS+3}], s40 offen sc1
        {l}:''')
    def red_sa():
        l=if_red()
        if cfg.sa0:
            e(f'''s_waitcnt vmcnt(0)
            v_max3_u32 v24, v24, v25, v26
            v_max_u32 v24, v24, v27
            v_cmp_eq_u32 vcc, -1, v24
            s_cbranch_vccz {l}''')
        e(f'v_and_b32 v{vA}, 15, v{vL}\nv_lshlrev_b32 v{vA}, 4, v{vA}\ns_mov_b32 s40, {WS_SA}')
        gather(e,cfg,[(24,4,vA,'s40',0)],vT,cfg.sleep_head)
        e(f'{l}:')
    def red_h():
        l=if_red()
        red_addr(WS_MU,MUS,'s52')
        e('s_add_u32 s53, s52, 4096')
        gather(e,cfg,[(24,4,vA,'s52',0),(28,4,vA,'s53',0)],vT,cfg.sleep_head)
        rowsum(24); rowsum(28)
        rnd_vec(e,24,2,26); rnd_vec(e,28,2,26)
        modulate(RN,2,28,24,24,26)
        e(f'''
        v_min_u32 v24, -2, v24
        s_lshl_b32 s40, s98, 7
        s_add_u32 s40, s40, {WS_H}
        s_mov_b32 s42, 0xffff
        s_mov_b32 s43, 0xffff
        s_mov_b64 exec, s[42:43]
        buffer_store_dword v24, v{vRo}, s[{SWS}:{SWS+3}], s40 offen sc1
        s_mov_b64 exec, -1
        {l}:
        ''')
    def red_ts():
        l=if_red()
        red_addr(WS_MN+4096,MNS,'s52')
        e('s_add_u32 s53, s52, 4096')
        gather(e,cfg,[(24,4,vA,'s52',0),(28,4,vA,'s53',0)],vT,cfg.sleep_head)
        rowsum(24); rowsum(28)
        rnd_vec(e,28,2,26)
        e(f'''
        v_add_f32 v28, 1.0, v28
        v_add_f32 v29, 1.0, v29
        v_cvt_pk_bf16_f32 v24, v28, v24
        v_cvt_pk_bf16_f32 v25, v29, v25
        v_min_u32 v24, -2, v24
        v_min_u32 v25, -2, v25
        v_lshlrev_b32 v{vA}, 1, v{vRo}
        s_lshl_b32 s40, s98, 8
        s_add_u32 s40, s40, {WS_TS}
        s_mov_b32 s42, 0xffff
        s_mov_b32 s43, 0xffff
        s_mov_b64 exec, s[42:43]
        buffer_store_dwordx2 v[24:25], v{vA}, s[{SWS}:{SWS+3}], s40 offen sc1
        s_mov_b64 exec, -1
        {l}:
        ''')
    def red_g():
        l=if_red()
        red_addr(WS_MN,MNS,'s52')
        e(f'v_mov_b32 v{vA+1}, v{vA}')
        red_addr(WS_MG,MGS,'s53')
        e(f's_add_u32 s54, s53, {16*MGS}')
        gather(e,cfg,[(24,4,vA+1,'s52',0),(28,4,vA,'s53',0),(32,4,vA,'s54',0)],vT,cfg.sleep_head)
        e('v_pk_add_f32 v[28:29], v[28:29], v[32:33]\nv_pk_add_f32 v[30:31], v[30:31], v[34:35]')
        rowsum(24); rowsum(28)
        e(f'v_mov_b32 v{RX+2}, v24\nv_mov_b32 v{RX+3}, v25\nv_mov_b32 v{RX+4}, v28\nv_mov_b32 v{RX+5}, v29')
        rnd_vec(e,RX+2,4,26)
        if cfg.warm: e(f'global_load_dword v24, v{vRo}, s[{P_OUT}:{P_OUT+1}]\ns_waitcnt vmcnt(0)')
        e(f'{l}:')
    def wpick(a=0,b=5):
        for g,d in sorted([t for t in [('WO',WO),('X0',X0),('X1',X1),('X2',X2),('X3',WJ)] if (t[0],0) in UNITS and upos(t[0],0)<upos('K',15)], key=lambda t: upos(t[0],0))[a:b]:
            if g=='X2':
                la=e.label('Lpl'); lb=e.label('Lpld')
                e(f's_cmp_ge_u32 s99, 224\ns_cbranch_scc1 {la}')
                pickup_cols(g,d)
                e(f's_branch {lb}\n{la}:')
                lds_signal(e,F_CONS+4*GROUPS.index(g),vFl,vOne)
                e(f'{lb}:')
            elif g=='WO': pickup_cols(g,d)
            elif g=='X3':
                la=e.label('Lpl'); lb=e.label('Lpld')
                e(f's_cmp_eq_u32 s0, 0\ns_cbranch_scc1 {la}')
                pickup(g,[d])
                e(f's_branch {lb}\n{la}:')
                lds_signal(e,F_CONS+4*GROUPS.index(g),vFl,vOne)
                e(f'{lb}:')
            else: pickup_x(g,d)
    def njobs():
        gbar1(); auxbar()
        job_pub(WS_MN,MNS,-16)
        ln=e.label('Lnoj2')
        e(f's_cmp_lt_u32 s99, 224\ns_cbranch_scc1 {ln}')
        auxbar(); mm([16,20],[X0,X1],JACC); auxbar(); job_pub(WS_MN,MNS,-16,scg='s101')
        e(f'{ln}:')
    def gjob():
        lg=e.label('Lnog')
        e(f's_cmp_eq_u32 s0, 0\ns_cbranch_scc1 {lg}')
        mm([56],[WJ],JACC); auxbar()
        e('s_and_b32 s42, s101, 7\ns_lshr_b32 s43, s101, 3')
        job_pub(WS_MG,MGS,0,'s42','s43')
        auxbar()
        e(f'{lg}:')
    e('''
    s_cmp_eq_u32 s33, 1
    s_cbranch_scc1 L_roleQ
    ''')
    e.c('---- roles U (sa, ca) and N (ga, sb, cb): silu(c) x w_mod tile')
    red_stats(); silu_A(); go1a(); pickup('J',[WJ,WJ+32])
    mm([16,20],[WJ,WJ+32],JACC); go1(); auxbar(); arrive()
    e('s_cmp_eq_u32 s33, 2\ns_cbranch_scc1 L_roleN')
    job_pub(WS_MU,MUS,0)
    stamp(e,cfg,1)
    wpick(); gbar1(); auxbar()
    stamp(e,cfg,2)
    e('s_branch L_common')
    e('L_roleN:')
    stamp(e,cfg,1)
    wpick(0,cfg.hafter); stamp(e,cfg,12); (lds_spin(e,cfg,F_P3,4,vFl,vT) if cfg.mgate else None); stamp(e,cfg,14); (None if cfg.direct else red_h()); stamp(e,cfg,15); wpick(cfg.hafter,5); njobs()
    stamp(e,cfg,2)
    e('s_branch L_common')
    e('L_roleQ:')
    e.c('---- role Q: h = LN(x)(1+ca)+sa, q = h x wq tile')
    if cfg.direct:
        row_stats()
        e(f'''
        s_lshl_b32 s40, s3, 3
        s_add_u32 s40, s40, {L_ST}
        v_mov_b32 v{vA}, s40
        ds_write_b64 v{vA}, v[24:25]
        ''')
    go1a(); pickup('J',[WJ,WJ+32]); go1(); auxbar(); arrive()
    if cfg.direct:
        e(f'''
        v_bfe_u32 v{vA}, v{vL}, 2, 2
        v_lshlrev_b32 v{vA}, 3, v{vA}
        v_add_u32 v{vA}, {L_ST}, v{vA}
        ds_read_b64 v[24:25], v{vA}
        ''')
        unpack(e,16,56,2)
        e('s_waitcnt lgkmcnt(0)')
        normalise(56,4,24,25,26)
    wpick(0,cfg.qafter)
    gbar1(); auxbar()
    stamp(e,cfg,1)
    if cfg.hgate: lds_spin(e,cfg,F_P2,4,vFl,vT)
    if cfg.direct:
        aoff(vA, MUS, 16, 64)
        e(f'''
        s_lshl_b32 s40, s36, 10
        s_lshl_b32 s41, s3, 8
        s_add_u32 s40, s40, s41
        s_add_u32 s52, s40, {WS_MU}
        ''')
        for i in range(1,8): e(f's_add_u32 s{52+i}, s52, {(i&3)*4*MUS+(i>>2)*4096}')
        gather(e,cfg,[(16+4*i,4,vA,f's{52+i}',0) for i in range(8)],vT,cfg.sleep_head)
        stamp(e,cfg,14)
        if cfg.stamps: e('s_mov_b32 s94, s41\ns_mov_b32 s95, 0')
        for m in range(2):
            for h in range(2):
                r=16+16*m+2*h
                e(f'''v_pk_add_f32 v[{r}:{r+1}], v[{r}:{r+1}], v[{r+4}:{r+5}]
                v_pk_add_f32 v[{r+8}:{r+9}], v[{r+8}:{r+9}], v[{r+12}:{r+13}]
                v_pk_add_f32 v[{48+4*m+2*h}:{49+4*m+2*h}], v[{r}:{r+1}], v[{r+8}:{r+9}]''')
        rnd_vec(e,48,8,vA)
        modulate(56,4,52,48,24,vA)
        e('v_mov_b32 v16, v24\nv_mov_b32 v20, v25')
    else:
        e(f's_mov_b32 s40, {WS_H}')
        gather(e,cfg,[(16,2,vHq,'s40',0)],vT,cfg.sleep_head)
        stamp(e,cfg,14)
        if cfg.stamps: e('s_mov_b32 s94, s41\ns_mov_b32 s95, 0')
        e('v_mov_b32 v20, v17')
    spread(16); spread(20)
    mm([16,20],[WJ,WJ+32],JACC); auxbar()
    job_pub(WS_Q,QS,0)
    stamp(e,cfg,2)
    wpick(cfg.qafter,5)
    e('L_common:')
    e.c('---- all roles: q for this workgroup, gb half job, (1+cb, sb), split maxima and sums, addresses for the tail')
    if cfg.qgate: lds_spin(e,cfg,F_P,4,vFl,vT)
    gather_q()
    stamp(e,cfg,3)
    auxbar()
    if cfg.post:
        la=e.label('Lpl'); lb=e.label('Lpld')
        e(f'''
        ds_read_b32 v{vT}, v{vFl} offset:{F_M}
        s_waitcnt lgkmcnt(0)
        v_readfirstlane_b32 s15, v{vT}
        s_cmp_ge_u32 s99, 224
        s_cbranch_scc1 {la}
        s_cmp_lg_u32 s15, 0
        s_cbranch_scc1 {la}
        ''')
        pickup_cols('X2',X2)
        e(f's_branch {lb}\n{la}:')
        lds_signal(e,F_CONS+4*GROUPS.index('X2'),vFl,vOne)
        e(f'{lb}:')
    gjob()
    red_ts()
    phase[0]='m'
    if 'h' in cfg.kill: e(f's_mov_b32 s46, {WS_END}')
    if 'm' in cfg.kill: e('s_mov_b32 s46, 0')
    F=192; T1=204; SB=206; AC2=[220+4*i for i in range(8)]
    lds_spin(e,cfg,F_ML,4,vFl,vT)
    lm=e.label('Lnoml')
    e(f'''
    s_cmp_lg_u32 s3, 0
    s_cbranch_scc1 {lm}
    v_and_b32 v{vA}, 7, v{vL}
    v_lshlrev_b32 v{vA+1}, 3, v{vA}
    v_add_u32 v{vA}, {L_ML}, v{vA+1}
    ds_read_b64 v[16:17], v{vA}
    ds_read_b64 v[18:19], v{vA} offset:64
    ds_read_b64 v[20:21], v{vA} offset:128
    ds_read_b64 v[22:23], v{vA} offset:192
    s_lshl_b32 s40, s37, 10
    s_lshl_b32 s41, s38, 6
    s_add_u32 s40, s40, s41
    s_add_u32 s40, s40, {WS_ML}
    s_waitcnt lgkmcnt(0)
    v_max3_f32 v24, v16, v18, v20
    v_max_f32 v24, v24, v22
    v_sub_f32 v16, v16, v24
    v_sub_f32 v18, v18, v24
    v_sub_f32 v20, v20, v24
    v_sub_f32 v22, v22, v24
    v_exp_f32 v16, v16
    v_exp_f32 v18, v18
    v_exp_f32 v20, v20
    v_exp_f32 v22, v22
    v_mul_f32 v25, v16, v17
    v_fmac_f32 v25, v18, v19
    v_fmac_f32 v25, v20, v21
    v_fmac_f32 v25, v22, v23
    v_min_u32 v24, -2, v24
    v_min_u32 v25, -2, v25
    s_mov_b64 exec, 0xff
    buffer_store_dwordx2 v[24:25], v{vA+1}, s[{SWS}:{SWS+3}], s40 offen sc1
    s_mov_b64 exec, -1
    ''')
    if cfg.adapt==2:
        e(f'''
        s_lshl_b32 s40, s37, 10
        s_add_u32 s40, s40, {WS_ML}
        buffer_load_dword v16, v{vRow}, s[{SWS}:{SWS+3}], s40 offen sc1
        s_waitcnt vmcnt(0)
        v_cmp_ne_u32 vcc, -1, v16
        s_bcnt1_i32_b64 s40, vcc
        s_cmp_lt_u32 s40, {4*cfg.rank}
        s_cbranch_scc1 {lm}
        ''')
        lds_signal(e,F_M,vFl,vOne)
    e(f'{lm}:')
    vOc=48; vOs=49; vH1=50; vYs=53; vH3=55; vZs=56; vXs=57; vSt=58; vOc2=59; vGs=51; vXr=52; vXw=60
    red_g()
    aoff(vH1, OS, 16, 64*OS)
    aoff(vH3, 8, 32, GS)
    aoff(vXs, 4, 16, 2048)
    aoff(vYs, 16, 4, 16*YS)
    aoff(vZs, 16, 4, 16*ZS)
    aoff(vGs, 16, 4, GS)
    aoff(vXr, XSTR, 0, 16)
    aoff(vXw, 4, 16, XSTR)
    aoff(vSt, 128, 8, 512)
    e(f'''
    v_add_u32 v{vXr}, {L_AX}, v{vXr}
    s_lshl_b32 s40, s3, 6
    s_add_u32 s40, s40, {L_AX}
    v_add_u32 v{vXw}, s40, v{vXw}
    s_lshl_b32 s40, s3, 1
    v_lshrrev_b32 v{vA}, 5, v{vL}
    v_add_u32 v{vA+2}, s40, v{vA}
    v_mul_u32_u24 v{vOc}, {OSTR}, v{vA+2}
    v_and_b32 v{vA+1}, 31, v{vL}
    v_lshl_add_u32 v{vOc}, v{vA+1}, 4, v{vOc}
    v_add_u32 v{vOc}, {OOFF}, v{vOc}
    v_add_u32 v{vOc2}, 0x10000, v{vOc}
    v_lshlrev_b32 v{vOs}, 3, v{vL}
    s_lshl_b32 s52, s37, 4
    s_add_u32 s52, s52, s38
    s_mul_i32 s52, s52, {OS}
    s_lshl_b32 s40, s3, 9
    s_add_u32 s52, s52, s40
    s_mul_i32 s53, s3, {16*OS}
    s_and_b32 s40, s14, 7
    s_lshl_b32 s40, s40, 8
    s_add_u32 s53, s53, s40
    s_bfe_u32 s40, s14, 0x20003
    s_lshl_b32 s40, s40, 6
    s_add_u32 s53, s53, s40
    s_add_u32 s54, s53, {4*OS}
    s_add_u32 s55, s53, {8*OS}
    s_add_u32 s56, s53, {12*OS}
    s_lshr_b32 s42, s3, 1
    s_and_b32 s43, s3, 1
    s_lshl_b32 s43, s43, 7
    s_lshr_b32 s40, s14, 5
    s_lshl_b32 s40, s40, 1
    s_add_u32 s40, s40, s42
    s_mul_i32 s57, s40, {YS}
    s_and_b32 s40, s14, 31
    s_lshl_b32 s40, s40, 8
    s_add_u32 s57, s57, s40
    s_add_u32 s57, s57, s43
    s_add_u32 s57, s57, {WS_Y}
    s_and_b32 s40, s1, 7
    s_lshl_b32 s40, s40, 1
    s_add_u32 s40, s40, s42
    s_mul_i32 s59, s40, {ZS}
    s_add_u32 s59, s59, s43
    s_lshr_b32 s43, s1, 3
    s_lshl_b32 s42, s43, 8
    s_add_u32 s59, s59, s42
    s_add_u32 s59, s59, {WS_Z}
    s_and_b32 s40, s63, 7
    s_lshl_b32 s58, s40, 8
    s_lshl_b32 s42, s3, 6
    s_add_u32 s58, s58, s42
    s_add_u32 s58, s58, {WS_X1}
    s_mov_b32 s49, {WS_ST}
    s_mul_i32 s60, s40, {4*GS}
    s_lshr_b32 s41, s63, 3
    s_lshl_b32 s41, s41, 9
    s_add_u32 s60, s60, s41
    s_lshl_b32 s40, s3, 7
    s_add_u32 s60, s60, s40
    s_add_u32 s60, s60, {WS_GU}
    s_lshl_b32 s43, s43, 9
    s_add_u32 s48, s43, s40
    s_add_u32 s48, s48, {WS_GU}
    s_mov_b32 s61, 0x3f80
    s_mov_b32 s62, 0x3f800000
    s_mov_b32 s96, 0x000f000f
    s_mov_b32 s97, 0x000f000f
    s_mov_b32 s10, {1024*3584*2}
    s_mov_b32 s11, 0x20000
    v_lshrrev_b32 v{vA}, 4, v{vL}
    v_and_b32 v{vA+1}, 15, v{vL}
    v_lshlrev_b32 v{vA+2}, 1, v{vA}
    v_xor_b32 v{vA+2}, v{vA+2}, v{vA+1}
    v_lshlrev_b32 v{vA+2}, 4, v{vA+2}
    v_lshl_add_u32 v208, v{vA}, 11, v{vA+2}
    v_xor_b32 v209, 128, v208
    v_mul_u32_u24 v210, 7168, v{vA}
    v_add_u32 v210, v210, v{vA+2}
    s_lshr_b32 s40, s1, 3
    s_lshl_b32 s13, s40, 18
    s_lshl_b32 s40, s3, 16
    s_add_u32 s13, s13, s40
    s_and_b32 s40, s1, 7
    s_lshl_b32 s40, s40, 8
    s_add_u32 s13, s13, s40
    s_and_b32 s40, s63, 7
    s_lshl_b32 s40, s40, 2
    s_add_u32 s40, s40, s3
    s_mul_i32 s12, s40, {32*7168}
    s_lshr_b32 s40, s63, 3
    s_lshl_b32 s40, s40, 8
    s_add_u32 s12, s12, s40
    ''')
    lf=e.label('Lnof')
    lds_spin(e,cfg,F_V,1,vFl,vT)
    if cfg.repf:
        lp=e.label('Lnopf')
        e(f'''
        s_cmp_lg_u32 s3, 2
        s_cbranch_scc1 {lp}
        s_getpc_b64 s[42:43]
        v_lshlrev_b32 v{vA}, 7, v{vL}
        global_load_dword v211, v{vA}, s[42:43]
        {lp}:
        ''')
    e(f's_cmp_lg_u32 s3, 0\ns_cbranch_scc1 {lf}')
    e(f's_lshl_b32 s40, s37, 10\ns_add_u32 s40, s40, {WS_ML}')
    gather(e,cfg,[(16,4,vRow,'s40',0)],vT,cfg.sleep_ml)
    e('v_mov_b32 v20, v16\nv_mov_b32 v22, v18')
    allred_s('v_max_f32',[20,22],24)
    e('''
    v_sub_f32 v16, v16, v20
    v_sub_f32 v18, v18, v22
    v_exp_f32 v16, v16
    v_exp_f32 v18, v18
    v_mul_f32 v21, v16, v17
    v_mul_f32 v23, v18, v19
    ''')
    allred_s('v_add_f32',[21,23],24)
    e(f'''
    v_rcp_f32 v21, v21
    v_rcp_f32 v23, v23
    v_add_u32 v{vA}, {L_ST}, v{vRow}
    s_mov_b64 exec, 15
    ds_write_b128 v{vA}, v[20:23]
    s_waitcnt lgkmcnt(0)
    s_mov_b64 exec, -1
    ''')
    lds_signal(e,F_F,vFl,vOne)
    e(f'''
    {lf}:
    ''')
    lsb=e.label('Lnosb')
    e(f's_cmp_ge_u32 s99, 224\ns_cbranch_scc1 {lsb}')
    aoff(vA, 8, 32, 4096)
    e(f'''
    s_and_b32 s40, s63, 7
    s_lshl_b32 s40, s40, 9
    s_lshl_b32 s42, s3, 7
    s_add_u32 s40, s40, s42
    s_add_u32 s40, s40, {WS_TS}
    ''')
    gather(e,cfg,[(16,2,vA,'s40',0)],vT,cfg.sleep_ml)
    e(f'''
    v_lshlrev_b32 v{T1}, 16, v16
    v_lshlrev_b32 v{T1+1}, 16, v17
    v_and_b32 v{SB}, 0xffff0000, v16
    v_and_b32 v{SB+1}, 0xffff0000, v17
    {lsb}:
    ''')
    e(f'''
    s_lshl_b32 s40, s3, 4
    v_lshrrev_b32 v{vA+1}, 5, v{vL}
    v_lshl_add_u32 v{vA}, v{vA+1}, 3, s40
    v_add_u32 v{vA+1}, {L_ST}, v{vA}
    v_add_u32 v{vA}, {L_ML}, v{vA}
    ds_read_b32 v{F}, v{vA}
    ds_read_b32 v{F+1}, v{vA} offset:64
    ds_read_b32 v{F+2}, v{vA} offset:128
    ds_read_b32 v{F+3}, v{vA} offset:192
    ''')
    lds_spin(e,cfg,F_F,1,vFl,vT)
    e(f'ds_read_b64 v[20:21], v{vA+1}\ns_waitcnt lgkmcnt(0)')
    for k in range(4): e(f'v_sub_f32 v{F+k}, v{F+k}, v20')
    for k in range(4): e(f'v_exp_f32 v{F+k}, v{F+k}')
    for k in range(4): e(f'v_mul_f32 v{F+k}, v{F+k}, v21')
    stamp(e,cfg,4)
    e.c('---- tail: combine the four waves of this workgroup')
    if cfg.help:
        lcp=e.label('Lnocp')
        e(f's_cmp_lg_u32 s3, 1\ns_cbranch_scc1 {lcp}')
        lds_spin(e,cfg,F_C,4,vFl,vT)
        e(f'''
        s_lshl_b32 s40, s37, 7
        s_lshl_b32 s41, s38, 2
        s_add_u32 s40, s40, s41
        s_add_u32 s40, s40, {WS_CP}
        v_mov_b32 v{vA}, 0
        s_mov_b64 exec, 1
        buffer_store_dword v{vOne}, v{vA}, s[{SWS}:{SWS+3}], s40 offen sc1
        s_mov_b64 exec, -1
        {lcp}:
        ''')
    if cfg.local: e(f'ds_read_b32 v{vT}, v{vFl} offset:{F_L}\ns_waitcnt lgkmcnt(0)\nv_readfirstlane_b32 s14, v{vT}')
    e(f's_setprio {cfg.prio2}')
    if cfg.obar: e('s_barrier')
    else: lds_spin(e,cfg,F_O,4,vFl,vT,sleep=0)
    stamp(e,cfg,5)
    phase[0]='t'
    if 't' in cfg.kill: e('s_branch L_fin')
    e(f'''
    ds_read_b128 v[16:19], v{vOc}
    ds_read_b128 v[20:23], v{vOc} offset:{RING}
    ds_read_b128 v[24:27], v{vOc2}
    ds_read_b128 v[28:31], v{vOc2} offset:{RING}
    s_waitcnt lgkmcnt(3)
    ''')
    for r in range(4): e(f'v_mul_f32 v{16+r}, v{16+r}, v{F}')
    for k in range(1,4):
        e(f's_waitcnt lgkmcnt({3-k})')
        for r in range(4): e(f'v_fmac_f32 v{16+r}, v{16+4*k+r}, v{F+k}')
    e(f'''
    v_cvt_pk_bf16_f32 v16, v16, v17
    v_cvt_pk_bf16_f32 v17, v18, v19
    v_min_u32 v16, -2, v16
    v_min_u32 v17, -2, v17
    buffer_store_dwordx2 v[16:17], v{vOs}, s[{SWS}:{SWS+3}], s52 offen sc1
    ''')
    def look(i, acki=None):
        if acki is not None and cfg.ack[acki]=='1': e('s_waitcnt vmcnt(0)')
        d=int(cfg.dly.split(',')[i])
        if d: e(f's_sleep {d}')
    def tstamp(i):
        if cfg.tstamps: stamp(e,cfg,i)
    look(0,0)
    def fast(loads, compute, check, inc=False):
        d=e.label('Lfd')
        for dst,n,voff,soff,imm in loads:
            op={1:'dword',2:'dwordx2',4:'dwordx4'}[n]
            e(f'buffer_load_{op} {v(dst,n)}, v{voff}, s[{SWS}:{SWS+3}], {soff} offen offset:{imm} sc1')
        if cfg.cnt and inc: compute(len(loads))
        else:
            e('s_waitcnt vmcnt(0)'); compute()
        check()
        n=fast.n
        def slow():
            gather(e,cfg,loads,vT,cfg.sleep_tail)
            if cfg.fine: e(f's_min_u32 s41, s41, 255\ns_lshl_b32 s41, s41, {8*n}\ns_or_b32 s100, s100, s41')
            compute()
        if cfg.ool:
            e(f's_cbranch_vccnz {d}_s\n{d}:')
            def later():
                e(f'{d}_s:'); slow(); e(f's_branch {d}')
            OOL.append(later)
        else:
            e(f's_cbranch_vccz {d}')
            slow()
            e(f'{d}:')
        fast.n+=1
    fast.n=0; OOL=[]
    if cfg.fine: e('s_mov_b32 s100, 0')
    def store2(accs, voff, soff):
        for j,ac in enumerate(accs):
            e(f'v_min_u32 v{ac}, -2, v{ac}\nbuffer_store_dword v{ac}, v{voff}, s[{SWS}:{SWS+3}], {soff} offen offset:{64*j} sc1')
    DEF=[(k,{'0':P_W1,'1':P_W3,'2':P_W2}[k]) for k in ('2' if cfg.post else cfg.defer)]
    DOFF=[o for o in (0,8192,16384,24576) if not (o < OOFF+4224 and OOFF < o+8192)]
    def defer_loads():
        if '0' in cfg.defer or '1' in cfg.defer: e('v_mov_b32 v14, v210\nv_xor_b32 v15, 128, v210')
        for n,(k,p) in enumerate(DEF):
            rs = 2048 if k=='2' else 7168
            e(f's_mov_b32 s8, s{p}\ns_mov_b32 s9, s{p+1}')
            for I in range(8):
                if I%4==0: e(f's_add_u32 m0, s32, {DOFF[n]+(I>>2)*4096}')
                e(f's_add_u32 s40, s{13 if k=="2" else 12}, {(8*(I&3)+4*(I>>2))*rs-1024*(I&3)}')
                e(f'buffer_load_dwordx4 v{(208 if k=="2" else 14)+(I&1)}, s[8:11], s40 offen offset:{(I&3)*1024} {cfg.pol} lds')
    e.c('---- H1 + output projection')
    def osum():
        for i in range(4):
            e(f'v_lshlrev_b32 v{32+2*i}, 16, v{16+i}\nv_and_b32 v{33+2*i}, 0xffff0000, v{16+i}')
        for j in range(1,4):
            if cfg.h1nan: e(f's_waitcnt vmcnt({3-j})')
            for i in range(4):
                e(f'v_dot2_f32_bf16 v{32+2*i}, v{16+4*j+i}, s61, v{32+2*i}\nv_dot2_f32_bf16 v{33+2*i}, v{16+4*j+i}, s62, v{33+2*i}')
    if cfg.h1pipe and 't' not in cfg.kill:
        l=e.label('Lh1'); d=e.label('Lh1d')
        def look4():
            for j in range(4): e(f'buffer_load_dwordx4 v[{16+4*j}:{19+4*j}], v{vH1}, s[{SWS}:{SWS+3}], s{53+j} offen sc1')
        e('s_mov_b32 s41, 0')
        for k in range(cfg.h1pipe-1):
            look4()
            if k<cfg.h1pipe-2 or True: e(f's_sleep {cfg.h1gap}')
        e(f'{l}:')
        look4()
        e(f's_add_u32 s41, s41, 1\ns_waitcnt vmcnt({4*(cfg.h1pipe-1)})\nv_max3_u32 v{vT}, v16, v17, v18')
        for i in range(19,31,2): e(f'v_max3_u32 v{vT}, v{vT}, v{i}, v{i+1}')
        e(f'''
        v_max_u32 v{vT}, v{vT}, v31
        v_cmp_eq_u32 vcc, -1, v{vT}
        s_cbranch_vccz {d}
        s_mov_b64 exec, vcc
        s_cmp_lt_u32 s41, {cfg.gpoll*4}
        s_cbranch_scc1 {l}
        {d}:
        s_mov_b64 exec, -1
        ''')
        tstamp(6)
        h=cfg.h1nan; cfg.h1nan=False; osum(); cfg.h1nan=h
    elif not cfg.h1nan or 't' in cfg.kill:
        gather(e,cfg,[(16,4,vH1,'s53',0),(20,4,vH1,'s54',0),(24,4,vH1,'s55',0),(28,4,vH1,'s56',0)],vT,cfg.sleep_tail,backoff=(cfg.bo_n,cfg.bo_s) if cfg.bo_s else None)
        tstamp(6)
        osum()
    else:
        l=e.label('Lh1'); d=e.label('Lh1d')
        if not cfg.post: e('s_cmp_ge_u32 s99, 224\ns_cselect_b32 s15, 1, 0')
        e(f's_mov_b32 s41, 0\n{l}:')
        for j in range(4): e(f'buffer_load_dwordx4 v[{16+4*j}:{19+4*j}], v{vH1}, s[{SWS}:{SWS+3}], s{53+j} offen sc1')
        e('s_add_u32 s41, s41, 1\ns_waitcnt vmcnt(3)')
        osum()
        e(f'''
        v_add_f32 v40, v32, v34
        v_add_f32 v41, v36, v38
        v_cmp_u_f32 vcc, v40, v41
        s_cbranch_vccz {d}
        v_max3_u32 v{vT}, v16, v17, v18
        ''')
        for i in range(19,31,2): e(f'v_max3_u32 v{vT}, v{vT}, v{i}, v{i+1}')
        e(f'''
        v_max_u32 v{vT}, v{vT}, v31
        v_cmp_eq_u32 vcc, -1, v{vT}
        s_cbranch_vccz {d}
        ''')
        if DEF and cfg.early:
            le=e.label('Lne')
            e(f'''
            s_cmp_lg_u32 s15, 0
            s_cbranch_scc1 {le}
            s_bcnt1_i32_b64 s40, vcc
            s_cmp_lt_u32 s40, {cfg.early}
            s_cbranch_scc1 {le}
            s_mov_b32 s15, 1
            s_mov_b64 exec, -1
            ''')
            defer_loads()
            e(f'{le}:')
        e(f'''
        s_mov_b64 exec, vcc
        s_sleep {cfg.sleep_tail}
        s_cmp_lt_u32 s41, {cfg.gpoll}
        s_cbranch_scc1 {l}
        {d}:
        s_mov_b64 exec, -1
        ''')
        tstamp(6)
    dppsum(32,8)
    for i in range(4): e(f'v_cvt_pk_bf16_f32 v{40+i}, v{32+2*i}, v{33+2*i}')
    e(f's_mov_b64 exec, s[96:97]\nds_write_b128 v{vXw}, v[40:43]\ns_mov_b64 exec, -1')
    if cfg.h1pipe: e('s_waitcnt vmcnt(0)')
    mmx([WO],[32,36],vXr)
    store2([32,36],vYs,'s57')
    tstamp(7)
    e('s_cmp_ge_u32 s99, 224\ns_cbranch_scc1 L_red')
    def red_tail(n, cnt=0):
        lst=list(range(n))
        if cnt:
            for i in range(1,n):
                a_,b_=(16,16+4*i) if (i==1 or i%2==0 or True) else (20,16+4*i)
                e(f's_waitcnt vmcnt({n-1-i})\nv_pk_add_f32 v[{a_}:{a_+1}], v[{a_}:{a_+1}], v[{b_}:{b_+1}]\nv_pk_add_f32 v[{a_+2}:{a_+3}], v[{a_+2}:{a_+3}], v[{b_+2}:{b_+3}]')
            lst=[0]
        elif cfg.cnt:
            for i in range(1,n):
                a_,b_=16,16+4*i
                e(f'v_pk_add_f32 v[{a_}:{a_+1}], v[{a_}:{a_+1}], v[{b_}:{b_+1}]\nv_pk_add_f32 v[{a_+2}:{a_+3}], v[{a_+2}:{a_+3}], v[{b_+2}:{b_+3}]')
            lst=[0]
        while len(lst)>1:
            nx=[]
            for i in range(0,len(lst)-1,2):
                a_,b_=16+4*lst[i],16+4*lst[i+1]
                e(f'v_pk_add_f32 v[{a_}:{a_+1}], v[{a_}:{a_+1}], v[{b_}:{b_+1}]\nv_pk_add_f32 v[{a_+2}:{a_+3}], v[{a_+2}:{a_+3}], v[{b_+2}:{b_+3}]')
                nx.append(lst[i])
            if len(lst)%2: nx.append(lst[-1])
            lst=nx
        e('''
        v_permlane32_swap_b32 v16, v18
        v_permlane32_swap_b32 v17, v19
        v_pk_add_f32 v[16:17], v[16:17], v[18:19]
        v_mov_b32 v18, v16
        v_mov_b32 v19, v17
        v_permlane16_swap_b32 v18, v16
        v_permlane16_swap_b32 v19, v17
        v_pk_add_f32 v[16:17], v[16:17], v[18:19]
        ''')
    def gate_res(G,X,dst):
        rnd_vec(e,16,2,18)
        e(f'v_pk_mul_f32 v[16:17], v[16:17], v[{G}:{G+1}]')
        rnd_vec(e,16,2,18)
        e(f'v_pk_add_f32 v[16:17], v[16:17], v[{X}:{X+1}]\nv_cvt_pk_bf16_f32 v{dst}, v16, v17')
    nan2=lambda a_,b_: (lambda: e(f'v_cmp_u_f32 vcc, v{a_}, v{b_}'))
    if DEF:
        ld=e.label('Ldef')
        if cfg.early: e(f's_cmp_lg_u32 s15, 0\ns_cbranch_scc1 {ld}')
        if cfg.post: e(f's_cmp_eq_u32 s15, 0\ns_cbranch_scc1 {ld}')
        defer_loads()
        e(f'{ld}:')
    look(2)
    if DEF: e('s_waitcnt vmcnt(0)')
    if any(k!='2' for k,p in DEF):
        e('s_barrier')
        for n,(k,p) in enumerate(DEF):
            if k!='2': pickup_cols('X'+k, X0 if k=='0' else X1, DOFF[n])
    e.c('---- H2b + gate/up')
    def ln2():
        unpack(e,16,32,1)
        allred_s('v_add_f32',[20,21],22,rors=(1,2,4,8),swaps=())
        e(f'''
        v_mul_f32 v20, 0x3a800000, v20
        v_mul_f32 v21, 0x3a800000, v21
        v_fma_f32 v21, -v20, v20, v21
        v_cmp_u_f32 s[42:43], v21, v21
        v_max_f32 v21, 0, v21
        ''')
        if cfg.round_ln2:
            finish_stats(20,21)
            normalise(32,2,20,21,22)
            modulate(32,2,T1,SB,16,22,prep=False)
        else:
            e(f'''
            v_add_f32 v21, 0x3727c5ac, v21
            v_rsq_f32 v21, v21
            v_sub_f32 v32, v32, v20
            v_sub_f32 v33, v33, v20
            v_mul_f32 v32, v32, v21
            v_mul_f32 v33, v33, v21
            v_fma_f32 v32, v32, v{T1}, v{SB}
            v_fma_f32 v33, v33, v{T1+1}, v{SB+1}
            v_cvt_pk_bf16_f32 v16, v32, v33
            ''')
        e(f'ds_write_b32 v{vXw}, v16')
    fast([(16,1,vXs,'s58',0),(20,2,vSt,'s49',0)], ln2, lambda: e('v_cmp_u_f32 vcc, v32, v33\ns_or_b64 vcc, vcc, s[42:43]'))
    tstamp(9)
    mmx([X0,X1],[32,36,40,44],vXr)
    for i in range(1,8): e(f's_add_u32 s{51+i}, s48, {i*4*GS}')
    for j in range(2): e(f'v_cvt_pk_bf16_f32 v{32+4*j}, v{32+4*j}, v{40+4*j}')
    if cfg.local:
        lg=e.label('Lgl'); lgd=e.label('Lgld')
        e(f'''
        v_min_u32 v32, -2, v32
        v_min_u32 v36, -2, v36
        s_cmp_lg_u32 s14, 0
        s_cbranch_scc1 {lg}
        buffer_store_dword v32, v{vGs}, s[{SWS}:{SWS+3}], s60 offen sc1
        buffer_store_dword v36, v{vGs}, s[{SWS}:{SWS+3}], s60 offen offset:64 sc1
        s_branch {lgd}
        {lg}:
        buffer_store_dword v32, v{vGs}, s[{SWS}:{SWS+3}], s60 offen
        buffer_store_dword v36, v{vGs}, s[{SWS}:{SWS+3}], s60 offen offset:64
        {lgd}:
        ''')
    else: store2([32,36],vGs,'s60')
    tstamp(10)
    for n,(k,p) in enumerate(DEF):
        if k=='2':
            lp=e.label('Lnp')
            if cfg.post: e(f's_cmp_eq_u32 s15, 0\ns_cbranch_scc1 {lp}')
            pickup_cols('X2', X2, DOFF[n])
            e(f'{lp}:')
    e.c('---- H3a + down projection')
    look(3,2)
    if cfg.fine: stamp(e,cfg,1)
    def gusum(cnt=0):
        if cnt: e('s_waitcnt vmcnt(7)')
        e('''v_lshlrev_b32 v32, 16, v16
        v_and_b32 v33, 0xffff0000, v16
        v_lshlrev_b32 v34, 16, v17
        v_and_b32 v35, 0xffff0000, v17''')
        for i in range(1,8):
            if cnt: e(f's_waitcnt vmcnt({7-i})')
            e(f'''v_dot2_f32_bf16 v32, v{16+2*i}, s61, v32
            v_dot2_f32_bf16 v33, v{16+2*i}, s62, v33
            v_dot2_f32_bf16 v34, v{17+2*i}, s61, v34
            v_dot2_f32_bf16 v35, v{17+2*i}, s62, v35''')
    fast([(16+2*i,2,vH3,'s48' if i==0 else f's{51+i}',0) for i in range(8)], gusum, nan2(32,34), True)
    tstamp(11)
    rnd_vec(e,32,4,20)
    e(f'''
    v_mul_f32 v20, 0xbfb8aa3b, v32
    v_mul_f32 v21, 0xbfb8aa3b, v34
    v_exp_f32 v20, v20
    v_exp_f32 v21, v21
    v_add_f32 v20, 1.0, v20
    v_add_f32 v21, 1.0, v21
    v_rcp_f32 v20, v20
    v_rcp_f32 v21, v21
    v_mul_f32 v32, v32, v20
    v_mul_f32 v34, v34, v21
    v_cvt_pk_bf16_f32 v20, v32, v34
    v_lshlrev_b32 v32, 16, v20
    v_and_b32 v34, 0xffff0000, v20
    v_mul_f32 v32, v32, v33
    v_mul_f32 v34, v34, v35
    v_cvt_pk_bf16_f32 v16, v32, v34
    ds_write_b32 v{vXw}, v16
    ''')
    mmx([X2],[32,36],vXr)
    store2([32,36],vZs,'s59')
    if cfg.fine: stamp(e,cfg,2)
    e('s_branch L_fin\nL_red:')
    e.c('---- H2a: reducers')
    l2=e.label('Lnoh2a')
    e(f'''
    s_cmp_ge_u32 s3, 2
    s_cbranch_scc1 L_fin
    s_mul_i32 s40, s98, {YS}
    s_add_u32 s40, s40, {WS_Y}
    s_add_u32 s51, s40, 4096
    s_lshl_b32 s52, s98, 7
    s_add_u32 s52, s52, {WS_X1}
    s_lshr_b32 s53, s98, 2
    s_lshl_b32 s53, s53, 7
    s_and_b32 s54, s98, 3
    s_lshl_b32 s54, s54, 3
    s_add_u32 s53, s53, s54
    s_add_u32 s53, s53, {WS_ST}
    s_mov_b32 s54, 0xffff
    s_mov_b32 s55, 0xffff
    v_mov_b32 v61, 0
    ''')
    look(1,1)
    if cfg.fine: stamp(e,cfg,14)
    fast([(16+4*i,4,vRow,'s40' if i<4 else 's51',(i&3)*1024) for i in range(8)], lambda c=0: red_tail(8,c), nan2(16,17), True)
    if cfg.fine: stamp(e,cfg,15)
    gate_res(RX+2,RX,16)
    e(f'''
    v_min_u32 v16, -2, v16
    v_lshlrev_b32 v{RX}, 16, v16
    v_and_b32 v{RX+1}, 0xffff0000, v16
    s_mov_b64 exec, s[54:55]
    buffer_store_dword v16, v{vRo}, s[{SWS}:{SWS+3}], s52 offen sc1
    s_mov_b64 exec, -1
    v_add_f32 v18, v{RX}, v{RX+1}
    v_mul_f32 v19, v{RX}, v{RX}
    v_fmac_f32 v19, v{RX+1}, v{RX+1}
    ''')
    allred_s('v_add_f32',[18,19],20,rors=(8,4,2,1),swaps=('v_permlane32_swap_b32',))
    e(f'''
    v_min_u32 v18, -2, v18
    v_min_u32 v19, -2, v19
    s_mov_b64 exec, 1
    buffer_store_dwordx2 v[18:19], v61, s[{SWS}:{SWS+3}], s53 offen sc1
    s_mov_b64 exec, -1
    ''')
    tstamp(8)
    e(f'''
    s_mul_i32 s40, s98, {ZS}
    s_add_u32 s40, s40, {WS_Z}
    s_add_u32 s51, s40, 4096
    s_lshl_b32 s52, s98, 7
    v_add_u32 v{vA}, s52, v{vRo}
    ''')
    e.c('---- H3b: final reducers')
    if cfg.local:
        lz=e.label('Lz');
        e(f's_sleep {cfg.dlyz}\ns_cmp_lg_u32 s14, 0\ns_cbranch_scc1 {lz}\ns_sleep {int(cfg.dly.split(",")[4])-cfg.dlyz}\n{lz}:')
    else: look(4)
    if cfg.fine: stamp(e,cfg,3)
    fast([(16+4*i,4,vRow,'s40' if i<4 else 's51',(i&3)*1024) for i in range(7)], lambda c=0: red_tail(7,c), nan2(16,17), True)
    tstamp(12)
    gate_res(RX+4,RX,16)
    e(f'''
    s_mov_b64 exec, s[54:55]
    global_store_dword v{vA}, v16, s[{P_OUT}:{P_OUT+1}]
    s_mov_b64 exec, -1
    L_fin:
    ''')
    stamp(e,cfg,13)
    if cfg.stamps: e('s_add_u32 s3, s3, 4')
    if cfg.fine: e('s_waitcnt lgkmcnt(0)\ns_mov_b32 s72, s100\ns_mov_b32 s73, 0')
    stamps_out(e,cfg,16,vA)
    e('s_endpgm')
    for f in OOL: f()

def gen(cfg):
    set_order(cfg.order, cfg.defer)
    e=A()
    e(f'''
    s_cmp_ge_u32 s2, 256
    s_cbranch_scc1 L_exit
    s_load_dwordx16 s[4:19], s[0:1], 0
    s_getpc_b64 s[48:49]
    L_pc:
    s_sub_u32 s48, s48, L_pc-{KN}
    s_subb_u32 s49, s49, 0
    s_lshl_b32 s40, s2, 4
    s_add_u32 s40, s40, role_table-{KN}
    s_load_dwordx4 s[92:95], s[48:49], s40
    s_load_dwordx8 s[20:27], s[0:1], 64
    s_load_dwordx4 s[28:31], s[0:1], 96
    v_lshrrev_b32 v2, 6, v0
    v_and_b32 v1, 63, v0
    v_readfirstlane_b32 s3, v2
    v_lshlrev_b32 v3, 7, v0
    s_cmp_ge_u32 s3, 5
    s_cbranch_scc1 L_nopf
    global_load_dword v255, v3, s[48:49]
    L_nopf:
    ''')
    roles(e)
    e('s_cmp_ge_u32 s3, 4\ns_cbranch_scc1 L_aux')
    stream(e,cfg)
    aux(e,cfg)
    e('L_exit:\ns_endpgm')
    import rolemap
    tab,rho=rolemap.build(odd=cfg.odd,c3=cfg.c3,qx=cfg.qx,lx=cfg.lx,bx=cfg.bx,lunits=44 if '2' in cfg.defer else 42)
    e('.p2align 8\n.type role_table,@object\nrole_table:')
    for t in tab: e('.long '+', '.join(str(x) for x in t))
    e('.size role_table, 4096')
    e('.p2align 8\n.fill (40960+256-(.-'+KN+'))/4, 4, 0xbf800000')
    doc = """; Fused adaLN + GQA decode attention + SwiGLU block in one launch: 256 workgroups (one per CU) of 8 waves.
;
"""
    hdr = (f'; diagnostic build (generated by gen2.py) {getattr(cfg,"args","")}\n' if cfg.stamps else doc) + f'; @launch grid=(256,1,1) block=(512,1,1) lds={LDS_BYTES}\n.amdgcn_target "amdgcn-amd-amdhsa--gfx950"\n'
    return hdr + khead(KN) + e.text() + kd(KN, 256)

if __name__=='__main__':
    cfg=Cfg()
    out=sys.argv[1]
    cfg.args=' '.join(sys.argv[2:])
    for kv in sys.argv[2:]:
        k,val=kv.split('=')
        cur=getattr(cfg,k)
        setattr(cfg,k, (val not in ('0','False')) if isinstance(cur,bool) else type(cur)(val.replace('+',' ')) if not isinstance(cur,int) else int(val,0))
    open(out,'w').write(gen(cfg))
```

```python
import sys
from asmgen import *
KN='adaLN_cond__gqa_block_cached__glu_gated_swiglu__decode_kernel'

import os
PAD = int(os.environ.get('PAD','128'))
OS  = 2048+PAD
YS  = 8192+PAD
GS  = 14336+PAD
ZS  = 7168+PAD
MNS = 12288+PAD
MGS = 4096+PAD
MUS = 8192+PAD
QS  = 16384+PAD
WS_O   = 0
WS_Y   = WS_O+256*OS
WS_GU  = WS_Y+64*YS
WS_Z   = WS_GU+32*GS
WS_MN  = WS_Z+64*ZS
WS_MG  = WS_MN+16*MNS
WS_ML  = WS_MG+32*MGS
WS_X1  = WS_ML+16384
WS_ST  = WS_X1+8192
WS_CP  = WS_ST+2048
WS_TS  = WS_CP+2048
WS_Q   = WS_TS+16384
FLATSH = -(-(WS_Q+16*QS)//(256*128))*128
WS_MU  = 256*FLATSH
WS_H   = WS_MU+16*MUS
WS_SA  = WS_H+8192
WS_END = WS_SA+1024
WS_STAMP = 0x400000
RING = 0x8000
L_RED  = 0x20000
L_AX   = 0x22400; XSTR = 320
L_QOP  = 0x24000; QSTR = 272
L_ML   = 0x24900
L_ST   = 0x24A00
L_FLAG = 0x24B00
LDS_BYTES = 0x24C00
OSTR = 528
F_LAND = 0
F_CONS = 32
F_Q = 64; F_ML = 68; F_O = 72; F_AUX = 76; F_V = 80; F_F = 84; F_P = 88; F_M = 92; F_P2 = 96; F_C = 100; F_P3 = 104; F_L = 108
P_X,P_K,P_V,P_WQ,P_WO,P_BX,P_W1,P_W3,P_W2,P_C,P_WM,P_OUT,P_DBG,P_WS = [4+2*i for i in range(14)]
LOG2E = 0x3fb8aa3b
SCALE = 0x3db504f3

class Cfg:
    D=2; D0=4
    N=4
    NV=4
    deep=16
    vsig=1
    sleep_ml=32
    pol='nt'
    stamps=False
    round_s=True
    round_ln=True
    sleep_head=8
    sleep_tail=1
    order='E'
    qgate=24
    ack='1111'
    dly='0,8,52,3,93'
    tstamps=True
    NL2=0
    cnt=True
    ool=True
    repf=0
    post=False
    local=True
    dlyloc=2; dlyz=85
    early=0
    dlyl=0
    h1gap=4
    h1pipe=0
    direct=True
    mgate=0
    tlb=0
    help=0
    helpn=2; helppol='nt'
    obar=True
    h1nan=True
    sa0=True
    sclear=0
    vwall=0
    warm=False
    safter=3
    odd=0.7; c3=0.0035; qx=0.6; lx=0.8; bx=1.0
    hgate=19
    hafter=3
    bo_n=16; bo_s=0
    cpol='sc1'
    kill=''
    lsleep=0
    prio2=2
    sprio=0
    ustamps=True
    defer=''
    round_ln2=False
    fine=False
    pairs=True
    NL=6; NH=8
    adapt=0
    rank=13
    lightdeep=False
    qafter=5
    NK=4; kdeep=16
    sleep_q=12
    hold=False
    prio=2
    gpoll=8192
    lpoll=1<<17

from gen1 import lds_signal, stamp, srd, allreduce64, unpack, rnd_vec, rnd1
import gen1
gen1.WS_STAMP = WS_STAMP
from gen1 import stamps_out, lds_spin, gather
SWS=44

def roles(e, part=3):
    if part&1:
        e('''
        s_waitcnt lgkmcnt(0)
        s_mov_b32 s34, s92
        s_mov_b32 s35, s95
        s_lshr_b32 s15, s93, 25
        ''')
    if part&2:
        e('''
        s_and_b32 s37, s2, 15
        s_lshr_b32 s38, s2, 4
        s_and_b32 s99, s93, 255
        s_cmp_ge_u32 s99, 64
        s_cselect_b32 s33, 1, 0
        s_cmp_ge_u32 s99, 192
        s_cselect_b32 s33, 2, s33
        s_bfe_u32 s36, s93, 0x20008
        s_bfe_u32 s39, s93, 0x6000a
        s_bfe_u32 s101, s93, 0x80010
        s_bfe_u32 s0, s93, 0x10018
        s_and_b32 s63, s94, 255
        s_bfe_u32 s1, s94, 0x80008
        s_lshr_b32 s14, s94, 16
        ''')

UNITS=[]
GROUPS=['J','WO','X0','X1','X2','X3']
def set_order(order, defer=''):
    U=lambda k,n: [(k,i) for i in range(n)]
    W=U('WO',2)+U('X0',2)+U('X1',2)+([] if '2' in defer else U('X2',2))+U('X3',2)
    K=U('K',16)
    if order=='A': UNITS[:] = U('J',4)+W+K+U('V',16)
    elif order=='E': UNITS[:] = U('J',4)+W[:2]+W[6:]+W[2:6]+K+U('V',16)
    elif order=='H': UNITS[:] = U('J',4)+W[:2]+W[8:]+W[2:6]+K+W[6:8]+U('V',16)
    elif order=='F': UNITS[:] = U('J',4)+W[6:]+W[:6]+K+U('V',16)
    elif order=='G': UNITS[:] = U('J',4)+W[:2]+W[6:]+K[:2]+W[2:6]+K[2:]+U('V',16)
    elif order=='C':
        mix=[]
        for i in range(8): mix+=[W[i],K[i]]
        UNITS[:] = U('J',4)+mix+W[8:]+K[8:]+U('V',16)
    elif order=='D':
        mix=[]
        for i in range(8): mix+=[K[i],W[i]]
        UNITS[:] = U('J',4)+mix+W[8:]+K[8:]+U('V',16)
def upos(kind,i): return UNITS.index((kind,i))
def slot(kind,i): return (upos(kind,i)%8)*4096

def stream(e, cfg):
    D=cfg.D; pol=cfg.pol
    vL=1; vK=2; vV=6; vW=8; vSw=10; vR=12; vFl=13; vOne=14; vT=15
    vKR=16; vVR=20; vX=28; vRJ=45
    Q=48; S=64; ST=128; P=128; O=160; VF=192
    SK,SV,SW = 44,48,52
    e.c('================= stream waves =================')
    e('L_stream:')
    if cfg.sprio: e(f's_setprio {cfg.sprio}')
    e(f'''
    v_lshrrev_b32 v{vR}, 4, v{vL}
    v_and_b32 v{vX+1}, 15, v{vL}
    v_lshlrev_b32 v{vX+6}, 1, v{vR}
    v_xor_b32 v{vX+6}, v{vX+6}, v{vX+1}
    v_lshlrev_b32 v{vSw}, 4, v{vX+6}
    v_xor_b32 v{vSw+1}, 128, v{vSw}
    v_and_b32 v{vRJ}, 2, v{vR}
    v_lshlrev_b32 v{vRJ}, 1, v{vRJ}
    v_and_or_b32 v{vRJ}, v{vR}, 1, v{vRJ}
    s_lshl_b32 s32, s3, 15
    s_mov_b32 s{SW+3}, 0x20000
    s_mov_b32 s96, 0
    s_lshl_b32 s43, s3, 6
    ''')
    roles(e,1)
    stamp(e,cfg,0)
    e('''
    s_cmp_eq_u32 s15, 0
    s_cbranch_scc1 L_go
    s_barrier
    L_go:
    ''')
    st = dict(issued=0, landed=-1, signaled=set())
    def pairwait(n,k):
        if not cfg.pairs or n<cfg.D0: return
        tot=4*n+k
        known=4*(st['landed']+1)
        if tot-known>cfg.NH:
            e(f's_waitcnt vmcnt({cfg.NH})'); note_landed((tot-cfg.NH)//4-1)
        NL = cfg.NL2 if (cfg.adapt==3 and n>upos('K',15)) else cfg.NL
        if tot-known>NL and NL<cfg.NH:
            lb=e.label('Lw')
            e(f's_cmp_lg_u32 s96, 0\ns_cbranch_scc1 {lb}\ns_waitcnt vmcnt({NL})\n{lb}:')
    def dma(voff, srdreg, soff, i):
        e(f'buffer_load_dwordx4 v{voff}, s[{srdreg}:{srdreg+3}], {soff} offen offset:{i*1024} {pol} lds')
    def tile_setup(kind, t):
        def ptr(a,b): e(f's_cselect_b32 s{SW}, s{a}, s{b}\ns_cselect_b32 s{SW+1}, s{a+1}, s{b+1}')
        if kind=='J':
            if t==0:
                e('s_cmp_eq_u32 s35, 8192'); ptr(P_WQ,P_WM)
                e(f'''s_mov_b32 s{SW+2}, {1024*6144*2}
                s_cselect_b32 s{SW+2}, {1024*4096*2}, s{SW+2}
                s_mov_b32 s56, s35
                s_mul_i32 s58, s43, s35
                s_add_u32 s58, s58, s34
                s_mov_b32 s57, s58''')
            else: e('s_lshl_b32 s40, s35, 1\ns_add_u32 s57, s58, s40')
        elif kind=='WO':
            e(f'''s_mov_b32 s{SW}, s{P_WO}
            s_mov_b32 s{SW+1}, s{P_WO+1}
            s_mov_b32 s{SW+2}, {4096*1024*2}
            s_mov_b32 s56, 2048
            s_and_b32 s40, s14, 7
            s_lshl_b32 s57, s40, 18
            s_lshl_b32 s40, s3, 21
            s_add_u32 s57, s57, s40
            s_bfe_u32 s40, s14, 0x20003
            s_lshl_b32 s40, s40, 16
            s_add_u32 s57, s57, s40
            s_lshr_b32 s40, s14, 5
            s_lshl_b32 s40, s40, 8
            s_add_u32 s57, s57, s40''')
        elif kind in ('X0','X1'):
            t = int(kind[1])
            if t==0:
                e(f'''s_and_b32 s40, s63, 7
                s_lshl_b32 s40, s40, 2
                s_add_u32 s40, s40, s3
                s_mul_i32 s59, s40, {32*7168}
                s_lshr_b32 s40, s63, 3
                s_lshl_b32 s40, s40, 8
                s_add_u32 s59, s59, s40''')
            e(f'''s_sub_u32 s40, s101, s39
            s_lshl_b32 s40, s40, 8
            s_add_u32 s40, s40, s58
            s_add_u32 s40, s40, {t*2*12288}
            s_cmp_lt_u32 s99, 224''')
            ptr(P_W3 if t else P_W1, P_WM)
            e(f'''s_mov_b32 s{SW+2}, {1024*6144*2}
            s_cselect_b32 s{SW+2}, {0 if str(t) in cfg.defer else 1024*3584*2}, s{SW+2}
            s_mov_b32 s56, 12288
            s_cselect_b32 s56, 7168, s56
            s_cselect_b32 s57, s59, s40''')
        elif kind=='X2':
            e(f'''s_lshr_b32 s40, s1, 3
            s_lshl_b32 s57, s40, 18
            s_lshl_b32 s40, s3, 16
            s_add_u32 s57, s57, s40
            s_and_b32 s40, s1, 7
            s_lshl_b32 s40, s40, 8
            s_add_u32 s57, s57, s40
            s_mov_b32 s{SW}, s{P_W2}
            s_mov_b32 s{SW+1}, s{P_W2+1}
            s_cmp_lt_u32 s99, 224
            s_cselect_b32 s{SW+2}, {1024*3584*2}, 0
            s_mov_b32 s56, 2048''')
            if cfg.post: e(f's_cmp_eq_u32 s97, 0\ns_cselect_b32 s{SW+2}, s{SW+2}, 0')
        elif kind=='X3':
            e(f'''s_and_b32 s40, s101, 7
            s_lshl_b32 s40, s40, 2
            s_add_u32 s40, s40, s3
            s_mul_i32 s57, s40, {32*12288}
            s_lshr_b32 s40, s101, 3
            s_lshl_b32 s40, s40, 8
            s_add_u32 s57, s57, s40
            s_add_u32 s57, s57, {40*256}
            s_mov_b32 s{SW}, s{P_WM}
            s_mov_b32 s{SW+1}, s{P_WM+1}
            s_cmp_lg_u32 s0, 0
            s_cselect_b32 s{SW+2}, {1024*6144*2}, 0
            s_mov_b32 s56, 12288''')
        if kind=='J': e(f'v_mov_b32 v{vX+8}, v{vRJ}\ns_mov_b32 s41, 1')
        elif kind in ('WO','X2','X3'): e(f'v_mov_b32 v{vX+8}, v{vR}\ns_mov_b32 s41, 0')
        else: e(f's_cselect_b64 vcc, 0, -1\ns_cselect_b32 s41, 0, 1\nv_cndmask_b32 v{vX+8}, v{vR}, v{vRJ}, vcc')
        e(f'''v_mad_u32_u24 v{vW}, v{vX+8}, s56, v{vSw}
        v_mad_u32_u24 v{vW+1}, v{vX+8}, s56, v{vSw+1}
        s_lshl_b32 s61, s56, s41
        s_lshl_b32 s60, s61, 3
        s_sub_u32 s60, s60, 1024
        s_lshl_b32 s61, s61, 2''')
    def emit_unit(n):
        kind,i = UNITS[n]
        if kind in GROUPS:
            if (i&1)==0: tile_setup(kind,i>>1); e('s_mov_b32 s41, s57')
            else: e('s_add_u32 s41, s57, s61')
            e(f's_add_u32 m0, s32, {(n%8)*4096}')
            for k in range(4):
                if k%2==0: pairwait(n,k)
                dma(vW+(k&1), SW, 's41', k)
                if k<3: e('s_add_u32 s41, s41, s60')
        else:
            e(f's_add_u32 s41, s62, {i*16384}\ns_add_u32 m0, s32, {(n%8)*4096}')
            for k in range(4):
                if k%2==0: pairwait(n,k)
                dma((vK+k) if kind=='K' else (vV+(k&1)), SK if kind=='K' else SV, 's41', k)
    def note_landed(n):
        st['landed']=max(st['landed'],n)
        for gi,g in enumerate(GROUPS):
            if (g,0) not in UNITS: continue
            last=max(k for k,u in enumerate(UNITS) if u[0]==g)
            if last<=st['landed'] and g not in st['signaled']:
                st['signaled'].add(g); lds_signal(e, F_LAND+4*gi, vFl, vOne)
                if g=='J': stamp(e,cfg,6)
    consumed=set()
    def issue(n):
        assert n==st['issued']
        if cfg.pairs and n==5: wait_landed(3)
        if n>=cfg.D0 and not cfg.pairs:
            N = cfg.NV if n>=upos('V',0)+cfg.deep else (cfg.NK if upos('K',min(cfg.kdeep,15))+(cfg.kdeep>15)<=n<upos('V',0) else cfg.N)
            full = n-1-(N+3)//4
            if st['landed']<n-1-N//4:
                e(f's_waitcnt vmcnt({N})'); note_landed(full)
        if n>=8 and UNITS[n-8][0]=='K' and UNITS[n-8][1]<8:
            stage(UNITS[n-8][1]); e('s_waitcnt lgkmcnt(0)')
        if n>=8:
            g=UNITS[n-8][0]
            if g in GROUPS and g not in consumed:
                last=max(k for k,u in enumerate(UNITS) if u[0]==g)
                if g not in st['signaled']: wait_landed(last)
                consumed.add(g); lds_spin(e,cfg,F_CONS+4*GROUPS.index(g),4,vFl,vT)
        if cfg.vwall and n==upos('V',cfg.vwall): lds_spin(e,cfg,F_F,1,vFl,vT)
        if cfg.stamps and cfg.ustamps: e(f's_memrealtime s[82:83]\ns_waitcnt lgkmcnt(0)\nv_writelane_b32 v47, s82, {n}')
        emit_unit(n); st['issued']=n+1
        if cfg.qgate and n==cfg.qgate: lds_signal(e,F_P,vFl,vOne)
        if cfg.hgate and n==cfg.hgate: lds_signal(e,F_P2,vFl,vOne)
        if cfg.mgate and n==cfg.mgate: lds_signal(e,F_P3,vFl,vOne)
        if cfg.help and n==upos('V',cfg.help): lds_signal(e,F_C,vFl,vOne)
    def stage(u):
        wait_landed(upos('K',u))
        for k in range(4):
            r=ST+(u%8)*16+4*k
            e(f'ds_read_b128 v[{r}:{r+3}], v{vKR+k} offset:{slot("K",u)}')
    def wait_landed(n):
        if st['landed']>=n: return
        e(f's_waitcnt vmcnt({4*(st["issued"]-1-n)})'); note_landed(n)
    if cfg.sclear:
        q4=FLATSH//4; nf=q4//1024; rem=q4%1024
        srd(e,SK,P_WS,WS_END)
        e(f'''
        v_mov_b32 v40, -1
        v_mov_b32 v41, -1
        v_mov_b32 v42, -1
        v_mov_b32 v43, -1
        v_lshlrev_b32 v39, 4, v{vL}
        s_mul_i32 s40, s2, {FLATSH}
        s_mul_i32 s41, s3, {q4}
        s_add_u32 s41, s40, s41
        ''')
        if cfg.sclear==2: issue(0)
        if cfg.sclear==2: e(f's_mul_i32 s40, s2, {FLATSH}\ns_mul_i32 s41, s3, {q4}\ns_add_u32 s41, s40, s41')
        for i in range(nf): e(f'buffer_store_dwordx4 v[40:43], v39, s[{SK}:{SK+3}], s41 offen offset:{1024*i} {cfg.cpol}')
        if rem:
            e(f'''v_cmp_gt_u32 vcc, {rem//16}, v{vL}
            s_and_b64 exec, exec, vcc
            buffer_store_dwordx4 v[40:43], v39, s[{SK}:{SK+3}], s41 offen offset:{1024*nf} {cfg.cpol}
            s_mov_b64 exec, -1''')
    for n in range(st['issued'],cfg.D0):
        issue(n)
        if n==0: roles(e,2)
    if cfg.lightdeep: e('s_cmp_ge_u32 s99, 224\ns_cselect_b32 s96, 1, 0')
    srd(e,SK,P_K,0x4000000); srd(e,SV,P_V,0x4000000)
    e(f'''
    s_lshl_b32 s62, s37, 22
    s_lshl_b32 s40, s38, 18
    s_add_u32 s62, s62, s40
    s_lshl_b32 s40, s3, 12
    s_add_u32 s62, s62, s40
    v_xor_b32 v{vX+6}, v{vX+1}, v{vR}
    v_lshlrev_b32 v{vX+7}, 8, v{vR}
    v_lshl_add_u32 v{vK}, v{vX+6}, 4, v{vX+7}
    v_xor_b32 v{vK+1}, 64, v{vK}
    v_xor_b32 v{vK+2}, 128, v{vK}
    v_xor_b32 v{vK+3}, 192, v{vK}
    v_add_u32 v{vV}, v{vSw}, v{vX+7}
    v_add_u32 v{vV+1}, v{vSw+1}, v{vX+7}
    v_lshlrev_b32 v{vX+7}, 8, v{vX+1}
    v_lshl_add_u32 v{vKR}, v{vX+6}, 4, v{vX+7}
    v_add_u32 v{vKR}, s32, v{vKR}
    v_xor_b32 v{vKR+1}, 64, v{vKR}
    v_xor_b32 v{vKR+2}, 128, v{vKR}
    v_xor_b32 v{vKR+3}, 192, v{vKR}
    v_lshrrev_b32 v{vX+2}, 2, v{vL}
    v_and_b32 v{vX+5}, 3, v{vL}
    v_lshlrev_b32 v{vX+6}, 8, v{vX+2}
    v_and_b32 v{vX+7}, 7, v{vX+2}
    v_lshl_add_u32 v{vX+6}, v{vX+7}, 5, v{vX+6}
    v_lshl_add_u32 v{vX+6}, v{vX+5}, 3, v{vX+6}
    v_add_u32 v{vVR}, s32, v{vX+6}
    ''')
    for ct in range(1,8): e(f'v_xor_b32 v{vVR+ct}, {ct<<5}, v{vVR}')
    e(f'''
    v_mov_b32 v{vFl}, {L_FLAG}
    v_mov_b32 v{vOne}, 1
    s_cmp_lg_u32 s15, 0
    s_cbranch_scc1 L_go2
    s_barrier
    L_go2:
    ''')
    V0=upos('V',0); NX=upos('K',15)+1
    for n in range(cfg.D0, NX): issue(n)
    def qk(u):
        for k in range(4):
            r=ST+(u%8)*16+4*k
            e(f'v_mfma_f32_16x16x32_bf16 v[{S+4*u}:{S+4*u+3}], v[{r}:{r+3}], v[{Q+4*k}:{Q+4*k+3}], '+('0' if k==0 else f'v[{S+4*u}:{S+4*u+3}]'))
    vM=vX; vLs=vX+1; t0=vX+2
    def rnd(u):
        for h in range(2):
            a0=S+4*u+2*h; a1=a0+1; t=t0+h
            if cfg.round_s:
                e(f'''v_cvt_pk_bf16_f32 v{t}, v{a0}, v{a1}
                v_lshlrev_b32 v{a0}, 16, v{t}
                v_and_b32 v{a1}, 0xffff0000, v{t}''')
            e(f'v_mul_f32 v{a0}, s42, v{a0}\nv_mul_f32 v{a1}, s42, v{a1}')
            if cfg.round_s:
                e(f'''v_cvt_pk_bf16_f32 v{t}, v{a0}, v{a1}
                v_lshlrev_b32 v{a0}, 16, v{t}
                v_and_b32 v{a1}, 0xffff0000, v{t}''')
            if u==0 and h==0: e(f'v_max_f32 v{vM}, v{a0}, v{a1}')
            else: e(f'v_max3_f32 v{vM}, v{vM}, v{a0}, v{a1}')
    stamp(e,cfg,1)
    e.c('---- all of K is on chip: wait for q, then scores and softmax')
    lds_spin(e,cfg,F_Q,4,vFl,vT)
    if cfg.adapt==3: e(f's_cmp_le_u32 s41, {cfg.rank}\ns_cselect_b32 s96, 1, 0')
    stamp(e,cfg,2)
    e(f'''
    v_and_b32 v{vX+6}, 7, v{vL}
    v_mul_u32_u24 v{vX+6}, {QSTR}, v{vX+6}
    v_lshl_add_u32 v{vX+6}, v{vR}, 4, v{vX+6}
    v_add_u32 v{vX+6}, {L_QOP}, v{vX+6}
    s_mov_b32 s42, {SCALE:#x}
    s_mov_b32 s43, {LOG2E:#x}
    ''')
    for k in range(4): e(f'ds_read_b128 v[{Q+4*k}:{Q+4*k+3}], v{vX+6} offset:{64*k}')
    if cfg.adapt==1: e(f'ds_read_b32 v{vT}, v{vFl} offset:{F_M}')
    e('s_waitcnt lgkmcnt(0)')
    if cfg.adapt==1: e(f'v_readfirstlane_b32 s96, v{vT}')
    if cfg.adapt not in (1,3): e('s_mov_b32 s96, 0')
    if cfg.post: e(f'ds_read_b32 v{vT}, v{vFl} offset:{F_M}\ns_waitcnt lgkmcnt(0)\nv_readfirstlane_b32 s97, v{vT}')
    for u in range(D):
        qk(u); stage(8+u); e('s_waitcnt lgkmcnt(0)'); issue(NX+u)
    for u in range(D,8):
        qk(u); stage(8+u)
    e('s_waitcnt lgkmcnt(0)')
    for u in range(8,16): qk(u)
    nxt=[NX+D]
    def more():
        if nxt[0]<V0+8:
            if cfg.adapt==2 and nxt[0]>=V0+7:
                e(f'ds_read_b32 v{vT}, v{vFl} offset:{F_M}\ns_waitcnt lgkmcnt(0)\nv_readfirstlane_b32 s96, v{vT}')
            issue(nxt[0]); nxt[0]+=1
    more()
    for u in range(16):
        rnd(u)
        if u in (5,10,15): more()
    e(f'''
    v_mov_b32 v{t0}, v{vM}
    v_permlane32_swap_b32 v{t0}, v{vM}
    v_max_f32 v{vM}, v{vM}, v{t0}
    v_mov_b32 v{t0}, v{vM}
    v_permlane16_swap_b32 v{t0}, v{vM}
    v_max_f32 v{vM}, v{vM}, v{t0}
    v_mul_f32 v{vM}, s43, v{vM}
    ''')
    for u in range(16):
        for r in range(4): e(f'v_fma_f32 v{S+4*u+r}, v{S+4*u+r}, s43, -v{vM}')
        for r in range(4): e(f'v_exp_f32 v{S+4*u+r}, v{S+4*u+r}')
        if u==0: e(f'v_add_f32 v{vLs}, v{S}, v{S+1}')
        else: e(f'v_add_f32 v{vLs}, v{vLs}, v{S+4*u}\nv_add_f32 v{vLs}, v{vLs}, v{S+4*u+1}')
        e(f'''v_cvt_pk_bf16_f32 v{P+2*u}, v{S+4*u}, v{S+4*u+1}
        v_add_f32 v{vLs}, v{vLs}, v{S+4*u+2}
        v_add_f32 v{vLs}, v{vLs}, v{S+4*u+3}
        v_cvt_pk_bf16_f32 v{P+2*u+1}, v{S+4*u+2}, v{S+4*u+3}''')
        if u in (7,): more()
    e(f'''
    v_mov_b32 v{t0}, v{vLs}
    v_permlane32_swap_b32 v{t0}, v{vLs}
    v_add_f32 v{vLs}, v{vLs}, v{t0}
    v_mov_b32 v{t0}, v{vLs}
    v_permlane16_swap_b32 v{t0}, v{vLs}
    v_add_f32 v{vLs}, v{vLs}, v{t0}
    s_lshl_b32 s40, s3, 6
    s_add_u32 s40, s40, {L_ML}
    v_lshl_add_u32 v{t0}, v{vL}, 3, s40
    s_mov_b64 exec, 0xff
    ds_write_b64 v{t0}, v[{vM}:{vM+1}]
    s_waitcnt lgkmcnt(0)
    s_mov_b64 exec, -1
    ''')
    lds_signal(e,F_ML,vFl,vOne)
    stamp(e,cfg,3)
    while nxt[0]<V0+8: more()
    e.c('---- P.V')
    for j in range(8):
        wait_landed(V0+2*j+1)
        if j==7: stamp(e,cfg,4)
        for ct in range(8):
            for hf in range(2):
                r=VF+4*ct+2*hf
                e(f'ds_read_b64_tr_b16 v[{r}:{r+1}], v{vVR+ct} offset:{slot("V",2*j+hf)}')
        for ct in range(8):
            e(f's_waitcnt lgkmcnt({14-2*ct})')
            e(f'v_mfma_f32_16x16x32_bf16 v[{O+4*ct}:{O+4*ct+3}], v[{VF+4*ct}:{VF+4*ct+3}], v[{P+4*j}:{P+4*j+3}], '+('0' if j==0 else f'v[{O+4*ct}:{O+4*ct+3}]'))
        if cfg.adapt==2 and j<3:
            e(f'ds_read_b32 v{vT}, v{vFl} offset:{F_M}\ns_waitcnt lgkmcnt(0)\nv_readfirstlane_b32 s96, v{vT}')
        for k in range(2):
            if V0+2*j+8+k < len(UNITS): issue(V0+2*j+8+k)
        if j==cfg.vsig: lds_signal(e,F_V,vFl,vOne)
        if j==6:
            e(f'''
            v_and_b32 v{t0}, 15, v{vL}
            v_mul_u32_u24 v{t0}, {OSTR}, v{t0}
            v_lshl_add_u32 v{t0}, v{vR}, 4, v{t0}
            v_add_u32 v{t0}, s32, v{t0}
            v_add_u32 v{t0}, {(slot('V',15)+4096)%RING}, v{t0}
            s_mov_b32 s40, 0x00ff00ff
            s_mov_b32 s41, 0x00ff00ff
            ''')
    e('s_mov_b64 exec, s[40:41]')
    for ct in range(8): e(f'ds_write_b128 v{t0}, v[{O+4*ct}:{O+4*ct+3}] offset:{64*ct}')
    e('s_waitcnt lgkmcnt(0)\ns_mov_b64 exec, -1')
    if cfg.obar: e('s_barrier')
    else: lds_signal(e,F_O,vFl,vOne)
    stamp(e,cfg,5)
    if cfg.help:
        lh=e.label('Lnohelp')
        srd(e,SW,P_WS,WS_END)
        e(f'''
        s_lshl_b32 s40, s37, 7
        s_add_u32 s40, s40, {WS_CP}
        v_and_b32 v{vX}, 15, v{vL}
        v_lshlrev_b32 v{vX}, 2, v{vX}
        buffer_load_dword v{vX+1}, v{vX}, s[{SW}:{SW+3}], s40 offen sc1
        v_lshlrev_b32 v{vX}, 4, v{vL}
        s_waitcnt vmcnt(0)
        v_cmp_eq_u32 vcc, -1, v{vX+1}
        s_lshr_b32 s40, vcc_lo, s38
        s_and_b32 s40, s40, 0xfffe
        s_cbranch_scc0 {lh}
        s_ff1_i32_b32 s40, s40
        s_add_u32 s40, s40, s38
        s_and_b32 s40, s40, 15
        s_sub_u32 s40, s40, s38
        s_lshl_b32 s40, s40, 18
        s_add_u32 s41, s62, s40
        ''')
        for u in range(15,15-cfg.helpn,-1):
            e(f's_add_u32 s40, s41, {u*16384}')
            for k in range(4): e(f'buffer_load_dwordx4 v[{64+16*(15-u)+4*k}:{67+16*(15-u)+4*k}], v{vX}, s[{SV}:{SV+3}], s40 offen offset:{1024*k} {cfg.helppol}')
        e(f's_waitcnt vmcnt(0)\n{lh}:')
    stamps_out(e,cfg,8,vX+4)
    if cfg.stamps:
        e(f'''s_lshl_b32 s40, s2, 2
        s_add_u32 s40, s40, s3
        s_lshl_b32 s40, s40, 8
        s_add_u32 s40, s40, {WS_STAMP+0x40000}
        v_lshl_add_u32 v46, v{vL}, 2, s40
        global_store_dword v46, v47, s[{P_WS}:{P_WS+1}]''')
    e('s_waitcnt lgkmcnt(0)\ns_endpgm')

def aux(e, cfg):
    global gather
    real_gather = gen1.gather
    phase = ['h']
    def gather(e, cfg, loads, vchk, sleep, **kw):
        if phase[0] in cfg.kill: e('s_mov_b32 s41, 1'); return
        real_gather(e, cfg, loads, vchk, sleep, **kw)
    vL=1; vFl=2; vOne=3; vT=4; vRow=5; vRd=6; vRr=7; vA=8
    X2=64; X0=96; X1=128; WO=160; WJ=192
    vHq=62; vRo=63; RN=64; RX=66
    OOFF=(slot('V',15)+4096)%RING
    e.c('================= aux waves =================')
    e('L_aux:')
    e(f'''
    s_setprio {cfg.prio}
    s_sub_u32 s3, s3, 4
    s_lshl_b32 s32, s3, 15
    v_lshlrev_b32 v{vRow}, 4, v{vL}
    v_mov_b32 v{vFl}, {L_FLAG}
    v_mov_b32 v{vOne}, 1
    v_mov_b32 v16, 0
    v_lshl_add_u32 v{vA+1}, v{vL}, 2, v{vFl}
    ds_write_b32 v{vA+1}, v16
    v_mov_b32 v32, -1
    v_mov_b32 v33, -1
    v_mov_b32 v34, -1
    v_mov_b32 v35, -1
    v_bfe_u32 v{vA+2}, v{vL}, 2, 2
    v_lshrrev_b32 v{vA+3}, 4, v{vL}
    v_and_b32 v{vA+6}, 3, v{vL}
    v_lshl_add_u32 v{vA+3}, v{vA+3}, 2, v{vA+6}
    v_lshlrev_b32 v{vA+2}, 11, v{vA+2}
    v_lshl_add_u32 v{vA}, v{vA+3}, 3, v{vA+2}
    ''')
    roles(e,3)
    e(f'''
    s_lshl_b32 s40, s36, 9
    s_lshl_b32 s41, s3, 7
    s_add_u32 s40, s40, s41
    v_add_u32 v{vA}, s40, v{vA}
    s_lshl_b32 s40, s3, 11
    v_add_u32 v{vA+1}, s40, v{vRow}
    v_lshl_add_u32 v{vA+5}, v{vA+3}, 2, v{vA+2}
    s_and_b32 s40, s101, 7
    s_lshl_b32 s40, s40, 8
    s_lshl_b32 s41, s3, 6
    s_add_u32 s40, s40, s41
    v_add_u32 v{vA+5}, s40, v{vA+5}
    s_waitcnt lgkmcnt(0)
    ''')
    stamp(e,cfg,0)
    if cfg.tlb:
        e(f'''
        s_lshl_b32 s40, s37, 22
        s_lshl_b32 s41, s38, 18
        s_add_u32 s40, s40, s41
        s_load_dword s51, s[{P_K}:{P_K+1}], s40
        s_load_dword s52, s[{P_V}:{P_V+1}], s40
        s_and_b32 s40, s14, 7
        s_lshl_b32 s40, s40, 18
        s_lshl_b32 s41, s3, 21
        s_add_u32 s40, s40, s41
        s_load_dword s53, s[{P_WO}:{P_WO+1}], s40
        s_and_b32 s40, s63, 7
        s_lshl_b32 s40, s40, 2
        s_add_u32 s40, s40, s3
        s_mul_i32 s40, s40, {32*7168}
        s_load_dword s54, s[{P_W1}:{P_W1+1}], s40
        s_load_dword s55, s[{P_W3}:{P_W3+1}], s40
        s_lshr_b32 s40, s1, 3
        s_lshl_b32 s40, s40, 18
        s_load_dword s56, s[{P_W2}:{P_W2+1}], s40
        s_load_dword s57, s[{P_OUT}:{P_OUT+1}], 0
        s_lshl_b32 s40, s3, 19
        s_load_dword s58, s[{P_WS}:{P_WS+1}], s40
        ''')
    srd(e,SWS,P_WS,WS_END)
    lh=e.label('Lnohead')
    e(f'''
    s_cmp_eq_u32 s15, 0
    s_cbranch_scc1 {lh}
    s_cmp_lg_u32 s3, 3
    s_cbranch_scc1 {lh}_b
    s_sub_u32 s41, s15, 32
    s_lshr_b32 s40, s41, 3
    s_mul_i32 s40, s40, {MUS}
    s_and_b32 s42, s41, 7
    s_lshl_b32 s42, s42, 9
    s_add_u32 s40, s40, s42
    s_add_u32 s40, s40, {WS_MU}
    s_add_u32 s42, s40, {8*MUS}
    s_add_u32 s43, s40, 4096
    s_add_u32 s48, s42, 4096
    v_lshrrev_b32 v{vA+4}, 5, v{vL}
    v_mul_u32_u24 v{vA+4}, {4*MUS}, v{vA+4}
    v_and_b32 v{vA+6}, 31, v{vL}
    v_lshl_add_u32 v{vA+4}, v{vA+6}, 4, v{vA+4}
    buffer_store_dwordx4 v[32:35], v{vA+4}, s[{SWS}:{SWS+3}], s40 offen sc1
    buffer_store_dwordx4 v[32:35], v{vA+4}, s[{SWS}:{SWS+3}], s42 offen sc1
    buffer_store_dwordx4 v[32:35], v{vA+4}, s[{SWS}:{SWS+3}], s43 offen sc1
    buffer_store_dwordx4 v[32:35], v{vA+4}, s[{SWS}:{SWS+3}], s48 offen sc1
    s_cmp_lt_u32 s15, 63
    s_cbranch_scc1 {lh}_c
    s_mov_b32 s40, {WS_SA}
    buffer_store_dwordx4 v[32:35], v{vRow}, s[{SWS}:{SWS+3}], s40 offen sc1
    {lh}_c:
    s_lshl_b32 s41, s41, 2
    v_mov_b32 v{vA+4}, s41
    {'s_waitcnt vmcnt(0)' if cfg.hold else 's_barrier'}
    {'' if cfg.hold else 's_waitcnt vmcnt(0)'}
    s_mov_b64 exec, 1
    global_store_dword v{vA+4}, v{vOne}, s[{P_DBG}:{P_DBG+1}] sc1
    s_mov_b64 exec, -1
    {'' if cfg.hold else 's_branch '+lh}
    {lh}_b:
    s_barrier
    {lh}:
    v_mov_b32 v{vHq}, v{vA}
    v_and_b32 v{vA+2}, 15, v{vL}
    v_lshlrev_b32 v{vRo}, 3, v{vA+2}
    v_lshrrev_b32 v{vA+2}, 5, v{vL}
    v_lshl_add_u32 v{vRo}, v{vA+2}, 2, v{vRo}
    s_cmp_eq_u32 s33, 1
    s_cbranch_scc1 {'L_qx' if cfg.direct else 'L_nox'}
    global_load_dwordx2 v[16:17], v{vA}, s[{P_C}:{P_C+1}]
    global_load_dword v18, v{vA+5}, s[{P_C}:{P_C+1}]
    s_cmp_lt_u32 s99, 224
    s_cbranch_scc1 L_nox
    s_cmp_ge_u32 s3, 2
    s_cbranch_scc1 L_nox
    s_sub_u32 s98, s99, 224
    s_lshl_b32 s98, s98, 1
    s_add_u32 s98, s98, s3
    s_lshr_b32 s40, s98, 4
    s_lshl_b32 s40, s40, 11
    v_add_u32 v{vA+1}, s40, v{vRow}
    s_lshl_b32 s40, s98, 7
    v_add_u32 v{vA+2}, s40, v{vRo}
    global_load_dwordx4 v[24:27], v{vA+1}, s[{P_X}:{P_X+1}]
    global_load_dwordx4 v[28:31], v{vA+1}, s[{P_X}:{P_X+1}] offset:1024
    global_load_dword v19, v{vA+2}, s[{P_X}:{P_X+1}]
    ''')
    if cfg.direct:
        e(f'''
        s_branch L_nox
        L_qx:
        s_lshl_b32 s40, s3, 11
        v_add_u32 v{vA+1}, s40, v{vRow}
        global_load_dwordx2 v[16:17], v{vA}, s[{P_X}:{P_X+1}]
        global_load_dwordx4 v[24:27], v{vA+1}, s[{P_X}:{P_X+1}]
        global_load_dwordx4 v[28:31], v{vA+1}, s[{P_X}:{P_X+1}] offset:1024
        ''')
    e(f'''
    L_nox:
    s_cmp_lg_u32 s15, 0
    s_cbranch_scc1 L_nobar
    s_barrier
    L_nobar:
    s_mov_b32 s50, 0
    s_mul_i32 s40, s3, 2304
    s_add_u32 s40, s40, {L_RED}
    v_lshrrev_b32 v{vA+2}, 4, v{vL}
    v_mul_u32_u24 v{vRd}, 576, v{vA+2}
    v_and_b32 v{vA+2}, 15, v{vL}
    v_lshl_add_u32 v{vRd}, v{vA+2}, 2, v{vRd}
    v_add_u32 v{vRd}, s40, v{vRd}
    s_mul_i32 s40, s3, 1152
    s_add_u32 s40, s40, {L_RED}
    v_lshrrev_b32 v{vA+2}, 5, v{vL}
    v_mul_u32_u24 v{vRr}, 576, v{vA+2}
    v_and_b32 v{vA+2}, 31, v{vL}
    v_lshl_add_u32 v{vRr}, v{vA+2}, 4, v{vRr}
    v_add_u32 v{vRr}, s40, v{vRr}
    ''')
    q4=FLATSH//4; nf=q4//1024; rem=q4%1024
    lc=e.label('Lclr'); lc2=e.label('Lclrd')
    e(f'''
    s_mul_i32 s40, s2, {FLATSH}
    s_mul_i32 s41, s3, {q4}
    s_add_u32 s41, s40, s41
    {'s_mov_b32 s46, 0' if 'c' in cfg.kill else ''}
    ''')
    if cfg.sclear: nf=0; rem=0
    for i in range(nf): e(f'buffer_store_dwordx4 v[32:35], v{vRow}, s[{SWS}:{SWS+3}], s41 offen offset:{1024*i} {cfg.cpol}')
    if rem:
        e(f'''v_cmp_gt_u32 vcc, {rem//16}, v{vL}
        s_and_b64 exec, exec, vcc
        buffer_store_dwordx4 v[32:35], v{vRow}, s[{SWS}:{SWS+3}], s41 offen offset:{1024*nf} {cfg.cpol}
        s_mov_b64 exec, -1''')
    nst=nf+(1 if rem else 0)
    lr0=if_red_early=e.label('Lnrc')
    e(f'''
    s_cmp_lt_u32 s99, 224
    s_cbranch_scc1 {lr0}
    s_cmp_ge_u32 s3, 2
    s_cbranch_scc1 {lr0}
    s_lshl_b32 s40, s98, 7
    s_add_u32 s40, s40, {WS_H}
    buffer_store_dword v32, v{vRo}, s[{SWS}:{SWS+3}], s40 offen sc1
    s_waitcnt vmcnt({nst+1})
    s_branch {lc2}
    {lr0}:
    s_waitcnt vmcnt({nst})
    {lc2}:
    ''')
    stamp(e,cfg,14)
    if 'c' in cfg.kill: e(f's_mov_b32 s46, {WS_END}')
    if 'h' in cfg.kill: e('s_mov_b32 s46, 0')
    def pub_addr(base, rs, skq, scg):
        e(f'''
        s_lshl_b32 s40, {skq}, 1
        s_add_u32 s40, s40, s3
        s_mul_i32 s40, s40, {2*rs}
        s_lshl_b32 s41, {scg}, 9
        s_add_u32 s40, s40, s41
        s_add_u32 s40, s40, {base}
        v_lshrrev_b32 v{vA}, 5, v{vL}
        v_mul_u32_u24 v{vA}, {rs}, v{vA}
        v_and_b32 v{vA+1}, 31, v{vL}
        v_lshl_add_u32 v{vA}, v{vA+1}, 4, v{vA}
        ''')
    def auxbar():
        e('s_add_u32 s50, s50, 4\ns_waitcnt lgkmcnt(0)')
        lds_signal(e,F_AUX,vFl,vOne)
        lds_spin(e,cfg,F_AUX,'s50',vFl,vT)
    def go1a():
        if 'h' in cfg.kill: return
        la=e.label('Lnogo')
        e(f'''
        v_and_b32 v61, 31, v{vL}
        v_lshlrev_b32 v61, 2, v61
        s_cmp_lg_u32 s3, 3
        s_cbranch_scc1 {la}
        global_load_dword v60, v61, s[{P_DBG}:{P_DBG+1}] sc1
        {la}:
        ''')
    def go1():
        if 'h' in cfg.kill: return
        l=e.label('Lgo'); d=e.label('Lgod'); la=e.label('Lnogo')
        e(f'''
        s_cmp_lg_u32 s3, 3
        s_cbranch_scc1 {la}
        s_mov_b32 s41, 0
        {l}:
        s_add_u32 s41, s41, 1
        s_waitcnt vmcnt(0)
        v_cmp_ne_u32 vcc, 1, v60
        s_cbranch_vccz {d}
        s_sleep {cfg.sleep_head}
        global_load_dword v60, v61, s[{P_DBG}:{P_DBG+1}] sc1
        s_cmp_lt_u32 s41, {cfg.gpoll}
        s_cbranch_scc1 {l}
        {d}:
        ''')
        stamp(e,cfg,15)
        e(f'{la}:\ns_waitcnt vmcnt(0)')
    def arrive():
        la=e.label('Lnoarr')
        e(f'''
        s_cmp_lg_u32 s3, 3
        s_cbranch_scc1 {la}
        s_and_b32 s40, s2, 7
        s_lshl_b32 s40, s40, 5
        s_lshr_b32 s41, s2, 3
        s_add_u32 s40, s40, s41
        s_lshl_b32 s40, s40, 2
        s_add_u32 s40, s40, {WS_SA}
        s_getreg_b32 s41, hwreg(HW_REG_XCC_ID, 0, 4)
        s_add_u32 s41, s41, 1
        v_mov_b32 v{vA}, 0
        v_mov_b32 v{vA+1}, s41
        s_mov_b64 exec, 1
        buffer_store_dword v{vA+1}, v{vA}, s[{SWS}:{SWS+3}], s40 offen sc1
        s_mov_b64 exec, -1
        {la}:
        ''')
    def gbar1():
        l1=e.label('Lgb1')
        e(f's_cmp_lg_u32 s3, 0\ns_cbranch_scc1 {l1}\ns_mov_b32 s40, {WS_SA}')
        gather(e,cfg,[(24,4,vRow,'s40',0)],vT,cfg.sleep_head)
        if cfg.local:
            e(f'''
            v_xor_b32 v25, v25, v24
            v_xor_b32 v26, v26, v24
            v_xor_b32 v27, v27, v24
            v_or3_b32 v25, v25, v26, v27
            v_mov_b32_dpp v26, v24 row_ror:1 row_mask:0xf bank_mask:0xf
            v_xor_b32 v26, v26, v24
            v_and_b32 v27, 7, v{vL}
            v_cmp_eq_u32 vcc, 0, v27
            v_cndmask_b32 v26, v26, 0, vcc
            v_or_b32 v25, v25, v26
            v_cmp_ne_u32 vcc, 0, v25
            s_cbranch_vccnz {l1}
            ''')
            lds_signal(e,F_L,vFl,vOne)
        e(f'{l1}:')
    def pickup(kind, dsts):
        gi=GROUPS.index(kind)
        e(f'''v_lshrrev_b32 v{vA+7}, 2, v{vL}
        v_lshlrev_b32 v{vA}, 8, v{vA+7}
        v_and_b32 v{vA+7}, 7, v{vA+7}
        v_lshl_add_u32 v{vA}, v{vA+7}, 5, v{vA}
        v_and_b32 v{vA+7}, 3, v{vL}
        v_lshl_add_u32 v{vA}, v{vA+7}, 3, v{vA}
        v_add_u32 v{vA}, s32, v{vA}''')
        for ct in range(1,8): e(f'v_xor_b32 v{vA+ct}, {ct<<5}, v{vA}')
        lds_spin(e,cfg,F_LAND+4*gi,4,vFl,vT)
        for t,W in enumerate(dsts):
            sk=None
            if isinstance(W,tuple):
                W=W[0]; sk=e.label('Lsk'); e(f's_cmp_eq_u32 s0, 0\ns_cbranch_scc1 {sk}')
            for ct in range(8):
                for hf in range(2):
                    r=W+4*ct+2*hf
                    e(f'ds_read_b64_tr_b16 v[{r}:{r+1}], v{vA+ct} offset:{slot(kind,2*t+hf)}')
            if sk: e(f'{sk}:')
        e('s_waitcnt lgkmcnt(0)')
        lds_signal(e,F_CONS+4*gi,vFl,vOne)
    def pickup_cols(kind, W, base=None):
        gi=GROUPS.index(kind)
        e(f'''v_lshrrev_b32 v{vA+7}, 2, v{vL}
        v_lshlrev_b32 v{vA}, 8, v{vA+7}
        v_and_b32 v{vA+7}, 7, v{vA+7}
        s_lshl_b32 s40, s3, 1
        v_xor_b32 v{vA+7}, s40, v{vA+7}
        v_lshl_add_u32 v{vA}, v{vA+7}, 5, v{vA}
        v_and_b32 v{vA+7}, 3, v{vL}
        v_lshl_add_u32 v{vA}, v{vA+7}, 3, v{vA}
        v_xor_b32 v{vA+1}, 32, v{vA}
        v_add_u32 v{vA+2}, 0x10000, v{vA}
        v_add_u32 v{vA+3}, 0x10000, v{vA+1}''')
        if base is None: lds_spin(e,cfg,F_LAND+4*gi,4,vFl,vT)
        for t in range(4):
            for j in range(2):
                for hf in range(2):
                    r=W+8*t+4*j+2*hf
                    e(f'ds_read_b64_tr_b16 v[{r}:{r+1}], v{vA+2*(t>>1)+j} offset:{(t&1)*RING+(slot(kind,hf) if base is None else base+4096*hf)}')
        if base is None:
            e('s_waitcnt lgkmcnt(0)')
            lds_signal(e,F_CONS+4*gi,vFl,vOne)
    def pickup_x(kind, W):
        la=e.label('Lpl'); lb=e.label('Lpld')
        e(f's_cmp_ge_u32 s99, 224\ns_cbranch_scc1 {la}')
        if kind[1] in cfg.defer: lds_signal(e,F_CONS+4*GROUPS.index(kind),vFl,vOne)
        else: pickup_cols(kind,W)
        e(f's_branch {lb}\n{la}:')
        pickup(kind,[W])
        e(f'{lb}:')
    def mmx(Ws, accs, vXr):
        e('s_waitcnt lgkmcnt(0)\ns_barrier')
        for t in range(4): e(f'ds_read_b128 v[{16+4*t}:{19+4*t}], v{vXr} offset:{64*t}')
        for t in range(4):
            e(f's_waitcnt lgkmcnt({3-t})')
            for m,W in enumerate(Ws):
                for j in range(2):
                    ac=accs[2*m+j]
                    e(f'v_mfma_f32_16x16x32_bf16 v[{ac}:{ac+3}], v[{16+4*t}:{19+4*t}], v[{W+8*t+4*j}:{W+8*t+4*j+3}], '+('0' if t==0 else f'v[{ac}:{ac+3}]'))
    def mm(As, Ws, accs, redoff=0):
        for t,(a_,W) in enumerate(zip(As,Ws)):
            for ct in range(8):
                e(f'v_mfma_f32_16x16x32_bf16 v[{accs[ct]}:{accs[ct]+3}], v[{a_}:{a_+3}], v[{W+4*ct}:{W+4*ct+3}], '+('0' if t==0 else f'v[{accs[ct]}:{accs[ct]+3}]'))
        for ct in range(8): e(f'ds_write_b32 v{vRd}, v{accs[ct]} offset:{64*ct}')
    JACC=[24+4*i for i in range(8)]
    def job_pub(base, rs, cgoff, skq='s36', scg='s39'):
        lp=e.label('Lnopub')
        e(f's_cmp_ge_u32 s3, 2\ns_cbranch_scc1 {lp}')
        for w in range(4): e(f'ds_read_b128 v[{24+4*w}:{27+4*w}], v{vRr} offset:{2304*w}')
        pub_addr(base+cgoff*512, rs, skq, scg)
        e('s_waitcnt lgkmcnt(0)')
        for a_,b_ in ((24,28),(32,36),(24,32)):
            e(f'v_pk_add_f32 v[{a_}:{a_+1}], v[{a_}:{a_+1}], v[{b_}:{b_+1}]\nv_pk_add_f32 v[{a_+2}:{a_+3}], v[{a_+2}:{a_+3}], v[{b_+2}:{b_+3}]')
        for r in range(4): e(f'v_min_u32 v{24+r}, -2, v{24+r}')
        e(f'buffer_store_dwordx4 v[24:27], v{vA}, s[{SWS}:{SWS+3}], s40 offen sc1\n{lp}:')
    def spread(r):
        for k in (1,2,3,0): e(f'v_mov_b32_dpp v{r+k}, v{r} quad_perm:[{k},{k},{k},{k}] row_mask:0xf bank_mask:0xf')
    def silu_A():
        unpack(e,16,32,3)
        for i in range(6): e(f'v_mul_f32 v{48+i}, 0xbfb8aa3b, v{32+i}')
        for i in range(6): e(f'v_exp_f32 v{48+i}, v{48+i}')
        for i in range(6): e(f'v_add_f32 v{48+i}, 1.0, v{48+i}')
        for i in range(6): e(f'v_rcp_f32 v{48+i}, v{48+i}')
        for i in range(6): e(f'v_mul_f32 v{32+i}, v{32+i}, v{48+i}')
        e('v_cvt_pk_bf16_f32 v16, v32, v33\nv_cvt_pk_bf16_f32 v20, v34, v35\nv_cvt_pk_bf16_f32 v56, v36, v37')
        spread(16); spread(20); spread(56)
    def sum4(r, dst):
        e(f'''v_pk_add_f32 v[{r}:{r+1}], v[{r}:{r+1}], v[{r+2}:{r+3}]
        v_pk_add_f32 v[{r+4}:{r+5}], v[{r+4}:{r+5}], v[{r+6}:{r+7}]
        v_pk_add_f32 v[{dst}:{dst+1}], v[{r}:{r+1}], v[{r+4}:{r+5}]''')
    def aoff(dst, pstr, bstr, gstr):
        e(f'''v_bfe_u32 v{vA+5}, v{vL}, 2, 2
        v_and_b32 v{vA+6}, 3, v{vL}
        v_lshrrev_b32 v{vA+7}, 4, v{vL}
        v_mul_u32_u24 v{dst}, {pstr}, v{vA+5}
        v_mul_u32_u24 v{vA+6}, {bstr}, v{vA+6}
        v_mul_u32_u24 v{vA+7}, {gstr}, v{vA+7}
        v_add3_u32 v{dst}, v{dst}, v{vA+6}, v{vA+7}''')
    def dppsum(r0, n):
        for r in (4,8):
            for i in range(n): e(f'v_add_f32_dpp v{r0+i}, v{r0+i}, v{r0+i} row_ror:{r} row_mask:0xf bank_mask:0xf')
    def allred_s(op, xs, t, rors=(4,8), swaps=('v_permlane16_swap_b32','v_permlane32_swap_b32')):
        for r in rors:
            for x in xs: e(f'{op}_dpp v{x}, v{x}, v{x} row_ror:{r} row_mask:0xf bank_mask:0xf')
        for sw in swaps:
            for k,x in enumerate(xs): e(f'v_mov_b32 v{t+k}, v{x}')
            for k,x in enumerate(xs): e(f'{sw} v{t+k}, v{x}')
            for k,x in enumerate(xs): e(f'{op} v{x}, v{x}, v{t+k}')
    def gather_q():
        e(f'''
        s_lshr_b32 s40, s37, 2
        s_mul_i32 s40, s40, {QS}
        s_and_b32 s41, s37, 3
        s_lshl_b32 s41, s41, 12
        s_add_u32 s40, s40, s41
        s_lshl_b32 s41, s3, 10
        s_add_u32 s40, s40, s41
        s_add_u32 s52, s40, {WS_Q}
        s_add_u32 s53, s52, {4*QS}
        s_add_u32 s54, s52, {8*QS}
        s_add_u32 s55, s52, {12*QS}
        ''')
        gather(e,cfg,[(24+4*i,4,vRow,f's{52+i}',0) for i in range(4)],vT,cfg.sleep_q)
        e(f'''
        s_mov_b32 s42, s41
        v_pk_add_f32 v[24:25], v[24:25], v[28:29]
        v_pk_add_f32 v[26:27], v[26:27], v[30:31]
        v_pk_add_f32 v[32:33], v[32:33], v[36:37]
        v_pk_add_f32 v[34:35], v[34:35], v[38:39]
        v_pk_add_f32 v[24:25], v[24:25], v[32:33]
        v_pk_add_f32 v[26:27], v[26:27], v[34:35]
        s_mul_i32 s40, s3, {2*QSTR}
        s_add_u32 s40, s40, {L_QOP}
        v_lshrrev_b32 v{vA}, 5, v{vL}
        v_mul_u32_u24 v{vA}, {QSTR}, v{vA}
        v_and_b32 v{vA+1}, 31, v{vL}
        v_lshl_add_u32 v{vA}, v{vA+1}, 3, v{vA}
        v_add_u32 v{vA}, s40, v{vA}
        v_cvt_pk_bf16_f32 v24, v24, v25
        v_cvt_pk_bf16_f32 v25, v26, v27
        ds_write_b64 v{vA}, v[24:25]
        ''')
        if cfg.adapt==1 or cfg.post:
            lb=e.label('Lld')
            e(f's_cmp_lg_u32 s42, 1\ns_cbranch_scc1 {lb}')
            if cfg.post: e(f's_cmp_lg_u32 s3, 0\ns_cbranch_scc1 {lb}')
            lds_signal(e,F_M,vFl,vOne)
            e(f'{lb}:')
        e('s_waitcnt lgkmcnt(0)')
        lds_signal(e,F_Q,vFl,vOne)
    early = True
    def finish_stats(mu,var):
        if cfg.round_ln: rnd1(e,mu); rnd1(e,var)
        e(f'v_add_f32 v{var}, 0x3727c5ac, v{var}')
        if cfg.round_ln: rnd1(e,var)
        e(f'v_sqrt_f32 v{var}, v{var}')
        if cfg.round_ln: rnd1(e,var)
        e(f'v_rcp_f32 v{var}, v{var}')
    def normalise(X,n,mu,rs,t):
        for i in range(n): e(f'v_sub_f32 v{X+i}, v{X+i}, v{mu}')
        if cfg.round_ln: rnd_vec(e,X,n,t)
        for i in range(n): e(f'v_mul_f32 v{X+i}, v{X+i}, v{rs}')
        if cfg.round_ln: rnd_vec(e,X,n,t)
    def modulate(X,n,T1,SB,out,t,prep=True):
        if prep:
            for i in range(n): e(f'v_add_f32 v{T1+i}, 1.0, v{T1+i}')
            if cfg.round_ln: rnd_vec(e,T1,n,t)
        for i in range(n): e(f'v_mul_f32 v{X+i}, v{X+i}, v{T1+i}')
        if cfg.round_ln: rnd_vec(e,X,n,t)
        for i in range(n): e(f'v_add_f32 v{X+i}, v{X+i}, v{SB+i}')
        for i in range(n//2): e(f'v_cvt_pk_bf16_f32 v{out+i}, v{X+2*i}, v{X+2*i+1}')
    def rowsum(r):
        e(f'''
        v_permlane32_swap_b32 v{r}, v{r+2}
        v_permlane32_swap_b32 v{r+1}, v{r+3}
        v_pk_add_f32 v[{r}:{r+1}], v[{r}:{r+1}], v[{r+2}:{r+3}]
        v_mov_b32 v{r+2}, v{r}
        v_mov_b32 v{r+3}, v{r+1}
        v_permlane16_swap_b32 v{r+2}, v{r}
        v_permlane16_swap_b32 v{r+3}, v{r+1}
        v_pk_add_f32 v[{r}:{r+1}], v[{r}:{r+1}], v[{r+2}:{r+3}]
        ''')
    def if_red():
        l=e.label('Lnr')
        e(f's_cmp_lt_u32 s99, 224\ns_cbranch_scc1 {l}\ns_cmp_ge_u32 s3, 2\ns_cbranch_scc1 {l}')
        return l
    def red_addr(base, rs, sreg):
        aoff(vA, 64, 16, 4*rs)
        e(f'''s_lshr_b32 s42, s98, 4
        s_mul_i32 s42, s42, {rs}
        s_and_b32 s43, s98, 15
        s_lshl_b32 s43, s43, 8
        s_add_u32 s42, s42, s43
        s_add_u32 {sreg}, s42, {base}''')
    def red_stats():
        l=if_red()
        if not cfg.direct: row_stats()
        unpack(e,19,RX,1)
        if not cfg.direct:
            unpack(e,19,RN,1)
            normalise(RN,2,24,25,26)
        e(f'{l}:')
    def row_stats():
        unpack(e,24,32,8)
        mu=24; var=25; a_=26; b_=27
        e(f'v_add_f32 v{mu}, v32, v33\nv_add_f32 v{a_}, v34, v35')
        for i in range(4,16,2): e(f'v_add_f32 v{mu}, v{mu}, v{32+i}\nv_add_f32 v{a_}, v{a_}, v{33+i}')
        e(f'v_add_f32 v{mu}, v{mu}, v{a_}')
        allreduce64(e,'v_add_f32',mu,a_)
        e(f'v_mul_f32 v{mu}, 0x3a800000, v{mu}')
        e(f'v_sub_f32 v{a_}, v32, v{mu}\nv_sub_f32 v{b_}, v33, v{mu}\nv_mul_f32 v{var}, v{a_}, v{a_}\nv_mul_f32 v28, v{b_}, v{b_}')
        for i in range(2,16,2):
            e(f'v_sub_f32 v{a_}, v{32+i}, v{mu}\nv_sub_f32 v{b_}, v{33+i}, v{mu}\nv_fmac_f32 v{var}, v{a_}, v{a_}\nv_fmac_f32 v28, v{b_}, v{b_}')
        e(f'v_add_f32 v{var}, v{var}, v28')
        allreduce64(e,'v_add_f32',var,a_)
        e(f'v_mul_f32 v{var}, 0x3a800000, v{var}')
        finish_stats(mu,var)
    def red_sa0():
        l=if_red()
        e(f'''v_and_b32 v28, 15, v{vL}
        v_lshlrev_b32 v28, 4, v28
        s_mov_b32 s40, {WS_SA}
        buffer_load_dwordx4 v[24:27], v28, s[{SWS}:{SWS+3}], s40 offen sc1
        {l}:''')
    def red_sa():
        l=if_red()
        if cfg.sa0:
            e(f'''s_waitcnt vmcnt(0)
            v_max3_u32 v24, v24, v25, v26
            v_max_u32 v24, v24, v27
            v_cmp_eq_u32 vcc, -1, v24
            s_cbranch_vccz {l}''')
        e(f'v_and_b32 v{vA}, 15, v{vL}\nv_lshlrev_b32 v{vA}, 4, v{vA}\ns_mov_b32 s40, {WS_SA}')
        gather(e,cfg,[(24,4,vA,'s40',0)],vT,cfg.sleep_head)
        e(f'{l}:')
    def red_h():
        l=if_red()
        red_addr(WS_MU,MUS,'s52')
        e('s_add_u32 s53, s52, 4096')
        gather(e,cfg,[(24,4,vA,'s52',0),(28,4,vA,'s53',0)],vT,cfg.sleep_head)
        rowsum(24); rowsum(28)
        rnd_vec(e,24,2,26); rnd_vec(e,28,2,26)
        modulate(RN,2,28,24,24,26)
        e(f'''
        v_min_u32 v24, -2, v24
        s_lshl_b32 s40, s98, 7
        s_add_u32 s40, s40, {WS_H}
        s_mov_b32 s42, 0xffff
        s_mov_b32 s43, 0xffff
        s_mov_b64 exec, s[42:43]
        buffer_store_dword v24, v{vRo}, s[{SWS}:{SWS+3}], s40 offen sc1
        s_mov_b64 exec, -1
        {l}:
        ''')
    def red_ts():
        l=if_red()
        red_addr(WS_MN+4096,MNS,'s52')
        e('s_add_u32 s53, s52, 4096')
        gather(e,cfg,[(24,4,vA,'s52',0),(28,4,vA,'s53',0)],vT,cfg.sleep_head)
        rowsum(24); rowsum(28)
        rnd_vec(e,28,2,26)
        e(f'''
        v_add_f32 v28, 1.0, v28
        v_add_f32 v29, 1.0, v29
        v_cvt_pk_bf16_f32 v24, v28, v24
        v_cvt_pk_bf16_f32 v25, v29, v25
        v_min_u32 v24, -2, v24
        v_min_u32 v25, -2, v25
        v_lshlrev_b32 v{vA}, 1, v{vRo}
        s_lshl_b32 s40, s98, 8
        s_add_u32 s40, s40, {WS_TS}
        s_mov_b32 s42, 0xffff
        s_mov_b32 s43, 0xffff
        s_mov_b64 exec, s[42:43]
        buffer_store_dwordx2 v[24:25], v{vA}, s[{SWS}:{SWS+3}], s40 offen sc1
        s_mov_b64 exec, -1
        {l}:
        ''')
    def red_g():
        l=if_red()
        red_addr(WS_MN,MNS,'s52')
        e(f'v_mov_b32 v{vA+1}, v{vA}')
        red_addr(WS_MG,MGS,'s53')
        e(f's_add_u32 s54, s53, {16*MGS}')
        gather(e,cfg,[(24,4,vA+1,'s52',0),(28,4,vA,'s53',0),(32,4,vA,'s54',0)],vT,cfg.sleep_head)
        e('v_pk_add_f32 v[28:29], v[28:29], v[32:33]\nv_pk_add_f32 v[30:31], v[30:31], v[34:35]')
        rowsum(24); rowsum(28)
        e(f'v_mov_b32 v{RX+2}, v24\nv_mov_b32 v{RX+3}, v25\nv_mov_b32 v{RX+4}, v28\nv_mov_b32 v{RX+5}, v29')
        rnd_vec(e,RX+2,4,26)
        if cfg.warm: e(f'global_load_dword v24, v{vRo}, s[{P_OUT}:{P_OUT+1}]\ns_waitcnt vmcnt(0)')
        e(f'{l}:')
    def wpick(a=0,b=5):
        for g,d in sorted([t for t in [('WO',WO),('X0',X0),('X1',X1),('X2',X2),('X3',WJ)] if (t[0],0) in UNITS and upos(t[0],0)<upos('K',15)], key=lambda t: upos(t[0],0))[a:b]:
            if g=='X2':
                la=e.label('Lpl'); lb=e.label('Lpld')
                e(f's_cmp_ge_u32 s99, 224\ns_cbranch_scc1 {la}')
                pickup_cols(g,d)
                e(f's_branch {lb}\n{la}:')
                lds_signal(e,F_CONS+4*GROUPS.index(g),vFl,vOne)
                e(f'{lb}:')
            elif g=='WO': pickup_cols(g,d)
            elif g=='X3':
                la=e.label('Lpl'); lb=e.label('Lpld')
                e(f's_cmp_eq_u32 s0, 0\ns_cbranch_scc1 {la}')
                pickup(g,[d])
                e(f's_branch {lb}\n{la}:')
                lds_signal(e,F_CONS+4*GROUPS.index(g),vFl,vOne)
                e(f'{lb}:')
            else: pickup_x(g,d)
    def njobs():
        gbar1(); auxbar()
        job_pub(WS_MN,MNS,-16)
        ln=e.label('Lnoj2')
        e(f's_cmp_lt_u32 s99, 224\ns_cbranch_scc1 {ln}')
        auxbar(); mm([16,20],[X0,X1],JACC); auxbar(); job_pub(WS_MN,MNS,-16,scg='s101')
        e(f'{ln}:')
    def gjob():
        lg=e.label('Lnog')
        e(f's_cmp_eq_u32 s0, 0\ns_cbranch_scc1 {lg}')
        mm([56],[WJ],JACC); auxbar()
        e('s_and_b32 s42, s101, 7\ns_lshr_b32 s43, s101, 3')
        job_pub(WS_MG,MGS,0,'s42','s43')
        auxbar()
        e(f'{lg}:')
    e('''
    s_cmp_eq_u32 s33, 1
    s_cbranch_scc1 L_roleQ
    ''')
    e.c('---- roles U (sa, ca) and N (ga, sb, cb): silu(c) x w_mod tile')
    red_stats(); silu_A(); go1a(); pickup('J',[WJ,WJ+32])
    mm([16,20],[WJ,WJ+32],JACC); go1(); auxbar(); arrive()
    e('s_cmp_eq_u32 s33, 2\ns_cbranch_scc1 L_roleN')
    job_pub(WS_MU,MUS,0)
    stamp(e,cfg,1)
    wpick(); gbar1(); auxbar()
    stamp(e,cfg,2)
    e('s_branch L_common')
    e('L_roleN:')
    stamp(e,cfg,1)
    wpick(0,cfg.hafter); stamp(e,cfg,12); (lds_spin(e,cfg,F_P3,4,vFl,vT) if cfg.mgate else None); stamp(e,cfg,14); (None if cfg.direct else red_h()); stamp(e,cfg,15); wpick(cfg.hafter,5); njobs()
    stamp(e,cfg,2)
    e('s_branch L_common')
    e('L_roleQ:')
    e.c('---- role Q: h = LN(x)(1+ca)+sa, q = h x wq tile')
    if cfg.direct:
        row_stats()
        e(f'''
        s_lshl_b32 s40, s3, 3
        s_add_u32 s40, s40, {L_ST}
        v_mov_b32 v{vA}, s40
        ds_write_b64 v{vA}, v[24:25]
        ''')
    go1a(); pickup('J',[WJ,WJ+32]); go1(); auxbar(); arrive()
    if cfg.direct:
        e(f'''
        v_bfe_u32 v{vA}, v{vL}, 2, 2
        v_lshlrev_b32 v{vA}, 3, v{vA}
        v_add_u32 v{vA}, {L_ST}, v{vA}
        ds_read_b64 v[24:25], v{vA}
        ''')
        unpack(e,16,56,2)
        e('s_waitcnt lgkmcnt(0)')
        normalise(56,4,24,25,26)
    wpick(0,cfg.qafter)
    gbar1(); auxbar()
    stamp(e,cfg,1)
    if cfg.hgate: lds_spin(e,cfg,F_P2,4,vFl,vT)
    if cfg.direct:
        aoff(vA, MUS, 16, 64)
        e(f'''
        s_lshl_b32 s40, s36, 10
        s_lshl_b32 s41, s3, 8
        s_add_u32 s40, s40, s41
        s_add_u32 s52, s40, {WS_MU}
        ''')
        for i in range(1,8): e(f's_add_u32 s{52+i}, s52, {(i&3)*4*MUS+(i>>2)*4096}')
        gather(e,cfg,[(16+4*i,4,vA,f's{52+i}',0) for i in range(8)],vT,cfg.sleep_head)
        stamp(e,cfg,14)
        if cfg.stamps: e('s_mov_b32 s94, s41\ns_mov_b32 s95, 0')
        for m in range(2):
            for h in range(2):
                r=16+16*m+2*h
                e(f'''v_pk_add_f32 v[{r}:{r+1}], v[{r}:{r+1}], v[{r+4}:{r+5}]
                v_pk_add_f32 v[{r+8}:{r+9}], v[{r+8}:{r+9}], v[{r+12}:{r+13}]
                v_pk_add_f32 v[{48+4*m+2*h}:{49+4*m+2*h}], v[{r}:{r+1}], v[{r+8}:{r+9}]''')
        rnd_vec(e,48,8,vA)
        modulate(56,4,52,48,24,vA)
        e('v_mov_b32 v16, v24\nv_mov_b32 v20, v25')
    else:
        e(f's_mov_b32 s40, {WS_H}')
        gather(e,cfg,[(16,2,vHq,'s40',0)],vT,cfg.sleep_head)
        stamp(e,cfg,14)
        if cfg.stamps: e('s_mov_b32 s94, s41\ns_mov_b32 s95, 0')
        e('v_mov_b32 v20, v17')
    spread(16); spread(20)
    mm([16,20],[WJ,WJ+32],JACC); auxbar()
    job_pub(WS_Q,QS,0)
    stamp(e,cfg,2)
    wpick(cfg.qafter,5)
    e('L_common:')
    e.c('---- all roles: q for this workgroup, gb half job, (1+cb, sb), split maxima and sums, addresses for the tail')
    if cfg.qgate: lds_spin(e,cfg,F_P,4,vFl,vT)
    gather_q()
    stamp(e,cfg,3)
    auxbar()
    if cfg.post:
        la=e.label('Lpl'); lb=e.label('Lpld')
        e(f'''
        ds_read_b32 v{vT}, v{vFl} offset:{F_M}
        s_waitcnt lgkmcnt(0)
        v_readfirstlane_b32 s15, v{vT}
        s_cmp_ge_u32 s99, 224
        s_cbranch_scc1 {la}
        s_cmp_lg_u32 s15, 0
        s_cbranch_scc1 {la}
        ''')
        pickup_cols('X2',X2)
        e(f's_branch {lb}\n{la}:')
        lds_signal(e,F_CONS+4*GROUPS.index('X2'),vFl,vOne)
        e(f'{lb}:')
    gjob()
    red_ts()
    phase[0]='m'
    if 'h' in cfg.kill: e(f's_mov_b32 s46, {WS_END}')
    if 'm' in cfg.kill: e('s_mov_b32 s46, 0')
    F=192; T1=204; SB=206; AC2=[220+4*i for i in range(8)]
    lds_spin(e,cfg,F_ML,4,vFl,vT)
    lm=e.label('Lnoml')
    e(f'''
    s_cmp_lg_u32 s3, 0
    s_cbranch_scc1 {lm}
    v_and_b32 v{vA}, 7, v{vL}
    v_lshlrev_b32 v{vA+1}, 3, v{vA}
    v_add_u32 v{vA}, {L_ML}, v{vA+1}
    ds_read_b64 v[16:17], v{vA}
    ds_read_b64 v[18:19], v{vA} offset:64
    ds_read_b64 v[20:21], v{vA} offset:128
    ds_read_b64 v[22:23], v{vA} offset:192
    s_lshl_b32 s40, s37, 10
    s_lshl_b32 s41, s38, 6
    s_add_u32 s40, s40, s41
    s_add_u32 s40, s40, {WS_ML}
    s_waitcnt lgkmcnt(0)
    v_max3_f32 v24, v16, v18, v20
    v_max_f32 v24, v24, v22
    v_sub_f32 v16, v16, v24
    v_sub_f32 v18, v18, v24
    v_sub_f32 v20, v20, v24
    v_sub_f32 v22, v22, v24
    v_exp_f32 v16, v16
    v_exp_f32 v18, v18
    v_exp_f32 v20, v20
    v_exp_f32 v22, v22
    v_mul_f32 v25, v16, v17
    v_fmac_f32 v25, v18, v19
    v_fmac_f32 v25, v20, v21
    v_fmac_f32 v25, v22, v23
    v_min_u32 v24, -2, v24
    v_min_u32 v25, -2, v25
    s_mov_b64 exec, 0xff
    buffer_store_dwordx2 v[24:25], v{vA+1}, s[{SWS}:{SWS+3}], s40 offen sc1
    s_mov_b64 exec, -1
    ''')
    if cfg.adapt==2:
        e(f'''
        s_lshl_b32 s40, s37, 10
        s_add_u32 s40, s40, {WS_ML}
        buffer_load_dword v16, v{vRow}, s[{SWS}:{SWS+3}], s40 offen sc1
        s_waitcnt vmcnt(0)
        v_cmp_ne_u32 vcc, -1, v16
        s_bcnt1_i32_b64 s40, vcc
        s_cmp_lt_u32 s40, {4*cfg.rank}
        s_cbranch_scc1 {lm}
        ''')
        lds_signal(e,F_M,vFl,vOne)
    e(f'{lm}:')
    vOc=48; vOs=49; vH1=50; vYs=53; vH3=55; vZs=56; vXs=57; vSt=58; vOc2=59; vGs=51; vXr=52; vXw=60
    red_g()
    aoff(vH1, OS, 16, 64*OS)
    aoff(vH3, 8, 32, GS)
    aoff(vXs, 4, 16, 2048)
    aoff(vYs, 16, 4, 16*YS)
    aoff(vZs, 16, 4, 16*ZS)
    aoff(vGs, 16, 4, GS)
    aoff(vXr, XSTR, 0, 16)
    aoff(vXw, 4, 16, XSTR)
    aoff(vSt, 128, 8, 512)
    e(f'''
    v_add_u32 v{vXr}, {L_AX}, v{vXr}
    s_lshl_b32 s40, s3, 6
    s_add_u32 s40, s40, {L_AX}
    v_add_u32 v{vXw}, s40, v{vXw}
    s_lshl_b32 s40, s3, 1
    v_lshrrev_b32 v{vA}, 5, v{vL}
    v_add_u32 v{vA+2}, s40, v{vA}
    v_mul_u32_u24 v{vOc}, {OSTR}, v{vA+2}
    v_and_b32 v{vA+1}, 31, v{vL}
    v_lshl_add_u32 v{vOc}, v{vA+1}, 4, v{vOc}
    v_add_u32 v{vOc}, {OOFF}, v{vOc}
    v_add_u32 v{vOc2}, 0x10000, v{vOc}
    v_lshlrev_b32 v{vOs}, 3, v{vL}
    s_lshl_b32 s52, s37, 4
    s_add_u32 s52, s52, s38
    s_mul_i32 s52, s52, {OS}
    s_lshl_b32 s40, s3, 9
    s_add_u32 s52, s52, s40
    s_mul_i32 s53, s3, {16*OS}
    s_and_b32 s40, s14, 7
    s_lshl_b32 s40, s40, 8
    s_add_u32 s53, s53, s40
    s_bfe_u32 s40, s14, 0x20003
    s_lshl_b32 s40, s40, 6
    s_add_u32 s53, s53, s40
    s_add_u32 s54, s53, {4*OS}
    s_add_u32 s55, s53, {8*OS}
    s_add_u32 s56, s53, {12*OS}
    s_lshr_b32 s42, s3, 1
    s_and_b32 s43, s3, 1
    s_lshl_b32 s43, s43, 7
    s_lshr_b32 s40, s14, 5
    s_lshl_b32 s40, s40, 1
    s_add_u32 s40, s40, s42
    s_mul_i32 s57, s40, {YS}
    s_and_b32 s40, s14, 31
    s_lshl_b32 s40, s40, 8
    s_add_u32 s57, s57, s40
    s_add_u32 s57, s57, s43
    s_add_u32 s57, s57, {WS_Y}
    s_and_b32 s40, s1, 7
    s_lshl_b32 s40, s40, 1
    s_add_u32 s40, s40, s42
    s_mul_i32 s59, s40, {ZS}
    s_add_u32 s59, s59, s43
    s_lshr_b32 s43, s1, 3
    s_lshl_b32 s42, s43, 8
    s_add_u32 s59, s59, s42
    s_add_u32 s59, s59, {WS_Z}
    s_and_b32 s40, s63, 7
    s_lshl_b32 s58, s40, 8
    s_lshl_b32 s42, s3, 6
    s_add_u32 s58, s58, s42
    s_add_u32 s58, s58, {WS_X1}
    s_mov_b32 s49, {WS_ST}
    s_mul_i32 s60, s40, {4*GS}
    s_lshr_b32 s41, s63, 3
    s_lshl_b32 s41, s41, 9
    s_add_u32 s60, s60, s41
    s_lshl_b32 s40, s3, 7
    s_add_u32 s60, s60, s40
    s_add_u32 s60, s60, {WS_GU}
    s_lshl_b32 s43, s43, 9
    s_add_u32 s48, s43, s40
    s_add_u32 s48, s48, {WS_GU}
    s_mov_b32 s61, 0x3f80
    s_mov_b32 s62, 0x3f800000
    s_mov_b32 s96, 0x000f000f
    s_mov_b32 s97, 0x000f000f
    s_mov_b32 s10, {1024*3584*2}
    s_mov_b32 s11, 0x20000
    v_lshrrev_b32 v{vA}, 4, v{vL}
    v_and_b32 v{vA+1}, 15, v{vL}
    v_lshlrev_b32 v{vA+2}, 1, v{vA}
    v_xor_b32 v{vA+2}, v{vA+2}, v{vA+1}
    v_lshlrev_b32 v{vA+2}, 4, v{vA+2}
    v_lshl_add_u32 v208, v{vA}, 11, v{vA+2}
    v_xor_b32 v209, 128, v208
    v_mul_u32_u24 v210, 7168, v{vA}
    v_add_u32 v210, v210, v{vA+2}
    s_lshr_b32 s40, s1, 3
    s_lshl_b32 s13, s40, 18
    s_lshl_b32 s40, s3, 16
    s_add_u32 s13, s13, s40
    s_and_b32 s40, s1, 7
    s_lshl_b32 s40, s40, 8
    s_add_u32 s13, s13, s40
    s_and_b32 s40, s63, 7
    s_lshl_b32 s40, s40, 2
    s_add_u32 s40, s40, s3
    s_mul_i32 s12, s40, {32*7168}
    s_lshr_b32 s40, s63, 3
    s_lshl_b32 s40, s40, 8
    s_add_u32 s12, s12, s40
    ''')
    lf=e.label('Lnof')
    lds_spin(e,cfg,F_V,1,vFl,vT)
    if cfg.repf:
        lp=e.label('Lnopf')
        e(f'''
        s_cmp_lg_u32 s3, 2
        s_cbranch_scc1 {lp}
        s_getpc_b64 s[42:43]
        v_lshlrev_b32 v{vA}, 7, v{vL}
        global_load_dword v211, v{vA}, s[42:43]
        {lp}:
        ''')
    e(f's_cmp_lg_u32 s3, 0\ns_cbranch_scc1 {lf}')
    e(f's_lshl_b32 s40, s37, 10\ns_add_u32 s40, s40, {WS_ML}')
    gather(e,cfg,[(16,4,vRow,'s40',0)],vT,cfg.sleep_ml)
    e('v_mov_b32 v20, v16\nv_mov_b32 v22, v18')
    allred_s('v_max_f32',[20,22],24)
    e('''
    v_sub_f32 v16, v16, v20
    v_sub_f32 v18, v18, v22
    v_exp_f32 v16, v16
    v_exp_f32 v18, v18
    v_mul_f32 v21, v16, v17
    v_mul_f32 v23, v18, v19
    ''')
    allred_s('v_add_f32',[21,23],24)
    e(f'''
    v_rcp_f32 v21, v21
    v_rcp_f32 v23, v23
    v_add_u32 v{vA}, {L_ST}, v{vRow}
    s_mov_b64 exec, 15
    ds_write_b128 v{vA}, v[20:23]
    s_waitcnt lgkmcnt(0)
    s_mov_b64 exec, -1
    ''')
    lds_signal(e,F_F,vFl,vOne)
    e(f'''
    {lf}:
    ''')
    lsb=e.label('Lnosb')
    e(f's_cmp_ge_u32 s99, 224\ns_cbranch_scc1 {lsb}')
    aoff(vA, 8, 32, 4096)
    e(f'''
    s_and_b32 s40, s63, 7
    s_lshl_b32 s40, s40, 9
    s_lshl_b32 s42, s3, 7
    s_add_u32 s40, s40, s42
    s_add_u32 s40, s40, {WS_TS}
    ''')
    gather(e,cfg,[(16,2,vA,'s40',0)],vT,cfg.sleep_ml)
    e(f'''
    v_lshlrev_b32 v{T1}, 16, v16
    v_lshlrev_b32 v{T1+1}, 16, v17
    v_and_b32 v{SB}, 0xffff0000, v16
    v_and_b32 v{SB+1}, 0xffff0000, v17
    {lsb}:
    ''')
    e(f'''
    s_lshl_b32 s40, s3, 4
    v_lshrrev_b32 v{vA+1}, 5, v{vL}
    v_lshl_add_u32 v{vA}, v{vA+1}, 3, s40
    v_add_u32 v{vA+1}, {L_ST}, v{vA}
    v_add_u32 v{vA}, {L_ML}, v{vA}
    ds_read_b32 v{F}, v{vA}
    ds_read_b32 v{F+1}, v{vA} offset:64
    ds_read_b32 v{F+2}, v{vA} offset:128
    ds_read_b32 v{F+3}, v{vA} offset:192
    ''')
    lds_spin(e,cfg,F_F,1,vFl,vT)
    e(f'ds_read_b64 v[20:21], v{vA+1}\ns_waitcnt lgkmcnt(0)')
    for k in range(4): e(f'v_sub_f32 v{F+k}, v{F+k}, v20')
    for k in range(4): e(f'v_exp_f32 v{F+k}, v{F+k}')
    for k in range(4): e(f'v_mul_f32 v{F+k}, v{F+k}, v21')
    stamp(e,cfg,4)
    e.c('---- tail: combine the four waves of this workgroup')
    if cfg.help:
        lcp=e.label('Lnocp')
        e(f's_cmp_lg_u32 s3, 1\ns_cbranch_scc1 {lcp}')
        lds_spin(e,cfg,F_C,4,vFl,vT)
        e(f'''
        s_lshl_b32 s40, s37, 7
        s_lshl_b32 s41, s38, 2
        s_add_u32 s40, s40, s41
        s_add_u32 s40, s40, {WS_CP}
        v_mov_b32 v{vA}, 0
        s_mov_b64 exec, 1
        buffer_store_dword v{vOne}, v{vA}, s[{SWS}:{SWS+3}], s40 offen sc1
        s_mov_b64 exec, -1
        {lcp}:
        ''')
    if cfg.local: e(f'ds_read_b32 v{vT}, v{vFl} offset:{F_L}\ns_waitcnt lgkmcnt(0)\nv_readfirstlane_b32 s14, v{vT}')
    e(f's_setprio {cfg.prio2}')
    if cfg.obar: e('s_barrier')
    else: lds_spin(e,cfg,F_O,4,vFl,vT,sleep=0)
    stamp(e,cfg,5)
    phase[0]='t'
    if 't' in cfg.kill: e('s_branch L_fin')
    e(f'''
    ds_read_b128 v[16:19], v{vOc}
    ds_read_b128 v[20:23], v{vOc} offset:{RING}
    ds_read_b128 v[24:27], v{vOc2}
    ds_read_b128 v[28:31], v{vOc2} offset:{RING}
    s_waitcnt lgkmcnt(3)
    ''')
    for r in range(4): e(f'v_mul_f32 v{16+r}, v{16+r}, v{F}')
    for k in range(1,4):
        e(f's_waitcnt lgkmcnt({3-k})')
        for r in range(4): e(f'v_fmac_f32 v{16+r}, v{16+4*k+r}, v{F+k}')
    e(f'''
    v_cvt_pk_bf16_f32 v16, v16, v17
    v_cvt_pk_bf16_f32 v17, v18, v19
    v_min_u32 v16, -2, v16
    v_min_u32 v17, -2, v17
    buffer_store_dwordx2 v[16:17], v{vOs}, s[{SWS}:{SWS+3}], s52 offen sc1
    ''')
    def look(i, acki=None):
        if acki is not None and cfg.ack[acki]=='1': e('s_waitcnt vmcnt(0)')
        d=int(cfg.dly.split(',')[i])
        if d: e(f's_sleep {d}')
    def tstamp(i):
        if cfg.tstamps: stamp(e,cfg,i)
    look(0,0)
    def fast(loads, compute, check, inc=False):
        d=e.label('Lfd')
        for dst,n,voff,soff,imm in loads:
            op={1:'dword',2:'dwordx2',4:'dwordx4'}[n]
            e(f'buffer_load_{op} {v(dst,n)}, v{voff}, s[{SWS}:{SWS+3}], {soff} offen offset:{imm} sc1')
        if cfg.cnt and inc: compute(len(loads))
        else:
            e('s_waitcnt vmcnt(0)'); compute()
        check()
        n=fast.n
        def slow():
            gather(e,cfg,loads,vT,cfg.sleep_tail)
            if cfg.fine: e(f's_min_u32 s41, s41, 255\ns_lshl_b32 s41, s41, {8*n}\ns_or_b32 s100, s100, s41')
            compute()
        if cfg.ool:
            e(f's_cbranch_vccnz {d}_s\n{d}:')
            def later():
                e(f'{d}_s:'); slow(); e(f's_branch {d}')
            OOL.append(later)
        else:
            e(f's_cbranch_vccz {d}')
            slow()
            e(f'{d}:')
        fast.n+=1
    fast.n=0; OOL=[]
    if cfg.fine: e('s_mov_b32 s100, 0')
    def store2(accs, voff, soff):
        for j,ac in enumerate(accs):
            e(f'v_min_u32 v{ac}, -2, v{ac}\nbuffer_store_dword v{ac}, v{voff}, s[{SWS}:{SWS+3}], {soff} offen offset:{64*j} sc1')
    DEF=[(k,{'0':P_W1,'1':P_W3,'2':P_W2}[k]) for k in ('2' if cfg.post else cfg.defer)]
    DOFF=[o for o in (0,8192,16384,24576) if not (o < OOFF+4224 and OOFF < o+8192)]
    def defer_loads():
        if '0' in cfg.defer or '1' in cfg.defer: e('v_mov_b32 v14, v210\nv_xor_b32 v15, 128, v210')
        for n,(k,p) in enumerate(DEF):
            rs = 2048 if k=='2' else 7168
            e(f's_mov_b32 s8, s{p}\ns_mov_b32 s9, s{p+1}')
            for I in range(8):
                if I%4==0: e(f's_add_u32 m0, s32, {DOFF[n]+(I>>2)*4096}')
                e(f's_add_u32 s40, s{13 if k=="2" else 12}, {(8*(I&3)+4*(I>>2))*rs-1024*(I&3)}')
                e(f'buffer_load_dwordx4 v{(208 if k=="2" else 14)+(I&1)}, s[8:11], s40 offen offset:{(I&3)*1024} {cfg.pol} lds')
    e.c('---- H1 + output projection')
    def osum():
        for i in range(4):
            e(f'v_lshlrev_b32 v{32+2*i}, 16, v{16+i}\nv_and_b32 v{33+2*i}, 0xffff0000, v{16+i}')
        for j in range(1,4):
            if cfg.h1nan: e(f's_waitcnt vmcnt({3-j})')
            for i in range(4):
                e(f'v_dot2_f32_bf16 v{32+2*i}, v{16+4*j+i}, s61, v{32+2*i}\nv_dot2_f32_bf16 v{33+2*i}, v{16+4*j+i}, s62, v{33+2*i}')
    if cfg.h1pipe and 't' not in cfg.kill:
        l=e.label('Lh1'); d=e.label('Lh1d')
        def look4():
            for j in range(4): e(f'buffer_load_dwordx4 v[{16+4*j}:{19+4*j}], v{vH1}, s[{SWS}:{SWS+3}], s{53+j} offen sc1')
        e('s_mov_b32 s41, 0')
        for k in range(cfg.h1pipe-1):
            look4()
            if k<cfg.h1pipe-2 or True: e(f's_sleep {cfg.h1gap}')
        e(f'{l}:')
        look4()
        e(f's_add_u32 s41, s41, 1\ns_waitcnt vmcnt({4*(cfg.h1pipe-1)})\nv_max3_u32 v{vT}, v16, v17, v18')
        for i in range(19,31,2): e(f'v_max3_u32 v{vT}, v{vT}, v{i}, v{i+1}')
        e(f'''
        v_max_u32 v{vT}, v{vT}, v31
        v_cmp_eq_u32 vcc, -1, v{vT}
        s_cbranch_vccz {d}
        s_mov_b64 exec, vcc
        s_cmp_lt_u32 s41, {cfg.gpoll*4}
        s_cbranch_scc1 {l}
        {d}:
        s_mov_b64 exec, -1
        ''')
        tstamp(6)
        h=cfg.h1nan; cfg.h1nan=False; osum(); cfg.h1nan=h
    elif not cfg.h1nan or 't' in cfg.kill:
        gather(e,cfg,[(16,4,vH1,'s53',0),(20,4,vH1,'s54',0),(24,4,vH1,'s55',0),(28,4,vH1,'s56',0)],vT,cfg.sleep_tail,backoff=(cfg.bo_n,cfg.bo_s) if cfg.bo_s else None)
        tstamp(6)
        osum()
    else:
        l=e.label('Lh1'); d=e.label('Lh1d')
        if not cfg.post: e('s_cmp_ge_u32 s99, 224\ns_cselect_b32 s15, 1, 0')
        e(f's_mov_b32 s41, 0\n{l}:')
        for j in range(4): e(f'buffer_load_dwordx4 v[{16+4*j}:{19+4*j}], v{vH1}, s[{SWS}:{SWS+3}], s{53+j} offen sc1')
        e('s_add_u32 s41, s41, 1\ns_waitcnt vmcnt(3)')
        osum()
        e(f'''
        v_add_f32 v40, v32, v34
        v_add_f32 v41, v36, v38
        v_cmp_u_f32 vcc, v40, v41
        s_cbranch_vccz {d}
        v_max3_u32 v{vT}, v16, v17, v18
        ''')
        for i in range(19,31,2): e(f'v_max3_u32 v{vT}, v{vT}, v{i}, v{i+1}')
        e(f'''
        v_max_u32 v{vT}, v{vT}, v31
        v_cmp_eq_u32 vcc, -1, v{vT}
        s_cbranch_vccz {d}
        ''')
        if DEF and cfg.early:
            le=e.label('Lne')
            e(f'''
            s_cmp_lg_u32 s15, 0
            s_cbranch_scc1 {le}
            s_bcnt1_i32_b64 s40, vcc
            s_cmp_lt_u32 s40, {cfg.early}
            s_cbranch_scc1 {le}
            s_mov_b32 s15, 1
            s_mov_b64 exec, -1
            ''')
            defer_loads()
            e(f'{le}:')
        e(f'''
        s_mov_b64 exec, vcc
        s_sleep {cfg.sleep_tail}
        s_cmp_lt_u32 s41, {cfg.gpoll}
        s_cbranch_scc1 {l}
        {d}:
        s_mov_b64 exec, -1
        ''')
        tstamp(6)
    dppsum(32,8)
    for i in range(4): e(f'v_cvt_pk_bf16_f32 v{40+i}, v{32+2*i}, v{33+2*i}')
    e(f's_mov_b64 exec, s[96:97]\nds_write_b128 v{vXw}, v[40:43]\ns_mov_b64 exec, -1')
    if cfg.h1pipe: e('s_waitcnt vmcnt(0)')
    mmx([WO],[32,36],vXr)
    store2([32,36],vYs,'s57')
    tstamp(7)
    e('s_cmp_ge_u32 s99, 224\ns_cbranch_scc1 L_red')
    def red_tail(n, cnt=0):
        lst=list(range(n))
        if cnt:
            for i in range(1,n):
                a_,b_=(16,16+4*i) if (i==1 or i%2==0 or True) else (20,16+4*i)
                e(f's_waitcnt vmcnt({n-1-i})\nv_pk_add_f32 v[{a_}:{a_+1}], v[{a_}:{a_+1}], v[{b_}:{b_+1}]\nv_pk_add_f32 v[{a_+2}:{a_+3}], v[{a_+2}:{a_+3}], v[{b_+2}:{b_+3}]')
            lst=[0]
        elif cfg.cnt:
            for i in range(1,n):
                a_,b_=16,16+4*i
                e(f'v_pk_add_f32 v[{a_}:{a_+1}], v[{a_}:{a_+1}], v[{b_}:{b_+1}]\nv_pk_add_f32 v[{a_+2}:{a_+3}], v[{a_+2}:{a_+3}], v[{b_+2}:{b_+3}]')
            lst=[0]
        while len(lst)>1:
            nx=[]
            for i in range(0,len(lst)-1,2):
                a_,b_=16+4*lst[i],16+4*lst[i+1]
                e(f'v_pk_add_f32 v[{a_}:{a_+1}], v[{a_}:{a_+1}], v[{b_}:{b_+1}]\nv_pk_add_f32 v[{a_+2}:{a_+3}], v[{a_+2}:{a_+3}], v[{b_+2}:{b_+3}]')
                nx.append(lst[i])
            if len(lst)%2: nx.append(lst[-1])
            lst=nx
        e('''
        v_permlane32_swap_b32 v16, v18
        v_permlane32_swap_b32 v17, v19
        v_pk_add_f32 v[16:17], v[16:17], v[18:19]
        v_mov_b32 v18, v16
        v_mov_b32 v19, v17
        v_permlane16_swap_b32 v18, v16
        v_permlane16_swap_b32 v19, v17
        v_pk_add_f32 v[16:17], v[16:17], v[18:19]
        ''')
    def gate_res(G,X,dst):
        rnd_vec(e,16,2,18)
        e(f'v_pk_mul_f32 v[16:17], v[16:17], v[{G}:{G+1}]')
        rnd_vec(e,16,2,18)
        e(f'v_pk_add_f32 v[16:17], v[16:17], v[{X}:{X+1}]\nv_cvt_pk_bf16_f32 v{dst}, v16, v17')
    nan2=lambda a_,b_: (lambda: e(f'v_cmp_u_f32 vcc, v{a_}, v{b_}'))
    if DEF:
        ld=e.label('Ldef')
        if cfg.early: e(f's_cmp_lg_u32 s15, 0\ns_cbranch_scc1 {ld}')
        if cfg.post: e(f's_cmp_eq_u32 s15, 0\ns_cbranch_scc1 {ld}')
        defer_loads()
        e(f'{ld}:')
    look(2)
    if DEF: e('s_waitcnt vmcnt(0)')
    if any(k!='2' for k,p in DEF):
        e('s_barrier')
        for n,(k,p) in enumerate(DEF):
            if k!='2': pickup_cols('X'+k, X0 if k=='0' else X1, DOFF[n])
    e.c('---- H2b + gate/up')
    def ln2():
        unpack(e,16,32,1)
        allred_s('v_add_f32',[20,21],22,rors=(1,2,4,8),swaps=())
        e(f'''
        v_mul_f32 v20, 0x3a800000, v20
        v_mul_f32 v21, 0x3a800000, v21
        v_fma_f32 v21, -v20, v20, v21
        v_cmp_u_f32 s[42:43], v21, v21
        v_max_f32 v21, 0, v21
        ''')
        if cfg.round_ln2:
            finish_stats(20,21)
            normalise(32,2,20,21,22)
            modulate(32,2,T1,SB,16,22,prep=False)
        else:
            e(f'''
            v_add_f32 v21, 0x3727c5ac, v21
            v_rsq_f32 v21, v21
            v_sub_f32 v32, v32, v20
            v_sub_f32 v33, v33, v20
            v_mul_f32 v32, v32, v21
            v_mul_f32 v33, v33, v21
            v_fma_f32 v32, v32, v{T1}, v{SB}
            v_fma_f32 v33, v33, v{T1+1}, v{SB+1}
            v_cvt_pk_bf16_f32 v16, v32, v33
            ''')
        e(f'ds_write_b32 v{vXw}, v16')
    fast([(16,1,vXs,'s58',0),(20,2,vSt,'s49',0)], ln2, lambda: e('v_cmp_u_f32 vcc, v32, v33\ns_or_b64 vcc, vcc, s[42:43]'))
    tstamp(9)
    mmx([X0,X1],[32,36,40,44],vXr)
    for i in range(1,8): e(f's_add_u32 s{51+i}, s48, {i*4*GS}')
    for j in range(2): e(f'v_cvt_pk_bf16_f32 v{32+4*j}, v{32+4*j}, v{40+4*j}')
    if cfg.local:
        lg=e.label('Lgl'); lgd=e.label('Lgld')
        e(f'''
        v_min_u32 v32, -2, v32
        v_min_u32 v36, -2, v36
        s_cmp_lg_u32 s14, 0
        s_cbranch_scc1 {lg}
        buffer_store_dword v32, v{vGs}, s[{SWS}:{SWS+3}], s60 offen sc1
        buffer_store_dword v36, v{vGs}, s[{SWS}:{SWS+3}], s60 offen offset:64 sc1
        s_branch {lgd}
        {lg}:
        buffer_store_dword v32, v{vGs}, s[{SWS}:{SWS+3}], s60 offen
        buffer_store_dword v36, v{vGs}, s[{SWS}:{SWS+3}], s60 offen offset:64
        {lgd}:
        ''')
    else: store2([32,36],vGs,'s60')
    tstamp(10)
    for n,(k,p) in enumerate(DEF):
        if k=='2':
            lp=e.label('Lnp')
            if cfg.post: e(f's_cmp_eq_u32 s15, 0\ns_cbranch_scc1 {lp}')
            pickup_cols('X2', X2, DOFF[n])
            e(f'{lp}:')
    e.c('---- H3a + down projection')
    look(3,2)
    if cfg.fine: stamp(e,cfg,1)
    def gusum(cnt=0):
        if cnt: e('s_waitcnt vmcnt(7)')
        e('''v_lshlrev_b32 v32, 16, v16
        v_and_b32 v33, 0xffff0000, v16
        v_lshlrev_b32 v34, 16, v17
        v_and_b32 v35, 0xffff0000, v17''')
        for i in range(1,8):
            if cnt: e(f's_waitcnt vmcnt({7-i})')
            e(f'''v_dot2_f32_bf16 v32, v{16+2*i}, s61, v32
            v_dot2_f32_bf16 v33, v{16+2*i}, s62, v33
            v_dot2_f32_bf16 v34, v{17+2*i}, s61, v34
            v_dot2_f32_bf16 v35, v{17+2*i}, s62, v35''')
    fast([(16+2*i,2,vH3,'s48' if i==0 else f's{51+i}',0) for i in range(8)], gusum, nan2(32,34), True)
    tstamp(11)
    rnd_vec(e,32,4,20)
    e(f'''
    v_mul_f32 v20, 0xbfb8aa3b, v32
    v_mul_f32 v21, 0xbfb8aa3b, v34
    v_exp_f32 v20, v20
    v_exp_f32 v21, v21
    v_add_f32 v20, 1.0, v20
    v_add_f32 v21, 1.0, v21
    v_rcp_f32 v20, v20
    v_rcp_f32 v21, v21
    v_mul_f32 v32, v32, v20
    v_mul_f32 v34, v34, v21
    v_cvt_pk_bf16_f32 v20, v32, v34
    v_lshlrev_b32 v32, 16, v20
    v_and_b32 v34, 0xffff0000, v20
    v_mul_f32 v32, v32, v33
    v_mul_f32 v34, v34, v35
    v_cvt_pk_bf16_f32 v16, v32, v34
    ds_write_b32 v{vXw}, v16
    ''')
    mmx([X2],[32,36],vXr)
    store2([32,36],vZs,'s59')
    if cfg.fine: stamp(e,cfg,2)
    e('s_branch L_fin\nL_red:')
    e.c('---- H2a: reducers')
    l2=e.label('Lnoh2a')
    e(f'''
    s_cmp_ge_u32 s3, 2
    s_cbranch_scc1 L_fin
    s_mul_i32 s40, s98, {YS}
    s_add_u32 s40, s40, {WS_Y}
    s_add_u32 s51, s40, 4096
    s_lshl_b32 s52, s98, 7
    s_add_u32 s52, s52, {WS_X1}
    s_lshr_b32 s53, s98, 2
    s_lshl_b32 s53, s53, 7
    s_and_b32 s54, s98, 3
    s_lshl_b32 s54, s54, 3
    s_add_u32 s53, s53, s54
    s_add_u32 s53, s53, {WS_ST}
    s_mov_b32 s54, 0xffff
    s_mov_b32 s55, 0xffff
    v_mov_b32 v61, 0
    ''')
    look(1,1)
    if cfg.fine: stamp(e,cfg,14)
    fast([(16+4*i,4,vRow,'s40' if i<4 else 's51',(i&3)*1024) for i in range(8)], lambda c=0: red_tail(8,c), nan2(16,17), True)
    if cfg.fine: stamp(e,cfg,15)
    gate_res(RX+2,RX,16)
    e(f'''
    v_min_u32 v16, -2, v16
    v_lshlrev_b32 v{RX}, 16, v16
    v_and_b32 v{RX+1}, 0xffff0000, v16
    s_mov_b64 exec, s[54:55]
    buffer_store_dword v16, v{vRo}, s[{SWS}:{SWS+3}], s52 offen sc1
    s_mov_b64 exec, -1
    v_add_f32 v18, v{RX}, v{RX+1}
    v_mul_f32 v19, v{RX}, v{RX}
    v_fmac_f32 v19, v{RX+1}, v{RX+1}
    ''')
    allred_s('v_add_f32',[18,19],20,rors=(8,4,2,1),swaps=('v_permlane32_swap_b32',))
    e(f'''
    v_min_u32 v18, -2, v18
    v_min_u32 v19, -2, v19
    s_mov_b64 exec, 1
    buffer_store_dwordx2 v[18:19], v61, s[{SWS}:{SWS+3}], s53 offen sc1
    s_mov_b64 exec, -1
    ''')
    tstamp(8)
    e(f'''
    s_mul_i32 s40, s98, {ZS}
    s_add_u32 s40, s40, {WS_Z}
    s_add_u32 s51, s40, 4096
    s_lshl_b32 s52, s98, 7
    v_add_u32 v{vA}, s52, v{vRo}
    ''')
    e.c('---- H3b: final reducers')
    if cfg.local:
        lz=e.label('Lz');
        e(f's_sleep {cfg.dlyz}\ns_cmp_lg_u32 s14, 0\ns_cbranch_scc1 {lz}\ns_sleep {int(cfg.dly.split(",")[4])-cfg.dlyz}\n{lz}:')
    else: look(4)
    if cfg.fine: stamp(e,cfg,3)
    fast([(16+4*i,4,vRow,'s40' if i<4 else 's51',(i&3)*1024) for i in range(7)], lambda c=0: red_tail(7,c), nan2(16,17), True)
    tstamp(12)
    gate_res(RX+4,RX,16)
    e(f'''
    s_mov_b64 exec, s[54:55]
    global_store_dword v{vA}, v16, s[{P_OUT}:{P_OUT+1}]
    s_mov_b64 exec, -1
    L_fin:
    ''')
    stamp(e,cfg,13)
    if cfg.stamps: e('s_add_u32 s3, s3, 4')
    if cfg.fine: e('s_waitcnt lgkmcnt(0)\ns_mov_b32 s72, s100\ns_mov_b32 s73, 0')
    stamps_out(e,cfg,16,vA)
    e('s_endpgm')
    for f in OOL: f()

def gen(cfg):
    set_order(cfg.order, cfg.defer)
    e=A()
    e(f'''
    s_cmp_ge_u32 s2, 256
    s_cbranch_scc1 L_exit
    {'s_memrealtime s[78:79]' if cfg.stamps else ''}
    s_load_dwordx16 s[4:19], s[0:1], 0
    s_getpc_b64 s[48:49]
    L_pc:
    s_sub_u32 s48, s48, L_pc-{KN}
    s_subb_u32 s49, s49, 0
    s_lshl_b32 s40, s2, 4
    s_add_u32 s40, s40, role_table-{KN}
    s_load_dwordx4 s[92:95], s[48:49], s40
    s_load_dwordx8 s[20:27], s[0:1], 64
    s_load_dwordx4 s[28:31], s[0:1], 96
    v_lshrrev_b32 v2, 6, v0
    v_and_b32 v1, 63, v0
    v_readfirstlane_b32 s3, v2
    v_lshlrev_b32 v3, 7, v0
    s_cmp_ge_u32 s3, 5
    s_cbranch_scc1 L_nopf
    global_load_dword v255, v3, s[48:49]
    L_nopf:
    ''')
    e('s_cmp_ge_u32 s3, 4\ns_cbranch_scc1 L_aux')
    stream(e,cfg)
    aux(e,cfg)
    e('L_exit:\ns_endpgm')
    import rolemap
    tab,rho=rolemap.build(odd=cfg.odd,c3=cfg.c3,qx=cfg.qx,lx=cfg.lx,bx=cfg.bx,lunits=44 if '2' in cfg.defer else 42)
    e('.p2align 8\n.type role_table,@object\nrole_table:')
    for t in tab: e('.long '+', '.join(str(x) for x in t))
    e('.size role_table, 4096')
    e('.p2align 8\n.fill (40960+256-(.-'+KN+'))/4, 4, 0xbf800000')
    doc = """; Fused adaLN + GQA decode attention + SwiGLU block in one launch: 256 workgroups (one per CU) of 8 waves.
;
"""
    hdr = (f'; diagnostic build (generated by gen2.py) {getattr(cfg,"args","")}\n' if cfg.stamps else doc) + f'; @launch grid=(256,1,1) block=(512,1,1) lds={LDS_BYTES}\n.amdgcn_target "amdgcn-amd-amdhsa--gfx950"\n'
    return hdr + khead(KN) + e.text() + kd(KN, 256)

if __name__=='__main__':
    cfg=Cfg()
    out=sys.argv[1]
    cfg.args=' '.join(sys.argv[2:])
    for kv in sys.argv[2:]:
        k,val=kv.split('=')
        cur=getattr(cfg,k)
        setattr(cfg,k, (val not in ('0','False')) if isinstance(cur,bool) else type(cur)(val.replace('+',' ')) if not isinstance(cur,int) else int(val,0))
    open(out,'w').write(gen(cfg))
```

```python
import sys
from asmgen import *
KN='adaLN_cond__gqa_block_cached__glu_gated_swiglu__decode_kernel'

import os
PAD = int(os.environ.get('PAD','128'))
OS  = 2048+PAD
YS  = 8192+PAD
GS  = 14336+PAD
ZS  = 7168+PAD
MNS = 12288+PAD
MGS = 4096+PAD
MUS = 8192+PAD
QS  = 16384+PAD
WS_O   = 0
WS_Y   = WS_O+256*OS
WS_GU  = WS_Y+64*YS
WS_Z   = WS_GU+32*GS
WS_MN  = WS_Z+64*ZS
WS_MG  = WS_MN+16*MNS
WS_ML  = WS_MG+32*MGS
WS_X1  = WS_ML+16384
WS_ST  = WS_X1+8192
WS_CP  = WS_ST+2048
WS_TS  = WS_CP+2048
WS_Q   = WS_TS+16384
FLATSH = -(-(WS_Q+16*QS)//(256*128))*128
WS_MU  = 256*FLATSH
WS_H   = WS_MU+16*MUS
WS_SA  = WS_H+8192
WS_END = WS_SA+1024
WS_STAMP = 0x400000
RING = 0x8000
L_RED  = 0x20000
L_AX   = 0x22400; XSTR = 320
L_QOP  = 0x24000; QSTR = 272
L_ML   = 0x24900
L_ST   = 0x24A00
L_FLAG = 0x24B00
LDS_BYTES = 0x24C00
OSTR = 528
F_LAND = 0
F_CONS = 32
F_Q = 64; F_ML = 68; F_O = 72; F_AUX = 76; F_V = 80; F_F = 84; F_P = 88; F_M = 92; F_P2 = 96; F_C = 100; F_P3 = 104; F_L = 108; F_A = 112; F_V2 = 116
P_X,P_K,P_V,P_WQ,P_WO,P_BX,P_W1,P_W3,P_W2,P_C,P_WM,P_OUT,P_DBG,P_WS = [4+2*i for i in range(14)]
LOG2E = 0x3fb8aa3b
SCALE = 0x3db504f3

class Cfg:
    D=2; D0=4
    N=4
    NV=4
    deep=16
    vsig=2
    sleep_ml=32
    pol='nt'
    stamps=False
    round_s=True
    round_ln=True
    sleep_head=8
    sleep_tail=1
    order='E'
    qgate=25
    ack='1111'
    dly='0,8,53,2,93'
    tstamps=True
    gwin=True; gwsub=4
    nlate=True
    dlyr=1
    glate=True
    mlloc=True
    tslate=True
    vsig2=4
    mlonce=True
    NL2=0
    cnt=True
    ool=True
    repf=0
    post=False
    local=True
    dlyloc=2; dlyz=85; gsub=11
    early=0
    dlyl=0
    h1gap=4
    h1pipe=0
    direct=True
    mgate=0
    tlb=0
    help=0
    helpn=2; helppol='nt'
    obar=True
    h1nan=True
    sa0=True
    sclear=0
    vwall=0
    warm=False
    safter=3
    odd=0.7; c3=0.0035; qx=0.6; lx=0.8; bx=1.0
    hgate=20
    hafter=3
    bo_n=16; bo_s=0
    cpol='sc1'
    kill=''
    lsleep=0
    prio2=2
    sprio=0
    ustamps=True
    defer=''
    round_ln2=False
    fine=False
    pairs=True
    NL=6; NH=8
    adapt=0
    rank=13
    lightdeep=False
    qafter=5
    NK=4; kdeep=16
    sleep_q=12
    hold=False
    prio=2
    gpoll=8192
    lpoll=1<<17

from gen1 import lds_signal, stamp, srd, allreduce64, unpack, rnd_vec, rnd1
import gen1
gen1.WS_STAMP = WS_STAMP
from gen1 import stamps_out, lds_spin, gather
SWS=44

def roles(e, part=3):
    if part&1:
        e('''
        s_waitcnt lgkmcnt(0)
        s_mov_b32 s34, s92
        s_mov_b32 s35, s95
        s_lshr_b32 s15, s93, 25
        ''')
    if part&2:
        e('''
        s_and_b32 s37, s2, 15
        s_lshr_b32 s38, s2, 4
        s_and_b32 s99, s93, 255
        s_cmp_ge_u32 s99, 64
        s_cselect_b32 s33, 1, 0
        s_cmp_ge_u32 s99, 192
        s_cselect_b32 s33, 2, s33
        s_bfe_u32 s36, s93, 0x20008
        s_bfe_u32 s39, s93, 0x6000a
        s_bfe_u32 s101, s93, 0x80010
        s_bfe_u32 s0, s93, 0x10018
        s_and_b32 s63, s94, 255
        s_bfe_u32 s1, s94, 0x80008
        s_lshr_b32 s14, s94, 16
        ''')

UNITS=[]
GROUPS=['J','WO','X0','X1','X2','X3']
def set_order(order, defer=''):
    U=lambda k,n: [(k,i) for i in range(n)]
    W=U('WO',2)+U('X0',2)+U('X1',2)+([] if '2' in defer else U('X2',2))+U('X3',2)
    K=U('K',16)
    if order=='A': UNITS[:] = U('J',4)+W+K+U('V',16)
    elif order=='E': UNITS[:] = U('J',4)+W[:2]+W[6:]+W[2:6]+K+U('V',16)
    elif order=='H': UNITS[:] = U('J',4)+W[:2]+W[8:]+W[2:6]+K+W[6:8]+U('V',16)
    elif order=='F': UNITS[:] = U('J',4)+W[6:]+W[:6]+K+U('V',16)
    elif order=='G': UNITS[:] = U('J',4)+W[:2]+W[6:]+K[:2]+W[2:6]+K[2:]+U('V',16)
    elif order=='C':
        mix=[]
        for i in range(8): mix+=[W[i],K[i]]
        UNITS[:] = U('J',4)+mix+W[8:]+K[8:]+U('V',16)
    elif order=='D':
        mix=[]
        for i in range(8): mix+=[K[i],W[i]]
        UNITS[:] = U('J',4)+mix+W[8:]+K[8:]+U('V',16)
def upos(kind,i): return UNITS.index((kind,i))
def slot(kind,i): return (upos(kind,i)%8)*4096

def stream(e, cfg):
    D=cfg.D; pol=cfg.pol
    vL=1; vK=2; vV=6; vW=8; vSw=10; vR=12; vFl=13; vOne=14; vT=15
    vKR=16; vVR=20; vX=28; vRJ=45
    Q=48; S=64; ST=128; P=128; O=160; VF=192
    SK,SV,SW = 44,48,52
    e.c('================= stream waves =================')
    e('L_stream:')
    if cfg.sprio: e(f's_setprio {cfg.sprio}')
    e(f'''
    v_lshrrev_b32 v{vR}, 4, v{vL}
    v_and_b32 v{vX+1}, 15, v{vL}
    v_lshlrev_b32 v{vX+6}, 1, v{vR}
    v_xor_b32 v{vX+6}, v{vX+6}, v{vX+1}
    v_lshlrev_b32 v{vSw}, 4, v{vX+6}
    v_xor_b32 v{vSw+1}, 128, v{vSw}
    v_and_b32 v{vRJ}, 2, v{vR}
    v_lshlrev_b32 v{vRJ}, 1, v{vRJ}
    v_and_or_b32 v{vRJ}, v{vR}, 1, v{vRJ}
    s_lshl_b32 s32, s3, 15
    s_mov_b32 s{SW+3}, 0x20000
    s_mov_b32 s96, 0
    s_lshl_b32 s43, s3, 6
    ''')
    roles(e,1)
    stamp(e,cfg,0)
    e('''
    s_cmp_eq_u32 s15, 0
    s_cbranch_scc1 L_go
    s_barrier
    L_go:
    ''')
    st = dict(issued=0, landed=-1, signaled=set())
    def pairwait(n,k):
        if not cfg.pairs or n<cfg.D0: return
        tot=4*n+k
        known=4*(st['landed']+1)
        if tot-known>cfg.NH:
            e(f's_waitcnt vmcnt({cfg.NH})'); note_landed((tot-cfg.NH)//4-1)
        NL = cfg.NL2 if (cfg.adapt==3 and n>upos('K',15)) else cfg.NL
        if tot-known>NL and NL<cfg.NH:
            lb=e.label('Lw')
            e(f's_cmp_lg_u32 s96, 0\ns_cbranch_scc1 {lb}\ns_waitcnt vmcnt({NL})\n{lb}:')
    def dma(voff, srdreg, soff, i):
        e(f'buffer_load_dwordx4 v{voff}, s[{srdreg}:{srdreg+3}], {soff} offen offset:{i*1024} {pol} lds')
    def tile_setup(kind, t):
        def ptr(a,b): e(f's_cselect_b32 s{SW}, s{a}, s{b}\ns_cselect_b32 s{SW+1}, s{a+1}, s{b+1}')
        if kind=='J':
            if t==0:
                e('s_cmp_eq_u32 s35, 8192'); ptr(P_WQ,P_WM)
                e(f'''s_mov_b32 s{SW+2}, {1024*6144*2}
                s_cselect_b32 s{SW+2}, {1024*4096*2}, s{SW+2}
                s_mov_b32 s56, s35
                s_mul_i32 s58, s43, s35
                s_add_u32 s58, s58, s34
                s_mov_b32 s57, s58''')
            else: e('s_lshl_b32 s40, s35, 1\ns_add_u32 s57, s58, s40')
        elif kind=='WO':
            e(f'''s_mov_b32 s{SW}, s{P_WO}
            s_mov_b32 s{SW+1}, s{P_WO+1}
            s_mov_b32 s{SW+2}, {4096*1024*2}
            s_mov_b32 s56, 2048
            s_and_b32 s40, s14, 7
            s_lshl_b32 s57, s40, 18
            s_lshl_b32 s40, s3, 21
            s_add_u32 s57, s57, s40
            s_bfe_u32 s40, s14, 0x20003
            s_lshl_b32 s40, s40, 16
            s_add_u32 s57, s57, s40
            s_lshr_b32 s40, s14, 5
            s_lshl_b32 s40, s40, 8
            s_add_u32 s57, s57, s40''')
        elif kind in ('X0','X1'):
            t = int(kind[1])
            if t==0:
                e(f'''s_and_b32 s40, s63, 7
                s_lshl_b32 s40, s40, 2
                s_add_u32 s40, s40, s3
                s_mul_i32 s59, s40, {32*7168}
                s_lshr_b32 s40, s63, 3
                s_lshl_b32 s40, s40, 8
                s_add_u32 s59, s59, s40''')
            e(f'''s_sub_u32 s40, s101, s39
            s_lshl_b32 s40, s40, 8
            s_add_u32 s40, s40, s58
            s_add_u32 s40, s40, {t*2*12288}
            s_cmp_lt_u32 s99, 224''')
            ptr(P_W3 if t else P_W1, P_WM)
            e(f'''s_mov_b32 s{SW+2}, {1024*6144*2}
            s_cselect_b32 s{SW+2}, {0 if str(t) in cfg.defer else 1024*3584*2}, s{SW+2}
            s_mov_b32 s56, 12288
            s_cselect_b32 s56, 7168, s56
            s_cselect_b32 s57, s59, s40''')
        elif kind=='X2':
            e(f'''s_lshr_b32 s40, s1, 3
            s_lshl_b32 s57, s40, 18
            s_lshl_b32 s40, s3, 16
            s_add_u32 s57, s57, s40
            s_and_b32 s40, s1, 7
            s_lshl_b32 s40, s40, 8
            s_add_u32 s57, s57, s40
            s_mov_b32 s{SW}, s{P_W2}
            s_mov_b32 s{SW+1}, s{P_W2+1}
            s_cmp_lt_u32 s99, 224
            s_cselect_b32 s{SW+2}, {1024*3584*2}, 0
            s_mov_b32 s56, 2048''')
            if cfg.post: e(f's_cmp_eq_u32 s97, 0\ns_cselect_b32 s{SW+2}, s{SW+2}, 0')
        elif kind=='X3':
            e(f'''s_and_b32 s40, s101, 7
            s_lshl_b32 s40, s40, 2
            s_add_u32 s40, s40, s3
            s_mul_i32 s57, s40, {32*12288}
            s_lshr_b32 s40, s101, 3
            s_lshl_b32 s40, s40, 8
            s_add_u32 s57, s57, s40
            s_add_u32 s57, s57, {40*256}
            s_mov_b32 s{SW}, s{P_WM}
            s_mov_b32 s{SW+1}, s{P_WM+1}
            s_cmp_lg_u32 s0, 0
            s_cselect_b32 s{SW+2}, {1024*6144*2}, 0
            s_mov_b32 s56, 12288''')
        if kind=='J': e(f'v_mov_b32 v{vX+8}, v{vRJ}\ns_mov_b32 s41, 1')
        elif kind in ('WO','X2','X3'): e(f'v_mov_b32 v{vX+8}, v{vR}\ns_mov_b32 s41, 0')
        else: e(f's_cselect_b64 vcc, 0, -1\ns_cselect_b32 s41, 0, 1\nv_cndmask_b32 v{vX+8}, v{vR}, v{vRJ}, vcc')
        e(f'''v_mad_u32_u24 v{vW}, v{vX+8}, s56, v{vSw}
        v_mad_u32_u24 v{vW+1}, v{vX+8}, s56, v{vSw+1}
        s_lshl_b32 s61, s56, s41
        s_lshl_b32 s60, s61, 3
        s_sub_u32 s60, s60, 1024
        s_lshl_b32 s61, s61, 2''')
    def emit_unit(n):
        kind,i = UNITS[n]
        if kind in GROUPS:
            if (i&1)==0: tile_setup(kind,i>>1); e('s_mov_b32 s41, s57')
            else: e('s_add_u32 s41, s57, s61')
            e(f's_add_u32 m0, s32, {(n%8)*4096}')
            for k in range(4):
                if k%2==0: pairwait(n,k)
                dma(vW+(k&1), SW, 's41', k)
                if k<3: e('s_add_u32 s41, s41, s60')
        else:
            e(f's_add_u32 s41, s62, {i*16384}\ns_add_u32 m0, s32, {(n%8)*4096}')
            for k in range(4):
                if k%2==0: pairwait(n,k)
                dma((vK+k) if kind=='K' else (vV+(k&1)), SK if kind=='K' else SV, 's41', k)
    def note_landed(n):
        st['landed']=max(st['landed'],n)
        for gi,g in enumerate(GROUPS):
            if (g,0) not in UNITS: continue
            last=max(k for k,u in enumerate(UNITS) if u[0]==g)
            if last<=st['landed'] and g not in st['signaled']:
                st['signaled'].add(g); lds_signal(e, F_LAND+4*gi, vFl, vOne)
                if g=='J': stamp(e,cfg,6)
    consumed=set()
    def issue(n):
        assert n==st['issued']
        if cfg.pairs and n==5: wait_landed(3)
        if n>=cfg.D0 and not cfg.pairs:
            N = cfg.NV if n>=upos('V',0)+cfg.deep else (cfg.NK if upos('K',min(cfg.kdeep,15))+(cfg.kdeep>15)<=n<upos('V',0) else cfg.N)
            full = n-1-(N+3)//4
            if st['landed']<n-1-N//4:
                e(f's_waitcnt vmcnt({N})'); note_landed(full)
        if n>=8 and UNITS[n-8][0]=='K' and UNITS[n-8][1]<8:
            stage(UNITS[n-8][1]); e('s_waitcnt lgkmcnt(0)')
        if n>=8:
            g=UNITS[n-8][0]
            if g in GROUPS and g not in consumed:
                last=max(k for k,u in enumerate(UNITS) if u[0]==g)
                if g not in st['signaled']: wait_landed(last)
                consumed.add(g); lds_spin(e,cfg,F_CONS+4*GROUPS.index(g),4,vFl,vT)
        if cfg.vwall and n==upos('V',cfg.vwall): lds_spin(e,cfg,F_F,1,vFl,vT)
        if cfg.stamps and cfg.ustamps: e(f's_memrealtime s[82:83]\ns_waitcnt lgkmcnt(0)\nv_writelane_b32 v47, s82, {n}')
        emit_unit(n); st['issued']=n+1
        if cfg.qgate and n==cfg.qgate: lds_signal(e,F_P,vFl,vOne)
        if cfg.hgate and n==cfg.hgate: lds_signal(e,F_P2,vFl,vOne)
        if cfg.mgate and n==cfg.mgate: lds_signal(e,F_P3,vFl,vOne)
        if cfg.help and n==upos('V',cfg.help): lds_signal(e,F_C,vFl,vOne)
    def stage(u):
        wait_landed(upos('K',u))
        for k in range(4):
            r=ST+(u%8)*16+4*k
            e(f'ds_read_b128 v[{r}:{r+3}], v{vKR+k} offset:{slot("K",u)}')
    def wait_landed(n):
        if st['landed']>=n: return
        e(f's_waitcnt vmcnt({4*(st["issued"]-1-n)})'); note_landed(n)
    if cfg.sclear:
        q4=FLATSH//4; nf=q4//1024; rem=q4%1024
        srd(e,SK,P_WS,WS_END)
        e(f'''
        v_mov_b32 v40, -1
        v_mov_b32 v41, -1
        v_mov_b32 v42, -1
        v_mov_b32 v43, -1
        v_lshlrev_b32 v39, 4, v{vL}
        s_mul_i32 s40, s2, {FLATSH}
        s_mul_i32 s41, s3, {q4}
        s_add_u32 s41, s40, s41
        ''')
        if cfg.sclear==2: issue(0)
        if cfg.sclear==2: e(f's_mul_i32 s40, s2, {FLATSH}\ns_mul_i32 s41, s3, {q4}\ns_add_u32 s41, s40, s41')
        for i in range(nf): e(f'buffer_store_dwordx4 v[40:43], v39, s[{SK}:{SK+3}], s41 offen offset:{1024*i} {cfg.cpol}')
        if rem:
            e(f'''v_cmp_gt_u32 vcc, {rem//16}, v{vL}
            s_and_b64 exec, exec, vcc
            buffer_store_dwordx4 v[40:43], v39, s[{SK}:{SK+3}], s41 offen offset:{1024*nf} {cfg.cpol}
            s_mov_b64 exec, -1''')
    for n in range(st['issued'],cfg.D0):
        issue(n)
        if n==0: roles(e,2)
    if cfg.lightdeep: e('s_cmp_ge_u32 s99, 224\ns_cselect_b32 s96, 1, 0')
    srd(e,SK,P_K,0x4000000); srd(e,SV,P_V,0x4000000)
    e(f'''
    s_lshl_b32 s62, s37, 22
    s_lshl_b32 s40, s38, 18
    s_add_u32 s62, s62, s40
    s_lshl_b32 s40, s3, 12
    s_add_u32 s62, s62, s40
    v_xor_b32 v{vX+6}, v{vX+1}, v{vR}
    v_lshlrev_b32 v{vX+7}, 8, v{vR}
    v_lshl_add_u32 v{vK}, v{vX+6}, 4, v{vX+7}
    v_xor_b32 v{vK+1}, 64, v{vK}
    v_xor_b32 v{vK+2}, 128, v{vK}
    v_xor_b32 v{vK+3}, 192, v{vK}
    v_add_u32 v{vV}, v{vSw}, v{vX+7}
    v_add_u32 v{vV+1}, v{vSw+1}, v{vX+7}
    v_lshlrev_b32 v{vX+7}, 8, v{vX+1}
    v_lshl_add_u32 v{vKR}, v{vX+6}, 4, v{vX+7}
    v_add_u32 v{vKR}, s32, v{vKR}
    v_xor_b32 v{vKR+1}, 64, v{vKR}
    v_xor_b32 v{vKR+2}, 128, v{vKR}
    v_xor_b32 v{vKR+3}, 192, v{vKR}
    v_lshrrev_b32 v{vX+2}, 2, v{vL}
    v_and_b32 v{vX+5}, 3, v{vL}
    v_lshlrev_b32 v{vX+6}, 8, v{vX+2}
    v_and_b32 v{vX+7}, 7, v{vX+2}
    v_lshl_add_u32 v{vX+6}, v{vX+7}, 5, v{vX+6}
    v_lshl_add_u32 v{vX+6}, v{vX+5}, 3, v{vX+6}
    v_add_u32 v{vVR}, s32, v{vX+6}
    ''')
    for ct in range(1,8): e(f'v_xor_b32 v{vVR+ct}, {ct<<5}, v{vVR}')
    e(f'''
    v_mov_b32 v{vFl}, {L_FLAG}
    v_mov_b32 v{vOne}, 1
    s_cmp_lg_u32 s15, 0
    s_cbranch_scc1 L_go2
    s_barrier
    L_go2:
    ''')
    V0=upos('V',0); NX=upos('K',15)+1
    for n in range(cfg.D0, NX): issue(n)
    def qk(u):
        for k in range(4):
            r=ST+(u%8)*16+4*k
            e(f'v_mfma_f32_16x16x32_bf16 v[{S+4*u}:{S+4*u+3}], v[{r}:{r+3}], v[{Q+4*k}:{Q+4*k+3}], '+('0' if k==0 else f'v[{S+4*u}:{S+4*u+3}]'))
    vM=vX; vLs=vX+1; t0=vX+2
    def rnd(u):
        for h in range(2):
            a0=S+4*u+2*h; a1=a0+1; t=t0+h
            if cfg.round_s:
                e(f'''v_cvt_pk_bf16_f32 v{t}, v{a0}, v{a1}
                v_lshlrev_b32 v{a0}, 16, v{t}
                v_and_b32 v{a1}, 0xffff0000, v{t}''')
            e(f'v_mul_f32 v{a0}, s42, v{a0}\nv_mul_f32 v{a1}, s42, v{a1}')
            if cfg.round_s:
                e(f'''v_cvt_pk_bf16_f32 v{t}, v{a0}, v{a1}
                v_lshlrev_b32 v{a0}, 16, v{t}
                v_and_b32 v{a1}, 0xffff0000, v{t}''')
            if u==0 and h==0: e(f'v_max_f32 v{vM}, v{a0}, v{a1}')
            else: e(f'v_max3_f32 v{vM}, v{vM}, v{a0}, v{a1}')
    stamp(e,cfg,1)
    e.c('---- all of K is on chip: wait for q, then scores and softmax')
    lds_spin(e,cfg,F_Q,4,vFl,vT)
    if cfg.adapt==3: e(f's_cmp_le_u32 s41, {cfg.rank}\ns_cselect_b32 s96, 1, 0')
    stamp(e,cfg,2)
    e(f'''
    v_and_b32 v{vX+6}, 7, v{vL}
    v_mul_u32_u24 v{vX+6}, {QSTR}, v{vX+6}
    v_lshl_add_u32 v{vX+6}, v{vR}, 4, v{vX+6}
    v_add_u32 v{vX+6}, {L_QOP}, v{vX+6}
    s_mov_b32 s42, {SCALE:#x}
    s_mov_b32 s43, {LOG2E:#x}
    ''')
    for k in range(4): e(f'ds_read_b128 v[{Q+4*k}:{Q+4*k+3}], v{vX+6} offset:{64*k}')
    if cfg.adapt==1: e(f'ds_read_b32 v{vT}, v{vFl} offset:{F_M}')
    e('s_waitcnt lgkmcnt(0)')
    if cfg.adapt==1: e(f'v_readfirstlane_b32 s96, v{vT}')
    if cfg.adapt not in (1,3): e('s_mov_b32 s96, 0')
    if cfg.post: e(f'ds_read_b32 v{vT}, v{vFl} offset:{F_M}\ns_waitcnt lgkmcnt(0)\nv_readfirstlane_b32 s97, v{vT}')
    for u in range(D):
        qk(u); stage(8+u); e('s_waitcnt lgkmcnt(0)'); issue(NX+u)
    for u in range(D,8):
        qk(u); stage(8+u)
    e('s_waitcnt lgkmcnt(0)')
    for u in range(8,16): qk(u)
    nxt=[NX+D]
    def more():
        if nxt[0]<V0+8:
            if cfg.adapt==2 and nxt[0]>=V0+7:
                e(f'ds_read_b32 v{vT}, v{vFl} offset:{F_M}\ns_waitcnt lgkmcnt(0)\nv_readfirstlane_b32 s96, v{vT}')
            issue(nxt[0]); nxt[0]+=1
    more()
    for u in range(16):
        rnd(u)
        if u in (5,10,15): more()
    e(f'''
    v_mov_b32 v{t0}, v{vM}
    v_permlane32_swap_b32 v{t0}, v{vM}
    v_max_f32 v{vM}, v{vM}, v{t0}
    v_mov_b32 v{t0}, v{vM}
    v_permlane16_swap_b32 v{t0}, v{vM}
    v_max_f32 v{vM}, v{vM}, v{t0}
    v_mul_f32 v{vM}, s43, v{vM}
    ''')
    for u in range(16):
        for r in range(4): e(f'v_fma_f32 v{S+4*u+r}, v{S+4*u+r}, s43, -v{vM}')
        for r in range(4): e(f'v_exp_f32 v{S+4*u+r}, v{S+4*u+r}')
        if u==0: e(f'v_add_f32 v{vLs}, v{S}, v{S+1}')
        else: e(f'v_add_f32 v{vLs}, v{vLs}, v{S+4*u}\nv_add_f32 v{vLs}, v{vLs}, v{S+4*u+1}')
        e(f'''v_cvt_pk_bf16_f32 v{P+2*u}, v{S+4*u}, v{S+4*u+1}
        v_add_f32 v{vLs}, v{vLs}, v{S+4*u+2}
        v_add_f32 v{vLs}, v{vLs}, v{S+4*u+3}
        v_cvt_pk_bf16_f32 v{P+2*u+1}, v{S+4*u+2}, v{S+4*u+3}''')
        if u in (7,): more()
    e(f'''
    v_mov_b32 v{t0}, v{vLs}
    v_permlane32_swap_b32 v{t0}, v{vLs}
    v_add_f32 v{vLs}, v{vLs}, v{t0}
    v_mov_b32 v{t0}, v{vLs}
    v_permlane16_swap_b32 v{t0}, v{vLs}
    v_add_f32 v{vLs}, v{vLs}, v{t0}
    s_lshl_b32 s40, s3, 6
    s_add_u32 s40, s40, {L_ML}
    v_lshl_add_u32 v{t0}, v{vL}, 3, s40
    s_mov_b64 exec, 0xff
    ds_write_b64 v{t0}, v[{vM}:{vM+1}]
    s_waitcnt lgkmcnt(0)
    s_mov_b64 exec, -1
    ''')
    lds_signal(e,F_ML,vFl,vOne)
    stamp(e,cfg,3)
    while nxt[0]<V0+8: more()
    e.c('---- P.V')
    for j in range(8):
        wait_landed(V0+2*j+1)
        if j==7: stamp(e,cfg,4)
        for ct in range(8):
            for hf in range(2):
                r=VF+4*ct+2*hf
                e(f'ds_read_b64_tr_b16 v[{r}:{r+1}], v{vVR+ct} offset:{slot("V",2*j+hf)}')
        for ct in range(8):
            e(f's_waitcnt lgkmcnt({14-2*ct})')
            e(f'v_mfma_f32_16x16x32_bf16 v[{O+4*ct}:{O+4*ct+3}], v[{VF+4*ct}:{VF+4*ct+3}], v[{P+4*j}:{P+4*j+3}], '+('0' if j==0 else f'v[{O+4*ct}:{O+4*ct+3}]'))
        if cfg.adapt==2 and j<3:
            e(f'ds_read_b32 v{vT}, v{vFl} offset:{F_M}\ns_waitcnt lgkmcnt(0)\nv_readfirstlane_b32 s96, v{vT}')
        for k in range(2):
            if V0+2*j+8+k < len(UNITS): issue(V0+2*j+8+k)
        if j==cfg.vsig: lds_signal(e,F_V,vFl,vOne)
        if cfg.vsig2 and j==cfg.vsig2: lds_signal(e,F_V2,vFl,vOne)
        if j==6:
            e(f'''
            v_and_b32 v{t0}, 15, v{vL}
            v_mul_u32_u24 v{t0}, {OSTR}, v{t0}
            v_lshl_add_u32 v{t0}, v{vR}, 4, v{t0}
            v_add_u32 v{t0}, s32, v{t0}
            v_add_u32 v{t0}, {(slot('V',15)+4096)%RING}, v{t0}
            s_mov_b32 s40, 0x00ff00ff
            s_mov_b32 s41, 0x00ff00ff
            ''')
    e('s_mov_b64 exec, s[40:41]')
    for ct in range(8): e(f'ds_write_b128 v{t0}, v[{O+4*ct}:{O+4*ct+3}] offset:{64*ct}')
    e('s_waitcnt lgkmcnt(0)\ns_mov_b64 exec, -1')
    if cfg.obar: e('s_barrier')
    else: lds_signal(e,F_O,vFl,vOne)
    stamp(e,cfg,5)
    if cfg.help:
        lh=e.label('Lnohelp')
        srd(e,SW,P_WS,WS_END)
        e(f'''
        s_lshl_b32 s40, s37, 7
        s_add_u32 s40, s40, {WS_CP}
        v_and_b32 v{vX}, 15, v{vL}
        v_lshlrev_b32 v{vX}, 2, v{vX}
        buffer_load_dword v{vX+1}, v{vX}, s[{SW}:{SW+3}], s40 offen sc1
        v_lshlrev_b32 v{vX}, 4, v{vL}
        s_waitcnt vmcnt(0)
        v_cmp_eq_u32 vcc, -1, v{vX+1}
        s_lshr_b32 s40, vcc_lo, s38
        s_and_b32 s40, s40, 0xfffe
        s_cbranch_scc0 {lh}
        s_ff1_i32_b32 s40, s40
        s_add_u32 s40, s40, s38
        s_and_b32 s40, s40, 15
        s_sub_u32 s40, s40, s38
        s_lshl_b32 s40, s40, 18
        s_add_u32 s41, s62, s40
        ''')
        for u in range(15,15-cfg.helpn,-1):
            e(f's_add_u32 s40, s41, {u*16384}')
            for k in range(4): e(f'buffer_load_dwordx4 v[{64+16*(15-u)+4*k}:{67+16*(15-u)+4*k}], v{vX}, s[{SV}:{SV+3}], s40 offen offset:{1024*k} {cfg.helppol}')
        e(f's_waitcnt vmcnt(0)\n{lh}:')
    stamps_out(e,cfg,8,vX+4)
    if cfg.stamps:
        e(f'''s_lshl_b32 s40, s2, 2
        s_add_u32 s40, s40, s3
        s_lshl_b32 s40, s40, 8
        s_add_u32 s40, s40, {WS_STAMP+0x40000}
        v_lshl_add_u32 v46, v{vL}, 2, s40
        global_store_dword v46, v47, s[{P_WS}:{P_WS+1}]''')
    e('s_waitcnt lgkmcnt(0)\ns_endpgm')

def aux(e, cfg):
    global gather
    real_gather = gen1.gather
    phase = ['h']
    def gather(e, cfg, loads, vchk, sleep, **kw):
        if phase[0] in cfg.kill: e('s_mov_b32 s41, 1'); return
        real_gather(e, cfg, loads, vchk, sleep, **kw)
    vL=1; vFl=2; vOne=3; vT=4; vRow=5; vRd=6; vRr=7; vA=8
    X2=64; X0=96; X1=128; WO=160; WJ=192
    vHq=62; vRo=63; RN=64; RX=66
    OOFF=(slot('V',15)+4096)%RING
    e.c('================= aux waves =================')
    e('L_aux:')
    e(f'''
    s_setprio {cfg.prio}
    s_sub_u32 s3, s3, 4
    s_lshl_b32 s32, s3, 15
    v_lshlrev_b32 v{vRow}, 4, v{vL}
    v_mov_b32 v{vFl}, {L_FLAG}
    v_mov_b32 v{vOne}, 1
    v_mov_b32 v16, 0
    v_lshl_add_u32 v{vA+1}, v{vL}, 2, v{vFl}
    ds_write_b32 v{vA+1}, v16
    v_mov_b32 v32, -1
    v_mov_b32 v33, -1
    v_mov_b32 v34, -1
    v_mov_b32 v35, -1
    v_bfe_u32 v{vA+2}, v{vL}, 2, 2
    v_lshrrev_b32 v{vA+3}, 4, v{vL}
    v_and_b32 v{vA+6}, 3, v{vL}
    v_lshl_add_u32 v{vA+3}, v{vA+3}, 2, v{vA+6}
    v_lshlrev_b32 v{vA+2}, 11, v{vA+2}
    v_lshl_add_u32 v{vA}, v{vA+3}, 3, v{vA+2}
    ''')
    roles(e,3)
    e(f'''
    s_lshl_b32 s40, s36, 9
    s_lshl_b32 s41, s3, 7
    s_add_u32 s40, s40, s41
    v_add_u32 v{vA}, s40, v{vA}
    s_lshl_b32 s40, s3, 11
    v_add_u32 v{vA+1}, s40, v{vRow}
    v_lshl_add_u32 v{vA+5}, v{vA+3}, 2, v{vA+2}
    s_and_b32 s40, s101, 7
    s_lshl_b32 s40, s40, 8
    s_lshl_b32 s41, s3, 6
    s_add_u32 s40, s40, s41
    v_add_u32 v{vA+5}, s40, v{vA+5}
    s_waitcnt lgkmcnt(0)
    ''')
    stamp(e,cfg,0)
    if cfg.tlb:
        e(f'''
        s_lshl_b32 s40, s37, 22
        s_lshl_b32 s41, s38, 18
        s_add_u32 s40, s40, s41
        s_load_dword s51, s[{P_K}:{P_K+1}], s40
        s_load_dword s52, s[{P_V}:{P_V+1}], s40
        s_and_b32 s40, s14, 7
        s_lshl_b32 s40, s40, 18
        s_lshl_b32 s41, s3, 21
        s_add_u32 s40, s40, s41
        s_load_dword s53, s[{P_WO}:{P_WO+1}], s40
        s_and_b32 s40, s63, 7
        s_lshl_b32 s40, s40, 2
        s_add_u32 s40, s40, s3
        s_mul_i32 s40, s40, {32*7168}
        s_load_dword s54, s[{P_W1}:{P_W1+1}], s40
        s_load_dword s55, s[{P_W3}:{P_W3+1}], s40
        s_lshr_b32 s40, s1, 3
        s_lshl_b32 s40, s40, 18
        s_load_dword s56, s[{P_W2}:{P_W2+1}], s40
        s_load_dword s57, s[{P_OUT}:{P_OUT+1}], 0
        s_lshl_b32 s40, s3, 19
        s_load_dword s58, s[{P_WS}:{P_WS+1}], s40
        ''')
    srd(e,SWS,P_WS,WS_END)
    lh=e.label('Lnohead')
    e(f'''
    s_cmp_eq_u32 s15, 0
    s_cbranch_scc1 {lh}
    s_cmp_lg_u32 s3, 3
    s_cbranch_scc1 {lh}_b
    s_sub_u32 s41, s15, 32
    s_lshr_b32 s40, s41, 3
    s_mul_i32 s40, s40, {MUS}
    s_and_b32 s42, s41, 7
    s_lshl_b32 s42, s42, 9
    s_add_u32 s40, s40, s42
    s_add_u32 s40, s40, {WS_MU}
    s_add_u32 s42, s40, {8*MUS}
    s_add_u32 s43, s40, 4096
    s_add_u32 s48, s42, 4096
    v_lshrrev_b32 v{vA+4}, 5, v{vL}
    v_mul_u32_u24 v{vA+4}, {4*MUS}, v{vA+4}
    v_and_b32 v{vA+6}, 31, v{vL}
    v_lshl_add_u32 v{vA+4}, v{vA+6}, 4, v{vA+4}
    buffer_store_dwordx4 v[32:35], v{vA+4}, s[{SWS}:{SWS+3}], s40 offen sc1
    buffer_store_dwordx4 v[32:35], v{vA+4}, s[{SWS}:{SWS+3}], s42 offen sc1
    buffer_store_dwordx4 v[32:35], v{vA+4}, s[{SWS}:{SWS+3}], s43 offen sc1
    buffer_store_dwordx4 v[32:35], v{vA+4}, s[{SWS}:{SWS+3}], s48 offen sc1
    s_cmp_lt_u32 s15, 63
    s_cbranch_scc1 {lh}_c
    s_mov_b32 s40, {WS_SA}
    buffer_store_dwordx4 v[32:35], v{vRow}, s[{SWS}:{SWS+3}], s40 offen sc1
    {lh}_c:
    s_lshl_b32 s41, s41, 2
    v_mov_b32 v{vA+4}, s41
    {'s_waitcnt vmcnt(0)' if cfg.hold else 's_barrier'}
    {'' if cfg.hold else 's_waitcnt vmcnt(0)'}
    s_mov_b64 exec, 1
    global_store_dword v{vA+4}, v{vOne}, s[{P_DBG}:{P_DBG+1}] sc1
    s_mov_b64 exec, -1
    {'' if cfg.hold else 's_branch '+lh}
    {lh}_b:
    s_barrier
    {lh}:
    v_mov_b32 v{vHq}, v{vA}
    v_and_b32 v{vA+2}, 15, v{vL}
    v_lshlrev_b32 v{vRo}, 3, v{vA+2}
    v_lshrrev_b32 v{vA+2}, 5, v{vL}
    v_lshl_add_u32 v{vRo}, v{vA+2}, 2, v{vRo}
    s_cmp_eq_u32 s33, 1
    s_cbranch_scc1 {'L_qx' if cfg.direct else 'L_nox'}
    global_load_dwordx2 v[16:17], v{vA}, s[{P_C}:{P_C+1}]
    global_load_dword v18, v{vA+5}, s[{P_C}:{P_C+1}]
    s_cmp_lt_u32 s99, 224
    s_cbranch_scc1 L_nox
    s_cmp_ge_u32 s3, 2
    s_cbranch_scc1 L_nox
    s_sub_u32 s98, s99, 224
    s_lshl_b32 s98, s98, 1
    s_add_u32 s98, s98, s3
    s_lshr_b32 s40, s98, 4
    s_lshl_b32 s40, s40, 11
    v_add_u32 v{vA+1}, s40, v{vRow}
    s_lshl_b32 s40, s98, 7
    v_add_u32 v{vA+2}, s40, v{vRo}
    global_load_dwordx4 v[24:27], v{vA+1}, s[{P_X}:{P_X+1}]
    global_load_dwordx4 v[28:31], v{vA+1}, s[{P_X}:{P_X+1}] offset:1024
    global_load_dword v19, v{vA+2}, s[{P_X}:{P_X+1}]
    ''')
    if cfg.direct:
        e(f'''
        s_branch L_nox
        L_qx:
        s_lshl_b32 s40, s3, 11
        v_add_u32 v{vA+1}, s40, v{vRow}
        global_load_dwordx2 v[16:17], v{vA}, s[{P_X}:{P_X+1}]
        global_load_dwordx4 v[24:27], v{vA+1}, s[{P_X}:{P_X+1}]
        global_load_dwordx4 v[28:31], v{vA+1}, s[{P_X}:{P_X+1}] offset:1024
        ''')
    e(f'''
    L_nox:
    s_cmp_lg_u32 s15, 0
    s_cbranch_scc1 L_nobar
    s_barrier
    L_nobar:
    s_mov_b32 s50, 0
    s_mul_i32 s40, s3, 2304
    s_add_u32 s40, s40, {L_RED}
    v_lshrrev_b32 v{vA+2}, 4, v{vL}
    v_mul_u32_u24 v{vRd}, 576, v{vA+2}
    v_and_b32 v{vA+2}, 15, v{vL}
    v_lshl_add_u32 v{vRd}, v{vA+2}, 2, v{vRd}
    v_add_u32 v{vRd}, s40, v{vRd}
    s_mul_i32 s40, s3, 1152
    s_add_u32 s40, s40, {L_RED}
    v_lshrrev_b32 v{vA+2}, 5, v{vL}
    v_mul_u32_u24 v{vRr}, 576, v{vA+2}
    v_and_b32 v{vA+2}, 31, v{vL}
    v_lshl_add_u32 v{vRr}, v{vA+2}, 4, v{vRr}
    v_add_u32 v{vRr}, s40, v{vRr}
    ''')
    q4=FLATSH//4; nf=q4//1024; rem=q4%1024
    lc=e.label('Lclr'); lc2=e.label('Lclrd')
    e(f'''
    s_mul_i32 s40, s2, {FLATSH}
    s_mul_i32 s41, s3, {q4}
    s_add_u32 s41, s40, s41
    {'s_mov_b32 s46, 0' if 'c' in cfg.kill else ''}
    ''')
    if cfg.sclear: nf=0; rem=0
    for i in range(nf): e(f'buffer_store_dwordx4 v[32:35], v{vRow}, s[{SWS}:{SWS+3}], s41 offen offset:{1024*i} {cfg.cpol}')
    if rem:
        e(f'''v_cmp_gt_u32 vcc, {rem//16}, v{vL}
        s_and_b64 exec, exec, vcc
        buffer_store_dwordx4 v[32:35], v{vRow}, s[{SWS}:{SWS+3}], s41 offen offset:{1024*nf} {cfg.cpol}
        s_mov_b64 exec, -1''')
    nst=nf+(1 if rem else 0)
    lr0=if_red_early=e.label('Lnrc')
    e(f'''
    s_cmp_lt_u32 s99, 224
    s_cbranch_scc1 {lr0}
    s_cmp_ge_u32 s3, 2
    s_cbranch_scc1 {lr0}
    s_lshl_b32 s40, s98, 7
    s_add_u32 s40, s40, {WS_H}
    buffer_store_dword v32, v{vRo}, s[{SWS}:{SWS+3}], s40 offen sc1
    s_waitcnt vmcnt({nst+1})
    s_branch {lc2}
    {lr0}:
    s_waitcnt vmcnt({nst})
    {lc2}:
    ''')
    stamp(e,cfg,14)
    if 'c' in cfg.kill: e(f's_mov_b32 s46, {WS_END}')
    if 'h' in cfg.kill: e('s_mov_b32 s46, 0')
    def pub_addr(base, rs, skq, scg):
        e(f'''
        s_lshl_b32 s40, {skq}, 1
        s_add_u32 s40, s40, s3
        s_mul_i32 s40, s40, {2*rs}
        s_lshl_b32 s41, {scg}, 9
        s_add_u32 s40, s40, s41
        s_add_u32 s40, s40, {base}
        v_lshrrev_b32 v{vA}, 5, v{vL}
        v_mul_u32_u24 v{vA}, {rs}, v{vA}
        v_and_b32 v{vA+1}, 31, v{vL}
        v_lshl_add_u32 v{vA}, v{vA+1}, 4, v{vA}
        ''')
    def auxbar():
        e('s_add_u32 s50, s50, 4\ns_waitcnt lgkmcnt(0)')
        lds_signal(e,F_AUX,vFl,vOne)
        lds_spin(e,cfg,F_AUX,'s50',vFl,vT)
    def go1a():
        if 'h' in cfg.kill: return
        la=e.label('Lnogo')
        e(f'''
        v_and_b32 v61, 31, v{vL}
        v_lshlrev_b32 v61, 2, v61
        s_cmp_lg_u32 s3, 3
        s_cbranch_scc1 {la}
        global_load_dword v60, v61, s[{P_DBG}:{P_DBG+1}] sc1
        {la}:
        ''')
    def go1():
        if 'h' in cfg.kill: return
        l=e.label('Lgo'); d=e.label('Lgod'); la=e.label('Lnogo')
        e(f'''
        s_cmp_lg_u32 s3, 3
        s_cbranch_scc1 {la}
        s_mov_b32 s41, 0
        {l}:
        s_add_u32 s41, s41, 1
        s_waitcnt vmcnt(0)
        v_cmp_ne_u32 vcc, 1, v60
        s_cbranch_vccz {d}
        s_sleep {cfg.sleep_head}
        global_load_dword v60, v61, s[{P_DBG}:{P_DBG+1}] sc1
        s_cmp_lt_u32 s41, {cfg.gpoll}
        s_cbranch_scc1 {l}
        {d}:
        ''')
        stamp(e,cfg,15)
        e(f'{la}:\ns_waitcnt vmcnt(0)')
    def arrive():
        la=e.label('Lnoarr')
        if 'a' in cfg.kill: return
        e(f'''
        s_cmp_lg_u32 s3, 3
        s_cbranch_scc1 {la}
        s_and_b32 s40, s2, 7
        s_lshl_b32 s40, s40, 5
        s_lshr_b32 s41, s2, 3
        s_add_u32 s40, s40, s41
        s_lshl_b32 s40, s40, 2
        s_add_u32 s40, s40, {WS_SA}
        s_getreg_b32 s41, hwreg(HW_REG_XCC_ID, 0, 4)
        s_add_u32 s41, s41, 1
        v_mov_b32 v{vA}, 0
        v_mov_b32 v{vA+1}, s41
        s_mov_b64 exec, 1
        buffer_store_dword v{vA+1}, v{vA}, s[{SWS}:{SWS+3}], s40 offen sc1
        s_mov_b64 exec, -1
        {la}:
        ''')
    def gbar1():
        l1=e.label('Lgb1')
        if 'a' in cfg.kill:
            e(f's_cmp_lg_u32 s3, 0\ns_cbranch_scc1 {l1}'); lds_signal(e,F_L,vFl,vOne); e(f'{l1}:'); return
        e(f's_cmp_lg_u32 s3, 0\ns_cbranch_scc1 {l1}\ns_mov_b32 s40, {WS_SA}')
        gather(e,cfg,[(24,4,vRow,'s40',0)],vT,cfg.sleep_head)
        if cfg.local:
            e(f'''
            v_xor_b32 v25, v25, v24
            v_xor_b32 v26, v26, v24
            v_xor_b32 v27, v27, v24
            v_or3_b32 v25, v25, v26, v27
            v_mov_b32_dpp v26, v24 row_ror:1 row_mask:0xf bank_mask:0xf
            v_xor_b32 v26, v26, v24
            v_and_b32 v27, 7, v{vL}
            v_cmp_eq_u32 vcc, 0, v27
            v_cndmask_b32 v26, v26, 0, vcc
            v_or_b32 v25, v25, v26
            v_cmp_ne_u32 vcc, 0, v25
            s_cbranch_vccnz {l1}
            ''')
            lds_signal(e,F_L,vFl,vOne)
        e(f'{l1}:')
    def pickup(kind, dsts):
        gi=GROUPS.index(kind)
        e(f'''v_lshrrev_b32 v{vA+7}, 2, v{vL}
        v_lshlrev_b32 v{vA}, 8, v{vA+7}
        v_and_b32 v{vA+7}, 7, v{vA+7}
        v_lshl_add_u32 v{vA}, v{vA+7}, 5, v{vA}
        v_and_b32 v{vA+7}, 3, v{vL}
        v_lshl_add_u32 v{vA}, v{vA+7}, 3, v{vA}
        v_add_u32 v{vA}, s32, v{vA}''')
        for ct in range(1,8): e(f'v_xor_b32 v{vA+ct}, {ct<<5}, v{vA}')
        lds_spin(e,cfg,F_LAND+4*gi,4,vFl,vT)
        for t,W in enumerate(dsts):
            sk=None
            if isinstance(W,tuple):
                W=W[0]; sk=e.label('Lsk'); e(f's_cmp_eq_u32 s0, 0\ns_cbranch_scc1 {sk}')
            for ct in range(8):
                for hf in range(2):
                    r=W+4*ct+2*hf
                    e(f'ds_read_b64_tr_b16 v[{r}:{r+1}], v{vA+ct} offset:{slot(kind,2*t+hf)}')
            if sk: e(f'{sk}:')
        e('s_waitcnt lgkmcnt(0)')
        lds_signal(e,F_CONS+4*gi,vFl,vOne)
    def pickup_cols(kind, W, base=None):
        gi=GROUPS.index(kind)
        e(f'''v_lshrrev_b32 v{vA+7}, 2, v{vL}
        v_lshlrev_b32 v{vA}, 8, v{vA+7}
        v_and_b32 v{vA+7}, 7, v{vA+7}
        s_lshl_b32 s40, s3, 1
        v_xor_b32 v{vA+7}, s40, v{vA+7}
        v_lshl_add_u32 v{vA}, v{vA+7}, 5, v{vA}
        v_and_b32 v{vA+7}, 3, v{vL}
        v_lshl_add_u32 v{vA}, v{vA+7}, 3, v{vA}
        v_xor_b32 v{vA+1}, 32, v{vA}
        v_add_u32 v{vA+2}, 0x10000, v{vA}
        v_add_u32 v{vA+3}, 0x10000, v{vA+1}''')
        if base is None: lds_spin(e,cfg,F_LAND+4*gi,4,vFl,vT)
        for t in range(4):
            for j in range(2):
                for hf in range(2):
                    r=W+8*t+4*j+2*hf
                    e(f'ds_read_b64_tr_b16 v[{r}:{r+1}], v{vA+2*(t>>1)+j} offset:{(t&1)*RING+(slot(kind,hf) if base is None else base+4096*hf)}')
        if base is None:
            e('s_waitcnt lgkmcnt(0)')
            lds_signal(e,F_CONS+4*gi,vFl,vOne)
    def pickup_x(kind, W):
        la=e.label('Lpl'); lb=e.label('Lpld')
        e(f's_cmp_ge_u32 s99, 224\ns_cbranch_scc1 {la}')
        if kind[1] in cfg.defer: lds_signal(e,F_CONS+4*GROUPS.index(kind),vFl,vOne)
        else: pickup_cols(kind,W)
        e(f's_branch {lb}\n{la}:')
        pickup(kind,[W])
        e(f'{lb}:')
    def mmx(Ws, accs, vXr):
        e('s_waitcnt lgkmcnt(0)\ns_barrier')
        for t in range(4): e(f'ds_read_b128 v[{16+4*t}:{19+4*t}], v{vXr} offset:{64*t}')
        for t in range(4):
            e(f's_waitcnt lgkmcnt({3-t})')
            for m,W in enumerate(Ws):
                for j in range(2):
                    ac=accs[2*m+j]
                    e(f'v_mfma_f32_16x16x32_bf16 v[{ac}:{ac+3}], v[{16+4*t}:{19+4*t}], v[{W+8*t+4*j}:{W+8*t+4*j+3}], '+('0' if t==0 else f'v[{ac}:{ac+3}]'))
    def mm(As, Ws, accs, redoff=0):
        for t,(a_,W) in enumerate(zip(As,Ws)):
            for ct in range(8):
                e(f'v_mfma_f32_16x16x32_bf16 v[{accs[ct]}:{accs[ct]+3}], v[{a_}:{a_+3}], v[{W+4*ct}:{W+4*ct+3}], '+('0' if t==0 else f'v[{accs[ct]}:{accs[ct]+3}]'))
        for ct in range(8): e(f'ds_write_b32 v{vRd}, v{accs[ct]} offset:{64*ct}')
    JACC=[24+4*i for i in range(8)]
    def job_sum(dst):
        lp=e.label('Lnosum')
        e(f's_cmp_ge_u32 s3, 2\ns_cbranch_scc1 {lp}')
        for w in range(4): e(f'ds_read_b128 v[{24+4*w}:{27+4*w}], v{vRr} offset:{2304*w}')
        e('s_waitcnt lgkmcnt(0)')
        for a_,b_,d_ in ((24,28,24),(32,36,32),(24,32,dst)):
            e(f'v_pk_add_f32 v[{d_}:{d_+1}], v[{a_}:{a_+1}], v[{b_}:{b_+1}]\nv_pk_add_f32 v[{d_+2}:{d_+3}], v[{a_+2}:{a_+3}], v[{b_+2}:{b_+3}]')
        for r in range(4): e(f'v_min_u32 v{dst+r}, -2, v{dst+r}')
        e(f'{lp}:')
    def job_store(src, base, rs, cgoff, skq='s36', scg='s39'):
        lp=e.label('Lnopub')
        e(f's_cmp_ge_u32 s3, 2\ns_cbranch_scc1 {lp}')
        pub_addr(base+cgoff*512, rs, skq, scg)
        e(f'buffer_store_dwordx4 v[{src}:{src+3}], v{vA}, s[{SWS}:{SWS+3}], s40 offen sc1\n{lp}:')
    def job_pub(base, rs, cgoff, skq='s36', scg='s39'):
        job_sum(24); job_store(24, base, rs, cgoff, skq, scg)
    def spread(r):
        for k in (1,2,3,0): e(f'v_mov_b32_dpp v{r+k}, v{r} quad_perm:[{k},{k},{k},{k}] row_mask:0xf bank_mask:0xf')
    def silu_A():
        unpack(e,16,32,3)
        for i in range(6): e(f'v_mul_f32 v{48+i}, 0xbfb8aa3b, v{32+i}')
        for i in range(6): e(f'v_exp_f32 v{48+i}, v{48+i}')
        for i in range(6): e(f'v_add_f32 v{48+i}, 1.0, v{48+i}')
        for i in range(6): e(f'v_rcp_f32 v{48+i}, v{48+i}')
        for i in range(6): e(f'v_mul_f32 v{32+i}, v{32+i}, v{48+i}')
        e('v_cvt_pk_bf16_f32 v16, v32, v33\nv_cvt_pk_bf16_f32 v20, v34, v35\nv_cvt_pk_bf16_f32 v56, v36, v37')
        spread(16); spread(20); spread(56)
    def sum4(r, dst):
        e(f'''v_pk_add_f32 v[{r}:{r+1}], v[{r}:{r+1}], v[{r+2}:{r+3}]
        v_pk_add_f32 v[{r+4}:{r+5}], v[{r+4}:{r+5}], v[{r+6}:{r+7}]
        v_pk_add_f32 v[{dst}:{dst+1}], v[{r}:{r+1}], v[{r+4}:{r+5}]''')
    def aoff(dst, pstr, bstr, gstr):
        e(f'''v_bfe_u32 v{vA+5}, v{vL}, 2, 2
        v_and_b32 v{vA+6}, 3, v{vL}
        v_lshrrev_b32 v{vA+7}, 4, v{vL}
        v_mul_u32_u24 v{dst}, {pstr}, v{vA+5}
        v_mul_u32_u24 v{vA+6}, {bstr}, v{vA+6}
        v_mul_u32_u24 v{vA+7}, {gstr}, v{vA+7}
        v_add3_u32 v{dst}, v{dst}, v{vA+6}, v{vA+7}''')
    def dppsum(r0, n):
        for r in (4,8):
            for i in range(n): e(f'v_add_f32_dpp v{r0+i}, v{r0+i}, v{r0+i} row_ror:{r} row_mask:0xf bank_mask:0xf')
    def allred_s(op, xs, t, rors=(4,8), swaps=('v_permlane16_swap_b32','v_permlane32_swap_b32')):
        for r in rors:
            for x in xs: e(f'{op}_dpp v{x}, v{x}, v{x} row_ror:{r} row_mask:0xf bank_mask:0xf')
        for sw in swaps:
            for k,x in enumerate(xs): e(f'v_mov_b32 v{t+k}, v{x}')
            for k,x in enumerate(xs): e(f'{sw} v{t+k}, v{x}')
            for k,x in enumerate(xs): e(f'{op} v{x}, v{x}, v{t+k}')
    def gather_q():
        e(f'''
        s_lshr_b32 s40, s37, 2
        s_mul_i32 s40, s40, {QS}
        s_and_b32 s41, s37, 3
        s_lshl_b32 s41, s41, 12
        s_add_u32 s40, s40, s41
        s_lshl_b32 s41, s3, 10
        s_add_u32 s40, s40, s41
        s_add_u32 s52, s40, {WS_Q}
        s_add_u32 s53, s52, {4*QS}
        s_add_u32 s54, s52, {8*QS}
        s_add_u32 s55, s52, {12*QS}
        ''')
        gather(e,cfg,[(24+4*i,4,vRow,f's{52+i}',0) for i in range(4)],vT,cfg.sleep_q)
        e(f'''
        s_mov_b32 s42, s41
        v_pk_add_f32 v[24:25], v[24:25], v[28:29]
        v_pk_add_f32 v[26:27], v[26:27], v[30:31]
        v_pk_add_f32 v[32:33], v[32:33], v[36:37]
        v_pk_add_f32 v[34:35], v[34:35], v[38:39]
        v_pk_add_f32 v[24:25], v[24:25], v[32:33]
        v_pk_add_f32 v[26:27], v[26:27], v[34:35]
        s_mul_i32 s40, s3, {2*QSTR}
        s_add_u32 s40, s40, {L_QOP}
        v_lshrrev_b32 v{vA}, 5, v{vL}
        v_mul_u32_u24 v{vA}, {QSTR}, v{vA}
        v_and_b32 v{vA+1}, 31, v{vL}
        v_lshl_add_u32 v{vA}, v{vA+1}, 3, v{vA}
        v_add_u32 v{vA}, s40, v{vA}
        v_cvt_pk_bf16_f32 v24, v24, v25
        v_cvt_pk_bf16_f32 v25, v26, v27
        ds_write_b64 v{vA}, v[24:25]
        ''')
        if cfg.adapt==1 or cfg.post:
            lb=e.label('Lld')
            e(f's_cmp_lg_u32 s42, 1\ns_cbranch_scc1 {lb}')
            if cfg.post: e(f's_cmp_lg_u32 s3, 0\ns_cbranch_scc1 {lb}')
            lds_signal(e,F_M,vFl,vOne)
            e(f'{lb}:')
        e('s_waitcnt lgkmcnt(0)')
        lds_signal(e,F_Q,vFl,vOne)
    early = True
    def finish_stats(mu,var):
        if cfg.round_ln: rnd1(e,mu); rnd1(e,var)
        e(f'v_add_f32 v{var}, 0x3727c5ac, v{var}')
        if cfg.round_ln: rnd1(e,var)
        e(f'v_sqrt_f32 v{var}, v{var}')
        if cfg.round_ln: rnd1(e,var)
        e(f'v_rcp_f32 v{var}, v{var}')
    def normalise(X,n,mu,rs,t):
        for i in range(n): e(f'v_sub_f32 v{X+i}, v{X+i}, v{mu}')
        if cfg.round_ln: rnd_vec(e,X,n,t)
        for i in range(n): e(f'v_mul_f32 v{X+i}, v{X+i}, v{rs}')
        if cfg.round_ln: rnd_vec(e,X,n,t)
    def modulate(X,n,T1,SB,out,t,prep=True):
        if prep:
            for i in range(n): e(f'v_add_f32 v{T1+i}, 1.0, v{T1+i}')
            if cfg.round_ln: rnd_vec(e,T1,n,t)
        for i in range(n): e(f'v_mul_f32 v{X+i}, v{X+i}, v{T1+i}')
        if cfg.round_ln: rnd_vec(e,X,n,t)
        for i in range(n): e(f'v_add_f32 v{X+i}, v{X+i}, v{SB+i}')
        for i in range(n//2): e(f'v_cvt_pk_bf16_f32 v{out+i}, v{X+2*i}, v{X+2*i+1}')
    def rowsum(r):
        e(f'''
        v_permlane32_swap_b32 v{r}, v{r+2}
        v_permlane32_swap_b32 v{r+1}, v{r+3}
        v_pk_add_f32 v[{r}:{r+1}], v[{r}:{r+1}], v[{r+2}:{r+3}]
        v_mov_b32 v{r+2}, v{r}
        v_mov_b32 v{r+3}, v{r+1}
        v_permlane16_swap_b32 v{r+2}, v{r}
        v_permlane16_swap_b32 v{r+3}, v{r+1}
        v_pk_add_f32 v[{r}:{r+1}], v[{r}:{r+1}], v[{r+2}:{r+3}]
        ''')
    def if_red():
        l=e.label('Lnr')
        e(f's_cmp_lt_u32 s99, 224\ns_cbranch_scc1 {l}\ns_cmp_ge_u32 s3, 2\ns_cbranch_scc1 {l}')
        return l
    def red_addr(base, rs, sreg):
        aoff(vA, 64, 16, 4*rs)
        e(f'''s_lshr_b32 s42, s98, 4
        s_mul_i32 s42, s42, {rs}
        s_and_b32 s43, s98, 15
        s_lshl_b32 s43, s43, 8
        s_add_u32 s42, s42, s43
        s_add_u32 {sreg}, s42, {base}''')
    def red_stats():
        l=if_red()
        if not cfg.direct: row_stats()
        unpack(e,19,RX,1)
        if not cfg.direct:
            unpack(e,19,RN,1)
            normalise(RN,2,24,25,26)
        e(f'{l}:')
    def row_stats():
        unpack(e,24,32,8)
        mu=24; var=25; a_=26; b_=27
        e(f'v_add_f32 v{mu}, v32, v33\nv_add_f32 v{a_}, v34, v35')
        for i in range(4,16,2): e(f'v_add_f32 v{mu}, v{mu}, v{32+i}\nv_add_f32 v{a_}, v{a_}, v{33+i}')
        e(f'v_add_f32 v{mu}, v{mu}, v{a_}')
        allreduce64(e,'v_add_f32',mu,a_)
        e(f'v_mul_f32 v{mu}, 0x3a800000, v{mu}')
        e(f'v_sub_f32 v{a_}, v32, v{mu}\nv_sub_f32 v{b_}, v33, v{mu}\nv_mul_f32 v{var}, v{a_}, v{a_}\nv_mul_f32 v28, v{b_}, v{b_}')
        for i in range(2,16,2):
            e(f'v_sub_f32 v{a_}, v{32+i}, v{mu}\nv_sub_f32 v{b_}, v{33+i}, v{mu}\nv_fmac_f32 v{var}, v{a_}, v{a_}\nv_fmac_f32 v28, v{b_}, v{b_}')
        e(f'v_add_f32 v{var}, v{var}, v28')
        allreduce64(e,'v_add_f32',var,a_)
        e(f'v_mul_f32 v{var}, 0x3a800000, v{var}')
        finish_stats(mu,var)
    def red_sa0():
        l=if_red()
        e(f'''v_and_b32 v28, 15, v{vL}
        v_lshlrev_b32 v28, 4, v28
        s_mov_b32 s40, {WS_SA}
        buffer_load_dwordx4 v[24:27], v28, s[{SWS}:{SWS+3}], s40 offen sc1
        {l}:''')
    def red_sa():
        l=if_red()
        if cfg.sa0:
            e(f'''s_waitcnt vmcnt(0)
            v_max3_u32 v24, v24, v25, v26
            v_max_u32 v24, v24, v27
            v_cmp_eq_u32 vcc, -1, v24
            s_cbranch_vccz {l}''')
        e(f'v_and_b32 v{vA}, 15, v{vL}\nv_lshlrev_b32 v{vA}, 4, v{vA}\ns_mov_b32 s40, {WS_SA}')
        gather(e,cfg,[(24,4,vA,'s40',0)],vT,cfg.sleep_head)
        e(f'{l}:')
    def red_h():
        l=if_red()
        red_addr(WS_MU,MUS,'s52')
        e('s_add_u32 s53, s52, 4096')
        gather(e,cfg,[(24,4,vA,'s52',0),(28,4,vA,'s53',0)],vT,cfg.sleep_head)
        rowsum(24); rowsum(28)
        rnd_vec(e,24,2,26); rnd_vec(e,28,2,26)
        modulate(RN,2,28,24,24,26)
        e(f'''
        v_min_u32 v24, -2, v24
        s_lshl_b32 s40, s98, 7
        s_add_u32 s40, s40, {WS_H}
        s_mov_b32 s42, 0xffff
        s_mov_b32 s43, 0xffff
        s_mov_b64 exec, s[42:43]
        buffer_store_dword v24, v{vRo}, s[{SWS}:{SWS+3}], s40 offen sc1
        s_mov_b64 exec, -1
        {l}:
        ''')
    def red_ts():
        l=if_red()
        red_addr(WS_MN+4096,MNS,'s52')
        e('s_add_u32 s53, s52, 4096')
        gather(e,cfg,[(24,4,vA,'s52',0),(28,4,vA,'s53',0)],vT,cfg.sleep_head)
        rowsum(24); rowsum(28)
        rnd_vec(e,28,2,26)
        e(f'''
        v_add_f32 v28, 1.0, v28
        v_add_f32 v29, 1.0, v29
        v_cvt_pk_bf16_f32 v24, v28, v24
        v_cvt_pk_bf16_f32 v25, v29, v25
        v_min_u32 v24, -2, v24
        v_min_u32 v25, -2, v25
        v_lshlrev_b32 v{vA}, 1, v{vRo}
        s_lshl_b32 s40, s98, 8
        s_add_u32 s40, s40, {WS_TS}
        s_mov_b32 s42, 0xffff
        s_mov_b32 s43, 0xffff
        s_mov_b64 exec, s[42:43]
        buffer_store_dwordx2 v[24:25], v{vA}, s[{SWS}:{SWS+3}], s40 offen sc1
        s_mov_b64 exec, -1
        {l}:
        ''')
    def red_g():
        l=if_red()
        red_addr(WS_MN,MNS,'s52')
        if cfg.glate:
            gather(e,cfg,[(24,4,vA,'s52',0)],vT,cfg.sleep_head)
            rowsum(24)
            e(f'v_mov_b32 v{RX+2}, v24\nv_mov_b32 v{RX+3}, v25')
            rnd_vec(e,RX+2,2,26)
        else:
            e(f'v_mov_b32 v{vA+1}, v{vA}')
            red_addr(WS_MG,MGS,'s53')
            e(f's_add_u32 s54, s53, {16*MGS}')
            gather(e,cfg,[(24,4,vA+1,'s52',0),(28,4,vA,'s53',0),(32,4,vA,'s54',0)],vT,cfg.sleep_head)
            e('v_pk_add_f32 v[28:29], v[28:29], v[32:33]\nv_pk_add_f32 v[30:31], v[30:31], v[34:35]')
            rowsum(24); rowsum(28)
            e(f'v_mov_b32 v{RX+2}, v24\nv_mov_b32 v{RX+3}, v25\nv_mov_b32 v{RX+4}, v28\nv_mov_b32 v{RX+5}, v29')
            rnd_vec(e,RX+2,4,26)
        if cfg.warm: e(f'global_load_dword v24, v{vRo}, s[{P_OUT}:{P_OUT+1}]\ns_waitcnt vmcnt(0)')
        e(f'{l}:')
    def wpick(a=0,b=5):
        for g,d in sorted([t for t in [('WO',WO),('X0',X0),('X1',X1),('X2',X2),('X3',WJ)] if (t[0],0) in UNITS and upos(t[0],0)<upos('K',15)], key=lambda t: upos(t[0],0))[a:b]:
            if g=='X2':
                la=e.label('Lpl'); lb=e.label('Lpld')
                e(f's_cmp_ge_u32 s99, 224\ns_cbranch_scc1 {la}')
                pickup_cols(g,d)
                e(f's_branch {lb}\n{la}:')
                lds_signal(e,F_CONS+4*GROUPS.index(g),vFl,vOne)
                e(f'{lb}:')
            elif g=='WO': pickup_cols(g,d)
            elif g=='X3':
                la=e.label('Lpl'); lb=e.label('Lpld')
                e(f's_cmp_eq_u32 s0, 0\ns_cbranch_scc1 {la}')
                pickup(g,[d])
                e(f's_branch {lb}\n{la}:')
                lds_signal(e,F_CONS+4*GROUPS.index(g),vFl,vOne)
                e(f'{lb}:')
            else: pickup_x(g,d)
    def njobs():
        gbar1(); auxbar()
        if cfg.nlate: job_sum(224)
        else: job_pub(WS_MN,MNS,-16)
        ln=e.label('Lnoj2')
        e(f's_cmp_lt_u32 s99, 224\ns_cbranch_scc1 {ln}')
        auxbar(); mm([16,20],[X0,X1],JACC); auxbar()
        if cfg.nlate: job_sum(228)
        else: job_pub(WS_MN,MNS,-16,scg='s101')
        e(f'{ln}:')
    def gjob():
        lg=e.label('Lnog')
        e(f's_cmp_eq_u32 s0, 0\ns_cbranch_scc1 {lg}')
        mm([56],[WJ],JACC)
        if not cfg.glate:
            auxbar(); gpub(); auxbar()
        e(f'{lg}:')
    def gpub():
        e('s_and_b32 s42, s101, 7\ns_lshr_b32 s43, s101, 3')
        job_pub(WS_MG,MGS,0,'s42','s43')
    e('''
    s_cmp_eq_u32 s33, 1
    s_cbranch_scc1 L_roleQ
    ''')
    e.c('---- roles U (sa, ca) and N (ga, sb, cb): silu(c) x w_mod tile')
    red_stats(); silu_A(); go1a(); pickup('J',[WJ,WJ+32])
    mm([16,20],[WJ,WJ+32],JACC); go1(); auxbar(); arrive()
    e('s_cmp_eq_u32 s33, 2\ns_cbranch_scc1 L_roleN')
    job_pub(WS_MU,MUS,0)
    stamp(e,cfg,1)
    wpick(); gbar1(); auxbar()
    stamp(e,cfg,2)
    e('s_branch L_common')
    e('L_roleN:')
    stamp(e,cfg,1)
    wpick(0,cfg.hafter); stamp(e,cfg,12); (lds_spin(e,cfg,F_P3,4,vFl,vT) if cfg.mgate else None); stamp(e,cfg,14); (None if cfg.direct else red_h()); stamp(e,cfg,15); wpick(cfg.hafter,5); njobs()
    stamp(e,cfg,2)
    e('s_branch L_common')
    e('L_roleQ:')
    e.c('---- role Q: h = LN(x)(1+ca)+sa, q = h x wq tile')
    if cfg.direct:
        row_stats()
        e(f'''
        s_lshl_b32 s40, s3, 3
        s_add_u32 s40, s40, {L_ST}
        v_mov_b32 v{vA}, s40
        ds_write_b64 v{vA}, v[24:25]
        ''')
    go1a(); pickup('J',[WJ,WJ+32]); go1(); auxbar(); arrive()
    if cfg.direct:
        e(f'''
        v_bfe_u32 v{vA}, v{vL}, 2, 2
        v_lshlrev_b32 v{vA}, 3, v{vA}
        v_add_u32 v{vA}, {L_ST}, v{vA}
        ds_read_b64 v[24:25], v{vA}
        ''')
        unpack(e,16,56,2)
        e('s_waitcnt lgkmcnt(0)')
        normalise(56,4,24,25,26)
    wpick(0,cfg.qafter)
    gbar1(); auxbar()
    stamp(e,cfg,1)
    if cfg.hgate: lds_spin(e,cfg,F_P2,4,vFl,vT)
    if cfg.direct:
        aoff(vA, MUS, 16, 64)
        e(f'''
        s_lshl_b32 s40, s36, 10
        s_lshl_b32 s41, s3, 8
        s_add_u32 s40, s40, s41
        s_add_u32 s52, s40, {WS_MU}
        ''')
        for i in range(1,8): e(f's_add_u32 s{52+i}, s52, {(i&3)*4*MUS+(i>>2)*4096}')
        gather(e,cfg,[(16+4*i,4,vA,f's{52+i}',0) for i in range(8)],vT,cfg.sleep_head)
        stamp(e,cfg,14)
        if cfg.stamps: e('s_mov_b32 s94, s41\ns_mov_b32 s95, 0')
        for m in range(2):
            for h in range(2):
                r=16+16*m+2*h
                e(f'''v_pk_add_f32 v[{r}:{r+1}], v[{r}:{r+1}], v[{r+4}:{r+5}]
                v_pk_add_f32 v[{r+8}:{r+9}], v[{r+8}:{r+9}], v[{r+12}:{r+13}]
                v_pk_add_f32 v[{48+4*m+2*h}:{49+4*m+2*h}], v[{r}:{r+1}], v[{r+8}:{r+9}]''')
        rnd_vec(e,48,8,vA)
        modulate(56,4,52,48,24,vA)
        e('v_mov_b32 v16, v24\nv_mov_b32 v20, v25')
    else:
        e(f's_mov_b32 s40, {WS_H}')
        gather(e,cfg,[(16,2,vHq,'s40',0)],vT,cfg.sleep_head)
        stamp(e,cfg,14)
        if cfg.stamps: e('s_mov_b32 s94, s41\ns_mov_b32 s95, 0')
        e('v_mov_b32 v20, v17')
    spread(16); spread(20)
    mm([16,20],[WJ,WJ+32],JACC); auxbar()
    job_pub(WS_Q,QS,0)
    stamp(e,cfg,2)
    wpick(cfg.qafter,5)
    e('L_common:')
    e.c('---- all roles: q for this workgroup, gb half job, (1+cb, sb), split maxima and sums, addresses for the tail')
    if cfg.qgate: lds_spin(e,cfg,F_P,4,vFl,vT)
    gather_q()
    stamp(e,cfg,3)
    auxbar()
    if cfg.post:
        la=e.label('Lpl'); lb=e.label('Lpld')
        e(f'''
        ds_read_b32 v{vT}, v{vFl} offset:{F_M}
        s_waitcnt lgkmcnt(0)
        v_readfirstlane_b32 s15, v{vT}
        s_cmp_ge_u32 s99, 224
        s_cbranch_scc1 {la}
        s_cmp_lg_u32 s15, 0
        s_cbranch_scc1 {la}
        ''')
        pickup_cols('X2',X2)
        e(f's_branch {lb}\n{la}:')
        lds_signal(e,F_CONS+4*GROUPS.index('X2'),vFl,vOne)
        e(f'{lb}:')
    gjob()
    if not cfg.nlate: red_ts()
    e('s_mov_b32 s34, s36')
    if cfg.local: e(f'ds_read_b32 v{vT}, v{vFl} offset:{F_L}\ns_waitcnt lgkmcnt(0)\nv_readfirstlane_b32 s36, v{vT}')
    phase[0]='m'
    if 'h' in cfg.kill: e(f's_mov_b32 s46, {WS_END}')
    if 'm' in cfg.kill: e('s_mov_b32 s46, 0')
    F=192; T1=204; SB=206; AC2=[220+4*i for i in range(8)]
    lds_spin(e,cfg,F_ML,4,vFl,vT)
    lm=e.label('Lnoml')
    e(f'''
    s_cmp_lg_u32 s3, 0
    s_cbranch_scc1 {lm}
    v_and_b32 v{vA}, 7, v{vL}
    v_lshlrev_b32 v{vA+1}, 3, v{vA}
    v_add_u32 v{vA}, {L_ML}, v{vA+1}
    ds_read_b64 v[16:17], v{vA}
    ds_read_b64 v[18:19], v{vA} offset:64
    ds_read_b64 v[20:21], v{vA} offset:128
    ds_read_b64 v[22:23], v{vA} offset:192
    s_lshl_b32 s40, s37, 10
    s_lshl_b32 s41, s38, 6
    s_add_u32 s40, s40, s41
    s_add_u32 s40, s40, {WS_ML}
    s_waitcnt lgkmcnt(0)
    v_max3_f32 v24, v16, v18, v20
    v_max_f32 v24, v24, v22
    v_sub_f32 v16, v16, v24
    v_sub_f32 v18, v18, v24
    v_sub_f32 v20, v20, v24
    v_sub_f32 v22, v22, v24
    v_exp_f32 v16, v16
    v_exp_f32 v18, v18
    v_exp_f32 v20, v20
    v_exp_f32 v22, v22
    v_mul_f32 v25, v16, v17
    v_fmac_f32 v25, v18, v19
    v_fmac_f32 v25, v20, v21
    v_fmac_f32 v25, v22, v23
    v_min_u32 v24, -2, v24
    v_min_u32 v25, -2, v25
    s_mov_b64 exec, 0xff
    ''')
    if cfg.local and cfg.mlloc:
        e(f'''
        s_cmp_lg_u32 s36, 0
        s_cbranch_scc1 {lm}_l
        buffer_store_dwordx2 v[24:25], v{vA+1}, s[{SWS}:{SWS+3}], s40 offen sc1
        s_branch {lm}_d
        {lm}_l:
        buffer_store_dwordx2 v[24:25], v{vA+1}, s[{SWS}:{SWS+3}], s40 offen
        {lm}_d:
        ''')
    elif 'l' not in cfg.kill: e(f'buffer_store_dwordx2 v[24:25], v{vA+1}, s[{SWS}:{SWS+3}], s40 offen sc1')
    e(f'''
    s_mov_b64 exec, -1
    ''')
    if cfg.adapt==2:
        e(f'''
        s_lshl_b32 s40, s37, 10
        s_add_u32 s40, s40, {WS_ML}
        buffer_load_dword v16, v{vRow}, s[{SWS}:{SWS+3}], s40 offen sc1
        s_waitcnt vmcnt(0)
        v_cmp_ne_u32 vcc, -1, v16
        s_bcnt1_i32_b64 s40, vcc
        s_cmp_lt_u32 s40, {4*cfg.rank}
        s_cbranch_scc1 {lm}
        ''')
        lds_signal(e,F_M,vFl,vOne)
    e(f'{lm}:')
    vOc=48; vOs=49; vH1=50; vYs=53; vH3=55; vZs=56; vXs=57; vSt=58; vOc2=59; vGs=51; vXr=52; vXw=60
    if not cfg.nlate: red_g()
    aoff(vH1, OS, 16, 64*OS)
    aoff(vH3, 8, 32, GS)
    aoff(vXs, 4, 16, 2048)
    aoff(vYs, 16, 4, 16*YS)
    aoff(vZs, 16, 4, 16*ZS)
    aoff(vGs, 16, 4, GS)
    aoff(vXr, XSTR, 0, 16)
    aoff(vXw, 4, 16, XSTR)
    aoff(vSt, 128, 8, 512)
    e(f'''
    v_add_u32 v{vXr}, {L_AX}, v{vXr}
    s_lshl_b32 s40, s3, 6
    s_add_u32 s40, s40, {L_AX}
    v_add_u32 v{vXw}, s40, v{vXw}
    s_lshl_b32 s40, s3, 1
    v_lshrrev_b32 v{vA}, 5, v{vL}
    v_add_u32 v{vA+2}, s40, v{vA}
    v_mul_u32_u24 v{vOc}, {OSTR}, v{vA+2}
    v_and_b32 v{vA+1}, 31, v{vL}
    v_lshl_add_u32 v{vOc}, v{vA+1}, 4, v{vOc}
    v_add_u32 v{vOc}, {OOFF}, v{vOc}
    v_add_u32 v{vOc2}, 0x10000, v{vOc}
    v_lshlrev_b32 v{vOs}, 3, v{vL}
    s_lshl_b32 s52, s37, 4
    s_add_u32 s52, s52, s38
    s_mul_i32 s52, s52, {OS}
    s_lshl_b32 s40, s3, 9
    s_add_u32 s52, s52, s40
    s_mul_i32 s53, s3, {16*OS}
    s_and_b32 s40, s14, 7
    s_lshl_b32 s40, s40, 8
    s_add_u32 s53, s53, s40
    s_bfe_u32 s40, s14, 0x20003
    s_lshl_b32 s40, s40, 6
    s_add_u32 s53, s53, s40
    s_add_u32 s54, s53, {4*OS}
    s_add_u32 s55, s53, {8*OS}
    s_add_u32 s56, s53, {12*OS}
    s_lshr_b32 s42, s3, 1
    s_and_b32 s43, s3, 1
    s_lshl_b32 s43, s43, 7
    s_lshr_b32 s40, s14, 5
    s_lshl_b32 s40, s40, 1
    s_add_u32 s40, s40, s42
    s_mul_i32 s57, s40, {YS}
    s_and_b32 s40, s14, 31
    s_lshl_b32 s40, s40, 8
    s_add_u32 s57, s57, s40
    s_add_u32 s57, s57, s43
    s_add_u32 s57, s57, {WS_Y}
    s_and_b32 s40, s1, 7
    s_lshl_b32 s40, s40, 1
    s_add_u32 s40, s40, s42
    s_mul_i32 s59, s40, {ZS}
    s_add_u32 s59, s59, s43
    s_lshr_b32 s43, s1, 3
    s_lshl_b32 s42, s43, 8
    s_add_u32 s59, s59, s42
    s_add_u32 s59, s59, {WS_Z}
    s_and_b32 s40, s63, 7
    s_lshl_b32 s58, s40, 8
    s_lshl_b32 s42, s3, 6
    s_add_u32 s58, s58, s42
    s_add_u32 s58, s58, {WS_X1}
    s_mov_b32 s49, {WS_ST}
    s_mul_i32 s60, s40, {4*GS}
    s_lshr_b32 s41, s63, 3
    s_lshl_b32 s41, s41, 9
    s_add_u32 s60, s60, s41
    s_lshl_b32 s40, s3, 7
    s_add_u32 s60, s60, s40
    s_add_u32 s60, s60, {WS_GU}
    s_lshl_b32 s43, s43, 9
    s_add_u32 s48, s43, s40
    s_add_u32 s48, s48, {WS_GU}
    s_mov_b32 s61, 0x3f80
    s_mov_b32 s62, 0x3f800000
    s_mov_b32 s96, 0x000f000f
    s_mov_b32 s97, 0x000f000f
    ''')
    if cfg.defer or cfg.post: e(f'''
    s_mov_b32 s10, {1024*3584*2}
    s_mov_b32 s11, 0x20000
    v_lshrrev_b32 v{vA}, 4, v{vL}
    v_and_b32 v{vA+1}, 15, v{vL}
    v_lshlrev_b32 v{vA+2}, 1, v{vA}
    v_xor_b32 v{vA+2}, v{vA+2}, v{vA+1}
    v_lshlrev_b32 v{vA+2}, 4, v{vA+2}
    v_lshl_add_u32 v208, v{vA}, 11, v{vA+2}
    v_xor_b32 v209, 128, v208
    v_mul_u32_u24 v210, 7168, v{vA}
    v_add_u32 v210, v210, v{vA+2}
    s_lshr_b32 s40, s1, 3
    s_lshl_b32 s13, s40, 18
    s_lshl_b32 s40, s3, 16
    s_add_u32 s13, s13, s40
    s_and_b32 s40, s1, 7
    s_lshl_b32 s40, s40, 8
    s_add_u32 s13, s13, s40
    s_and_b32 s40, s63, 7
    s_lshl_b32 s40, s40, 2
    s_add_u32 s40, s40, s3
    s_mul_i32 s12, s40, {32*7168}
    s_lshr_b32 s40, s63, 3
    s_lshl_b32 s40, s40, 8
    s_add_u32 s12, s12, s40
    ''')
    lf=e.label('Lnof')
    lds_spin(e,cfg,F_V,1,vFl,vT)
    if cfg.repf:
        lp=e.label('Lnopf')
        e(f'''
        s_cmp_lg_u32 s3, 2
        s_cbranch_scc1 {lp}
        s_getpc_b64 s[42:43]
        v_lshlrev_b32 v{vA}, 7, v{vL}
        global_load_dword v211, v{vA}, s[42:43]
        {lp}:
        ''')
    def ml_look(once):
        e(f's_lshl_b32 s40, s37, 10\ns_add_u32 s40, s40, {WS_ML}')
        if 'l' in cfg.kill: e('v_mov_b32 v16, 0x41200000\nv_mov_b32 v17, 1.0\nv_mov_b32 v18, 0x41200000\nv_mov_b32 v19, 1.0')
        elif once:
            e(f'''
            buffer_load_dwordx4 v[16:19], v{vRow}, s[{SWS}:{SWS+3}], s40 offen sc1
            s_waitcnt vmcnt(0)
            v_max3_u32 v20, v16, v17, v18
            v_max_u32 v20, v20, v19
            v_cmp_eq_u32 vcc, -1, v20
            s_cbranch_vccnz {once}
            ''')
        else: gather(e,cfg,[(16,4,vRow,'s40',0)],vT,cfg.sleep_ml if not cfg.mlonce else 4)
        e('v_mov_b32 v20, v16\nv_mov_b32 v22, v18')
        allred_s('v_max_f32',[20,22],24)
        e('''
        v_sub_f32 v16, v16, v20
        v_sub_f32 v18, v18, v22
        v_exp_f32 v16, v16
        v_exp_f32 v18, v18
        v_mul_f32 v21, v16, v17
        v_mul_f32 v23, v18, v19
        ''')
        allred_s('v_add_f32',[21,23],24)
        e(f'''
        v_rcp_f32 v21, v21
        v_rcp_f32 v23, v23
        v_add_u32 v24, {L_ST}, v{vRow}
        s_mov_b64 exec, 15
        ds_write_b128 v24, v[20:23]
        s_waitcnt lgkmcnt(0)
        s_mov_b64 exec, -1
        ''')
        lds_signal(e,F_F,vFl,vOne)
    def factors():
        lds_spin(e,cfg,F_F,1,vFl,vT)
        e(f'ds_read_b64 v[20:21], v{vA+1}\ns_waitcnt lgkmcnt(0)')
        for k in range(4): e(f'v_sub_f32 v{F+k}, v{F+k}, v20')
        for k in range(4): e(f'v_exp_f32 v{F+k}, v{F+k}')
        for k in range(4): e(f'v_mul_f32 v{F+k}, v{F+k}, v21')
    def ts_addr(vd):
        aoff(vd, 8, 32, 4096)
        e(f'''
        s_and_b32 s51, s63, 7
        s_lshl_b32 s51, s51, 9
        s_lshl_b32 s42, s3, 7
        s_add_u32 s51, s51, s42
        s_add_u32 s51, s51, {WS_TS}
        ''')
    def ts_unpack(r):
        e(f'''
        v_lshlrev_b32 v{T1}, 16, v{r}
        v_lshlrev_b32 v{T1+1}, 16, v{r+1}
        v_and_b32 v{SB}, 0xffff0000, v{r}
        v_and_b32 v{SB+1}, 0xffff0000, v{r+1}
        ''')
    e(f's_cmp_lg_u32 s3, 0\ns_cbranch_scc1 {lf}')
    if cfg.mlonce and cfg.vsig2:
        ml_look(lf+'_y')
        e(f's_branch {lf}_x\n{lf}_y:')
        lds_spin(e,cfg,F_V2,1,vFl,vT)
    ml_look(lf+'_x' if cfg.mlonce else None)
    if cfg.mlonce:
        e(f'{lf}_x:')
        lds_signal(e,F_A,vFl,vOne)
    e(f'{lf}:')
    if cfg.tslate: ts_addr(212)
    else:
        lsb=e.label('Lnosb')
        e(f's_cmp_ge_u32 s99, 224\ns_cbranch_scc1 {lsb}')
        ts_addr(vA)
        gather(e,cfg,[(16,2,vA,'s51',0)],vT,cfg.sleep_ml)
        ts_unpack(16)
        e(f'{lsb}:')
    e(f'''
    s_lshl_b32 s40, s3, 4
    v_lshrrev_b32 v{vA+1}, 5, v{vL}
    v_lshl_add_u32 v{vA}, v{vA+1}, 3, s40
    v_add_u32 v{vA+1}, {L_ST}, v{vA}
    v_add_u32 v{vA}, {L_ML}, v{vA}
    ds_read_b32 v{F}, v{vA}
    ds_read_b32 v{F+1}, v{vA} offset:64
    ds_read_b32 v{F+2}, v{vA} offset:128
    ds_read_b32 v{F+3}, v{vA} offset:192
    ''')
    if cfg.mlonce:
        lds_spin(e,cfg,F_A,1,vFl,vT)
        lnf=e.label('Lnf')
        e(f'''
        ds_read_b32 v{vT}, v{vFl} offset:{F_F}
        s_waitcnt lgkmcnt(0)
        v_readfirstlane_b32 s33, v{vT}
        s_cmp_eq_u32 s33, 0
        s_cbranch_scc1 {lnf}
        ''')
        factors()
        e(f'{lnf}:')
    else: factors()
    stamp(e,cfg,4)
    e.c('---- tail: combine the four waves of this workgroup')
    if cfg.help:
        lcp=e.label('Lnocp')
        e(f's_cmp_lg_u32 s3, 1\ns_cbranch_scc1 {lcp}')
        lds_spin(e,cfg,F_C,4,vFl,vT)
        e(f'''
        s_lshl_b32 s40, s37, 7
        s_lshl_b32 s41, s38, 2
        s_add_u32 s40, s40, s41
        s_add_u32 s40, s40, {WS_CP}
        v_mov_b32 v{vA}, 0
        s_mov_b64 exec, 1
        buffer_store_dword v{vOne}, v{vA}, s[{SWS}:{SWS+3}], s40 offen sc1
        s_mov_b64 exec, -1
        {lcp}:
        ''')
    e(f's_setprio {cfg.prio2}')
    if cfg.obar: e('s_barrier')
    else: lds_spin(e,cfg,F_O,4,vFl,vT,sleep=0)
    stamp(e,cfg,5)
    if cfg.mlonce:
        lml=e.label('Lml')
        e(f's_cmp_eq_u32 s33, 0\ns_cbranch_scc1 {lml}_s\n{lml}:')
        def ml_late():
            e(f'{lml}_s:\ns_cmp_lg_u32 s3, 0\ns_cbranch_scc1 {lml}_f')
            ml_look(None)
            e(f'{lml}_f:')
            factors()
            e(f's_branch {lml}')
        OOL0=[ml_late]
    else: OOL0=[]
    phase[0]='t'
    if 't' in cfg.kill: e('s_branch L_fin')
    e(f'''
    ds_read_b128 v[16:19], v{vOc}
    ds_read_b128 v[20:23], v{vOc} offset:{RING}
    ds_read_b128 v[24:27], v{vOc2}
    ds_read_b128 v[28:31], v{vOc2} offset:{RING}
    s_waitcnt lgkmcnt(3)
    ''')
    for r in range(4): e(f'v_mul_f32 v{16+r}, v{16+r}, v{F}')
    for k in range(1,4):
        e(f's_waitcnt lgkmcnt({3-k})')
        for r in range(4): e(f'v_fmac_f32 v{16+r}, v{16+4*k+r}, v{F+k}')
    e(f'''
    v_cvt_pk_bf16_f32 v16, v16, v17
    v_cvt_pk_bf16_f32 v17, v18, v19
    v_min_u32 v16, -2, v16
    v_min_u32 v17, -2, v17
    buffer_store_dwordx2 v[16:17], v{vOs}, s[{SWS}:{SWS+3}], s52 offen sc1
    ''')
    def look(i, acki=None):
        if acki is not None and cfg.ack[acki]=='1': e('s_waitcnt vmcnt(0)')
        d=int(cfg.dly.split(',')[i])
        if d: e(f's_sleep {d}')
    def tstamp(i):
        if cfg.tstamps: stamp(e,cfg,i)
    if cfg.glate and not cfg.gwin:
        lgp=e.label('Lnogp')
        e(f's_cmp_eq_u32 s0, 0\ns_cbranch_scc1 {lgp}')
        gpub()
        e(f'{lgp}:')
    if cfg.nlate:
        lnp=e.label('Lnonp')
        e(f's_cmp_lt_u32 s99, 192\ns_cbranch_scc1 {lnp}')
        job_store(224,WS_MN,MNS,-16,'s34','s39')
        e(f's_cmp_lt_u32 s99, 224\ns_cbranch_scc1 {lnp}')
        job_store(228,WS_MN,MNS,-16,'s34','s101')
        e(f'{lnp}:')
    look(0,0)
    def fast(loads, compute, check, inc=False):
        d=e.label('Lfd')
        for dst,n,voff,soff,imm in loads:
            op={1:'dword',2:'dwordx2',4:'dwordx4'}[n]
            e(f'buffer_load_{op} {v(dst,n)}, v{voff}, s[{SWS}:{SWS+3}], {soff} offen offset:{imm} sc1')
        if cfg.cnt and inc: compute(len(loads))
        else:
            e('s_waitcnt vmcnt(0)'); compute()
        check()
        n=fast.n
        def slow():
            gather(e,cfg,loads,vT,cfg.sleep_tail)
            if cfg.fine: e(f's_min_u32 s41, s41, 255\ns_lshl_b32 s41, s41, {8*n}\ns_or_b32 s100, s100, s41')
            compute()
        if cfg.ool:
            e(f's_cbranch_vccnz {d}_s\n{d}:')
            def later():
                e(f'{d}_s:'); slow(); e(f's_branch {d}')
            OOL.append(later)
        else:
            e(f's_cbranch_vccz {d}')
            slow()
            e(f'{d}:')
        fast.n+=1
    fast.n=0; OOL=OOL0
    if cfg.fine: e('s_mov_b32 s100, 0')
    def store2(accs, voff, soff):
        for j,ac in enumerate(accs):
            e(f'v_min_u32 v{ac}, -2, v{ac}\nbuffer_store_dword v{ac}, v{voff}, s[{SWS}:{SWS+3}], {soff} offen offset:{64*j} sc1')
    DEF=[(k,{'0':P_W1,'1':P_W3,'2':P_W2}[k]) for k in ('2' if cfg.post else cfg.defer)]
    DOFF=[o for o in (0,8192,16384,24576) if not (o < OOFF+4224 and OOFF < o+8192)]
    def defer_loads():
        if '0' in cfg.defer or '1' in cfg.defer: e('v_mov_b32 v14, v210\nv_xor_b32 v15, 128, v210')
        for n,(k,p) in enumerate(DEF):
            rs = 2048 if k=='2' else 7168
            e(f's_mov_b32 s8, s{p}\ns_mov_b32 s9, s{p+1}')
            for I in range(8):
                if I%4==0: e(f's_add_u32 m0, s32, {DOFF[n]+(I>>2)*4096}')
                e(f's_add_u32 s40, s{13 if k=="2" else 12}, {(8*(I&3)+4*(I>>2))*rs-1024*(I&3)}')
                e(f'buffer_load_dwordx4 v{(208 if k=="2" else 14)+(I&1)}, s[8:11], s40 offen offset:{(I&3)*1024} {cfg.pol} lds')
    e.c('---- H1 + output projection')
    def osum():
        for i in range(4):
            e(f'v_lshlrev_b32 v{32+2*i}, 16, v{16+i}\nv_and_b32 v{33+2*i}, 0xffff0000, v{16+i}')
        for j in range(1,4):
            if cfg.h1nan: e(f's_waitcnt vmcnt({3-j})')
            for i in range(4):
                e(f'v_dot2_f32_bf16 v{32+2*i}, v{16+4*j+i}, s61, v{32+2*i}\nv_dot2_f32_bf16 v{33+2*i}, v{16+4*j+i}, s62, v{33+2*i}')
    if cfg.h1pipe and 't' not in cfg.kill:
        l=e.label('Lh1'); d=e.label('Lh1d')
        def look4():
            for j in range(4): e(f'buffer_load_dwordx4 v[{16+4*j}:{19+4*j}], v{vH1}, s[{SWS}:{SWS+3}], s{53+j} offen sc1')
        e('s_mov_b32 s41, 0')
        for k in range(cfg.h1pipe-1):
            look4()
            if k<cfg.h1pipe-2 or True: e(f's_sleep {cfg.h1gap}')
        e(f'{l}:')
        look4()
        e(f's_add_u32 s41, s41, 1\ns_waitcnt vmcnt({4*(cfg.h1pipe-1)})\nv_max3_u32 v{vT}, v16, v17, v18')
        for i in range(19,31,2): e(f'v_max3_u32 v{vT}, v{vT}, v{i}, v{i+1}')
        e(f'''
        v_max_u32 v{vT}, v{vT}, v31
        v_cmp_eq_u32 vcc, -1, v{vT}
        s_cbranch_vccz {d}
        s_mov_b64 exec, vcc
        s_cmp_lt_u32 s41, {cfg.gpoll*4}
        s_cbranch_scc1 {l}
        {d}:
        s_mov_b64 exec, -1
        ''')
        tstamp(6)
        h=cfg.h1nan; cfg.h1nan=False; osum(); cfg.h1nan=h
    elif not cfg.h1nan or 't' in cfg.kill:
        gather(e,cfg,[(16,4,vH1,'s53',0),(20,4,vH1,'s54',0),(24,4,vH1,'s55',0),(28,4,vH1,'s56',0)],vT,cfg.sleep_tail,backoff=(cfg.bo_n,cfg.bo_s) if cfg.bo_s else None)
        tstamp(6)
        osum()
    else:
        l=e.label('Lh1'); d=e.label('Lh1d')
        if not cfg.post: e('s_cmp_ge_u32 s99, 224\ns_cselect_b32 s15, 1, 0')
        e(f's_mov_b32 s41, 0\n{l}:')
        for j in range(4): e(f'buffer_load_dwordx4 v[{16+4*j}:{19+4*j}], v{vH1}, s[{SWS}:{SWS+3}], s{53+j} offen sc1')
        e('s_add_u32 s41, s41, 1\ns_waitcnt vmcnt(3)')
        osum()
        e(f'''
        v_add_f32 v40, v32, v34
        v_add_f32 v41, v36, v38
        v_cmp_u_f32 vcc, v40, v41
        s_cbranch_vccz {d}
        v_max3_u32 v{vT}, v16, v17, v18
        ''')
        for i in range(19,31,2): e(f'v_max3_u32 v{vT}, v{vT}, v{i}, v{i+1}')
        e(f'''
        v_max_u32 v{vT}, v{vT}, v31
        v_cmp_eq_u32 vcc, -1, v{vT}
        s_cbranch_vccz {d}
        ''')
        if DEF and cfg.early:
            le=e.label('Lne')
            e(f'''
            s_cmp_lg_u32 s15, 0
            s_cbranch_scc1 {le}
            s_bcnt1_i32_b64 s40, vcc
            s_cmp_lt_u32 s40, {cfg.early}
            s_cbranch_scc1 {le}
            s_mov_b32 s15, 1
            s_mov_b64 exec, -1
            ''')
            defer_loads()
            e(f'{le}:')
        e(f'''
        s_mov_b64 exec, vcc
        s_sleep {cfg.sleep_tail}
        s_cmp_lt_u32 s41, {cfg.gpoll}
        s_cbranch_scc1 {l}
        {d}:
        s_mov_b64 exec, -1
        ''')
        tstamp(6)
    dppsum(32,8)
    for i in range(4): e(f'v_cvt_pk_bf16_f32 v{40+i}, v{32+2*i}, v{33+2*i}')
    e(f's_mov_b64 exec, s[96:97]\nds_write_b128 v{vXw}, v[40:43]\ns_mov_b64 exec, -1')
    if cfg.h1pipe: e('s_waitcnt vmcnt(0)')
    mmx([WO],[32,36],vXr)
    store2([32,36],vYs,'s57')
    tstamp(7)
    e('s_cmp_ge_u32 s99, 224\ns_cbranch_scc1 L_red')
    def red_tail(n, cnt=0):
        lst=list(range(n))
        if cnt:
            for i in range(1,n):
                a_,b_=(16,16+4*i) if (i==1 or i%2==0 or True) else (20,16+4*i)
                e(f's_waitcnt vmcnt({n-1-i})\nv_pk_add_f32 v[{a_}:{a_+1}], v[{a_}:{a_+1}], v[{b_}:{b_+1}]\nv_pk_add_f32 v[{a_+2}:{a_+3}], v[{a_+2}:{a_+3}], v[{b_+2}:{b_+3}]')
            lst=[0]
        elif cfg.cnt:
            for i in range(1,n):
                a_,b_=16,16+4*i
                e(f'v_pk_add_f32 v[{a_}:{a_+1}], v[{a_}:{a_+1}], v[{b_}:{b_+1}]\nv_pk_add_f32 v[{a_+2}:{a_+3}], v[{a_+2}:{a_+3}], v[{b_+2}:{b_+3}]')
            lst=[0]
        while len(lst)>1:
            nx=[]
            for i in range(0,len(lst)-1,2):
                a_,b_=16+4*lst[i],16+4*lst[i+1]
                e(f'v_pk_add_f32 v[{a_}:{a_+1}], v[{a_}:{a_+1}], v[{b_}:{b_+1}]\nv_pk_add_f32 v[{a_+2}:{a_+3}], v[{a_+2}:{a_+3}], v[{b_+2}:{b_+3}]')
                nx.append(lst[i])
            if len(lst)%2: nx.append(lst[-1])
            lst=nx
        e('''
        v_permlane32_swap_b32 v16, v18
        v_permlane32_swap_b32 v17, v19
        v_pk_add_f32 v[16:17], v[16:17], v[18:19]
        v_mov_b32 v18, v16
        v_mov_b32 v19, v17
        v_permlane16_swap_b32 v18, v16
        v_permlane16_swap_b32 v19, v17
        v_pk_add_f32 v[16:17], v[16:17], v[18:19]
        ''')
    def gate_res(G,X,dst):
        rnd_vec(e,16,2,18)
        e(f'v_pk_mul_f32 v[16:17], v[16:17], v[{G}:{G+1}]')
        rnd_vec(e,16,2,18)
        e(f'v_pk_add_f32 v[16:17], v[16:17], v[{X}:{X+1}]\nv_cvt_pk_bf16_f32 v{dst}, v16, v17')
    nan2=lambda a_,b_: (lambda: e(f'v_cmp_u_f32 vcc, v{a_}, v{b_}'))
    if DEF:
        ld=e.label('Ldef')
        if cfg.early: e(f's_cmp_lg_u32 s15, 0\ns_cbranch_scc1 {ld}')
        if cfg.post: e(f's_cmp_eq_u32 s15, 0\ns_cbranch_scc1 {ld}')
        defer_loads()
        e(f'{ld}:')
    if cfg.tslate and not cfg.nlate: e(f'buffer_load_dwordx2 v[214:215], v212, s[{SWS}:{SWS+3}], s51 offen sc1')
    if cfg.glate and cfg.gwin:
        lgp=e.label('Lnogp')
        e(f's_cmp_eq_u32 s0, 0\ns_cbranch_scc1 {lgp}\ns_cmp_ge_u32 s3, 2\ns_cbranch_scc1 {lgp}')
        gpub()
        e(f's_branch {lgp}_d\n{lgp}:\ns_sleep {cfg.gwsub}\n{lgp}_d:')
        e(f's_sleep {int(cfg.dly.split(",")[2])-cfg.gwsub}')
    else: look(2)
    if cfg.tslate and not cfg.nlate:
        lt=e.label('Lts')
        e(f's_waitcnt vmcnt(0)\nv_max_u32 v{vT}, v214, v215\nv_cmp_eq_u32 vcc, -1, v{vT}\ns_cbranch_vccnz {lt}_s\n{lt}:')
        def ts_slow():
            e(f'{lt}_s:'); gather(e,cfg,[(214,2,212,'s51',0)],vT,cfg.sleep_tail); e(f's_branch {lt}')
        OOL.append(ts_slow)
        ts_unpack(214)
    if DEF: e('s_waitcnt vmcnt(0)')
    if any(k!='2' for k,p in DEF):
        e('s_barrier')
        for n,(k,p) in enumerate(DEF):
            if k!='2': pickup_cols('X'+k, X0 if k=='0' else X1, DOFF[n])
    e.c('---- H2b + gate/up')
    def ln2():
        if cfg.nlate: ts_unpack(214)
        unpack(e,16,32,1)
        allred_s('v_add_f32',[20,21],22,rors=(1,2,4,8),swaps=())
        e(f'''
        v_mul_f32 v20, 0x3a800000, v20
        v_mul_f32 v21, 0x3a800000, v21
        v_fma_f32 v21, -v20, v20, v21
        v_cmp_u_f32 s[42:43], v21, v21
        v_max_f32 v21, 0, v21
        ''')
        if cfg.round_ln2:
            finish_stats(20,21)
            normalise(32,2,20,21,22)
            modulate(32,2,T1,SB,16,22,prep=False)
        else:
            e(f'''
            v_add_f32 v21, 0x3727c5ac, v21
            v_rsq_f32 v21, v21
            v_sub_f32 v32, v32, v20
            v_sub_f32 v33, v33, v20
            v_mul_f32 v32, v32, v21
            v_mul_f32 v33, v33, v21
            v_fma_f32 v32, v32, v{T1}, v{SB}
            v_fma_f32 v33, v33, v{T1+1}, v{SB+1}
            v_cvt_pk_bf16_f32 v16, v32, v33
            ''')
        e(f'ds_write_b32 v{vXw}, v16')
    fast([(16,1,vXs,'s58',0),(20,2,vSt,'s49',0)]+([(214,2,212,'s51',0)] if cfg.nlate else []), ln2, lambda: e('v_cmp_u_f32 vcc, v32, v33\ns_or_b64 vcc, vcc, s[42:43]'))
    tstamp(9)
    mmx([X0,X1],[32,36,40,44],vXr)
    for i in range(1,8): e(f's_add_u32 s{51+i}, s48, {i*4*GS}')
    for j in range(2): e(f'v_cvt_pk_bf16_f32 v{32+4*j}, v{32+4*j}, v{40+4*j}')
    if cfg.local:
        lg=e.label('Lgl'); lgd=e.label('Lgld')
        e(f'''
        v_min_u32 v32, -2, v32
        v_min_u32 v36, -2, v36
        s_cmp_lg_u32 s36, 0
        s_cbranch_scc1 {lg}
        buffer_store_dword v32, v{vGs}, s[{SWS}:{SWS+3}], s60 offen sc1
        buffer_store_dword v36, v{vGs}, s[{SWS}:{SWS+3}], s60 offen offset:64 sc1
        s_branch {lgd}
        {lg}:
        buffer_store_dword v32, v{vGs}, s[{SWS}:{SWS+3}], s60 offen
        buffer_store_dword v36, v{vGs}, s[{SWS}:{SWS+3}], s60 offen offset:64
        {lgd}:
        ''')
    else: store2([32,36],vGs,'s60')
    tstamp(10)
    for n,(k,p) in enumerate(DEF):
        if k=='2':
            lp=e.label('Lnp')
            if cfg.post: e(f's_cmp_eq_u32 s15, 0\ns_cbranch_scc1 {lp}')
            pickup_cols('X2', X2, DOFF[n])
            e(f'{lp}:')
    e.c('---- H3a + down projection')
    look(3,2)
    if cfg.fine: stamp(e,cfg,1)
    def gusum(cnt=0):
        if cnt: e('s_waitcnt vmcnt(7)')
        e('''v_lshlrev_b32 v32, 16, v16
        v_and_b32 v33, 0xffff0000, v16
        v_lshlrev_b32 v34, 16, v17
        v_and_b32 v35, 0xffff0000, v17''')
        for i in range(1,8):
            if cnt: e(f's_waitcnt vmcnt({7-i})')
            e(f'''v_dot2_f32_bf16 v32, v{16+2*i}, s61, v32
            v_dot2_f32_bf16 v33, v{16+2*i}, s62, v33
            v_dot2_f32_bf16 v34, v{17+2*i}, s61, v34
            v_dot2_f32_bf16 v35, v{17+2*i}, s62, v35''')
    fast([(16+2*i,2,vH3,'s48' if i==0 else f's{51+i}',0) for i in range(8)], gusum, nan2(32,34), True)
    tstamp(11)
    rnd_vec(e,32,4,20)
    e(f'''
    v_mul_f32 v20, 0xbfb8aa3b, v32
    v_mul_f32 v21, 0xbfb8aa3b, v34
    v_exp_f32 v20, v20
    v_exp_f32 v21, v21
    v_add_f32 v20, 1.0, v20
    v_add_f32 v21, 1.0, v21
    v_rcp_f32 v20, v20
    v_rcp_f32 v21, v21
    v_mul_f32 v32, v32, v20
    v_mul_f32 v34, v34, v21
    v_cvt_pk_bf16_f32 v20, v32, v34
    v_lshlrev_b32 v32, 16, v20
    v_and_b32 v34, 0xffff0000, v20
    v_mul_f32 v32, v32, v33
    v_mul_f32 v34, v34, v35
    v_cvt_pk_bf16_f32 v16, v32, v34
    ds_write_b32 v{vXw}, v16
    ''')
    mmx([X2],[32,36],vXr)
    store2([32,36],vZs,'s59')
    if cfg.fine: stamp(e,cfg,2)
    e('s_branch L_fin\nL_red:')
    e.c('---- H2a: reducers')
    l2=e.label('Lnoh2a')
    e(f'''
    s_cmp_ge_u32 s3, 2
    s_cbranch_scc1 {'L_ts' if cfg.nlate else 'L_fin'}
    s_mul_i32 s40, s98, {YS}
    s_add_u32 s40, s40, {WS_Y}
    s_add_u32 s51, s40, 4096
    s_lshl_b32 s52, s98, 7
    s_add_u32 s52, s52, {WS_X1}
    s_lshr_b32 s53, s98, 2
    s_lshl_b32 s53, s53, 7
    s_and_b32 s54, s98, 3
    s_lshl_b32 s54, s54, 3
    s_add_u32 s53, s53, s54
    s_add_u32 s53, s53, {WS_ST}
    s_mov_b32 s54, 0xffff
    s_mov_b32 s55, 0xffff
    v_mov_b32 v61, 0
    ''')
    if cfg.nlate:
        red_addr(WS_MN,MNS,'s12')
        gather(e,cfg,[(32,4,vA,'s12',0)],vT,cfg.sleep_tail)
        rowsum(32)
        e(f'v_mov_b32 v{RX+2}, v32\nv_mov_b32 v{RX+3}, v33')
        rnd_vec(e,RX+2,2,26)
        if cfg.dlyr: e(f's_sleep {cfg.dlyr}')
        def ts_waves():
            e('L_ts:')
            e.c('---- waves 2, 3 of the reducing workgroups: (1+cb, sb)')
            e('s_sub_u32 s98, s99, 224\ns_lshl_b32 s98, s98, 1\ns_add_u32 s98, s98, s3\ns_sub_u32 s98, s98, 2')
            red_addr(WS_MN+4096,MNS,'s12')
            e('s_add_u32 s13, s12, 4096')
            gather(e,cfg,[(24,4,vA,'s12',0),(28,4,vA,'s13',0)],vT,cfg.sleep_tail)
            rowsum(24); rowsum(28)
            rnd_vec(e,28,2,26)
            e(f'''
            v_add_f32 v28, 1.0, v28
            v_add_f32 v29, 1.0, v29
            v_cvt_pk_bf16_f32 v24, v28, v24
            v_cvt_pk_bf16_f32 v25, v29, v25
            v_min_u32 v24, -2, v24
            v_min_u32 v25, -2, v25
            v_lshlrev_b32 v{vA}, 1, v{vRo}
            s_lshl_b32 s40, s98, 8
            s_add_u32 s40, s40, {WS_TS}
            s_mov_b32 s54, 0xffff
            s_mov_b32 s55, 0xffff
            s_mov_b64 exec, s[54:55]
            buffer_store_dwordx2 v[24:25], v{vA}, s[{SWS}:{SWS+3}], s40 offen sc1
            s_mov_b64 exec, -1
            s_branch L_fin
            ''')
        OOL.append(ts_waves)
    else: look(1,1)
    if cfg.fine: stamp(e,cfg,14)
    fast([(16+4*i,4,vRow,'s40' if i<4 else 's51',(i&3)*1024) for i in range(8)], lambda c=0: red_tail(8,c), nan2(16,17), True)
    if cfg.fine: stamp(e,cfg,15)
    gate_res(RX+2,RX,16)
    e(f'''
    v_min_u32 v16, -2, v16
    v_lshlrev_b32 v{RX}, 16, v16
    v_and_b32 v{RX+1}, 0xffff0000, v16
    s_mov_b64 exec, s[54:55]
    buffer_store_dword v16, v{vRo}, s[{SWS}:{SWS+3}], s52 offen sc1
    s_mov_b64 exec, -1
    v_add_f32 v18, v{RX}, v{RX+1}
    v_mul_f32 v19, v{RX}, v{RX}
    v_fmac_f32 v19, v{RX+1}, v{RX+1}
    ''')
    allred_s('v_add_f32',[18,19],20,rors=(8,4,2,1),swaps=('v_permlane32_swap_b32',))
    e(f'''
    v_min_u32 v18, -2, v18
    v_min_u32 v19, -2, v19
    s_mov_b64 exec, 1
    buffer_store_dwordx2 v[18:19], v61, s[{SWS}:{SWS+3}], s53 offen sc1
    s_mov_b64 exec, -1
    ''')
    tstamp(8)
    if cfg.glate:
        red_addr(WS_MG,MGS,'s12')
        e(f's_add_u32 s13, s12, {16*MGS}')
        gather(e,cfg,[(28,4,vA,'s12',0),(32,4,vA,'s13',0)],vT,cfg.sleep_tail)
        e('v_pk_add_f32 v[28:29], v[28:29], v[32:33]\nv_pk_add_f32 v[30:31], v[30:31], v[34:35]')
        rowsum(28)
        e(f'v_mov_b32 v{RX+4}, v28\nv_mov_b32 v{RX+5}, v29')
        rnd_vec(e,RX+4,2,26)
    e(f'''
    s_mul_i32 s40, s98, {ZS}
    s_add_u32 s40, s40, {WS_Z}
    s_add_u32 s51, s40, 4096
    s_lshl_b32 s52, s98, 7
    v_add_u32 v{vA}, s52, v{vRo}
    ''')
    e.c('---- H3b: final reducers')
    if cfg.local:
        lz=e.label('Lz');
        e(f's_sleep {cfg.dlyz-(cfg.gsub if cfg.glate else 0)}\ns_cmp_lg_u32 s36, 0\ns_cbranch_scc1 {lz}\ns_sleep {int(cfg.dly.split(",")[4])-cfg.dlyz}\n{lz}:')
    else: look(4)
    if cfg.fine: stamp(e,cfg,3)
    fast([(16+4*i,4,vRow,'s40' if i<4 else 's51',(i&3)*1024) for i in range(7)], lambda c=0: red_tail(7,c), nan2(16,17), True)
    tstamp(12)
    gate_res(RX+4,RX,16)
    e(f'''
    s_mov_b64 exec, s[54:55]
    global_store_dword v{vA}, v16, s[{P_OUT}:{P_OUT+1}]
    s_mov_b64 exec, -1
    L_fin:
    ''')
    stamp(e,cfg,13)
    if cfg.stamps: e('s_add_u32 s3, s3, 4')
    if cfg.fine: e('s_waitcnt lgkmcnt(0)\ns_mov_b32 s72, s100\ns_mov_b32 s73, 0')
    stamps_out(e,cfg,16,vA)
    e('s_endpgm')
    for f in OOL: f()

def gen(cfg):
    set_order(cfg.order, cfg.defer)
    e=A()
    e(f'''
    s_cmp_ge_u32 s2, 256
    s_cbranch_scc1 L_exit
    {'s_memrealtime s[78:79]' if cfg.stamps else ''}
    s_load_dwordx16 s[4:19], s[0:1], 0
    s_getpc_b64 s[48:49]
    L_pc:
    s_sub_u32 s48, s48, L_pc-{KN}
    s_subb_u32 s49, s49, 0
    s_lshl_b32 s40, s2, 4
    s_add_u32 s40, s40, role_table-{KN}
    s_load_dwordx4 s[92:95], s[48:49], s40
    s_load_dwordx8 s[20:27], s[0:1], 64
    s_load_dwordx4 s[28:31], s[0:1], 96
    v_lshrrev_b32 v2, 6, v0
    v_and_b32 v1, 63, v0
    v_readfirstlane_b32 s3, v2
    v_lshlrev_b32 v3, 7, v0
    s_cmp_ge_u32 s3, 5
    s_cbranch_scc1 L_nopf
    global_load_dword v255, v3, s[48:49]
    L_nopf:
    ''')
    e('s_cmp_ge_u32 s3, 4\ns_cbranch_scc1 L_aux')
    stream(e,cfg)
    aux(e,cfg)
    e('L_exit:\ns_endpgm')
    import rolemap
    tab,rho=rolemap.build(odd=cfg.odd,c3=cfg.c3,qx=cfg.qx,lx=cfg.lx,bx=cfg.bx,lunits=44 if '2' in cfg.defer else 42)
    e('.p2align 8\n.type role_table,@object\nrole_table:')
    for t in tab: e('.long '+', '.join(str(x) for x in t))
    e('.size role_table, 4096')
    e('.p2align 8\n.fill (40960+256-(.-'+KN+'))/4, 4, 0xbf800000')
    doc = """; Fused adaLN + GQA decode attention + SwiGLU block in one launch: 256 workgroups (one per CU) of 8 waves.
;
"""
    hdr = (f'; diagnostic build (generated by gen2.py) {getattr(cfg,"args","")}\n' if cfg.stamps else doc) + f'; @launch grid=(256,1,1) block=(512,1,1) lds={LDS_BYTES}\n.amdgcn_target "amdgcn-amd-amdhsa--gfx950"\n'
    return hdr + khead(KN) + e.text() + kd(KN, 256)

if __name__=='__main__':
    cfg=Cfg()
    out=sys.argv[1]
    cfg.args=' '.join(sys.argv[2:])
    for kv in sys.argv[2:]:
        k,val=kv.split('=')
        cur=getattr(cfg,k)
        setattr(cfg,k, (val not in ('0','False')) if isinstance(cur,bool) else type(cur)(val.replace('+',' ')) if not isinstance(cur,int) else int(val,0))
    open(out,'w').write(gen(cfg))
```

```python
import sys
from asmgen import *
KN='adaLN_cond__gqa_block_cached__glu_gated_swiglu__decode_kernel'

import os
PAD = int(os.environ.get('PAD','128'))
OS  = 2048+PAD
YS  = 8192+PAD
GS  = 14336+PAD
ZS  = 7168+PAD
MNS = 12288+PAD
MGS = 4096+PAD
MUS = 8192+PAD
QS  = 16384+PAD
WS_O   = 0
WS_Y   = WS_O+256*OS
WS_GU  = WS_Y+64*YS
WS_Z   = WS_GU+32*GS
WS_MN  = WS_Z+64*ZS
WS_MG  = WS_MN+16*MNS
WS_ML  = WS_MG+32*MGS
WS_X1  = WS_ML+16384
WS_ST  = WS_X1+8192
WS_CP  = WS_ST+2048
WS_TS  = WS_CP+2048
WS_Q   = WS_TS+16384
FLATSH = -(-(WS_Q+16*QS)//(256*128))*128
WS_MU  = 256*FLATSH
WS_H   = WS_MU+16*MUS
WS_SA  = WS_H+8192
WS_END = WS_SA+1024
WS_STAMP = 0x400000
RING = 0x8000
L_RED  = 0x20000
L_AX   = 0x22400; XSTR = 320
L_QOP  = 0x24000; QSTR = 272
L_ML   = 0x24900
L_ST   = 0x24A00
L_FLAG = 0x24B00
LDS_BYTES = 0x24C00
OSTR = 528
F_LAND = 0
F_CONS = 32
F_Q = 64; F_ML = 68; F_O = 72; F_AUX = 76; F_V = 80; F_F = 84; F_P = 88; F_M = 92; F_P2 = 96; F_C = 100; F_P3 = 104; F_L = 108; F_A = 112; F_V2 = 116
P_X,P_K,P_V,P_WQ,P_WO,P_BX,P_W1,P_W3,P_W2,P_C,P_WM,P_OUT,P_DBG,P_WS = [4+2*i for i in range(14)]
LOG2E = 0x3fb8aa3b
SCALE = 0x3db504f3

class Cfg:
    D=2; D0=4
    N=4
    NV=4
    deep=16
    vsig=2
    sleep_ml=32
    pol='nt'
    stamps=False
    round_s=True
    round_ln=True
    sleep_head=8
    sleep_tail=1
    order='E'
    qgate=25
    ack='1111'
    dly='0,8,53,2,93'
    tstamps=True
    gwin=True; gwsub=4
    nlate=True
    dlyr=1
    glate=True
    mlloc=True
    tslate=True
    vsig2=4
    mlonce=True
    NL2=0
    cnt=True
    ool=True
    repf=0
    post=False
    local=True
    dlyloc=2; dlyz=85; gsub=11
    early=0
    dlyl=0
    h1gap=4
    h1pipe=0
    direct=True
    mgate=0
    tlb=0
    help=0
    helpn=2; helppol='nt'
    obar=True
    h1nan=True
    sa0=True
    sclear=0
    vwall=0
    warm=False
    safter=3
    odd=0.7; c3=0.0035; qx=0.6; lx=0.8; bx=1.0
    hgate=20
    hafter=3
    bo_n=16; bo_s=0
    cpol='sc1'
    kill=''
    lsleep=0
    prio2=2
    sprio=0
    ustamps=True
    defer=''
    round_ln2=False
    fine=False
    pairs=True
    NL=6; NH=8
    adapt=0
    rank=13
    lightdeep=False
    qafter=5
    NK=4; kdeep=16
    sleep_q=12
    hold=False
    prio=2
    gpoll=8192
    lpoll=1<<17

from gen1 import lds_signal, stamp, srd, allreduce64, unpack, rnd_vec, rnd1
import gen1
gen1.WS_STAMP = WS_STAMP
from gen1 import stamps_out, lds_spin, gather
SWS=44

def roles(e, part=3):
    if part&1:
        e('''
        s_waitcnt lgkmcnt(0)
        s_mov_b32 s34, s92
        s_mov_b32 s35, s95
        s_lshr_b32 s15, s93, 25
        ''')
    if part&2:
        e('''
        s_and_b32 s37, s2, 15
        s_lshr_b32 s38, s2, 4
        s_and_b32 s99, s93, 255
        s_cmp_ge_u32 s99, 64
        s_cselect_b32 s33, 1, 0
        s_cmp_ge_u32 s99, 192
        s_cselect_b32 s33, 2, s33
        s_bfe_u32 s36, s93, 0x20008
        s_bfe_u32 s39, s93, 0x6000a
        s_bfe_u32 s101, s93, 0x80010
        s_bfe_u32 s0, s93, 0x10018
        s_and_b32 s63, s94, 255
        s_bfe_u32 s1, s94, 0x80008
        s_lshr_b32 s14, s94, 16
        ''')

UNITS=[]
GROUPS=['J','WO','X0','X1','X2','X3']
def set_order(order, defer=''):
    U=lambda k,n: [(k,i) for i in range(n)]
    W=U('WO',2)+U('X0',2)+U('X1',2)+([] if '2' in defer else U('X2',2))+U('X3',2)
    K=U('K',16)
    if order=='A': UNITS[:] = U('J',4)+W+K+U('V',16)
    elif order=='E': UNITS[:] = U('J',4)+W[:2]+W[6:]+W[2:6]+K+U('V',16)
    elif order=='J': UNITS[:] = U('J',4)+K[:4]+W[:2]+W[6:]+W[2:6]+K[4:]+U('V',16)
    elif order=='K': UNITS[:] = U('J',4)+K[:2]+W[:2]+W[6:]+K[2:4]+W[2:6]+K[4:]+U('V',16)
    elif order=='L': UNITS[:] = U('J',4)+K[:8]+W[:2]+W[6:]+W[2:6]+K[8:]+U('V',16)
    elif order=='H': UNITS[:] = U('J',4)+W[:2]+W[8:]+W[2:6]+K+W[6:8]+U('V',16)
    elif order=='F': UNITS[:] = U('J',4)+W[6:]+W[:6]+K+U('V',16)
    elif order=='G': UNITS[:] = U('J',4)+W[:2]+W[6:]+K[:2]+W[2:6]+K[2:]+U('V',16)
    elif order=='C':
        mix=[]
        for i in range(8): mix+=[W[i],K[i]]
        UNITS[:] = U('J',4)+mix+W[8:]+K[8:]+U('V',16)
    elif order=='D':
        mix=[]
        for i in range(8): mix+=[K[i],W[i]]
        UNITS[:] = U('J',4)+mix+W[8:]+K[8:]+U('V',16)
def upos(kind,i): return UNITS.index((kind,i))
def slot(kind,i): return (upos(kind,i)%8)*4096

def stream(e, cfg):
    D=cfg.D; pol=cfg.pol
    vL=1; vK=2; vV=6; vW=8; vSw=10; vR=12; vFl=13; vOne=14; vT=15
    vKR=16; vVR=20; vX=28; vRJ=45
    Q=48; S=64; ST=128; P=128; O=160; VF=192
    SK,SV,SW = 44,48,52
    e.c('================= stream waves =================')
    e('L_stream:')
    if cfg.sprio: e(f's_setprio {cfg.sprio}')
    e(f'''
    v_lshrrev_b32 v{vR}, 4, v{vL}
    v_and_b32 v{vX+1}, 15, v{vL}
    v_lshlrev_b32 v{vX+6}, 1, v{vR}
    v_xor_b32 v{vX+6}, v{vX+6}, v{vX+1}
    v_lshlrev_b32 v{vSw}, 4, v{vX+6}
    v_xor_b32 v{vSw+1}, 128, v{vSw}
    v_and_b32 v{vRJ}, 2, v{vR}
    v_lshlrev_b32 v{vRJ}, 1, v{vRJ}
    v_and_or_b32 v{vRJ}, v{vR}, 1, v{vRJ}
    s_lshl_b32 s32, s3, 15
    s_mov_b32 s{SW+3}, 0x20000
    s_mov_b32 s96, 0
    s_lshl_b32 s43, s3, 6
    ''')
    roles(e,1)
    stamp(e,cfg,0)
    e('''
    s_cmp_eq_u32 s15, 0
    s_cbranch_scc1 L_go
    s_barrier
    L_go:
    ''')
    st = dict(issued=0, landed=-1, signaled=set())
    def pairwait(n,k):
        if not cfg.pairs or n<cfg.D0: return
        tot=4*n+k
        known=4*(st['landed']+1)
        if tot-known>cfg.NH:
            e(f's_waitcnt vmcnt({cfg.NH})'); note_landed((tot-cfg.NH)//4-1)
        NL = cfg.NL2 if (cfg.adapt==3 and n>upos('K',15)) else cfg.NL
        if tot-known>NL and NL<cfg.NH:
            lb=e.label('Lw')
            e(f's_cmp_lg_u32 s96, 0\ns_cbranch_scc1 {lb}\ns_waitcnt vmcnt({NL})\n{lb}:')
    def dma(voff, srdreg, soff, i):
        e(f'buffer_load_dwordx4 v{voff}, s[{srdreg}:{srdreg+3}], {soff} offen offset:{i*1024} {pol} lds')
    def tile_setup(kind, t):
        def ptr(a,b): e(f's_cselect_b32 s{SW}, s{a}, s{b}\ns_cselect_b32 s{SW+1}, s{a+1}, s{b+1}')
        if kind=='J':
            if t==0:
                e('s_cmp_eq_u32 s35, 8192'); ptr(P_WQ,P_WM)
                e(f'''s_mov_b32 s{SW+2}, {1024*6144*2}
                s_cselect_b32 s{SW+2}, {1024*4096*2}, s{SW+2}
                s_mov_b32 s56, s35
                s_mul_i32 s58, s43, s35
                s_add_u32 s58, s58, s34
                s_mov_b32 s57, s58''')
            else: e('s_lshl_b32 s40, s35, 1\ns_add_u32 s57, s58, s40')
        elif kind=='WO':
            e(f'''s_mov_b32 s{SW}, s{P_WO}
            s_mov_b32 s{SW+1}, s{P_WO+1}
            s_mov_b32 s{SW+2}, {4096*1024*2}
            s_mov_b32 s56, 2048
            s_and_b32 s40, s14, 7
            s_lshl_b32 s57, s40, 18
            s_lshl_b32 s40, s3, 21
            s_add_u32 s57, s57, s40
            s_bfe_u32 s40, s14, 0x20003
            s_lshl_b32 s40, s40, 16
            s_add_u32 s57, s57, s40
            s_lshr_b32 s40, s14, 5
            s_lshl_b32 s40, s40, 8
            s_add_u32 s57, s57, s40''')
        elif kind in ('X0','X1'):
            t = int(kind[1])
            if t==0:
                e(f'''s_and_b32 s40, s63, 7
                s_lshl_b32 s40, s40, 2
                s_add_u32 s40, s40, s3
                s_mul_i32 s59, s40, {32*7168}
                s_lshr_b32 s40, s63, 3
                s_lshl_b32 s40, s40, 8
                s_add_u32 s59, s59, s40''')
            e(f'''s_sub_u32 s40, s101, s39
            s_lshl_b32 s40, s40, 8
            s_add_u32 s40, s40, s58
            s_add_u32 s40, s40, {t*2*12288}
            s_cmp_lt_u32 s99, 224''')
            ptr(P_W3 if t else P_W1, P_WM)
            e(f'''s_mov_b32 s{SW+2}, {1024*6144*2}
            s_cselect_b32 s{SW+2}, {0 if str(t) in cfg.defer else 1024*3584*2}, s{SW+2}
            s_mov_b32 s56, 12288
            s_cselect_b32 s56, 7168, s56
            s_cselect_b32 s57, s59, s40''')
        elif kind=='X2':
            e(f'''s_lshr_b32 s40, s1, 3
            s_lshl_b32 s57, s40, 18
            s_lshl_b32 s40, s3, 16
            s_add_u32 s57, s57, s40
            s_and_b32 s40, s1, 7
            s_lshl_b32 s40, s40, 8
            s_add_u32 s57, s57, s40
            s_mov_b32 s{SW}, s{P_W2}
            s_mov_b32 s{SW+1}, s{P_W2+1}
            s_cmp_lt_u32 s99, 224
            s_cselect_b32 s{SW+2}, {1024*3584*2}, 0
            s_mov_b32 s56, 2048''')
            if cfg.post: e(f's_cmp_eq_u32 s97, 0\ns_cselect_b32 s{SW+2}, s{SW+2}, 0')
        elif kind=='X3':
            e(f'''s_and_b32 s40, s101, 7
            s_lshl_b32 s40, s40, 2
            s_add_u32 s40, s40, s3
            s_mul_i32 s57, s40, {32*12288}
            s_lshr_b32 s40, s101, 3
            s_lshl_b32 s40, s40, 8
            s_add_u32 s57, s57, s40
            s_add_u32 s57, s57, {40*256}
            s_mov_b32 s{SW}, s{P_WM}
            s_mov_b32 s{SW+1}, s{P_WM+1}
            s_cmp_lg_u32 s0, 0
            s_cselect_b32 s{SW+2}, {1024*6144*2}, 0
            s_mov_b32 s56, 12288''')
        if kind=='J': e(f'v_mov_b32 v{vX+8}, v{vRJ}\ns_mov_b32 s41, 1')
        elif kind in ('WO','X2','X3'): e(f'v_mov_b32 v{vX+8}, v{vR}\ns_mov_b32 s41, 0')
        else: e(f's_cselect_b64 vcc, 0, -1\ns_cselect_b32 s41, 0, 1\nv_cndmask_b32 v{vX+8}, v{vR}, v{vRJ}, vcc')
        e(f'''v_mad_u32_u24 v{vW}, v{vX+8}, s56, v{vSw}
        v_mad_u32_u24 v{vW+1}, v{vX+8}, s56, v{vSw+1}
        s_lshl_b32 s61, s56, s41
        s_lshl_b32 s60, s61, 3
        s_sub_u32 s60, s60, 1024
        s_lshl_b32 s61, s61, 2''')
    def emit_unit(n):
        kind,i = UNITS[n]
        if kind in GROUPS:
            if (i&1)==0: tile_setup(kind,i>>1); e('s_mov_b32 s41, s57')
            else: e('s_add_u32 s41, s57, s61')
            e(f's_add_u32 m0, s32, {(n%8)*4096}')
            for k in range(4):
                if k%2==0: pairwait(n,k)
                dma(vW+(k&1), SW, 's41', k)
                if k<3: e('s_add_u32 s41, s41, s60')
        else:
            e(f's_add_u32 s41, s62, {i*16384}\ns_add_u32 m0, s32, {(n%8)*4096}')
            for k in range(4):
                if k%2==0: pairwait(n,k)
                dma((vK+k) if kind=='K' else (vV+(k&1)), SK if kind=='K' else SV, 's41', k)
    def note_landed(n):
        st['landed']=max(st['landed'],n)
        for gi,g in enumerate(GROUPS):
            if (g,0) not in UNITS: continue
            last=max(k for k,u in enumerate(UNITS) if u[0]==g)
            if last<=st['landed'] and g not in st['signaled']:
                st['signaled'].add(g); lds_signal(e, F_LAND+4*gi, vFl, vOne)
                if g=='J': stamp(e,cfg,6)
    consumed=set()
    def issue(n):
        assert n==st['issued']
        if cfg.pairs and n==5: wait_landed(3)
        if n>=cfg.D0 and not cfg.pairs:
            N = cfg.NV if n>=upos('V',0)+cfg.deep else (cfg.NK if upos('K',min(cfg.kdeep,15))+(cfg.kdeep>15)<=n<upos('V',0) else cfg.N)
            full = n-1-(N+3)//4
            if st['landed']<n-1-N//4:
                e(f's_waitcnt vmcnt({N})'); note_landed(full)
        if n>=8 and UNITS[n-8][0]=='K' and UNITS[n-8][1]<8:
            stage(UNITS[n-8][1]); e('s_waitcnt lgkmcnt(0)')
        if n>=8:
            g=UNITS[n-8][0]
            if g in GROUPS and g not in consumed:
                last=max(k for k,u in enumerate(UNITS) if u[0]==g)
                if g not in st['signaled']: wait_landed(last)
                consumed.add(g); lds_spin(e,cfg,F_CONS+4*GROUPS.index(g),4,vFl,vT)
        if cfg.vwall and n==upos('V',cfg.vwall): lds_spin(e,cfg,F_F,1,vFl,vT)
        if cfg.stamps and cfg.ustamps: e(f's_memrealtime s[82:83]\ns_waitcnt lgkmcnt(0)\nv_writelane_b32 v47, s82, {n}')
        emit_unit(n); st['issued']=n+1
        if cfg.qgate and n==cfg.qgate: lds_signal(e,F_P,vFl,vOne)
        if cfg.hgate and n==cfg.hgate: lds_signal(e,F_P2,vFl,vOne)
        if cfg.mgate and n==cfg.mgate: lds_signal(e,F_P3,vFl,vOne)
        if cfg.help and n==upos('V',cfg.help): lds_signal(e,F_C,vFl,vOne)
    def stage(u):
        wait_landed(upos('K',u))
        for k in range(4):
            r=ST+(u%8)*16+4*k
            e(f'ds_read_b128 v[{r}:{r+3}], v{vKR+k} offset:{slot("K",u)}')
    def wait_landed(n):
        if st['landed']>=n: return
        e(f's_waitcnt vmcnt({4*(st["issued"]-1-n)})'); note_landed(n)
    if cfg.sclear:
        q4=FLATSH//4; nf=q4//1024; rem=q4%1024
        srd(e,SK,P_WS,WS_END)
        e(f'''
        v_mov_b32 v40, -1
        v_mov_b32 v41, -1
        v_mov_b32 v42, -1
        v_mov_b32 v43, -1
        v_lshlrev_b32 v39, 4, v{vL}
        s_mul_i32 s40, s2, {FLATSH}
        s_mul_i32 s41, s3, {q4}
        s_add_u32 s41, s40, s41
        ''')
        if cfg.sclear==2: issue(0)
        if cfg.sclear==2: e(f's_mul_i32 s40, s2, {FLATSH}\ns_mul_i32 s41, s3, {q4}\ns_add_u32 s41, s40, s41')
        for i in range(nf): e(f'buffer_store_dwordx4 v[40:43], v39, s[{SK}:{SK+3}], s41 offen offset:{1024*i} {cfg.cpol}')
        if rem:
            e(f'''v_cmp_gt_u32 vcc, {rem//16}, v{vL}
            s_and_b64 exec, exec, vcc
            buffer_store_dwordx4 v[40:43], v39, s[{SK}:{SK+3}], s41 offen offset:{1024*nf} {cfg.cpol}
            s_mov_b64 exec, -1''')
    for n in range(st['issued'],cfg.D0):
        issue(n)
        if n==0: roles(e,2)
    if cfg.lightdeep: e('s_cmp_ge_u32 s99, 224\ns_cselect_b32 s96, 1, 0')
    srd(e,SK,P_K,0x4000000); srd(e,SV,P_V,0x4000000)
    e(f'''
    s_lshl_b32 s62, s37, 22
    s_lshl_b32 s40, s38, 18
    s_add_u32 s62, s62, s40
    s_lshl_b32 s40, s3, 12
    s_add_u32 s62, s62, s40
    v_xor_b32 v{vX+6}, v{vX+1}, v{vR}
    v_lshlrev_b32 v{vX+7}, 8, v{vR}
    v_lshl_add_u32 v{vK}, v{vX+6}, 4, v{vX+7}
    v_xor_b32 v{vK+1}, 64, v{vK}
    v_xor_b32 v{vK+2}, 128, v{vK}
    v_xor_b32 v{vK+3}, 192, v{vK}
    v_add_u32 v{vV}, v{vSw}, v{vX+7}
    v_add_u32 v{vV+1}, v{vSw+1}, v{vX+7}
    v_lshlrev_b32 v{vX+7}, 8, v{vX+1}
    v_lshl_add_u32 v{vKR}, v{vX+6}, 4, v{vX+7}
    v_add_u32 v{vKR}, s32, v{vKR}
    v_xor_b32 v{vKR+1}, 64, v{vKR}
    v_xor_b32 v{vKR+2}, 128, v{vKR}
    v_xor_b32 v{vKR+3}, 192, v{vKR}
    v_lshrrev_b32 v{vX+2}, 2, v{vL}
    v_and_b32 v{vX+5}, 3, v{vL}
    v_lshlrev_b32 v{vX+6}, 8, v{vX+2}
    v_and_b32 v{vX+7}, 7, v{vX+2}
    v_lshl_add_u32 v{vX+6}, v{vX+7}, 5, v{vX+6}
    v_lshl_add_u32 v{vX+6}, v{vX+5}, 3, v{vX+6}
    v_add_u32 v{vVR}, s32, v{vX+6}
    ''')
    for ct in range(1,8): e(f'v_xor_b32 v{vVR+ct}, {ct<<5}, v{vVR}')
    e(f'''
    v_mov_b32 v{vFl}, {L_FLAG}
    v_mov_b32 v{vOne}, 1
    s_cmp_lg_u32 s15, 0
    s_cbranch_scc1 L_go2
    s_barrier
    L_go2:
    ''')
    V0=upos('V',0); NX=upos('K',15)+1
    for n in range(cfg.D0, NX): issue(n)
    def qk(u):
        for k in range(4):
            r=ST+(u%8)*16+4*k
            e(f'v_mfma_f32_16x16x32_bf16 v[{S+4*u}:{S+4*u+3}], v[{r}:{r+3}], v[{Q+4*k}:{Q+4*k+3}], '+('0' if k==0 else f'v[{S+4*u}:{S+4*u+3}]'))
    vM=vX; vLs=vX+1; t0=vX+2
    def rnd(u):
        for h in range(2):
            a0=S+4*u+2*h; a1=a0+1; t=t0+h
            if cfg.round_s:
                e(f'''v_cvt_pk_bf16_f32 v{t}, v{a0}, v{a1}
                v_lshlrev_b32 v{a0}, 16, v{t}
                v_and_b32 v{a1}, 0xffff0000, v{t}''')
            e(f'v_mul_f32 v{a0}, s42, v{a0}\nv_mul_f32 v{a1}, s42, v{a1}')
            if cfg.round_s:
                e(f'''v_cvt_pk_bf16_f32 v{t}, v{a0}, v{a1}
                v_lshlrev_b32 v{a0}, 16, v{t}
                v_and_b32 v{a1}, 0xffff0000, v{t}''')
            if u==0 and h==0: e(f'v_max_f32 v{vM}, v{a0}, v{a1}')
            else: e(f'v_max3_f32 v{vM}, v{vM}, v{a0}, v{a1}')
    stamp(e,cfg,1)
    e.c('---- all of K is on chip: wait for q, then scores and softmax')
    lds_spin(e,cfg,F_Q,4,vFl,vT)
    if cfg.adapt==3: e(f's_cmp_le_u32 s41, {cfg.rank}\ns_cselect_b32 s96, 1, 0')
    stamp(e,cfg,2)
    e(f'''
    v_and_b32 v{vX+6}, 7, v{vL}
    v_mul_u32_u24 v{vX+6}, {QSTR}, v{vX+6}
    v_lshl_add_u32 v{vX+6}, v{vR}, 4, v{vX+6}
    v_add_u32 v{vX+6}, {L_QOP}, v{vX+6}
    s_mov_b32 s42, {SCALE:#x}
    s_mov_b32 s43, {LOG2E:#x}
    ''')
    for k in range(4): e(f'ds_read_b128 v[{Q+4*k}:{Q+4*k+3}], v{vX+6} offset:{64*k}')
    if cfg.adapt==1: e(f'ds_read_b32 v{vT}, v{vFl} offset:{F_M}')
    e('s_waitcnt lgkmcnt(0)')
    if cfg.adapt==1: e(f'v_readfirstlane_b32 s96, v{vT}')
    if cfg.adapt not in (1,3): e('s_mov_b32 s96, 0')
    if cfg.post: e(f'ds_read_b32 v{vT}, v{vFl} offset:{F_M}\ns_waitcnt lgkmcnt(0)\nv_readfirstlane_b32 s97, v{vT}')
    for u in range(D):
        qk(u); stage(8+u); e('s_waitcnt lgkmcnt(0)'); issue(NX+u)
    for u in range(D,8):
        qk(u); stage(8+u)
    e('s_waitcnt lgkmcnt(0)')
    for u in range(8,16): qk(u)
    nxt=[NX+D]
    def more():
        if nxt[0]<V0+8:
            if cfg.adapt==2 and nxt[0]>=V0+7:
                e(f'ds_read_b32 v{vT}, v{vFl} offset:{F_M}\ns_waitcnt lgkmcnt(0)\nv_readfirstlane_b32 s96, v{vT}')
            issue(nxt[0]); nxt[0]+=1
    more()
    for u in range(16):
        rnd(u)
        if u in (5,10,15): more()
    e(f'''
    v_mov_b32 v{t0}, v{vM}
    v_permlane32_swap_b32 v{t0}, v{vM}
    v_max_f32 v{vM}, v{vM}, v{t0}
    v_mov_b32 v{t0}, v{vM}
    v_permlane16_swap_b32 v{t0}, v{vM}
    v_max_f32 v{vM}, v{vM}, v{t0}
    v_mul_f32 v{vM}, s43, v{vM}
    ''')
    for u in range(16):
        for r in range(4): e(f'v_fma_f32 v{S+4*u+r}, v{S+4*u+r}, s43, -v{vM}')
        for r in range(4): e(f'v_exp_f32 v{S+4*u+r}, v{S+4*u+r}')
        if u==0: e(f'v_add_f32 v{vLs}, v{S}, v{S+1}')
        else: e(f'v_add_f32 v{vLs}, v{vLs}, v{S+4*u}\nv_add_f32 v{vLs}, v{vLs}, v{S+4*u+1}')
        e(f'''v_cvt_pk_bf16_f32 v{P+2*u}, v{S+4*u}, v{S+4*u+1}
        v_add_f32 v{vLs}, v{vLs}, v{S+4*u+2}
        v_add_f32 v{vLs}, v{vLs}, v{S+4*u+3}
        v_cvt_pk_bf16_f32 v{P+2*u+1}, v{S+4*u+2}, v{S+4*u+3}''')
        if u in (7,): more()
    e(f'''
    v_mov_b32 v{t0}, v{vLs}
    v_permlane32_swap_b32 v{t0}, v{vLs}
    v_add_f32 v{vLs}, v{vLs}, v{t0}
    v_mov_b32 v{t0}, v{vLs}
    v_permlane16_swap_b32 v{t0}, v{vLs}
    v_add_f32 v{vLs}, v{vLs}, v{t0}
    s_lshl_b32 s40, s3, 6
    s_add_u32 s40, s40, {L_ML}
    v_lshl_add_u32 v{t0}, v{vL}, 3, s40
    s_mov_b64 exec, 0xff
    ds_write_b64 v{t0}, v[{vM}:{vM+1}]
    s_waitcnt lgkmcnt(0)
    s_mov_b64 exec, -1
    ''')
    lds_signal(e,F_ML,vFl,vOne)
    stamp(e,cfg,3)
    while nxt[0]<V0+8: more()
    e.c('---- P.V')
    for j in range(8):
        wait_landed(V0+2*j+1)
        if j==7: stamp(e,cfg,4)
        for ct in range(8):
            for hf in range(2):
                r=VF+4*ct+2*hf
                e(f'ds_read_b64_tr_b16 v[{r}:{r+1}], v{vVR+ct} offset:{slot("V",2*j+hf)}')
        for ct in range(8):
            e(f's_waitcnt lgkmcnt({14-2*ct})')
            e(f'v_mfma_f32_16x16x32_bf16 v[{O+4*ct}:{O+4*ct+3}], v[{VF+4*ct}:{VF+4*ct+3}], v[{P+4*j}:{P+4*j+3}], '+('0' if j==0 else f'v[{O+4*ct}:{O+4*ct+3}]'))
        if cfg.adapt==2 and j<3:
            e(f'ds_read_b32 v{vT}, v{vFl} offset:{F_M}\ns_waitcnt lgkmcnt(0)\nv_readfirstlane_b32 s96, v{vT}')
        for k in range(2):
            if V0+2*j+8+k < len(UNITS): issue(V0+2*j+8+k)
        if j==cfg.vsig: lds_signal(e,F_V,vFl,vOne)
        if cfg.vsig2 and j==cfg.vsig2: lds_signal(e,F_V2,vFl,vOne)
        if j==6:
            e(f'''
            v_and_b32 v{t0}, 15, v{vL}
            v_mul_u32_u24 v{t0}, {OSTR}, v{t0}
            v_lshl_add_u32 v{t0}, v{vR}, 4, v{t0}
            v_add_u32 v{t0}, s32, v{t0}
            v_add_u32 v{t0}, {(slot('V',15)+4096)%RING}, v{t0}
            s_mov_b32 s40, 0x00ff00ff
            s_mov_b32 s41, 0x00ff00ff
            ''')
    e('s_mov_b64 exec, s[40:41]')
    for ct in range(8): e(f'ds_write_b128 v{t0}, v[{O+4*ct}:{O+4*ct+3}] offset:{64*ct}')
    e('s_waitcnt lgkmcnt(0)\ns_mov_b64 exec, -1')
    if cfg.obar: e('s_barrier')
    else: lds_signal(e,F_O,vFl,vOne)
    stamp(e,cfg,5)
    if cfg.help:
        lh=e.label('Lnohelp')
        srd(e,SW,P_WS,WS_END)
        e(f'''
        s_lshl_b32 s40, s37, 7
        s_add_u32 s40, s40, {WS_CP}
        v_and_b32 v{vX}, 15, v{vL}
        v_lshlrev_b32 v{vX}, 2, v{vX}
        buffer_load_dword v{vX+1}, v{vX}, s[{SW}:{SW+3}], s40 offen sc1
        v_lshlrev_b32 v{vX}, 4, v{vL}
        s_waitcnt vmcnt(0)
        v_cmp_eq_u32 vcc, -1, v{vX+1}
        s_lshr_b32 s40, vcc_lo, s38
        s_and_b32 s40, s40, 0xfffe
        s_cbranch_scc0 {lh}
        s_ff1_i32_b32 s40, s40
        s_add_u32 s40, s40, s38
        s_and_b32 s40, s40, 15
        s_sub_u32 s40, s40, s38
        s_lshl_b32 s40, s40, 18
        s_add_u32 s41, s62, s40
        ''')
        for u in range(15,15-cfg.helpn,-1):
            e(f's_add_u32 s40, s41, {u*16384}')
            for k in range(4): e(f'buffer_load_dwordx4 v[{64+16*(15-u)+4*k}:{67+16*(15-u)+4*k}], v{vX}, s[{SV}:{SV+3}], s40 offen offset:{1024*k} {cfg.helppol}')
        e(f's_waitcnt vmcnt(0)\n{lh}:')
    stamps_out(e,cfg,8,vX+4)
    if cfg.stamps:
        e(f'''s_lshl_b32 s40, s2, 2
        s_add_u32 s40, s40, s3
        s_lshl_b32 s40, s40, 8
        s_add_u32 s40, s40, {WS_STAMP+0x40000}
        v_lshl_add_u32 v46, v{vL}, 2, s40
        global_store_dword v46, v47, s[{P_WS}:{P_WS+1}]''')
    e('s_waitcnt lgkmcnt(0)\ns_endpgm')

def aux(e, cfg):
    global gather
    real_gather = gen1.gather
    phase = ['h']
    def gather(e, cfg, loads, vchk, sleep, **kw):
        if phase[0] in cfg.kill: e('s_mov_b32 s41, 1'); return
        real_gather(e, cfg, loads, vchk, sleep, **kw)
    vL=1; vFl=2; vOne=3; vT=4; vRow=5; vRd=6; vRr=7; vA=8
    X2=64; X0=96; X1=128; WO=160; WJ=192
    vHq=62; vRo=63; RN=64; RX=66
    OOFF=(slot('V',15)+4096)%RING
    e.c('================= aux waves =================')
    e('L_aux:')
    e(f'''
    s_setprio {cfg.prio}
    s_sub_u32 s3, s3, 4
    s_lshl_b32 s32, s3, 15
    v_lshlrev_b32 v{vRow}, 4, v{vL}
    v_mov_b32 v{vFl}, {L_FLAG}
    v_mov_b32 v{vOne}, 1
    v_mov_b32 v16, 0
    v_lshl_add_u32 v{vA+1}, v{vL}, 2, v{vFl}
    ds_write_b32 v{vA+1}, v16
    v_mov_b32 v32, -1
    v_mov_b32 v33, -1
    v_mov_b32 v34, -1
    v_mov_b32 v35, -1
    v_bfe_u32 v{vA+2}, v{vL}, 2, 2
    v_lshrrev_b32 v{vA+3}, 4, v{vL}
    v_and_b32 v{vA+6}, 3, v{vL}
    v_lshl_add_u32 v{vA+3}, v{vA+3}, 2, v{vA+6}
    v_lshlrev_b32 v{vA+2}, 11, v{vA+2}
    v_lshl_add_u32 v{vA}, v{vA+3}, 3, v{vA+2}
    ''')
    roles(e,3)
    e(f'''
    s_lshl_b32 s40, s36, 9
    s_lshl_b32 s41, s3, 7
    s_add_u32 s40, s40, s41
    v_add_u32 v{vA}, s40, v{vA}
    s_lshl_b32 s40, s3, 11
    v_add_u32 v{vA+1}, s40, v{vRow}
    v_lshl_add_u32 v{vA+5}, v{vA+3}, 2, v{vA+2}
    s_and_b32 s40, s101, 7
    s_lshl_b32 s40, s40, 8
    s_lshl_b32 s41, s3, 6
    s_add_u32 s40, s40, s41
    v_add_u32 v{vA+5}, s40, v{vA+5}
    s_waitcnt lgkmcnt(0)
    ''')
    stamp(e,cfg,0)
    if cfg.tlb:
        e(f'''
        s_lshl_b32 s40, s37, 22
        s_lshl_b32 s41, s38, 18
        s_add_u32 s40, s40, s41
        s_load_dword s51, s[{P_K}:{P_K+1}], s40
        s_load_dword s52, s[{P_V}:{P_V+1}], s40
        s_and_b32 s40, s14, 7
        s_lshl_b32 s40, s40, 18
        s_lshl_b32 s41, s3, 21
        s_add_u32 s40, s40, s41
        s_load_dword s53, s[{P_WO}:{P_WO+1}], s40
        s_and_b32 s40, s63, 7
        s_lshl_b32 s40, s40, 2
        s_add_u32 s40, s40, s3
        s_mul_i32 s40, s40, {32*7168}
        s_load_dword s54, s[{P_W1}:{P_W1+1}], s40
        s_load_dword s55, s[{P_W3}:{P_W3+1}], s40
        s_lshr_b32 s40, s1, 3
        s_lshl_b32 s40, s40, 18
        s_load_dword s56, s[{P_W2}:{P_W2+1}], s40
        s_load_dword s57, s[{P_OUT}:{P_OUT+1}], 0
        s_lshl_b32 s40, s3, 19
        s_load_dword s58, s[{P_WS}:{P_WS+1}], s40
        ''')
    srd(e,SWS,P_WS,WS_END)
    lh=e.label('Lnohead')
    e(f'''
    s_cmp_eq_u32 s15, 0
    s_cbranch_scc1 {lh}
    s_cmp_lg_u32 s3, 3
    s_cbranch_scc1 {lh}_b
    s_sub_u32 s41, s15, 32
    s_lshr_b32 s40, s41, 3
    s_mul_i32 s40, s40, {MUS}
    s_and_b32 s42, s41, 7
    s_lshl_b32 s42, s42, 9
    s_add_u32 s40, s40, s42
    s_add_u32 s40, s40, {WS_MU}
    s_add_u32 s42, s40, {8*MUS}
    s_add_u32 s43, s40, 4096
    s_add_u32 s48, s42, 4096
    v_lshrrev_b32 v{vA+4}, 5, v{vL}
    v_mul_u32_u24 v{vA+4}, {4*MUS}, v{vA+4}
    v_and_b32 v{vA+6}, 31, v{vL}
    v_lshl_add_u32 v{vA+4}, v{vA+6}, 4, v{vA+4}
    buffer_store_dwordx4 v[32:35], v{vA+4}, s[{SWS}:{SWS+3}], s40 offen sc1
    buffer_store_dwordx4 v[32:35], v{vA+4}, s[{SWS}:{SWS+3}], s42 offen sc1
    buffer_store_dwordx4 v[32:35], v{vA+4}, s[{SWS}:{SWS+3}], s43 offen sc1
    buffer_store_dwordx4 v[32:35], v{vA+4}, s[{SWS}:{SWS+3}], s48 offen sc1
    s_cmp_lt_u32 s15, 63
    s_cbranch_scc1 {lh}_c
    s_mov_b32 s40, {WS_SA}
    buffer_store_dwordx4 v[32:35], v{vRow}, s[{SWS}:{SWS+3}], s40 offen sc1
    {lh}_c:
    s_lshl_b32 s41, s41, 2
    v_mov_b32 v{vA+4}, s41
    {'s_waitcnt vmcnt(0)' if cfg.hold else 's_barrier'}
    {'' if cfg.hold else 's_waitcnt vmcnt(0)'}
    s_mov_b64 exec, 1
    global_store_dword v{vA+4}, v{vOne}, s[{P_DBG}:{P_DBG+1}] sc1
    s_mov_b64 exec, -1
    {'' if cfg.hold else 's_branch '+lh}
    {lh}_b:
    s_barrier
    {lh}:
    v_mov_b32 v{vHq}, v{vA}
    v_and_b32 v{vA+2}, 15, v{vL}
    v_lshlrev_b32 v{vRo}, 3, v{vA+2}
    v_lshrrev_b32 v{vA+2}, 5, v{vL}
    v_lshl_add_u32 v{vRo}, v{vA+2}, 2, v{vRo}
    s_cmp_eq_u32 s33, 1
    s_cbranch_scc1 {'L_qx' if cfg.direct else 'L_nox'}
    global_load_dwordx2 v[16:17], v{vA}, s[{P_C}:{P_C+1}]
    global_load_dword v18, v{vA+5}, s[{P_C}:{P_C+1}]
    s_cmp_lt_u32 s99, 224
    s_cbranch_scc1 L_nox
    s_cmp_ge_u32 s3, 2
    s_cbranch_scc1 L_nox
    s_sub_u32 s98, s99, 224
    s_lshl_b32 s98, s98, 1
    s_add_u32 s98, s98, s3
    s_lshr_b32 s40, s98, 4
    s_lshl_b32 s40, s40, 11
    v_add_u32 v{vA+1}, s40, v{vRow}
    s_lshl_b32 s40, s98, 7
    v_add_u32 v{vA+2}, s40, v{vRo}
    global_load_dwordx4 v[24:27], v{vA+1}, s[{P_X}:{P_X+1}]
    global_load_dwordx4 v[28:31], v{vA+1}, s[{P_X}:{P_X+1}] offset:1024
    global_load_dword v19, v{vA+2}, s[{P_X}:{P_X+1}]
    ''')
    if cfg.direct:
        e(f'''
        s_branch L_nox
        L_qx:
        s_lshl_b32 s40, s3, 11
        v_add_u32 v{vA+1}, s40, v{vRow}
        global_load_dwordx2 v[16:17], v{vA}, s[{P_X}:{P_X+1}]
        global_load_dwordx4 v[24:27], v{vA+1}, s[{P_X}:{P_X+1}]
        global_load_dwordx4 v[28:31], v{vA+1}, s[{P_X}:{P_X+1}] offset:1024
        ''')
    e(f'''
    L_nox:
    s_cmp_lg_u32 s15, 0
    s_cbranch_scc1 L_nobar
    s_barrier
    L_nobar:
    s_mov_b32 s50, 0
    s_mul_i32 s40, s3, 2304
    s_add_u32 s40, s40, {L_RED}
    v_lshrrev_b32 v{vA+2}, 4, v{vL}
    v_mul_u32_u24 v{vRd}, 576, v{vA+2}
    v_and_b32 v{vA+2}, 15, v{vL}
    v_lshl_add_u32 v{vRd}, v{vA+2}, 2, v{vRd}
    v_add_u32 v{vRd}, s40, v{vRd}
    s_mul_i32 s40, s3, 1152
    s_add_u32 s40, s40, {L_RED}
    v_lshrrev_b32 v{vA+2}, 5, v{vL}
    v_mul_u32_u24 v{vRr}, 576, v{vA+2}
    v_and_b32 v{vA+2}, 31, v{vL}
    v_lshl_add_u32 v{vRr}, v{vA+2}, 4, v{vRr}
    v_add_u32 v{vRr}, s40, v{vRr}
    ''')
    q4=FLATSH//4; nf=q4//1024; rem=q4%1024
    lc=e.label('Lclr'); lc2=e.label('Lclrd')
    e(f'''
    s_mul_i32 s40, s2, {FLATSH}
    s_mul_i32 s41, s3, {q4}
    s_add_u32 s41, s40, s41
    {'s_mov_b32 s46, 0' if 'c' in cfg.kill else ''}
    ''')
    if cfg.sclear: nf=0; rem=0
    for i in range(nf): e(f'buffer_store_dwordx4 v[32:35], v{vRow}, s[{SWS}:{SWS+3}], s41 offen offset:{1024*i} {cfg.cpol}')
    if rem:
        e(f'''v_cmp_gt_u32 vcc, {rem//16}, v{vL}
        s_and_b64 exec, exec, vcc
        buffer_store_dwordx4 v[32:35], v{vRow}, s[{SWS}:{SWS+3}], s41 offen offset:{1024*nf} {cfg.cpol}
        s_mov_b64 exec, -1''')
    nst=nf+(1 if rem else 0)
    lr0=if_red_early=e.label('Lnrc')
    e(f'''
    s_cmp_lt_u32 s99, 224
    s_cbranch_scc1 {lr0}
    s_cmp_ge_u32 s3, 2
    s_cbranch_scc1 {lr0}
    s_lshl_b32 s40, s98, 7
    s_add_u32 s40, s40, {WS_H}
    buffer_store_dword v32, v{vRo}, s[{SWS}:{SWS+3}], s40 offen sc1
    s_waitcnt vmcnt({nst+1})
    s_branch {lc2}
    {lr0}:
    s_waitcnt vmcnt({nst})
    {lc2}:
    ''')
    stamp(e,cfg,14)
    if 'c' in cfg.kill: e(f's_mov_b32 s46, {WS_END}')
    if 'h' in cfg.kill: e('s_mov_b32 s46, 0')
    def pub_addr(base, rs, skq, scg):
        e(f'''
        s_lshl_b32 s40, {skq}, 1
        s_add_u32 s40, s40, s3
        s_mul_i32 s40, s40, {2*rs}
        s_lshl_b32 s41, {scg}, 9
        s_add_u32 s40, s40, s41
        s_add_u32 s40, s40, {base}
        v_lshrrev_b32 v{vA}, 5, v{vL}
        v_mul_u32_u24 v{vA}, {rs}, v{vA}
        v_and_b32 v{vA+1}, 31, v{vL}
        v_lshl_add_u32 v{vA}, v{vA+1}, 4, v{vA}
        ''')
    def auxbar():
        e('s_add_u32 s50, s50, 4\ns_waitcnt lgkmcnt(0)')
        lds_signal(e,F_AUX,vFl,vOne)
        lds_spin(e,cfg,F_AUX,'s50',vFl,vT)
    def go1a():
        if 'h' in cfg.kill: return
        la=e.label('Lnogo')
        e(f'''
        v_and_b32 v61, 31, v{vL}
        v_lshlrev_b32 v61, 2, v61
        s_cmp_lg_u32 s3, 3
        s_cbranch_scc1 {la}
        global_load_dword v60, v61, s[{P_DBG}:{P_DBG+1}] sc1
        {la}:
        ''')
    def go1():
        if 'h' in cfg.kill: return
        l=e.label('Lgo'); d=e.label('Lgod'); la=e.label('Lnogo')
        e(f'''
        s_cmp_lg_u32 s3, 3
        s_cbranch_scc1 {la}
        s_mov_b32 s41, 0
        {l}:
        s_add_u32 s41, s41, 1
        s_waitcnt vmcnt(0)
        v_cmp_ne_u32 vcc, 1, v60
        s_cbranch_vccz {d}
        s_sleep {cfg.sleep_head}
        global_load_dword v60, v61, s[{P_DBG}:{P_DBG+1}] sc1
        s_cmp_lt_u32 s41, {cfg.gpoll}
        s_cbranch_scc1 {l}
        {d}:
        ''')
        stamp(e,cfg,15)
        e(f'{la}:\ns_waitcnt vmcnt(0)')
    def arrive():
        la=e.label('Lnoarr')
        if 'a' in cfg.kill: return
        e(f'''
        s_cmp_lg_u32 s3, 3
        s_cbranch_scc1 {la}
        s_and_b32 s40, s2, 7
        s_lshl_b32 s40, s40, 5
        s_lshr_b32 s41, s2, 3
        s_add_u32 s40, s40, s41
        s_lshl_b32 s40, s40, 2
        s_add_u32 s40, s40, {WS_SA}
        s_getreg_b32 s41, hwreg(HW_REG_XCC_ID, 0, 4)
        s_add_u32 s41, s41, 1
        v_mov_b32 v{vA}, 0
        v_mov_b32 v{vA+1}, s41
        s_mov_b64 exec, 1
        buffer_store_dword v{vA+1}, v{vA}, s[{SWS}:{SWS+3}], s40 offen sc1
        s_mov_b64 exec, -1
        {la}:
        ''')
    def gbar1():
        l1=e.label('Lgb1')
        if 'a' in cfg.kill:
            e(f's_cmp_lg_u32 s3, 0\ns_cbranch_scc1 {l1}'); lds_signal(e,F_L,vFl,vOne); e(f'{l1}:'); return
        e(f's_cmp_lg_u32 s3, 0\ns_cbranch_scc1 {l1}\ns_mov_b32 s40, {WS_SA}')
        gather(e,cfg,[(24,4,vRow,'s40',0)],vT,cfg.sleep_head)
        if cfg.local:
            e(f'''
            v_xor_b32 v25, v25, v24
            v_xor_b32 v26, v26, v24
            v_xor_b32 v27, v27, v24
            v_or3_b32 v25, v25, v26, v27
            v_mov_b32_dpp v26, v24 row_ror:1 row_mask:0xf bank_mask:0xf
            v_xor_b32 v26, v26, v24
            v_and_b32 v27, 7, v{vL}
            v_cmp_eq_u32 vcc, 0, v27
            v_cndmask_b32 v26, v26, 0, vcc
            v_or_b32 v25, v25, v26
            v_cmp_ne_u32 vcc, 0, v25
            s_cbranch_vccnz {l1}
            ''')
            lds_signal(e,F_L,vFl,vOne)
        e(f'{l1}:')
    def pickup(kind, dsts):
        gi=GROUPS.index(kind)
        e(f'''v_lshrrev_b32 v{vA+7}, 2, v{vL}
        v_lshlrev_b32 v{vA}, 8, v{vA+7}
        v_and_b32 v{vA+7}, 7, v{vA+7}
        v_lshl_add_u32 v{vA}, v{vA+7}, 5, v{vA}
        v_and_b32 v{vA+7}, 3, v{vL}
        v_lshl_add_u32 v{vA}, v{vA+7}, 3, v{vA}
        v_add_u32 v{vA}, s32, v{vA}''')
        for ct in range(1,8): e(f'v_xor_b32 v{vA+ct}, {ct<<5}, v{vA}')
        lds_spin(e,cfg,F_LAND+4*gi,4,vFl,vT)
        for t,W in enumerate(dsts):
            sk=None
            if isinstance(W,tuple):
                W=W[0]; sk=e.label('Lsk'); e(f's_cmp_eq_u32 s0, 0\ns_cbranch_scc1 {sk}')
            for ct in range(8):
                for hf in range(2):
                    r=W+4*ct+2*hf
                    e(f'ds_read_b64_tr_b16 v[{r}:{r+1}], v{vA+ct} offset:{slot(kind,2*t+hf)}')
            if sk: e(f'{sk}:')
        e('s_waitcnt lgkmcnt(0)')
        lds_signal(e,F_CONS+4*gi,vFl,vOne)
    def pickup_cols(kind, W, base=None):
        gi=GROUPS.index(kind)
        e(f'''v_lshrrev_b32 v{vA+7}, 2, v{vL}
        v_lshlrev_b32 v{vA}, 8, v{vA+7}
        v_and_b32 v{vA+7}, 7, v{vA+7}
        s_lshl_b32 s40, s3, 1
        v_xor_b32 v{vA+7}, s40, v{vA+7}
        v_lshl_add_u32 v{vA}, v{vA+7}, 5, v{vA}
        v_and_b32 v{vA+7}, 3, v{vL}
        v_lshl_add_u32 v{vA}, v{vA+7}, 3, v{vA}
        v_xor_b32 v{vA+1}, 32, v{vA}
        v_add_u32 v{vA+2}, 0x10000, v{vA}
        v_add_u32 v{vA+3}, 0x10000, v{vA+1}''')
        if base is None: lds_spin(e,cfg,F_LAND+4*gi,4,vFl,vT)
        for t in range(4):
            for j in range(2):
                for hf in range(2):
                    r=W+8*t+4*j+2*hf
                    e(f'ds_read_b64_tr_b16 v[{r}:{r+1}], v{vA+2*(t>>1)+j} offset:{(t&1)*RING+(slot(kind,hf) if base is None else base+4096*hf)}')
        if base is None:
            e('s_waitcnt lgkmcnt(0)')
            lds_signal(e,F_CONS+4*gi,vFl,vOne)
    def pickup_x(kind, W):
        la=e.label('Lpl'); lb=e.label('Lpld')
        e(f's_cmp_ge_u32 s99, 224\ns_cbranch_scc1 {la}')
        if kind[1] in cfg.defer: lds_signal(e,F_CONS+4*GROUPS.index(kind),vFl,vOne)
        else: pickup_cols(kind,W)
        e(f's_branch {lb}\n{la}:')
        pickup(kind,[W])
        e(f'{lb}:')
    def mmx(Ws, accs, vXr, xo=0):
        e('s_waitcnt lgkmcnt(0)\ns_barrier')
        for t in range(4): e(f'ds_read_b128 v[{16+4*t}:{19+4*t}], v{vXr} offset:{xo+64*t}')
        for t in range(4):
            e(f's_waitcnt lgkmcnt({3-t})')
            for m,W in enumerate(Ws):
                for j in range(2):
                    ac=accs[2*m+j]
                    e(f'v_mfma_f32_16x16x32_bf16 v[{ac}:{ac+3}], v[{16+4*t}:{19+4*t}], v[{W+8*t+4*j}:{W+8*t+4*j+3}], '+('0' if t==0 else f'v[{ac}:{ac+3}]'))
    def mm(As, Ws, accs, redoff=0):
        for t,(a_,W) in enumerate(zip(As,Ws)):
            for ct in range(8):
                e(f'v_mfma_f32_16x16x32_bf16 v[{accs[ct]}:{accs[ct]+3}], v[{a_}:{a_+3}], v[{W+4*ct}:{W+4*ct+3}], '+('0' if t==0 else f'v[{accs[ct]}:{accs[ct]+3}]'))
        for ct in range(8): e(f'ds_write_b32 v{vRd}, v{accs[ct]} offset:{64*ct}')
    JACC=[24+4*i for i in range(8)]
    def job_sum(dst):
        lp=e.label('Lnosum')
        e(f's_cmp_ge_u32 s3, 2\ns_cbranch_scc1 {lp}')
        for w in range(4): e(f'ds_read_b128 v[{24+4*w}:{27+4*w}], v{vRr} offset:{2304*w}')
        e('s_waitcnt lgkmcnt(0)')
        for a_,b_,d_ in ((24,28,24),(32,36,32),(24,32,dst)):
            e(f'v_pk_add_f32 v[{d_}:{d_+1}], v[{a_}:{a_+1}], v[{b_}:{b_+1}]\nv_pk_add_f32 v[{d_+2}:{d_+3}], v[{a_+2}:{a_+3}], v[{b_+2}:{b_+3}]')
        for r in range(4): e(f'v_min_u32 v{dst+r}, -2, v{dst+r}')
        e(f'{lp}:')
    def job_store(src, base, rs, cgoff, skq='s36', scg='s39'):
        lp=e.label('Lnopub')
        e(f's_cmp_ge_u32 s3, 2\ns_cbranch_scc1 {lp}')
        pub_addr(base+cgoff*512, rs, skq, scg)
        e(f'buffer_store_dwordx4 v[{src}:{src+3}], v{vA}, s[{SWS}:{SWS+3}], s40 offen sc1\n{lp}:')
    def job_pub(base, rs, cgoff, skq='s36', scg='s39'):
        job_sum(24); job_store(24, base, rs, cgoff, skq, scg)
    def spread(r):
        for k in (1,2,3,0): e(f'v_mov_b32_dpp v{r+k}, v{r} quad_perm:[{k},{k},{k},{k}] row_mask:0xf bank_mask:0xf')
    def silu_A():
        unpack(e,16,32,3)
        for i in range(6): e(f'v_mul_f32 v{48+i}, 0xbfb8aa3b, v{32+i}')
        for i in range(6): e(f'v_exp_f32 v{48+i}, v{48+i}')
        for i in range(6): e(f'v_add_f32 v{48+i}, 1.0, v{48+i}')
        for i in range(6): e(f'v_rcp_f32 v{48+i}, v{48+i}')
        for i in range(6): e(f'v_mul_f32 v{32+i}, v{32+i}, v{48+i}')
        e('v_cvt_pk_bf16_f32 v16, v32, v33\nv_cvt_pk_bf16_f32 v20, v34, v35\nv_cvt_pk_bf16_f32 v56, v36, v37')
        spread(16); spread(20); spread(56)
    def sum4(r, dst):
        e(f'''v_pk_add_f32 v[{r}:{r+1}], v[{r}:{r+1}], v[{r+2}:{r+3}]
        v_pk_add_f32 v[{r+4}:{r+5}], v[{r+4}:{r+5}], v[{r+6}:{r+7}]
        v_pk_add_f32 v[{dst}:{dst+1}], v[{r}:{r+1}], v[{r+4}:{r+5}]''')
    def aoff(dst, pstr, bstr, gstr):
        e(f'''v_bfe_u32 v{vA+5}, v{vL}, 2, 2
        v_and_b32 v{vA+6}, 3, v{vL}
        v_lshrrev_b32 v{vA+7}, 4, v{vL}
        v_mul_u32_u24 v{dst}, {pstr}, v{vA+5}
        v_mul_u32_u24 v{vA+6}, {bstr}, v{vA+6}
        v_mul_u32_u24 v{vA+7}, {gstr}, v{vA+7}
        v_add3_u32 v{dst}, v{dst}, v{vA+6}, v{vA+7}''')
    def dppsum(r0, n):
        for r in (4,8):
            for i in range(n): e(f'v_add_f32_dpp v{r0+i}, v{r0+i}, v{r0+i} row_ror:{r} row_mask:0xf bank_mask:0xf')
    def allred_s(op, xs, t, rors=(4,8), swaps=('v_permlane16_swap_b32','v_permlane32_swap_b32')):
        for r in rors:
            for x in xs: e(f'{op}_dpp v{x}, v{x}, v{x} row_ror:{r} row_mask:0xf bank_mask:0xf')
        for sw in swaps:
            for k,x in enumerate(xs): e(f'v_mov_b32 v{t+k}, v{x}')
            for k,x in enumerate(xs): e(f'{sw} v{t+k}, v{x}')
            for k,x in enumerate(xs): e(f'{op} v{x}, v{x}, v{t+k}')
    def gather_q():
        e(f'''
        s_lshr_b32 s40, s37, 2
        s_mul_i32 s40, s40, {QS}
        s_and_b32 s41, s37, 3
        s_lshl_b32 s41, s41, 12
        s_add_u32 s40, s40, s41
        s_lshl_b32 s41, s3, 10
        s_add_u32 s40, s40, s41
        s_add_u32 s52, s40, {WS_Q}
        s_add_u32 s53, s52, {4*QS}
        s_add_u32 s54, s52, {8*QS}
        s_add_u32 s55, s52, {12*QS}
        ''')
        gather(e,cfg,[(24+4*i,4,vRow,f's{52+i}',0) for i in range(4)],vT,cfg.sleep_q)
        e(f'''
        s_mov_b32 s42, s41
        v_pk_add_f32 v[24:25], v[24:25], v[28:29]
        v_pk_add_f32 v[26:27], v[26:27], v[30:31]
        v_pk_add_f32 v[32:33], v[32:33], v[36:37]
        v_pk_add_f32 v[34:35], v[34:35], v[38:39]
        v_pk_add_f32 v[24:25], v[24:25], v[32:33]
        v_pk_add_f32 v[26:27], v[26:27], v[34:35]
        s_mul_i32 s40, s3, {2*QSTR}
        s_add_u32 s40, s40, {L_QOP}
        v_lshrrev_b32 v{vA}, 5, v{vL}
        v_mul_u32_u24 v{vA}, {QSTR}, v{vA}
        v_and_b32 v{vA+1}, 31, v{vL}
        v_lshl_add_u32 v{vA}, v{vA+1}, 3, v{vA}
        v_add_u32 v{vA}, s40, v{vA}
        v_cvt_pk_bf16_f32 v24, v24, v25
        v_cvt_pk_bf16_f32 v25, v26, v27
        ds_write_b64 v{vA}, v[24:25]
        ''')
        if cfg.adapt==1 or cfg.post:
            lb=e.label('Lld')
            e(f's_cmp_lg_u32 s42, 1\ns_cbranch_scc1 {lb}')
            if cfg.post: e(f's_cmp_lg_u32 s3, 0\ns_cbranch_scc1 {lb}')
            lds_signal(e,F_M,vFl,vOne)
            e(f'{lb}:')
        e('s_waitcnt lgkmcnt(0)')
        lds_signal(e,F_Q,vFl,vOne)
    early = True
    def finish_stats(mu,var):
        if cfg.round_ln: rnd1(e,mu); rnd1(e,var)
        e(f'v_add_f32 v{var}, 0x3727c5ac, v{var}')
        if cfg.round_ln: rnd1(e,var)
        e(f'v_sqrt_f32 v{var}, v{var}')
        if cfg.round_ln: rnd1(e,var)
        e(f'v_rcp_f32 v{var}, v{var}')
    def normalise(X,n,mu,rs,t):
        for i in range(n): e(f'v_sub_f32 v{X+i}, v{X+i}, v{mu}')
        if cfg.round_ln: rnd_vec(e,X,n,t)
        for i in range(n): e(f'v_mul_f32 v{X+i}, v{X+i}, v{rs}')
        if cfg.round_ln: rnd_vec(e,X,n,t)
    def modulate(X,n,T1,SB,out,t,prep=True):
        if prep:
            for i in range(n): e(f'v_add_f32 v{T1+i}, 1.0, v{T1+i}')
            if cfg.round_ln: rnd_vec(e,T1,n,t)
        for i in range(n): e(f'v_mul_f32 v{X+i}, v{X+i}, v{T1+i}')
        if cfg.round_ln: rnd_vec(e,X,n,t)
        for i in range(n): e(f'v_add_f32 v{X+i}, v{X+i}, v{SB+i}')
        for i in range(n//2): e(f'v_cvt_pk_bf16_f32 v{out+i}, v{X+2*i}, v{X+2*i+1}')
    def rowsum(r):
        e(f'''
        v_permlane32_swap_b32 v{r}, v{r+2}
        v_permlane32_swap_b32 v{r+1}, v{r+3}
        v_pk_add_f32 v[{r}:{r+1}], v[{r}:{r+1}], v[{r+2}:{r+3}]
        v_mov_b32 v{r+2}, v{r}
        v_mov_b32 v{r+3}, v{r+1}
        v_permlane16_swap_b32 v{r+2}, v{r}
        v_permlane16_swap_b32 v{r+3}, v{r+1}
        v_pk_add_f32 v[{r}:{r+1}], v[{r}:{r+1}], v[{r+2}:{r+3}]
        ''')
    def if_red():
        l=e.label('Lnr')
        e(f's_cmp_lt_u32 s99, 224\ns_cbranch_scc1 {l}\ns_cmp_ge_u32 s3, 2\ns_cbranch_scc1 {l}')
        return l
    def red_addr(base, rs, sreg):
        aoff(vA, 64, 16, 4*rs)
        e(f'''s_lshr_b32 s42, s98, 4
        s_mul_i32 s42, s42, {rs}
        s_and_b32 s43, s98, 15
        s_lshl_b32 s43, s43, 8
        s_add_u32 s42, s42, s43
        s_add_u32 {sreg}, s42, {base}''')
    def red_stats():
        l=if_red()
        if not cfg.direct: row_stats()
        unpack(e,19,RX,1)
        if not cfg.direct:
            unpack(e,19,RN,1)
            normalise(RN,2,24,25,26)
        e(f'{l}:')
    def row_stats():
        unpack(e,24,32,8)
        mu=24; var=25; a_=26; b_=27
        e(f'v_add_f32 v{mu}, v32, v33\nv_add_f32 v{a_}, v34, v35')
        for i in range(4,16,2): e(f'v_add_f32 v{mu}, v{mu}, v{32+i}\nv_add_f32 v{a_}, v{a_}, v{33+i}')
        e(f'v_add_f32 v{mu}, v{mu}, v{a_}')
        allreduce64(e,'v_add_f32',mu,a_)
        e(f'v_mul_f32 v{mu}, 0x3a800000, v{mu}')
        e(f'v_sub_f32 v{a_}, v32, v{mu}\nv_sub_f32 v{b_}, v33, v{mu}\nv_mul_f32 v{var}, v{a_}, v{a_}\nv_mul_f32 v28, v{b_}, v{b_}')
        for i in range(2,16,2):
            e(f'v_sub_f32 v{a_}, v{32+i}, v{mu}\nv_sub_f32 v{b_}, v{33+i}, v{mu}\nv_fmac_f32 v{var}, v{a_}, v{a_}\nv_fmac_f32 v28, v{b_}, v{b_}')
        e(f'v_add_f32 v{var}, v{var}, v28')
        allreduce64(e,'v_add_f32',var,a_)
        e(f'v_mul_f32 v{var}, 0x3a800000, v{var}')
        finish_stats(mu,var)
    def red_sa0():
        l=if_red()
        e(f'''v_and_b32 v28, 15, v{vL}
        v_lshlrev_b32 v28, 4, v28
        s_mov_b32 s40, {WS_SA}
        buffer_load_dwordx4 v[24:27], v28, s[{SWS}:{SWS+3}], s40 offen sc1
        {l}:''')
    def red_sa():
        l=if_red()
        if cfg.sa0:
            e(f'''s_waitcnt vmcnt(0)
            v_max3_u32 v24, v24, v25, v26
            v_max_u32 v24, v24, v27
            v_cmp_eq_u32 vcc, -1, v24
            s_cbranch_vccz {l}''')
        e(f'v_and_b32 v{vA}, 15, v{vL}\nv_lshlrev_b32 v{vA}, 4, v{vA}\ns_mov_b32 s40, {WS_SA}')
        gather(e,cfg,[(24,4,vA,'s40',0)],vT,cfg.sleep_head)
        e(f'{l}:')
    def red_h():
        l=if_red()
        red_addr(WS_MU,MUS,'s52')
        e('s_add_u32 s53, s52, 4096')
        gather(e,cfg,[(24,4,vA,'s52',0),(28,4,vA,'s53',0)],vT,cfg.sleep_head)
        rowsum(24); rowsum(28)
        rnd_vec(e,24,2,26); rnd_vec(e,28,2,26)
        modulate(RN,2,28,24,24,26)
        e(f'''
        v_min_u32 v24, -2, v24
        s_lshl_b32 s40, s98, 7
        s_add_u32 s40, s40, {WS_H}
        s_mov_b32 s42, 0xffff
        s_mov_b32 s43, 0xffff
        s_mov_b64 exec, s[42:43]
        buffer_store_dword v24, v{vRo}, s[{SWS}:{SWS+3}], s40 offen sc1
        s_mov_b64 exec, -1
        {l}:
        ''')
    def red_ts():
        l=if_red()
        red_addr(WS_MN+4096,MNS,'s52')
        e('s_add_u32 s53, s52, 4096')
        gather(e,cfg,[(24,4,vA,'s52',0),(28,4,vA,'s53',0)],vT,cfg.sleep_head)
        rowsum(24); rowsum(28)
        rnd_vec(e,28,2,26)
        e(f'''
        v_add_f32 v28, 1.0, v28
        v_add_f32 v29, 1.0, v29
        v_cvt_pk_bf16_f32 v24, v28, v24
        v_cvt_pk_bf16_f32 v25, v29, v25
        v_min_u32 v24, -2, v24
        v_min_u32 v25, -2, v25
        v_lshlrev_b32 v{vA}, 1, v{vRo}
        s_lshl_b32 s40, s98, 8
        s_add_u32 s40, s40, {WS_TS}
        s_mov_b32 s42, 0xffff
        s_mov_b32 s43, 0xffff
        s_mov_b64 exec, s[42:43]
        buffer_store_dwordx2 v[24:25], v{vA}, s[{SWS}:{SWS+3}], s40 offen sc1
        s_mov_b64 exec, -1
        {l}:
        ''')
    def red_g():
        l=if_red()
        red_addr(WS_MN,MNS,'s52')
        if cfg.glate:
            gather(e,cfg,[(24,4,vA,'s52',0)],vT,cfg.sleep_head)
            rowsum(24)
            e(f'v_mov_b32 v{RX+2}, v24\nv_mov_b32 v{RX+3}, v25')
            rnd_vec(e,RX+2,2,26)
        else:
            e(f'v_mov_b32 v{vA+1}, v{vA}')
            red_addr(WS_MG,MGS,'s53')
            e(f's_add_u32 s54, s53, {16*MGS}')
            gather(e,cfg,[(24,4,vA+1,'s52',0),(28,4,vA,'s53',0),(32,4,vA,'s54',0)],vT,cfg.sleep_head)
            e('v_pk_add_f32 v[28:29], v[28:29], v[32:33]\nv_pk_add_f32 v[30:31], v[30:31], v[34:35]')
            rowsum(24); rowsum(28)
            e(f'v_mov_b32 v{RX+2}, v24\nv_mov_b32 v{RX+3}, v25\nv_mov_b32 v{RX+4}, v28\nv_mov_b32 v{RX+5}, v29')
            rnd_vec(e,RX+2,4,26)
        if cfg.warm: e(f'global_load_dword v24, v{vRo}, s[{P_OUT}:{P_OUT+1}]\ns_waitcnt vmcnt(0)')
        e(f'{l}:')
    def wpick(a=0,b=5):
        for g,d in sorted([t for t in [('WO',WO),('X0',X0),('X1',X1),('X2',X2),('X3',WJ)] if (t[0],0) in UNITS and upos(t[0],0)<upos('K',15)], key=lambda t: upos(t[0],0))[a:b]:
            if g=='X2':
                la=e.label('Lpl'); lb=e.label('Lpld')
                e(f's_cmp_ge_u32 s99, 224\ns_cbranch_scc1 {la}')
                pickup_cols(g,d)
                e(f's_branch {lb}\n{la}:')
                lds_signal(e,F_CONS+4*GROUPS.index(g),vFl,vOne)
                e(f'{lb}:')
            elif g=='WO': pickup_cols(g,d)
            elif g=='X3':
                la=e.label('Lpl'); lb=e.label('Lpld')
                e(f's_cmp_eq_u32 s0, 0\ns_cbranch_scc1 {la}')
                pickup(g,[d])
                e(f's_branch {lb}\n{la}:')
                lds_signal(e,F_CONS+4*GROUPS.index(g),vFl,vOne)
                e(f'{lb}:')
            else: pickup_x(g,d)
    def njobs():
        gbar1(); auxbar()
        if cfg.nlate: job_sum(224)
        else: job_pub(WS_MN,MNS,-16)
        ln=e.label('Lnoj2')
        e(f's_cmp_lt_u32 s99, 224\ns_cbranch_scc1 {ln}')
        auxbar(); mm([16,20],[X0,X1],JACC); auxbar()
        if cfg.nlate: job_sum(228)
        else: job_pub(WS_MN,MNS,-16,scg='s101')
        e(f'{ln}:')
    def gjob():
        lg=e.label('Lnog')
        e(f's_cmp_eq_u32 s0, 0\ns_cbranch_scc1 {lg}')
        mm([56],[WJ],JACC)
        if not cfg.glate:
            auxbar(); gpub(); auxbar()
        e(f'{lg}:')
    def gpub():
        e('s_and_b32 s42, s101, 7\ns_lshr_b32 s43, s101, 3')
        job_pub(WS_MG,MGS,0,'s42','s43')
    e('''
    s_cmp_eq_u32 s33, 1
    s_cbranch_scc1 L_roleQ
    ''')
    e.c('---- roles U (sa, ca) and N (ga, sb, cb): silu(c) x w_mod tile')
    red_stats(); silu_A(); go1a(); pickup('J',[WJ,WJ+32])
    mm([16,20],[WJ,WJ+32],JACC); go1(); auxbar(); arrive()
    e('s_cmp_eq_u32 s33, 2\ns_cbranch_scc1 L_roleN')
    job_pub(WS_MU,MUS,0)
    stamp(e,cfg,1)
    wpick(); gbar1(); auxbar()
    stamp(e,cfg,2)
    e('s_branch L_common')
    e('L_roleN:')
    stamp(e,cfg,1)
    wpick(0,cfg.hafter); stamp(e,cfg,12); (lds_spin(e,cfg,F_P3,4,vFl,vT) if cfg.mgate else None); stamp(e,cfg,14); (None if cfg.direct else red_h()); stamp(e,cfg,15); wpick(cfg.hafter,5); njobs()
    stamp(e,cfg,2)
    e('s_branch L_common')
    e('L_roleQ:')
    e.c('---- role Q: h = LN(x)(1+ca)+sa, q = h x wq tile')
    if cfg.direct:
        row_stats()
        e(f'''
        s_lshl_b32 s40, s3, 3
        s_add_u32 s40, s40, {L_ST}
        v_mov_b32 v{vA}, s40
        ds_write_b64 v{vA}, v[24:25]
        ''')
    go1a(); pickup('J',[WJ,WJ+32]); go1(); auxbar(); arrive()
    if cfg.direct:
        e(f'''
        v_bfe_u32 v{vA}, v{vL}, 2, 2
        v_lshlrev_b32 v{vA}, 3, v{vA}
        v_add_u32 v{vA}, {L_ST}, v{vA}
        ds_read_b64 v[24:25], v{vA}
        ''')
        unpack(e,16,56,2)
        e('s_waitcnt lgkmcnt(0)')
        normalise(56,4,24,25,26)
    wpick(0,cfg.qafter)
    gbar1(); auxbar()
    stamp(e,cfg,1)
    if cfg.hgate: lds_spin(e,cfg,F_P2,4,vFl,vT)
    if cfg.direct:
        aoff(vA, MUS, 16, 64)
        e(f'''
        s_lshl_b32 s40, s36, 10
        s_lshl_b32 s41, s3, 8
        s_add_u32 s40, s40, s41
        s_add_u32 s52, s40, {WS_MU}
        ''')
        for i in range(1,8): e(f's_add_u32 s{52+i}, s52, {(i&3)*4*MUS+(i>>2)*4096}')
        gather(e,cfg,[(16+4*i,4,vA,f's{52+i}',0) for i in range(8)],vT,cfg.sleep_head)
        stamp(e,cfg,14)
        if cfg.stamps: e('s_mov_b32 s94, s41\ns_mov_b32 s95, 0')
        for m in range(2):
            for h in range(2):
                r=16+16*m+2*h
                e(f'''v_pk_add_f32 v[{r}:{r+1}], v[{r}:{r+1}], v[{r+4}:{r+5}]
                v_pk_add_f32 v[{r+8}:{r+9}], v[{r+8}:{r+9}], v[{r+12}:{r+13}]
                v_pk_add_f32 v[{48+4*m+2*h}:{49+4*m+2*h}], v[{r}:{r+1}], v[{r+8}:{r+9}]''')
        rnd_vec(e,48,8,vA)
        modulate(56,4,52,48,24,vA)
        e('v_mov_b32 v16, v24\nv_mov_b32 v20, v25')
    else:
        e(f's_mov_b32 s40, {WS_H}')
        gather(e,cfg,[(16,2,vHq,'s40',0)],vT,cfg.sleep_head)
        stamp(e,cfg,14)
        if cfg.stamps: e('s_mov_b32 s94, s41\ns_mov_b32 s95, 0')
        e('v_mov_b32 v20, v17')
    spread(16); spread(20)
    mm([16,20],[WJ,WJ+32],JACC); auxbar()
    job_pub(WS_Q,QS,0)
    stamp(e,cfg,2)
    wpick(cfg.qafter,5)
    e('L_common:')
    e.c('---- all roles: q for this workgroup, gb half job, (1+cb, sb), split maxima and sums, addresses for the tail')
    if cfg.qgate: lds_spin(e,cfg,F_P,4,vFl,vT)
    gather_q()
    stamp(e,cfg,3)
    auxbar()
    if cfg.post:
        la=e.label('Lpl'); lb=e.label('Lpld')
        e(f'''
        ds_read_b32 v{vT}, v{vFl} offset:{F_M}
        s_waitcnt lgkmcnt(0)
        v_readfirstlane_b32 s15, v{vT}
        s_cmp_ge_u32 s99, 224
        s_cbranch_scc1 {la}
        s_cmp_lg_u32 s15, 0
        s_cbranch_scc1 {la}
        ''')
        pickup_cols('X2',X2)
        e(f's_branch {lb}\n{la}:')
        lds_signal(e,F_CONS+4*GROUPS.index('X2'),vFl,vOne)
        e(f'{lb}:')
    gjob()
    if not cfg.nlate: red_ts()
    e('s_mov_b32 s34, s36')
    if cfg.local: e(f'ds_read_b32 v{vT}, v{vFl} offset:{F_L}\ns_waitcnt lgkmcnt(0)\nv_readfirstlane_b32 s36, v{vT}')
    phase[0]='m'
    if 'h' in cfg.kill: e(f's_mov_b32 s46, {WS_END}')
    if 'm' in cfg.kill: e('s_mov_b32 s46, 0')
    F=192; T1=204; SB=206; AC2=[220+4*i for i in range(8)]
    lds_spin(e,cfg,F_ML,4,vFl,vT)
    lm=e.label('Lnoml')
    e(f'''
    s_cmp_lg_u32 s3, 0
    s_cbranch_scc1 {lm}
    v_and_b32 v{vA}, 7, v{vL}
    v_lshlrev_b32 v{vA+1}, 3, v{vA}
    v_add_u32 v{vA}, {L_ML}, v{vA+1}
    ds_read_b64 v[16:17], v{vA}
    ds_read_b64 v[18:19], v{vA} offset:64
    ds_read_b64 v[20:21], v{vA} offset:128
    ds_read_b64 v[22:23], v{vA} offset:192
    s_lshl_b32 s40, s37, 10
    s_lshl_b32 s41, s38, 6
    s_add_u32 s40, s40, s41
    s_add_u32 s40, s40, {WS_ML}
    s_waitcnt lgkmcnt(0)
    v_max3_f32 v24, v16, v18, v20
    v_max_f32 v24, v24, v22
    v_sub_f32 v16, v16, v24
    v_sub_f32 v18, v18, v24
    v_sub_f32 v20, v20, v24
    v_sub_f32 v22, v22, v24
    v_exp_f32 v16, v16
    v_exp_f32 v18, v18
    v_exp_f32 v20, v20
    v_exp_f32 v22, v22
    v_mul_f32 v25, v16, v17
    v_fmac_f32 v25, v18, v19
    v_fmac_f32 v25, v20, v21
    v_fmac_f32 v25, v22, v23
    v_min_u32 v24, -2, v24
    v_min_u32 v25, -2, v25
    s_mov_b64 exec, 0xff
    ''')
    if cfg.local and cfg.mlloc:
        e(f'''
        s_cmp_lg_u32 s36, 0
        s_cbranch_scc1 {lm}_l
        buffer_store_dwordx2 v[24:25], v{vA+1}, s[{SWS}:{SWS+3}], s40 offen sc1
        s_branch {lm}_d
        {lm}_l:
        buffer_store_dwordx2 v[24:25], v{vA+1}, s[{SWS}:{SWS+3}], s40 offen
        {lm}_d:
        ''')
    elif 'l' not in cfg.kill: e(f'buffer_store_dwordx2 v[24:25], v{vA+1}, s[{SWS}:{SWS+3}], s40 offen sc1')
    e(f'''
    s_mov_b64 exec, -1
    ''')
    if cfg.adapt==2:
        e(f'''
        s_lshl_b32 s40, s37, 10
        s_add_u32 s40, s40, {WS_ML}
        buffer_load_dword v16, v{vRow}, s[{SWS}:{SWS+3}], s40 offen sc1
        s_waitcnt vmcnt(0)
        v_cmp_ne_u32 vcc, -1, v16
        s_bcnt1_i32_b64 s40, vcc
        s_cmp_lt_u32 s40, {4*cfg.rank}
        s_cbranch_scc1 {lm}
        ''')
        lds_signal(e,F_M,vFl,vOne)
    e(f'{lm}:')
    vOc=48; vOs=49; vH1=50; vYs=53; vH3=55; vZs=56; vXs=57; vSt=58; vOc2=59; vGs=51; vXr=52; vXw=60
    if not cfg.nlate: red_g()
    aoff(vH1, OS, 16, 64*OS)
    aoff(vH3, 8, 32, GS)
    aoff(vXs, 4, 16, 2048)
    aoff(vYs, 16, 4, 16*YS)
    aoff(vZs, 16, 4, 16*ZS)
    aoff(vGs, 16, 4, GS)
    aoff(vXr, XSTR, 0, 16)
    aoff(vXw, 4, 16, XSTR)
    aoff(vSt, 128, 8, 512)
    e(f'''
    v_add_u32 v{vXr}, {L_AX}, v{vXr}
    s_lshl_b32 s40, s3, 6
    s_add_u32 s40, s40, {L_AX}
    v_add_u32 v{vXw}, s40, v{vXw}
    s_lshl_b32 s40, s3, 1
    v_lshrrev_b32 v{vA}, 5, v{vL}
    v_add_u32 v{vA+2}, s40, v{vA}
    v_mul_u32_u24 v{vOc}, {OSTR}, v{vA+2}
    v_and_b32 v{vA+1}, 31, v{vL}
    v_lshl_add_u32 v{vOc}, v{vA+1}, 4, v{vOc}
    v_add_u32 v{vOc}, {OOFF}, v{vOc}
    v_add_u32 v{vOc2}, 0x10000, v{vOc}
    v_lshlrev_b32 v{vOs}, 3, v{vL}
    s_lshl_b32 s52, s37, 4
    s_add_u32 s52, s52, s38
    s_mul_i32 s52, s52, {OS}
    s_lshl_b32 s40, s3, 9
    s_add_u32 s52, s52, s40
    s_mul_i32 s53, s3, {16*OS}
    s_and_b32 s40, s14, 7
    s_lshl_b32 s40, s40, 8
    s_add_u32 s53, s53, s40
    s_bfe_u32 s40, s14, 0x20003
    s_lshl_b32 s40, s40, 6
    s_add_u32 s53, s53, s40
    s_add_u32 s54, s53, {4*OS}
    s_add_u32 s55, s53, {8*OS}
    s_add_u32 s56, s53, {12*OS}
    s_lshr_b32 s42, s3, 1
    s_and_b32 s43, s3, 1
    s_lshl_b32 s43, s43, 7
    s_lshr_b32 s40, s14, 5
    s_lshl_b32 s40, s40, 1
    s_add_u32 s40, s40, s42
    s_mul_i32 s57, s40, {YS}
    s_and_b32 s40, s14, 31
    s_lshl_b32 s40, s40, 8
    s_add_u32 s57, s57, s40
    s_add_u32 s57, s57, s43
    s_add_u32 s57, s57, {WS_Y}
    s_and_b32 s40, s1, 7
    s_lshl_b32 s40, s40, 1
    s_add_u32 s40, s40, s42
    s_mul_i32 s59, s40, {ZS}
    s_add_u32 s59, s59, s43
    s_lshr_b32 s43, s1, 3
    s_lshl_b32 s42, s43, 8
    s_add_u32 s59, s59, s42
    s_add_u32 s59, s59, {WS_Z}
    s_and_b32 s40, s63, 7
    s_lshl_b32 s58, s40, 8
    s_lshl_b32 s42, s3, 6
    s_add_u32 s58, s58, s42
    s_add_u32 s58, s58, {WS_X1}
    s_mov_b32 s49, {WS_ST}
    s_mul_i32 s60, s40, {4*GS}
    s_lshr_b32 s41, s63, 3
    s_lshl_b32 s41, s41, 9
    s_add_u32 s60, s60, s41
    s_lshl_b32 s40, s3, 7
    s_add_u32 s60, s60, s40
    s_add_u32 s60, s60, {WS_GU}
    s_lshl_b32 s43, s43, 9
    s_add_u32 s48, s43, s40
    s_add_u32 s48, s48, {WS_GU}
    s_mov_b32 s61, 0x3f80
    s_mov_b32 s62, 0x3f800000
    s_mov_b32 s96, 0x000f000f
    s_mov_b32 s97, 0x000f000f
    ''')
    if cfg.defer or cfg.post: e(f'''
    s_mov_b32 s10, {1024*3584*2}
    s_mov_b32 s11, 0x20000
    v_lshrrev_b32 v{vA}, 4, v{vL}
    v_and_b32 v{vA+1}, 15, v{vL}
    v_lshlrev_b32 v{vA+2}, 1, v{vA}
    v_xor_b32 v{vA+2}, v{vA+2}, v{vA+1}
    v_lshlrev_b32 v{vA+2}, 4, v{vA+2}
    v_lshl_add_u32 v208, v{vA}, 11, v{vA+2}
    v_xor_b32 v209, 128, v208
    v_mul_u32_u24 v210, 7168, v{vA}
    v_add_u32 v210, v210, v{vA+2}
    s_lshr_b32 s40, s1, 3
    s_lshl_b32 s13, s40, 18
    s_lshl_b32 s40, s3, 16
    s_add_u32 s13, s13, s40
    s_and_b32 s40, s1, 7
    s_lshl_b32 s40, s40, 8
    s_add_u32 s13, s13, s40
    s_and_b32 s40, s63, 7
    s_lshl_b32 s40, s40, 2
    s_add_u32 s40, s40, s3
    s_mul_i32 s12, s40, {32*7168}
    s_lshr_b32 s40, s63, 3
    s_lshl_b32 s40, s40, 8
    s_add_u32 s12, s12, s40
    ''')
    lf=e.label('Lnof')
    lds_spin(e,cfg,F_V,1,vFl,vT)
    if cfg.repf:
        lp=e.label('Lnopf')
        e(f'''
        s_cmp_lg_u32 s3, 2
        s_cbranch_scc1 {lp}
        s_getpc_b64 s[42:43]
        v_lshlrev_b32 v{vA}, 7, v{vL}
        global_load_dword v211, v{vA}, s[42:43]
        {lp}:
        ''')
    def ml_look(once):
        e(f's_lshl_b32 s40, s37, 10\ns_add_u32 s40, s40, {WS_ML}')
        if 'l' in cfg.kill: e('v_mov_b32 v16, 0x41200000\nv_mov_b32 v17, 1.0\nv_mov_b32 v18, 0x41200000\nv_mov_b32 v19, 1.0')
        elif once:
            e(f'''
            buffer_load_dwordx4 v[16:19], v{vRow}, s[{SWS}:{SWS+3}], s40 offen sc1
            s_waitcnt vmcnt(0)
            v_max3_u32 v20, v16, v17, v18
            v_max_u32 v20, v20, v19
            v_cmp_eq_u32 vcc, -1, v20
            s_cbranch_vccnz {once}
            ''')
        else: gather(e,cfg,[(16,4,vRow,'s40',0)],vT,cfg.sleep_ml if not cfg.mlonce else 4)
        e('v_mov_b32 v20, v16\nv_mov_b32 v22, v18')
        allred_s('v_max_f32',[20,22],24)
        e('''
        v_sub_f32 v16, v16, v20
        v_sub_f32 v18, v18, v22
        v_exp_f32 v16, v16
        v_exp_f32 v18, v18
        v_mul_f32 v21, v16, v17
        v_mul_f32 v23, v18, v19
        ''')
        allred_s('v_add_f32',[21,23],24)
        e(f'''
        v_rcp_f32 v21, v21
        v_rcp_f32 v23, v23
        v_add_u32 v24, {L_ST}, v{vRow}
        s_mov_b64 exec, 15
        ds_write_b128 v24, v[20:23]
        s_waitcnt lgkmcnt(0)
        s_mov_b64 exec, -1
        ''')
        lds_signal(e,F_F,vFl,vOne)
    def factors():
        lds_spin(e,cfg,F_F,1,vFl,vT)
        e(f'ds_read_b64 v[20:21], v{vA+1}\ns_waitcnt lgkmcnt(0)')
        for k in range(4): e(f'v_sub_f32 v{F+k}, v{F+k}, v20')
        for k in range(4): e(f'v_exp_f32 v{F+k}, v{F+k}')
        for k in range(4): e(f'v_mul_f32 v{F+k}, v{F+k}, v21')
    def ts_addr(vd):
        aoff(vd, 8, 32, 4096)
        e(f'''
        s_and_b32 s51, s63, 7
        s_lshl_b32 s51, s51, 9
        s_lshl_b32 s42, s3, 7
        s_add_u32 s51, s51, s42
        s_add_u32 s51, s51, {WS_TS}
        ''')
    def ts_unpack(r):
        e(f'''
        v_lshlrev_b32 v{T1}, 16, v{r}
        v_lshlrev_b32 v{T1+1}, 16, v{r+1}
        v_and_b32 v{SB}, 0xffff0000, v{r}
        v_and_b32 v{SB+1}, 0xffff0000, v{r+1}
        ''')
    e(f's_cmp_lg_u32 s3, 0\ns_cbranch_scc1 {lf}')
    if cfg.mlonce and cfg.vsig2:
        ml_look(lf+'_y')
        e(f's_branch {lf}_x\n{lf}_y:')
        lds_spin(e,cfg,F_V2,1,vFl,vT)
    ml_look(lf+'_x' if cfg.mlonce else None)
    if cfg.mlonce:
        e(f'{lf}_x:')
        lds_signal(e,F_A,vFl,vOne)
    e(f'{lf}:')
    if cfg.tslate: ts_addr(212)
    else:
        lsb=e.label('Lnosb')
        e(f's_cmp_ge_u32 s99, 224\ns_cbranch_scc1 {lsb}')
        ts_addr(vA)
        gather(e,cfg,[(16,2,vA,'s51',0)],vT,cfg.sleep_ml)
        ts_unpack(16)
        e(f'{lsb}:')
    e(f'''
    s_lshl_b32 s40, s3, 4
    v_lshrrev_b32 v{vA+1}, 5, v{vL}
    v_lshl_add_u32 v{vA}, v{vA+1}, 3, s40
    v_add_u32 v{vA+1}, {L_ST}, v{vA}
    v_add_u32 v{vA}, {L_ML}, v{vA}
    ds_read_b32 v{F}, v{vA}
    ds_read_b32 v{F+1}, v{vA} offset:64
    ds_read_b32 v{F+2}, v{vA} offset:128
    ds_read_b32 v{F+3}, v{vA} offset:192
    ''')
    if cfg.mlonce:
        lds_spin(e,cfg,F_A,1,vFl,vT)
        lnf=e.label('Lnf')
        e(f'''
        ds_read_b32 v{vT}, v{vFl} offset:{F_F}
        s_waitcnt lgkmcnt(0)
        v_readfirstlane_b32 s33, v{vT}
        s_cmp_eq_u32 s33, 0
        s_cbranch_scc1 {lnf}
        ''')
        factors()
        e(f'{lnf}:')
    else: factors()
    stamp(e,cfg,4)
    e.c('---- tail: combine the four waves of this workgroup')
    if cfg.help:
        lcp=e.label('Lnocp')
        e(f's_cmp_lg_u32 s3, 1\ns_cbranch_scc1 {lcp}')
        lds_spin(e,cfg,F_C,4,vFl,vT)
        e(f'''
        s_lshl_b32 s40, s37, 7
        s_lshl_b32 s41, s38, 2
        s_add_u32 s40, s40, s41
        s_add_u32 s40, s40, {WS_CP}
        v_mov_b32 v{vA}, 0
        s_mov_b64 exec, 1
        buffer_store_dword v{vOne}, v{vA}, s[{SWS}:{SWS+3}], s40 offen sc1
        s_mov_b64 exec, -1
        {lcp}:
        ''')
    e(f's_setprio {cfg.prio2}')
    if cfg.obar: e('s_barrier')
    else: lds_spin(e,cfg,F_O,4,vFl,vT,sleep=0)
    stamp(e,cfg,5)
    if cfg.mlonce:
        lml=e.label('Lml')
        e(f's_cmp_eq_u32 s33, 0\ns_cbranch_scc1 {lml}_s\n{lml}:')
        def ml_late():
            e(f'{lml}_s:\ns_cmp_lg_u32 s3, 0\ns_cbranch_scc1 {lml}_f')
            ml_look(None)
            e(f'{lml}_f:')
            factors()
            e(f's_branch {lml}')
        OOL0=[ml_late]
    else: OOL0=[]
    phase[0]='t'
    if 't' in cfg.kill: e('s_branch L_fin')
    e(f'''
    ds_read_b128 v[16:19], v{vOc}
    ds_read_b128 v[20:23], v{vOc} offset:{RING}
    ds_read_b128 v[24:27], v{vOc2}
    ds_read_b128 v[28:31], v{vOc2} offset:{RING}
    s_waitcnt lgkmcnt(3)
    ''')
    for r in range(4): e(f'v_mul_f32 v{16+r}, v{16+r}, v{F}')
    for k in range(1,4):
        e(f's_waitcnt lgkmcnt({3-k})')
        for r in range(4): e(f'v_fmac_f32 v{16+r}, v{16+4*k+r}, v{F+k}')
    e(f'''
    v_cvt_pk_bf16_f32 v16, v16, v17
    v_cvt_pk_bf16_f32 v17, v18, v19
    v_min_u32 v16, -2, v16
    v_min_u32 v17, -2, v17
    buffer_store_dwordx2 v[16:17], v{vOs}, s[{SWS}:{SWS+3}], s52 offen sc1
    ''')
    def look(i, acki=None):
        if acki is not None and cfg.ack[acki]=='1': e('s_waitcnt vmcnt(0)')
        d=int(cfg.dly.split(',')[i])
        if d: e(f's_sleep {d}')
    def tstamp(i):
        if cfg.tstamps: stamp(e,cfg,i)
    if cfg.glate and not cfg.gwin:
        lgp=e.label('Lnogp')
        e(f's_cmp_eq_u32 s0, 0\ns_cbranch_scc1 {lgp}')
        gpub()
        e(f'{lgp}:')
    if cfg.nlate:
        lnp=e.label('Lnonp')
        e(f's_cmp_lt_u32 s99, 192\ns_cbranch_scc1 {lnp}')
        job_store(224,WS_MN,MNS,-16,'s34','s39')
        e(f's_cmp_lt_u32 s99, 224\ns_cbranch_scc1 {lnp}')
        job_store(228,WS_MN,MNS,-16,'s34','s101')
        e(f'{lnp}:')
    look(0,0)
    def fast(loads, compute, check, inc=False):
        d=e.label('Lfd')
        for dst,n,voff,soff,imm in loads:
            op={1:'dword',2:'dwordx2',4:'dwordx4'}[n]
            e(f'buffer_load_{op} {v(dst,n)}, v{voff}, s[{SWS}:{SWS+3}], {soff} offen offset:{imm} sc1')
        if cfg.cnt and inc: compute(len(loads))
        else:
            e('s_waitcnt vmcnt(0)'); compute()
        check()
        n=fast.n
        def slow():
            gather(e,cfg,loads,vT,cfg.sleep_tail)
            if cfg.fine: e(f's_min_u32 s41, s41, 255\ns_lshl_b32 s41, s41, {8*n}\ns_or_b32 s100, s100, s41')
            compute()
        if cfg.ool:
            e(f's_cbranch_vccnz {d}_s\n{d}:')
            def later():
                e(f'{d}_s:'); slow(); e(f's_branch {d}')
            OOL.append(later)
        else:
            e(f's_cbranch_vccz {d}')
            slow()
            e(f'{d}:')
        fast.n+=1
    fast.n=0; OOL=OOL0
    if cfg.fine: e('s_mov_b32 s100, 0')
    def store2(accs, voff, soff):
        for j,ac in enumerate(accs):
            e(f'v_min_u32 v{ac}, -2, v{ac}\nbuffer_store_dword v{ac}, v{voff}, s[{SWS}:{SWS+3}], {soff} offen offset:{64*j} sc1')
    DEF=[(k,{'0':P_W1,'1':P_W3,'2':P_W2}[k]) for k in ('2' if cfg.post else cfg.defer)]
    DOFF=[o for o in (0,8192,16384,24576) if not (o < OOFF+4224 and OOFF < o+8192)]
    def defer_loads():
        if '0' in cfg.defer or '1' in cfg.defer: e('v_mov_b32 v14, v210\nv_xor_b32 v15, 128, v210')
        for n,(k,p) in enumerate(DEF):
            rs = 2048 if k=='2' else 7168
            e(f's_mov_b32 s8, s{p}\ns_mov_b32 s9, s{p+1}')
            for I in range(8):
                if I%4==0: e(f's_add_u32 m0, s32, {DOFF[n]+(I>>2)*4096}')
                e(f's_add_u32 s40, s{13 if k=="2" else 12}, {(8*(I&3)+4*(I>>2))*rs-1024*(I&3)}')
                e(f'buffer_load_dwordx4 v{(208 if k=="2" else 14)+(I&1)}, s[8:11], s40 offen offset:{(I&3)*1024} {cfg.pol} lds')
    e.c('---- H1 + output projection')
    def osum():
        for i in range(4):
            e(f'v_lshlrev_b32 v{32+2*i}, 16, v{16+i}\nv_and_b32 v{33+2*i}, 0xffff0000, v{16+i}')
        for j in range(1,4):
            if cfg.h1nan: e(f's_waitcnt vmcnt({3-j})')
            for i in range(4):
                e(f'v_dot2_f32_bf16 v{32+2*i}, v{16+4*j+i}, s61, v{32+2*i}\nv_dot2_f32_bf16 v{33+2*i}, v{16+4*j+i}, s62, v{33+2*i}')
    if cfg.h1pipe and 't' not in cfg.kill:
        l=e.label('Lh1'); d=e.label('Lh1d')
        def look4():
            for j in range(4): e(f'buffer_load_dwordx4 v[{16+4*j}:{19+4*j}], v{vH1}, s[{SWS}:{SWS+3}], s{53+j} offen sc1')
        e('s_mov_b32 s41, 0')
        for k in range(cfg.h1pipe-1):
            look4()
            if k<cfg.h1pipe-2 or True: e(f's_sleep {cfg.h1gap}')
        e(f'{l}:')
        look4()
        e(f's_add_u32 s41, s41, 1\ns_waitcnt vmcnt({4*(cfg.h1pipe-1)})\nv_max3_u32 v{vT}, v16, v17, v18')
        for i in range(19,31,2): e(f'v_max3_u32 v{vT}, v{vT}, v{i}, v{i+1}')
        e(f'''
        v_max_u32 v{vT}, v{vT}, v31
        v_cmp_eq_u32 vcc, -1, v{vT}
        s_cbranch_vccz {d}
        s_mov_b64 exec, vcc
        s_cmp_lt_u32 s41, {cfg.gpoll*4}
        s_cbranch_scc1 {l}
        {d}:
        s_mov_b64 exec, -1
        ''')
        tstamp(6)
        h=cfg.h1nan; cfg.h1nan=False; osum(); cfg.h1nan=h
    elif not cfg.h1nan or 't' in cfg.kill:
        gather(e,cfg,[(16,4,vH1,'s53',0),(20,4,vH1,'s54',0),(24,4,vH1,'s55',0),(28,4,vH1,'s56',0)],vT,cfg.sleep_tail,backoff=(cfg.bo_n,cfg.bo_s) if cfg.bo_s else None)
        tstamp(6)
        osum()
    else:
        l=e.label('Lh1'); d=e.label('Lh1d')
        if not cfg.post: e('s_cmp_ge_u32 s99, 224\ns_cselect_b32 s15, 1, 0')
        e(f's_mov_b32 s41, 0\n{l}:')
        for j in range(4): e(f'buffer_load_dwordx4 v[{16+4*j}:{19+4*j}], v{vH1}, s[{SWS}:{SWS+3}], s{53+j} offen sc1')
        e('s_add_u32 s41, s41, 1\ns_waitcnt vmcnt(3)')
        osum()
        e(f'''
        v_add_f32 v40, v32, v34
        v_add_f32 v41, v36, v38
        v_cmp_u_f32 vcc, v40, v41
        s_cbranch_vccz {d}
        v_max3_u32 v{vT}, v16, v17, v18
        ''')
        for i in range(19,31,2): e(f'v_max3_u32 v{vT}, v{vT}, v{i}, v{i+1}')
        e(f'''
        v_max_u32 v{vT}, v{vT}, v31
        v_cmp_eq_u32 vcc, -1, v{vT}
        s_cbranch_vccz {d}
        ''')
        if DEF and cfg.early:
            le=e.label('Lne')
            e(f'''
            s_cmp_lg_u32 s15, 0
            s_cbranch_scc1 {le}
            s_bcnt1_i32_b64 s40, vcc
            s_cmp_lt_u32 s40, {cfg.early}
            s_cbranch_scc1 {le}
            s_mov_b32 s15, 1
            s_mov_b64 exec, -1
            ''')
            defer_loads()
            e(f'{le}:')
        e(f'''
        s_mov_b64 exec, vcc
        s_sleep {cfg.sleep_tail}
        s_cmp_lt_u32 s41, {cfg.gpoll}
        s_cbranch_scc1 {l}
        {d}:
        s_mov_b64 exec, -1
        ''')
        tstamp(6)
    dppsum(32,8)
    for i in range(4): e(f'v_cvt_pk_bf16_f32 v{40+i}, v{32+2*i}, v{33+2*i}')
    e(f's_mov_b64 exec, s[96:97]\nds_write_b128 v{vXw}, v[40:43]\ns_mov_b64 exec, -1')
    if cfg.h1pipe: e('s_waitcnt vmcnt(0)')
    mmx([WO],[32,36],vXr)
    store2([32,36],vYs,'s57')
    tstamp(7)
    e('s_cmp_ge_u32 s99, 224\ns_cbranch_scc1 L_red')
    def red_tail(n, cnt=0):
        lst=list(range(n))
        if cnt:
            for i in range(1,n):
                a_,b_=(16,16+4*i) if (i==1 or i%2==0 or True) else (20,16+4*i)
                e(f's_waitcnt vmcnt({n-1-i})\nv_pk_add_f32 v[{a_}:{a_+1}], v[{a_}:{a_+1}], v[{b_}:{b_+1}]\nv_pk_add_f32 v[{a_+2}:{a_+3}], v[{a_+2}:{a_+3}], v[{b_+2}:{b_+3}]')
            lst=[0]
        elif cfg.cnt:
            for i in range(1,n):
                a_,b_=16,16+4*i
                e(f'v_pk_add_f32 v[{a_}:{a_+1}], v[{a_}:{a_+1}], v[{b_}:{b_+1}]\nv_pk_add_f32 v[{a_+2}:{a_+3}], v[{a_+2}:{a_+3}], v[{b_+2}:{b_+3}]')
            lst=[0]
        while len(lst)>1:
            nx=[]
            for i in range(0,len(lst)-1,2):
                a_,b_=16+4*lst[i],16+4*lst[i+1]
                e(f'v_pk_add_f32 v[{a_}:{a_+1}], v[{a_}:{a_+1}], v[{b_}:{b_+1}]\nv_pk_add_f32 v[{a_+2}:{a_+3}], v[{a_+2}:{a_+3}], v[{b_+2}:{b_+3}]')
                nx.append(lst[i])
            if len(lst)%2: nx.append(lst[-1])
            lst=nx
        e('''
        v_permlane32_swap_b32 v16, v18
        v_permlane32_swap_b32 v17, v19
        v_pk_add_f32 v[16:17], v[16:17], v[18:19]
        v_mov_b32 v18, v16
        v_mov_b32 v19, v17
        v_permlane16_swap_b32 v18, v16
        v_permlane16_swap_b32 v19, v17
        v_pk_add_f32 v[16:17], v[16:17], v[18:19]
        ''')
    def gate_res(G,X,dst):
        rnd_vec(e,16,2,18)
        e(f'v_pk_mul_f32 v[16:17], v[16:17], v[{G}:{G+1}]')
        rnd_vec(e,16,2,18)
        e(f'v_pk_add_f32 v[16:17], v[16:17], v[{X}:{X+1}]\nv_cvt_pk_bf16_f32 v{dst}, v16, v17')
    nan2=lambda a_,b_: (lambda: e(f'v_cmp_u_f32 vcc, v{a_}, v{b_}'))
    if DEF:
        ld=e.label('Ldef')
        if cfg.early: e(f's_cmp_lg_u32 s15, 0\ns_cbranch_scc1 {ld}')
        if cfg.post: e(f's_cmp_eq_u32 s15, 0\ns_cbranch_scc1 {ld}')
        defer_loads()
        e(f'{ld}:')
    if cfg.tslate and not cfg.nlate: e(f'buffer_load_dwordx2 v[214:215], v212, s[{SWS}:{SWS+3}], s51 offen sc1')
    if cfg.glate and cfg.gwin:
        lgp=e.label('Lnogp')
        e(f's_cmp_eq_u32 s0, 0\ns_cbranch_scc1 {lgp}\ns_cmp_ge_u32 s3, 2\ns_cbranch_scc1 {lgp}')
        gpub()
        e(f's_branch {lgp}_d\n{lgp}:\ns_sleep {cfg.gwsub}\n{lgp}_d:')
        e(f's_sleep {int(cfg.dly.split(",")[2])-cfg.gwsub}')
    else: look(2)
    if cfg.tslate and not cfg.nlate:
        lt=e.label('Lts')
        e(f's_waitcnt vmcnt(0)\nv_max_u32 v{vT}, v214, v215\nv_cmp_eq_u32 vcc, -1, v{vT}\ns_cbranch_vccnz {lt}_s\n{lt}:')
        def ts_slow():
            e(f'{lt}_s:'); gather(e,cfg,[(214,2,212,'s51',0)],vT,cfg.sleep_tail); e(f's_branch {lt}')
        OOL.append(ts_slow)
        ts_unpack(214)
    if DEF: e('s_waitcnt vmcnt(0)')
    if any(k!='2' for k,p in DEF):
        e('s_barrier')
        for n,(k,p) in enumerate(DEF):
            if k!='2': pickup_cols('X'+k, X0 if k=='0' else X1, DOFF[n])
    e.c('---- H2b + gate/up')
    def ln2():
        if cfg.nlate: ts_unpack(214)
        unpack(e,16,32,1)
        allred_s('v_add_f32',[20,21],22,rors=(1,2,4,8),swaps=())
        e(f'''
        v_mul_f32 v20, 0x3a800000, v20
        v_mul_f32 v21, 0x3a800000, v21
        v_fma_f32 v21, -v20, v20, v21
        v_cmp_u_f32 s[42:43], v21, v21
        v_max_f32 v21, 0, v21
        ''')
        if cfg.round_ln2:
            finish_stats(20,21)
            normalise(32,2,20,21,22)
            modulate(32,2,T1,SB,16,22,prep=False)
        else:
            e(f'''
            v_add_f32 v21, 0x3727c5ac, v21
            v_rsq_f32 v21, v21
            v_sub_f32 v32, v32, v20
            v_sub_f32 v33, v33, v20
            v_mul_f32 v32, v32, v21
            v_mul_f32 v33, v33, v21
            v_fma_f32 v32, v32, v{T1}, v{SB}
            v_fma_f32 v33, v33, v{T1+1}, v{SB+1}
            v_cvt_pk_bf16_f32 v16, v32, v33
            ''')
        e(f'ds_write_b32 v{vXw}, v16 offset:{4*XSTR}')
    fast([(16,1,vXs,'s58',0),(20,2,vSt,'s49',0)]+([(214,2,212,'s51',0)] if cfg.nlate else []), ln2, lambda: e('v_cmp_u_f32 vcc, v32, v33\ns_or_b64 vcc, vcc, s[42:43]'))
    tstamp(9)
    mmx([X0,X1],[32,36,40,44],vXr,4*XSTR)
    for i in range(1,8): e(f's_add_u32 s{51+i}, s48, {i*4*GS}')
    for j in range(2): e(f'v_cvt_pk_bf16_f32 v{32+4*j}, v{32+4*j}, v{40+4*j}')
    if cfg.local:
        lg=e.label('Lgl'); lgd=e.label('Lgld')
        e(f'''
        v_min_u32 v32, -2, v32
        v_min_u32 v36, -2, v36
        s_cmp_lg_u32 s36, 0
        s_cbranch_scc1 {lg}
        buffer_store_dword v32, v{vGs}, s[{SWS}:{SWS+3}], s60 offen sc1
        buffer_store_dword v36, v{vGs}, s[{SWS}:{SWS+3}], s60 offen offset:64 sc1
        s_branch {lgd}
        {lg}:
        buffer_store_dword v32, v{vGs}, s[{SWS}:{SWS+3}], s60 offen
        buffer_store_dword v36, v{vGs}, s[{SWS}:{SWS+3}], s60 offen offset:64
        {lgd}:
        ''')
    else: store2([32,36],vGs,'s60')
    tstamp(10)
    for n,(k,p) in enumerate(DEF):
        if k=='2':
            lp=e.label('Lnp')
            if cfg.post: e(f's_cmp_eq_u32 s15, 0\ns_cbranch_scc1 {lp}')
            pickup_cols('X2', X2, DOFF[n])
            e(f'{lp}:')
    e.c('---- H3a + down projection')
    look(3,2)
    if cfg.fine: stamp(e,cfg,1)
    def gusum(cnt=0):
        if cnt: e('s_waitcnt vmcnt(7)')
        e('''v_lshlrev_b32 v32, 16, v16
        v_and_b32 v33, 0xffff0000, v16
        v_lshlrev_b32 v34, 16, v17
        v_and_b32 v35, 0xffff0000, v17''')
        for i in range(1,8):
            if cnt: e(f's_waitcnt vmcnt({7-i})')
            e(f'''v_dot2_f32_bf16 v32, v{16+2*i}, s61, v32
            v_dot2_f32_bf16 v33, v{16+2*i}, s62, v33
            v_dot2_f32_bf16 v34, v{17+2*i}, s61, v34
            v_dot2_f32_bf16 v35, v{17+2*i}, s62, v35''')
    fast([(16+2*i,2,vH3,'s48' if i==0 else f's{51+i}',0) for i in range(8)], gusum, nan2(32,34), True)
    tstamp(11)
    rnd_vec(e,32,4,20)
    e(f'''
    v_mul_f32 v20, 0xbfb8aa3b, v32
    v_mul_f32 v21, 0xbfb8aa3b, v34
    v_exp_f32 v20, v20
    v_exp_f32 v21, v21
    v_add_f32 v20, 1.0, v20
    v_add_f32 v21, 1.0, v21
    v_rcp_f32 v20, v20
    v_rcp_f32 v21, v21
    v_mul_f32 v32, v32, v20
    v_mul_f32 v34, v34, v21
    v_cvt_pk_bf16_f32 v20, v32, v34
    v_lshlrev_b32 v32, 16, v20
    v_and_b32 v34, 0xffff0000, v20
    v_mul_f32 v32, v32, v33
    v_mul_f32 v34, v34, v35
    v_cvt_pk_bf16_f32 v16, v32, v34
    ds_write_b32 v{vXw}, v16
    ''')
    mmx([X2],[32,36],vXr)
    store2([32,36],vZs,'s59')
    if cfg.fine: stamp(e,cfg,2)
    e('s_branch L_fin\nL_red:')
    e.c('---- H2a: reducers')
    l2=e.label('Lnoh2a')
    e(f'''
    s_cmp_ge_u32 s3, 2
    s_cbranch_scc1 {'L_ts' if cfg.nlate else 'L_fin'}
    s_mul_i32 s40, s98, {YS}
    s_add_u32 s40, s40, {WS_Y}
    s_add_u32 s51, s40, 4096
    s_lshl_b32 s52, s98, 7
    s_add_u32 s52, s52, {WS_X1}
    s_lshr_b32 s53, s98, 2
    s_lshl_b32 s53, s53, 7
    s_and_b32 s54, s98, 3
    s_lshl_b32 s54, s54, 3
    s_add_u32 s53, s53, s54
    s_add_u32 s53, s53, {WS_ST}
    s_mov_b32 s54, 0xffff
    s_mov_b32 s55, 0xffff
    v_mov_b32 v61, 0
    ''')
    if cfg.nlate:
        red_addr(WS_MN,MNS,'s12')
        gather(e,cfg,[(32,4,vA,'s12',0)],vT,cfg.sleep_tail)
        rowsum(32)
        e(f'v_mov_b32 v{RX+2}, v32\nv_mov_b32 v{RX+3}, v33')
        rnd_vec(e,RX+2,2,26)
        if cfg.dlyr: e(f's_sleep {cfg.dlyr}')
        def ts_waves():
            e('L_ts:')
            e.c('---- waves 2, 3 of the reducing workgroups: (1+cb, sb)')
            e('s_sub_u32 s98, s99, 224\ns_lshl_b32 s98, s98, 1\ns_add_u32 s98, s98, s3\ns_sub_u32 s98, s98, 2')
            red_addr(WS_MN+4096,MNS,'s12')
            e('s_add_u32 s13, s12, 4096')
            gather(e,cfg,[(24,4,vA,'s12',0),(28,4,vA,'s13',0)],vT,cfg.sleep_tail)
            rowsum(24); rowsum(28)
            rnd_vec(e,28,2,26)
            e(f'''
            v_add_f32 v28, 1.0, v28
            v_add_f32 v29, 1.0, v29
            v_cvt_pk_bf16_f32 v24, v28, v24
            v_cvt_pk_bf16_f32 v25, v29, v25
            v_min_u32 v24, -2, v24
            v_min_u32 v25, -2, v25
            v_lshlrev_b32 v{vA}, 1, v{vRo}
            s_lshl_b32 s40, s98, 8
            s_add_u32 s40, s40, {WS_TS}
            s_mov_b32 s54, 0xffff
            s_mov_b32 s55, 0xffff
            s_mov_b64 exec, s[54:55]
            buffer_store_dwordx2 v[24:25], v{vA}, s[{SWS}:{SWS+3}], s40 offen sc1
            s_mov_b64 exec, -1
            s_branch L_fin
            ''')
        OOL.append(ts_waves)
    else: look(1,1)
    if cfg.fine: stamp(e,cfg,14)
    fast([(16+4*i,4,vRow,'s40' if i<4 else 's51',(i&3)*1024) for i in range(8)], lambda c=0: red_tail(8,c), nan2(16,17), True)
    if cfg.fine: stamp(e,cfg,15)
    gate_res(RX+2,RX,16)
    e(f'''
    v_min_u32 v16, -2, v16
    v_lshlrev_b32 v{RX}, 16, v16
    v_and_b32 v{RX+1}, 0xffff0000, v16
    s_mov_b64 exec, s[54:55]
    buffer_store_dword v16, v{vRo}, s[{SWS}:{SWS+3}], s52 offen sc1
    s_mov_b64 exec, -1
    v_add_f32 v18, v{RX}, v{RX+1}
    v_mul_f32 v19, v{RX}, v{RX}
    v_fmac_f32 v19, v{RX+1}, v{RX+1}
    ''')
    allred_s('v_add_f32',[18,19],20,rors=(8,4,2,1),swaps=('v_permlane32_swap_b32',))
    e(f'''
    v_min_u32 v18, -2, v18
    v_min_u32 v19, -2, v19
    s_mov_b64 exec, 1
    buffer_store_dwordx2 v[18:19], v61, s[{SWS}:{SWS+3}], s53 offen sc1
    s_mov_b64 exec, -1
    ''')
    tstamp(8)
    if cfg.glate:
        red_addr(WS_MG,MGS,'s12')
        e(f's_add_u32 s13, s12, {16*MGS}')
        gather(e,cfg,[(28,4,vA,'s12',0),(32,4,vA,'s13',0)],vT,cfg.sleep_tail)
        e('v_pk_add_f32 v[28:29], v[28:29], v[32:33]\nv_pk_add_f32 v[30:31], v[30:31], v[34:35]')
        rowsum(28)
        e(f'v_mov_b32 v{RX+4}, v28\nv_mov_b32 v{RX+5}, v29')
        rnd_vec(e,RX+4,2,26)
    e(f'''
    s_mul_i32 s40, s98, {ZS}
    s_add_u32 s40, s40, {WS_Z}
    s_add_u32 s51, s40, 4096
    s_lshl_b32 s52, s98, 7
    v_add_u32 v{vA}, s52, v{vRo}
    ''')
    e.c('---- H3b: final reducers')
    if cfg.local:
        lz=e.label('Lz');
        e(f's_sleep {cfg.dlyz-(cfg.gsub if cfg.glate else 0)}\ns_cmp_lg_u32 s36, 0\ns_cbranch_scc1 {lz}\ns_sleep {int(cfg.dly.split(",")[4])-cfg.dlyz}\n{lz}:')
    else: look(4)
    if cfg.fine: stamp(e,cfg,3)
    fast([(16+4*i,4,vRow,'s40' if i<4 else 's51',(i&3)*1024) for i in range(7)], lambda c=0: red_tail(7,c), nan2(16,17), True)
    tstamp(12)
    gate_res(RX+4,RX,16)
    e(f'''
    s_mov_b64 exec, s[54:55]
    global_store_dword v{vA}, v16, s[{P_OUT}:{P_OUT+1}]
    s_mov_b64 exec, -1
    L_fin:
    ''')
    stamp(e,cfg,13)
    if cfg.stamps: e('s_add_u32 s3, s3, 4')
    if cfg.fine: e('s_waitcnt lgkmcnt(0)\ns_mov_b32 s72, s100\ns_mov_b32 s73, 0')
    stamps_out(e,cfg,16,vA)
    e('s_endpgm')
    for f in OOL: f()

def gen(cfg):
    set_order(cfg.order, cfg.defer)
    e=A()
    e(f'''
    s_cmp_ge_u32 s2, 256
    s_cbranch_scc1 L_exit
    {'s_memrealtime s[78:79]' if cfg.stamps else ''}
    s_load_dwordx16 s[4:19], s[0:1], 0
    s_getpc_b64 s[48:49]
    L_pc:
    s_sub_u32 s48, s48, L_pc-{KN}
    s_subb_u32 s49, s49, 0
    s_lshl_b32 s40, s2, 4
    s_add_u32 s40, s40, role_table-{KN}
    s_load_dwordx4 s[92:95], s[48:49], s40
    s_load_dwordx8 s[20:27], s[0:1], 64
    s_load_dwordx4 s[28:31], s[0:1], 96
    v_lshrrev_b32 v2, 6, v0
    v_and_b32 v1, 63, v0
    v_readfirstlane_b32 s3, v2
    v_lshlrev_b32 v3, 7, v0
    s_cmp_ge_u32 s3, 5
    s_cbranch_scc1 L_nopf
    global_load_dword v255, v3, s[48:49]
    L_nopf:
    ''')
    e('s_cmp_ge_u32 s3, 4\ns_cbranch_scc1 L_aux')
    stream(e,cfg)
    aux(e,cfg)
    e('L_exit:\ns_endpgm')
    import rolemap
    tab,rho=rolemap.build(odd=cfg.odd,c3=cfg.c3,qx=cfg.qx,lx=cfg.lx,bx=cfg.bx,lunits=44 if '2' in cfg.defer else 42)
    e('.p2align 8\n.type role_table,@object\nrole_table:')
    for t in tab: e('.long '+', '.join(str(x) for x in t))
    e('.size role_table, 4096')
    e.c('never executed: keeps the 40 KiB that the first waves fetch into L2 inside this section')
    e('.p2align 8\n.fill (40960+256-(.-'+KN+'))/4, 4, 0xbf800000')
    doc = """; Fused adaLN + GQA decode attention + SwiGLU block in one launch: 256 workgroups (one per CU) of 8 waves.
;
"""
    hdr = (f'; diagnostic build (generated by gen2.py) {getattr(cfg,"args","")}\n' if cfg.stamps else doc) + f'; @launch grid=(256,1,1) block=(512,1,1) lds={LDS_BYTES}\n.amdgcn_target "amdgcn-amd-amdhsa--gfx950"\n'
    return hdr + khead(KN) + e.text() + kd(KN, 256)

if __name__=='__main__':
    cfg=Cfg()
    out=sys.argv[1]
    cfg.args=' '.join(sys.argv[2:])
    for kv in sys.argv[2:]:
        k,val=kv.split('=')
        cur=getattr(cfg,k)
        setattr(cfg,k, (val not in ('0','False')) if isinstance(cur,bool) else type(cur)(val.replace('+',' ')) if not isinstance(cur,int) else int(val,0))
    open(out,'w').write(gen(cfg))
```
